```python
import torch

def _softmax(x, axis=-1):
    return torch.softmax(x, dim=axis)
def _gelu(x):
    return torch.nn.functional.gelu(x, approximate="tanh")
def _silu(x):
    return torch.nn.functional.silu(x)
def _sigmoid(x):
    return torch.sigmoid(x)
def _layernorm(x, axis=-1, eps=1e-5):
    m = x.mean(dim=axis, keepdim=True)
    v = x.var(dim=axis, keepdim=True, unbiased=False)
    return (x - m) / torch.sqrt(v + eps)
def _scatter_add(tgt, idx, src, axis=0):
    return tgt.clone().index_add_(axis, idx, src)
def _segment_sum(src, seg, n):
    out = torch.zeros((n,) + src.shape[1:], dtype=src.dtype)
    return out.index_add_(0, seg, src)
def _pad(x, pw):
    flat = tuple(v for pair in reversed(pw) for v in pair)
    return torch.nn.functional.pad(x, flat)

kernel_name = 'parallel_sum__compressed_kv_cla__dense_activation_mish__prompt'

def setup_inputs():

    _w = (lambda a: (lambda t: t.to(torch.bfloat16) if t.is_floating_point() else t)(torch.as_tensor(a)))
    def _A_setup():
        B, H, Sq, Sk, D, M = 1, 32, 2048, 2048, 128, 512
        Dc = 4 * D
        return {
            "x": _w((lambda *s: torch.randn(*s, dtype=torch.bfloat16) * 0.05)(B, Sq, M)),
            "c_kv": _w((lambda *s: torch.randn(*s, dtype=torch.bfloat16) * 0.4)(B, Sk, Dc)),
            "w_q": _w((lambda *s: torch.randn(*s, dtype=torch.bfloat16) * 3.2)(M, H, D) * (M ** -0.5)),
            "w_uk": _w((lambda *s: torch.randn(*s, dtype=torch.bfloat16) * 3.2)(Dc, H, D) * (Dc ** -0.5)),
            "w_uv": _w((lambda *s: torch.randn(*s, dtype=torch.bfloat16) * 0.4)(Dc, H, D) * (Dc ** -0.5)),
            "w_o": _w((lambda *s: torch.randn(*s, dtype=torch.bfloat16) * 0.4)(H, D, M) * ((H * D) ** -0.5)),
        }
    _A_in = _A_setup()

    def _B_setup():
        B, S, D, F = 1, 2048, 512, 1376
        return {
            "x": _w((lambda *s: torch.randn(*s, dtype=torch.bfloat16) * 0.05)(B, S, D)),
            "w1": _w((lambda *s: torch.randn(*s, dtype=torch.bfloat16) * 0.8)(D, F) * (D ** -0.5)),
            "b1": _w((lambda *s: torch.randn(*s, dtype=torch.bfloat16) * 0.2)(F)),
            "w2": _w((lambda *s: torch.randn(*s, dtype=torch.bfloat16) * 0.1)(F, D) * (F ** -0.5)),
        }
    _B_in = _B_setup()

    return {
        "A_x": _A_in["x"],
        "A_c_kv": _A_in["c_kv"],
        "A_w_q": _A_in["w_q"],
        "A_w_uk": _A_in["w_uk"],
        "A_w_uv": _A_in["w_uv"],
        "A_w_o": _A_in["w_o"],
        "B_x": _B_in["x"],
        "B_w1": _B_in["w1"],
        "B_b1": _B_in["b1"],
        "B_w2": _B_in["w2"],
    }

def reference(A_x, A_c_kv, A_w_q, A_w_uk, A_w_uv, A_w_o, B_x, B_w1, B_b1, B_w2):
    def _A_ref(x, c_kv, w_q, w_uk, w_uv, w_o):
        B, Sq, M = x.shape[0], x.shape[1], x.shape[2]
        Sk = c_kv.shape[1]
        H, D = w_q.shape[1], w_q.shape[2]
        q = torch.einsum("bqm,mhd->bhqd", x, w_q)
        k = torch.einsum("bkc,chd->bhkd", c_kv, w_uk)
        v = torch.einsum("bkc,chd->bhkd", c_kv, w_uv)
        scores = torch.einsum("bhqd,bhkd->bhqk", q, k) * (D ** -0.5)
        off = Sk - Sq
        qi = torch.arange(Sq)[:, None]
        kj = torch.arange(Sk)[None, :]
        cmask = kj <= (qi + off)
        scores = torch.where(cmask[None, None], scores, -1e9)
        p = _softmax(scores, axis=-1)
        ctx = torch.einsum("bhqk,bhkd->bhqd", p, v)
        return torch.einsum("bhqd,hdm->bqm", ctx, w_o)

    def _B_ref(x, w1, b1, w2):
        h = torch.einsum("bsd,df->bsf", x, w1) + b1
        sp = torch.log1p(torch.exp(-torch.abs(h))) + torch.where(h > 0, h, torch.zeros_like(h))
        act = h * torch.tanh(sp)
        return torch.einsum("bsf,fd->bsd", act, w2)

    x = A_x
    xn = _layernorm(x, axis=-1)
    return x + _A_ref(xn, A_c_kv, A_w_q, A_w_uk, A_w_uv, A_w_o) + _B_ref(xn, B_w1, B_b1, B_w2)
```

```python
import re

def _expand(tok):
    tok = tok.strip()
    neg = tok.startswith('-')
    if neg: tok = tok[1:]
    m = re.fullmatch(r'abs\((.*)\)', tok) or re.fullmatch(r'\|(.*)\|', tok)
    if m: tok = m.group(1)
    m = re.fullmatch(r'([vas])\[(\d+):(\d+)\]', tok)
    if m:
        return [f"{m.group(1)}{i}" for i in range(int(m.group(2)), int(m.group(3))+1)]
    m = re.fullmatch(r'([vas])(\d+)', tok)
    if m: return [tok]
    if tok in ('vcc',): return ['vcc']
    if tok in ('vcc_lo','vcc_hi'): return ['vcc']
    if tok in ('exec','exec_lo','exec_hi'): return ['exec']
    if tok == 'm0': return ['m0']
    if tok == 'scc': return ['scc']
    return []

TRANS = ('v_exp_f32','v_log_f32','v_rcp_f32','v_rsq_f32','v_sqrt_f32','v_sin_f32','v_cos_f32')

class I:
    __slots__ = ('text','kind','rd','wr','op','srcc','nop','tag','cost','dpp','wide_store')
    def __init__(s, text, tag=None):
        s.text = text; s.tag = tag
        s.rd = []; s.wr = []; s.srcc = []; s.nop = 1; s.dpp = False; s.wide_store = False
        t = text.split('\n')[0].split(';')[0].strip()
        if t.endswith(':') or t.startswith('.') or not t:
            s.kind = 'label'; s.op = t; s.nop = 0; s.cost = 0; return
        parts = t.split(None, 1)
        op = parts[0]; s.op = op
        rest = parts[1] if len(parts) > 1 else ''
        ops = []
        if rest:
            depth = 0; cur = ''
            for ch in rest:
                if ch == '[': depth += 1
                if ch == ']': depth -= 1
                if ch == ',' and depth == 0:
                    ops.append(cur.strip()); cur = ''
                else: cur += ch
            ops.append(cur.strip())
        mods = ''
        if ops:
            lp = ops[-1].split(None, 1)
            if len(lp) > 1:
                ops[-1] = lp[0]; mods = lp[1]
        E = [_expand(o) for o in ops]
        flat = lambda L: [x for l in L for x in l]
        s.cost = 4
        if op.startswith('v_mfma'):
            s.kind = 'mfma'; s.wr = E[0]; s.rd = flat(E[1:3]); s.srcc = E[3]; s.cost = 8
        elif op.startswith('v_cmp'):
            s.kind = 'valu'; s.wr = E[0]; s.rd = flat(E[1:])
        elif op.startswith('v_permlane') and 'swap' in op:
            s.kind = 'valu'; s.wr = flat(E); s.rd = flat(E)
        elif op.startswith('v_'):
            s.kind = 'trans' if op.replace('_e32','').replace('_e64','') in TRANS else 'valu'
            if s.kind == 'trans': s.cost = 8
            s.wr = list(E[0]); s.rd = flat(E[1:])
            if op.startswith(('v_fmac','v_dot2c','v_pk_fmac')): s.rd += E[0]
            if op.startswith(('v_add_co','v_sub_co','v_addc_co')): s.wr += E[1]; s.rd = flat(E[2:])
            if 'quad_perm' in mods or 'row_' in mods or 'dpp' in op: s.dpp = True
        elif op.startswith('ds_read') or op.startswith('ds_bpermute') or op.startswith('ds_swizzle'):
            s.kind = 'ds'; s.wr = E[0]; s.rd = flat(E[1:])
        elif op.startswith('ds_write'):
            s.kind = 'ds'; s.rd = flat(E)
        elif op.startswith(('buffer_load','global_load')):
            s.kind = 'vmem'
            if re.search(r'\blds\b', mods) or 'load_lds' in op:
                s.rd = flat(E) + ['m0']
            else:
                s.wr = E[0]; s.rd = flat(E[1:])
        elif op.startswith(('buffer_store','global_store','buffer_atomic','global_atomic')):
            s.kind = 'vmem'; s.rd = flat(E)
            if 'x4' in op or 'x3' in op:
                s.wide_store = True
                s.srcc = E[0] if op.startswith('buffer') else E[1]
            if 'atomic' in op and 'sc0' in mods:
                s.wr = E[0]
        elif op.startswith('buffer_inv') or op.startswith('buffer_wbl2'):
            s.kind = 'vmem'
        elif op == 's_nop':
            s.kind = 'salu'; s.nop = int(ops[0], 0) + 1; s.cost = 4*s.nop
        elif op in ('s_waitcnt','s_barrier','s_endpgm','s_setprio','s_sleep'):
            s.kind = 'salu'
        elif op.startswith('s_cbranch') or op == 's_branch':
            s.kind = 'branch'
            if 'scc' in op: s.rd = ['scc']
            if 'vcc' in op: s.rd = ['vcc']
        elif op.startswith('s_cmp'):
            s.kind = 'salu'; s.wr = ['scc']; s.rd = flat(E)
        elif op.startswith(('s_load','s_memtime','s_memrealtime')):
            s.kind = 'smem'; s.wr = E[0]; s.rd = flat(E[1:])
        elif op.startswith(('s_setpc',)):
            s.kind = 'branch'; s.rd = flat(E)
        elif op.startswith(('s_call','s_swappc')):
            s.kind = 'branch'; s.wr = E[0]
        elif op.startswith('s_'):
            s.kind = 'salu'; s.wr = E[0]; s.rd = flat(E[1:])
            if op.startswith(('s_cselect','s_addc','s_cmov')): s.rd += ['scc']
        else:
            raise Exception("unknown op " + text)
    def __repr__(s): return s.text

def isv(k): return k in ('valu','trans')

def need(p, c):
    n = 0
    pw = set(p.wr)
    if isv(p.kind):
        vw = {r for r in pw if r[0] in 'va' and r != 'vcc'}
        sw = pw - vw
        if c.kind == 'mfma' and vw & (set(c.rd) | set(c.srcc)): n = max(n, 2)
        if p.kind == 'trans' and isv(c.kind) and c.kind != 'trans' and vw & set(c.rd): n = max(n, 1)
        if p.kind == 'trans' and c.kind == 'trans' and vw & set(c.rd): n = max(n, 1)
        if c.op.startswith(('v_readfirstlane','v_readlane')) and vw & set(c.rd): n = max(n, 1)
        if c.op.startswith('v_writelane') and vw & set(c.wr): n = max(n, 1)
        if c.op.startswith('v_permlane') and vw & set(c.rd): n = max(n, 2)
        if c.dpp and vw & set(c.rd): n = max(n, 2)
        if sw:
            if isv(c.kind) and sw & set(c.rd): n = max(n, 2)
            if c.kind == 'vmem' and sw & set(c.rd): n = max(n, 5)
            if c.kind in ('salu','smem') and sw & set(c.rd): n = max(n, 1)
            if 'exec' in sw and c.kind == 'mfma': n = max(n, 4)
    if p.kind == 'mfma':
        D = pw
        four = '16x16x32' in p.op
        two = '4x4x4' in p.op
        big, ovl = (8, 6) if four else ((5, 4) if two else (12, 10))
        if c.kind == 'mfma':
            if D & set(c.rd): n = max(n, big)
            if D & set(c.srcc):
                if not (list(p.wr) == list(c.srcc) and p.op == c.op): n = max(n, ovl)
                elif two: n = max(n, 2)
            elif D & set(c.wr): n = max(n, ovl)
        elif isv(c.kind):
            if D & (set(c.rd) | set(c.wr)): n = max(n, big)
        elif c.kind in ('ds','vmem'):
            if D & (set(c.rd) | set(c.wr)): n = max(n, big)
        if isv(c.kind) and set(p.srcc) & set(c.wr):
            n = max(n, 3 if four else (1 if two else 7))
    if p.kind == 'salu' and 'm0' in pw and c.kind == 'vmem' and 'm0' in c.rd: n = max(n, 1)
    if p.wide_store and set(p.srcc) & set(c.wr):
        n = max(n, 2 if isv(c.kind) else 1)
    return n

MAXD = 14
def fix_hazards(seq, pre=None, verbose=False):
    out = list(pre) if pre else []
    npre = len(out)
    added = 0
    for c in seq:
        if c.kind == 'label':
            out.append(c); continue
        dist = 0; req = 0
        for p in reversed(out):
            if p.kind == 'label': continue
            if dist >= MAXD: break
            n = need(p, c)
            if n > dist: req = max(req, n - dist)
            dist += p.nop
        while req > 0:
            k = min(req, 16)
            out.append(I(f"s_nop {k-1}")); added += k
            if verbose: print("  nop", k, "before", c.text)
            req -= k
        out.append(c)
    return out[npre:], added

class Tracker:
    def __init__(s, maxn): s.n = 0; s.last = {}; s.maxn = maxn
    def issue(s, tag=None):
        s.n += 1
        if tag is not None: s.last[tag] = s.n
    def count_for(s, tags):
        if isinstance(tags, (str, tuple)) and not isinstance(tags, list): tags = [tags]
        m = max(s.last[t] for t in tags)
        return min(s.n - m, s.maxn)

class Gaps:
    def __init__(s, n):
        s.n = n
        s.mf = [None]*n
        s.pre = [[] for _ in range(n)]
        s.nv = [[] for _ in range(n)]
        s.va = [[] for _ in range(n)]
    def put(s, g, ins):
        if isinstance(ins, str): ins = I(ins)
        (s.va if isv(ins.kind) else s.nv)[g].append(ins)
        return ins
    def putv(s, g, ins):
        if isinstance(ins, str): ins = I(ins)
        s.va[g].append(ins); return ins
    def before(s, g, ins):
        if isinstance(ins, str): ins = I(ins)
        s.pre[g].append(ins); return ins
    def linear(s, lo=0, hi=None):
        out = []
        for g in range(lo, s.n if hi is None else hi):
            out += s.pre[g]
            if s.mf[g] is not None: out.append(s.mf[g])
            out += s.nv[g]; out += s.va[g]
        return out
    def report(s):
        for g in range(s.n):
            c = sum(i.cost for i in s.va[g])
            print(g, 'pre', len(s.pre[g]), 'nv', len(s.nv[g]), 'valu cyc', c)

def resolve_waits(seq, vm=None, lg=None):
    vm = vm or Tracker(63); lg = lg or Tracker(15)
    out = []
    for i in seq:
        if isinstance(i, Wait):
            parts = []
            if i.vm is not None: parts.append(f"vmcnt({vm.count_for(i.vm) if i.vm != 0 else 0})")
            if i.lg is not None: parts.append(f"lgkmcnt({lg.count_for(i.lg) if i.lg != 0 else 0})")
            out.append(I("s_waitcnt " + " ".join(parts)))
            continue
        if i.kind == 'vmem' and i.tag != 'NOCOUNT': vm.issue(i.tag)
        if i.kind == 'ds': lg.issue(i.tag)
        out.append(i)
    return out

class Wait(I):
    __slots__ = ('vm','lg')
    def __init__(s, vm=None, lg=None):
        I.__init__(s, "s_waitcnt 0")
        s.vm = vm; s.lg = lg

def T(text, tag):
    return I(text, tag)
```

```python
import math, sys, struct, os
from asmlib import *

WS_XN = 0x0
WS_KF = 0x200000
WS_VF = 0x1200000
WS_CA = 0x2200000
CA_RB = 172*1024
WS_SIZE = 0x10000000
SCALE = math.log2(math.e) / math.sqrt(128.0)
def f2u(f): return struct.unpack('<I', struct.pack('<f', f))[0]
MF = "v_mfma_f32_16x16x32_bf16"
def vr(b, n=4): return f"v[{b}:{b+n-1}]"
def ar(b, n=4): return f"a[{b}:{b+n-1}]"
def sr(b, n=4): return f"s[{b}:{b+n-1}]"
def L(lines): return [I(x) if isinstance(x, str) else x for x in lines]

def srd(d, lo, hi, size):
    return [f"s_mov_b32 s{d}, s{lo}", f"s_mov_b32 s{d+1}, s{hi}",
            f"s_mov_b32 s{d+2}, {size}" , f"s_mov_b32 s{d+3}, 0x00020000"]
def srd_off(d, lo, hi, soff, size):
    return [f"s_add_u32 s{d}, s{lo}, s{soff}", f"s_addc_u32 s{d+1}, s{hi}, 0", f"s_sub_u32 s{d+2}, {size}, s{soff}", f"s_mov_b32 s{d+3}, 0x00020000"]

PROF = bool(os.environ.get("PROF"))
WS_PROF = 0xF000000
NSTAMP = 12
def stamp(k):
    return [I(f"s_memtime s[{72+2*k}:{73+2*k}]")] if PROF else []
def prof_begin():
    return ([I("s_memrealtime s[96:97]")] + [x for k in range(NSTAMP) for x in stamp(k)]) if PROF else []
def prof_end(kidx, S_WS, sW, nwaves, vtmp=0):
    if not PROF: return []
    o = L(["s_waitcnt vmcnt(0)", "s_memrealtime s[98:99]"]) + stamp(NSTAMP-1) + L(["s_waitcnt lgkmcnt(0)",
          f"s_mul_i32 s70, s2, {nwaves}", f"s_add_u32 s70, s70, s{sW}", "s_lshl_b32 s70, s70, 6",
          f"s_add_u32 s70, s70, {WS_PROF + kidx*0x40000}", f"v_mov_b32 v{vtmp+16}, 0"])
    regs = [96, 98] + [72+2*k for k in range(NSTAMP)] + [97, 99]
    for j, rg in enumerate(regs): o += L([f"v_mov_b32 v{vtmp+j}, s{rg}"])
    for j in range(4):
        o += L([f"buffer_store_dwordx4 {vr(vtmp+4*j)}, v{vtmp+16}, {sr(S_WS)}, s70 offen offset:{16*j}"])
    return o

def code_prefetch(label, here, nbytes, vdst, vaddr, nthreads=256, sp=60):
    o = [f"s_getpc_b64 s[{sp}:{sp+1}]", f"{here}:"]
    if label is not None:
        o += [f"s_add_u32 s{sp}, s{sp}, {label}-{here}", f"s_addc_u32 s{sp+1}, s{sp+1}, 0"]
    o += [f"v_lshlrev_b32 v{vaddr}, 6, v0"]
    per = nthreads*64
    n = (nbytes + per - 1)//per
    for j in range(n):
        o += [f"global_load_dword v{vdst}, v{vaddr}, s[{sp}:{sp+1}]"]
        if j + 1 < n: o += [f"v_add_u32 v{vaddr}, {per}, v{vaddr}"]
    return L(o)

def red32(v, t):
    dpp = " row_mask:0xf bank_mask:0xf"
    return [f"v_add_f32_dpp v{v}, v{v}, v{v} quad_perm:[1,0,3,2]{dpp}",
            f"v_add_f32_dpp v{v}, v{v}, v{v} quad_perm:[2,3,0,1]{dpp}",
            f"v_add_f32_dpp v{v}, v{v}, v{v} row_half_mirror{dpp}",
            f"v_add_f32_dpp v{v}, v{v}, v{v} row_mirror{dpp}",
            f"v_mov_b32 v{t}, v{v}",
            f"v_permlane16_swap_b32 v{t}, v{v}",
            f"v_add_f32 v{v}, v{v}, v{t}"]

def w_dma_voff(vlane, vd0, vd1, pitch, t1, t2):
    return [f"v_bfe_u32 v{t1}, v{vlane}, 4, 1", f"v_lshlrev_b32 v{t1}, 1, v{t1}", f"v_and_b32 v{t2}, 7, v{vlane}",
            f"v_xor_b32 v{t1}, v{t1}, v{t2}", f"v_lshlrev_b32 v{t1}, 4, v{t1}",
            f"v_lshrrev_b32 v{t2}, 3, v{vlane}", f"v_mul_u32_u24 v{t2}, {pitch}, v{t2}",
            f"v_add_u32 v{vd0}, v{t1}, v{t2}", f"v_xor_b32 v{t1}, 64, v{t1}", f"v_add_u32 v{vd1}, v{t1}, v{t2}",
            f"v_add_u32 v{vd1}, {8*pitch-1024}, v{vd1}"]
def w_tr_addr(vlane, vT, t1, t2):
    o = [f"v_lshrrev_b32 v{t1}, 4, v{vlane}", f"v_lshlrev_b32 v{t1}, 10, v{t1}",
         f"v_bfe_u32 v{t2}, v{vlane}, 2, 2", f"v_lshl_add_u32 v{t1}, v{t2}, 7, v{t1}",
         f"v_and_b32 v{t2}, 3, v{vlane}", f"v_lshl_add_u32 v{t1}, v{t2}, 3, v{t1}",
         f"v_bfe_u32 v{t2}, v{vlane}, 3, 2",
         f"v_lshl_add_u32 v{vT}, v{t2}, 5, v{t1}"]
    for cb in range(1, 4): o += [f"v_xor_b32 v{vT+cb}, {cb*32}, v{vT}"]
    return o

def gemm_groups(G, g0, groups, WF, pre, nbuf=2):
    starts = []; g = g0
    for gr in groups:
        starts.append(g); g += len(gr['frags'])*len(gr['chains'])
    for n, gr in enumerate(groups):
        CH = len(gr['frags'])
        base = WF + (n % nbuf)*4*gr.get('bufsz', CH)
        tagid = gr.setdefault('id', (g0, n))
        reads = []
        for j, (va, off) in enumerate(gr['frags']):
            for t in range(2):
                reads.append(T(f"ds_read_b64_tr_b16 {vr(base+4*j+2*t,2)}, v{va} offset:{off+t*512}", ('wf', tagid, j)))
        if n == 0:
            pre.extend(gr.get('sync') or []); pre.extend(reads); gr['syncgap'] = None
        else:
            ps = starts[n-1]; plen = starts[n] - ps
            first = ps + 1
            for x in (gr.get('sync') or []): G.before(first, x)
            gr['syncgap'] = first
            span = max(len(reads), (plen*3)//4 - 1)
            for i, x in enumerate(reads): G.put(first + (i*span)//len(reads), x)
        gg = starts[n]
        for c, ch in enumerate(gr['chains']):
            for j in range(CH):
                G.mf[gg] = I(ch[j](base + 4*j))
                if c == 0 and (j % 2 == 0):
                    G.before(gg, Wait(lg=[('wf', tagid, min(j+1, CH-1))] + (gr.get('lgwait', []) if j == 0 else [])))
                gg += 1
    return starts, g

def place_stream(G, groups, spacing, start=2):
    cur = start; last = start - 2
    for (e, ins) in groups:
        cur = max(cur, e + 2); last = max(last, e)
        pend = []
        for x in ins:
            if x.kind != 'vmem': pend.append(x); continue
            for j, y in enumerate(pend): G.put(max(last, cur - len(pend) + j), y)
            pend = []
            G.put(cur, x); last = cur; cur += spacing
    return cur

def spread(G, ins, g0, g1):
    for j, x in enumerate(ins):
        g = g0 + (j*(g1-g0))//len(ins)
        if x.kind == 'vmem' and not x.wr: G.put(g+1, x)
        else: G.put(g, x)

def gen_k1():
    S_CKV, S_WK, S_WV, S_WS, S_X = 4, 8, 12, 16, 20
    sW, sH, sR = 24, 25, 26
    sK, sV = 28, 32
    sAk, sWk = 40, 48
    sAm, sWm, sT, sT2, sFl, sSc, sLN, sH8 = 56, 57, 58, 59, 60, 61, 62, 63
    vL, vL16 = 2, 3
    vAD = 4; vAR = 8; vWD = 10; vT = 12; vTh = 16
    WF = 32; ACC1 = 96; ACC0 = 128
    CHV = 8
    pre = prof_begin()
    pre += L(["s_load_dwordx4 s[28:31], s[0:1], 0", "s_load_dwordx4 s[32:35], s[0:1], 24", "s_load_dwordx2 s[36:37], s[0:1], 96",
              "s_cmp_ge_u32 s2, 256", "s_cbranch_scc1 K1_END"])
    pre += code_prefetch(None, "K1_PC", 24576, 21, 20, sp=38)
    pre += L(["v_lshrrev_b32 v1, 6, v0", f"v_and_b32 v{vL}, 63, v0", f"v_readfirstlane_b32 s{sW}, v1",
              f"v_lshlrev_b32 v{vL16}, 4, v{vL}",
              f"s_and_b32 s{sT}, s2, 7", f"s_lshl_b32 s{sT}, s{sT}, 2", f"s_bfe_u32 s{sT2}, s2, 0x20003",
              f"s_add_u32 s{sH}, s{sT}, s{sT2}", f"s_lshr_b32 s{sR}, s2, 5"])
    pre += L([f"v_lshrrev_b32 v24, 5, v{vL}", f"v_and_b32 v25, 31, v{vL}", "v_lshlrev_b32 v22, 10, v24",
              "v_lshl_add_u32 v22, v25, 5, v22",
              "v_lshlrev_b32 v23, 9, v25", "v_lshl_add_u32 v23, v24, 4, v23"])
    pre += L([f"v_lshrrev_b32 v24, 4, v{vL}", f"v_and_b32 v25, 7, v{vL}", "v_xor_b32 v24, v24, v25", "v_lshlrev_b32 v24, 4, v24",
              f"v_lshrrev_b32 v25, 3, v{vL}", f"v_lshl_add_u32 v{vAD}, v25, 10, v24",
              f"v_xor_b32 v{vAD+1}, 64, v{vAD}", f"v_add_u32 v{vAD+1}, {8192-1024}, v{vAD+1}",
              f"v_add_u32 v{vAD+2}, {2*(8192-1024)}, v{vAD}", f"v_add_u32 v{vAD+3}, {2*(8192-1024)}, v{vAD+1}"])
    pre += L(w_dma_voff(vL, vWD, vWD+1, 8192, 24, 25))
    pre += L([f"s_lshl_b32 s{sT}, s{sR}, 18", f"s_lshl_b32 s{sT2}, s{sW}, 16", f"s_add_u32 s{sT}, s{sT}, s{sT2}",
              f"s_lshl_b32 s{sT2}, s{sW}, 17",
              f"s_add_u32 s27, s{sH}, s{sR}", "s_lshl_b32 s27, s27, 1"])
    for j in range(8):
        pre += L(["s_and_b32 s27, s27, 7", f"s_lshl_b32 s{sAk+j}, s27, 7", f"s_add_u32 s{sAk+j}, s{sAk+j}, s{sT}",
                  f"s_lshl_b32 s{sWk+j}, s27, 19", f"s_add_u32 s{sWk+j}, s{sWk+j}, s{sT2}", "s_add_u32 s27, s27, 1"])
    pre += L([f"s_mul_i32 s{sAm}, s{sW}, 24576", f"s_add_u32 s{sAm}, s{sAm}, 65536", f"s_lshl_b32 s{sWm}, s{sW}, 11",
              f"s_lshl_b32 s{sH8}, s{sH}, 8", f"s_and_b32 s{sFl}, s{sR}, 1", f"s_lshl_b32 s{sFl}, s{sFl}, 7",
              f"s_lshl_b32 s{sT}, s2, 3", f"s_lshl_b32 s{sT2}, s{sW}, 1", f"s_add_u32 s{sT}, s{sT}, s{sT2}", f"s_lshl_b32 s{sLN}, s{sT}, 10"])
    pre += L(["s_waitcnt lgkmcnt(0)"]) + stamp(1)
    pre += L(srd(S_CKV, 30, 31, 0x200000))
    def dmaA(s):
        slot = s % 3
        o = []
        for hh in range(2):
            o += [I(f"s_add_u32 m0, s{sAm}, {slot*8192 + hh*4096}"), I(f"s_add_u32 s{sT}, s{sAk+s}, {hh*0x8000}")]
            for j in range(4):
                o.append(T(f"buffer_load_dwordx4 v{vAD+j}, {sr(S_CKV)}, s{sT} offen offset:{j*1024} lds", ('A', s)))
        return o
    def dmaUT(sd, ksl, ch, ldsoff, tag):
        if sd == S_WV: so = L([f"s_xor_b32 s{sT2}, s{sFl}, {ch*128}", f"s_add_u32 s{sT2}, s{sT2}, s{sWk+ksl}"])
        else: so = L([f"s_add_u32 s{sT2}, s{sWk+ksl}, {ch*128}"])
        return [I(f"s_add_u32 m0, s{sWm}, {ldsoff}")] + so + [
                T(f"buffer_load_dwordx4 v{vWD}, {sr(sd)}, s{sT2} offen lds", tag),
                T(f"buffer_load_dwordx4 v{vWD+1}, {sr(sd)}, s{sT2} offen offset:1024 lds", tag)]
    kslot = lambda p, u: ((p % 4)*2 + u)*8192
    def dmaWK(p): return [x for u in range(2) for x in dmaUT(S_WK, (p//2)*2 + u, p % 2, kslot(p, u), ('W', p))]
    aslot = lambda sl, w: 65536 + w*24576 + sl*8192
    vloc = {}
    for j in range(4): vloc[(0, j)] = aslot(2, j); vloc[(0, 4+j)] = aslot(0, j); vloc[(1, j)] = aslot(1, j)
    vloc[(1, 4)] = kslot(4, 0); vloc[(1, 5)] = kslot(4, 1); vloc[(1, 6)] = kslot(5, 0); vloc[(1, 7)] = kslot(5, 1)
    def dmaWV(ch, ksls): return [x for k in ksls for x in dmaUT(S_WV, k, ch, vloc[(ch, k)], ('V', ch))]
    pre += dmaA(0)
    pre += L(srd_off(S_WK, 32, 33, sH8, 0x400000))
    pre += dmaWK(0)
    pre += L(srd(S_X, 28, 29, 0x200000))
    pre += [T(f"buffer_load_dwordx4 v[128:131], v22, {sr(S_X)}, s{sLN} offen", 'ln'),
            T(f"buffer_load_dwordx4 v[132:135], v22, {sr(S_X)}, s{sLN} offen offset:16", 'ln')]
    pre += dmaA(1) + stamp(2)
    pre += L(srd_off(S_WV, 34, 35, sH8, 0x400000) + srd(S_WS, 36, 37, WS_SIZE))
    pre += L(w_tr_addr(vL, vT, 24, 25)) + L([f"v_add_u32 v{vTh+c}, 0x10000, v{vT+c}" for c in range(4)] + [f"v_add_u32 v{28+c}, 0x20000, v{vT+c}" for c in range(4)])
    pre += L([f"v_and_b32 v24, 15, v{vL}", f"v_bfe_u32 v25, v{vL}, 1, 3", f"v_lshrrev_b32 v26, 4, v{vL}", "v_xor_b32 v25, v25, v26",
              "v_lshlrev_b32 v25, 4, v25", "v_lshl_add_u32 v24, v24, 7, v25", f"v_add_u32 v{vAR}, s{sAm}, v24",
              f"v_xor_b32 v{vAR+1}, 64, v{vAR}"])
    pre += L([f"s_lshl_b32 s{sT}, s{sH}, 19", f"s_lshl_b32 s{sT2}, s{sR}, 16", f"s_add_u32 s{sT}, s{sT}, s{sT2}",
              f"s_lshl_b32 s{sT2}, s{sW}, 14", f"s_add_u32 s{sT}, s{sT}, s{sT2}"])
    for j in range(4):
        pre += L([f"s_add_u32 s{sK+j}, s{sT}, {WS_KF + j*4096}", f"s_lshl_b32 s27, s{sFl}, 6", f"s_xor_b32 s27, s27, {j*4096}", f"s_add_u32 s27, s27, s{sT}", f"s_add_u32 s{sV+j}, s27, {WS_VF}"])
    pre += L([f"s_mov_b32 s{sSc}, {f2u(SCALE):#x}"])
    X = 144; R0 = 128; m, t, d, q = 136, 137, 138, 139
    ln = [Wait(vm='ln')] + stamp(3)
    for j in range(8):
        ln += L([f"v_lshlrev_b32 v{X+2*j}, 16, v{R0+j}", f"v_and_b32 v{X+2*j+1}, 0xffff0000, v{R0+j}"])
    ln += L([f"v_add_f32 v{m}, v{X}, v{X+1}"] + [f"v_add_f32 v{m}, v{m}, v{X+j}" for j in range(2, 16)])
    ln += L(red32(m, t))
    ln += L([f"v_mul_f32 v{m}, 0x3b000000, v{m}"])
    ln += L([f"v_sub_f32 v{d}, v{X}, v{m}", f"v_mul_f32 v{q}, v{d}, v{d}"])
    for j in range(1, 16):
        ln += L([f"v_sub_f32 v{d}, v{X+j}, v{m}", f"v_fmac_f32 v{q}, v{d}, v{d}"])
    ln += L(red32(q, t))
    ln += L([f"v_mul_f32 v{q}, 0x3b000000, v{q}", f"v_cvt_pk_bf16_f32 v{m}, v{m}, v{q}",
             f"v_and_b32 v{q}, 0xffff0000, v{m}", f"v_lshlrev_b32 v{m}, 16, v{m}",
             f"v_add_f32 v{q}, {f2u(1e-5):#x}, v{q}", f"v_cvt_pk_bf16_f32 v{q}, v{q}, v{q}", f"v_lshlrev_b32 v{q}, 16, v{q}",
             f"v_sqrt_f32 v{q}, v{q}", f"v_cvt_pk_bf16_f32 v{q}, v{q}, v{q}", f"v_lshlrev_b32 v{q}, 16, v{q}",
             f"v_rcp_f32 v{q}, v{q}"])
    for j in range(8):
        a, b = X+2*j, X+2*j+1
        ln += L([f"v_sub_f32 v{a}, v{a}, v{m}", f"v_sub_f32 v{b}, v{b}, v{m}", f"v_cvt_pk_bf16_f32 v{a}, v{a}, v{b}",
                 f"v_and_b32 v{b}, 0xffff0000, v{a}", f"v_lshlrev_b32 v{a}, 16, v{a}",
                 f"v_mul_f32 v{a}, v{a}, v{q}", f"v_mul_f32 v{b}, v{b}, v{q}", f"v_cvt_pk_bf16_f32 v{R0+j}, v{a}, v{b}"])
    more = dmaWK(1) + dmaA(2)
    ln2 = []; k = 0
    for i, x in enumerate(ln):
        ln2.append(x)
        if i >= 4 and i % 5 == 0 and k < len(more):
            ln2.append(more[k]); k += 1
            while k < len(more) and more[k-1].kind == 'salu': ln2.append(more[k]); k += 1
    ln2 += more[k:]
    ln2 += L([f"s_lshr_b32 s{sT}, s2, 1", f"s_lshl_b32 s{sT}, s{sT}, 14", f"s_and_b32 s{sT2}, s2, 1", f"s_lshl_b32 s{sT2}, s{sT2}, 7",
             f"s_add_u32 s{sT}, s{sT}, s{sT2}", f"s_lshl_b32 s{sT2}, s{sW}, 5", f"s_add_u32 s{sT}, s{sT}, s{sT2}"])
    ln2 += L([f"buffer_store_dwordx4 {vr(R0)}, v23, {sr(S_WS)}, s{sT} offen offset:{WS_XN}",
              f"buffer_store_dwordx4 {vr(R0+4)}, v23, {sr(S_WS)}, s{sT} offen offset:{WS_XN+256}"])
    pre += ln2 + stamp(4)
    def readA(s):
        slot = s % 3
        return [T(f"ds_read_b128 {ar((mb*16 + s*2 + k)*4)}, v{vAR+k} offset:{slot*8192 + mb*2048}", ('Ar', s))
                for mb in range(4) for k in range(2)]
    pre += [Wait(vm=('A', 0))] + readA(0) + [Wait(vm=('A', 1))] + readA(1) + stamp(5)
    afr = lambda mb, ks: ar((mb*16 + ks)*4)
    groups = []
    for p in range(8):
        st, ch = p//2, p % 2
        for cb in range(4):
            db = ch*4 + cb
            fr = [(vT+cb, kslot(p, j//2) + (j % 2)*4096) for j in range(4)]
            chains = []
            for mb in range(4):
                D = ACC0 + (db*4 + mb)*4
                chains.append([(lambda f, D=D, mb=mb, ks=st*4+j: f"{MF} {vr(D)}, {vr(f)}, {afr(mb, ks)}, {'0' if ks == 0 else vr(D)}") for j in range(4)])
            gr = dict(frags=fr, chains=chains, bufsz=CHV)
            if cb == 0:
                gr['sync'] = [Wait(vm=('W', p)), I("s_barrier")]; gr['pair'] = p
                if ch == 0: gr['lgwait'] = [('Ar', 2*st+1)]
            groups.append(gr)
    nk = len(groups)
    for db in range(8):
        ch, cb = db//4, db % 4
        for kh in range(16//CHV):
            fr = []
            for j in range(CHV):
                ks = kh*CHV + j
                o = vloc[(ch, ks//2)] + (ks % 2)*4096
                fr.append(((vT, vTh, 28)[o >> 16] + cb, o & 0xffff))
            chains = []
            for mb in range(4):
                D = ACC1 + ((db % 2)*4 + mb)*4
                chains.append([(lambda f, D=D, mb=mb, ks=kh*CHV+j: f"{MF} {vr(D)}, {afr(mb, ks)}, {vr(f)}, {'0' if ks == 0 else vr(D)}") for j in range(CHV)])
            gr = dict(frags=fr, chains=chains, bufsz=CHV)
            if cb == 0 and kh == 0: gr['sync'] = [Wait(vm=('V', ch)), I("s_barrier")]; gr['vch'] = ch
            groups.append(gr)
    G = Gaps(1024)
    starts, gend = gemm_groups(G, 0, groups, WF, pre)
    assert gend == 1024
    bar = {gr['pair']: gr['syncgap'] for gr in groups if 'pair' in gr}
    after = {1: dmaWK(2) + dmaWK(3) + dmaA(4), 2: dmaWK(4), 3: dmaWK(5), 4: dmaWK(6), 5: dmaWK(7) + dmaWV(0, range(0, 4)),
             6: dmaWV(0, range(4, 8)) + dmaWV(1, (4, 5)), 7: dmaWV(1, range(0, 4)) + dmaWV(1, (6, 7))}
    stream = [(0, dmaA(3))]
    for p in range(8):
        g = 64*p
        if p + 2 < 8:
            G.before(g+16, Wait(vm=('A', p+2)))
            for j, x in enumerate(readA(p+2)): G.put(g+16+2*j, x)
            if p + 5 < 8:
                G.before(g+34, Wait(lg=('Ar', p+2)))
                if p == 0:
                    stream.append((bar[1], after.pop(1)))
                stream.append((g+34, dmaA(p+5)))
        if p + 1 in after: stream.append((bar[p+1], after[p+1]))
    end = place_stream(G, stream, int(os.environ.get("SP", "4")), start=4)
    print("K1 dma stream ends at gap", end)
    ins = []
    for js in range(4):
        for mb in range(4):
            D0, D1 = ACC0 + ((2*js)*4 + mb)*4, ACC0 + ((2*js+1)*4 + mb)*4
            ins += L([f"v_mul_f32 v{D+r}, s{sSc}, v{D+r}" for D in (D0, D1) for r in range(4)])
            ins += L([f"v_cvt_pk_bf16_f32 v{D0}, v{D0}, v{D0+1}", f"v_cvt_pk_bf16_f32 v{D0+1}, v{D0+2}, v{D0+3}",
                      f"v_cvt_pk_bf16_f32 v{D0+2}, v{D1}, v{D1+1}", f"v_cvt_pk_bf16_f32 v{D0+3}, v{D1+2}, v{D1+3}",
                      f"buffer_store_dwordx4 {vr(D0)}, v{vL16}, {sr(S_WS)}, s{sK+mb} offen offset:{js*1024}"])
    spread(G, ins, 530, 800)
    tail = []
    for db in range(8):
        ins = []
        for ks in range(2):
            D0, D1 = ACC1 + ((db % 2)*4 + 2*ks)*4, ACC1 + ((db % 2)*4 + 2*ks+1)*4
            ins += L([f"v_cvt_pk_bf16_f32 v{D0}, v{D0}, v{D0+1}", f"v_cvt_pk_bf16_f32 v{D0+1}, v{D0+2}, v{D0+3}",
                      f"v_cvt_pk_bf16_f32 v{D0+2}, v{D1}, v{D1+1}", f"v_cvt_pk_bf16_f32 v{D0+3}, v{D1+2}, v{D1+3}",
                      f"buffer_store_dwordx4 {vr(D0)}, v{vL16}, {sr(S_WS)}, s{sV+db//2} offen offset:{(db%2)*2048 + ks*1024}"])
        if db < 7: spread(G, ins, 512 + 64*(db+1) + 6, 512 + 64*(db+1) + 40)
        else: tail = ins
    seq = pre + stamp(6) + G.linear(0, 64) + stamp(7) + G.linear(64, 512) + stamp(8) + G.linear(512, 1024) + stamp(9) + tail + stamp(10) + prof_end(0, S_WS, sW, 4)
    seq = resolve_waits(seq)
    seq, n = fix_hazards(seq)
    print("K1: instrs", len(seq), "nops", n)
    return seq + L(["K1_END:", "s_endpgm"])

def emit(kernels, path):
    hdr = open('parallel_sum__compressed_kv_cla__dense_activation_mish__prompt.s.ref').read().split('\n')
    out = [l for l in hdr[:14]]
    for (name, grid, block, lds, seq, nv, acc) in kernels:
        out.append(f"; @launch kernel={name} grid=({grid},1,1) block=({block},1,1) lds={lds}")
    out += ['.amdgcn_target "amdgcn-amd-amdhsa--gfx950"', ".text"]
    for (name, grid, block, lds, seq, nv, acc) in kernels:
        out += [f".globl {name}", ".p2align 8", f".type {name},@function", f"{name}:"]
        out += [("" if i.kind == 'label' else "    ") + i.text for i in seq]
    out.append(".fill 8192, 4, 0xbf800000")
    out.append('.section .rodata,"a"')
    for (name, grid, block, lds, seq, nv, acc) in kernels:
        out += [".p2align 6", f".amdhsa_kernel {name}", f"  .amdhsa_next_free_vgpr {nv}", "  .amdhsa_next_free_sgpr 102",
                f"  .amdhsa_accum_offset {acc}", "  .amdhsa_group_segment_fixed_size 0", "  .amdhsa_kernarg_size 104",
                "  .amdhsa_user_sgpr_count 2", "  .amdhsa_user_sgpr_kernarg_segment_ptr 1",
                "  .amdhsa_system_sgpr_workgroup_id_x 1", ".end_amdhsa_kernel"]
    open(path, "w").write("\n".join(out) + "\n")

if __name__ == "__main__":
    ks = [("kvproj_kernel", 256, 256, 163840, gen_k1(), 512, 256)]
    emit(ks, sys.argv[1] if len(sys.argv) > 1 else "k.s")
```

```python
from gen import *

NEGINF = "0xff800000"
THR = f2u(2.0**60)

def gen_k2():
    S_WS, S_WQ, S_W1, S_K, S_V, S_B1 = 4, 8, 12, 16, 20, 24
    sW, sH, sI, sPar = 28, 29, 30, 31
    sXN = 32
    sAct = 36
    sWm, sT, sT2, sT3 = 44, 45, 46, 47
    sWoQ, sWo1 = 48, 49
    sKd, sVd, sGd, sKr, sVr, sVk = 50, 51, 52, 53, 54, 55
    sC = {'a': 56, 'b': 57}
    sCnt, sThr, sRet = 58, 59, 60
    sPC = 62
    sKA = 64
    vL, vL16 = 2, 3
    vX = 4
    vWDq, vWD1 = 8, 10
    vT = 12; vTh = 16; vTt = 20
    vDM, vKr, vVr, vLB = 24, 25, 26, 27
    vNI = 28
    tA, tB = 29, 30
    WF = 32
    QE = 64
    QO = 128
    HA = 192
    P = {'a': 32, 'b': 48}
    S = {'a': 128, 'b': 160}
    QX = 192
    NM = {'a': 224, 'b': 232}
    ET = 240
    TS = {'a': 244, 'b': 246}; LS = {'a': 248, 'b': 250}; MS = {'a': 252, 'b': 254}
    O = {'a': 0, 'b': 64}; KF_, VF_ = 128, 192
    qf = lambda mbx, js: QE + (js*4 + mbx)*4
    Qreg = {'a': lambda nb, js: qf(nb, js), 'b': lambda nb, js: qf(2+nb, js), 'x': lambda nb, js: QX + (js*2+nb)*4}

    pre = prof_begin()
    pre += L([f"s_load_dwordx2 s[64:65], s[0:1], 16", "s_load_dwordx2 s[68:69], s[0:1], 56",
              "s_load_dwordx2 s[66:67], s[0:1], 96", "s_load_dwordx2 s[26:27], s[0:1], 64",
              "s_cmp_ge_u32 s2, 256", "s_cbranch_scc1 K2_END"])
    pre += code_prefetch(None, "K2_PC", 49152, 31, 30, sp=sPC)
    pre += L(["v_lshrrev_b32 v1, 6, v0", f"v_and_b32 v{vL}, 63, v0", f"v_readfirstlane_b32 s{sW}, v1",
              f"v_lshlrev_b32 v{vL16}, 4, v{vL}",
              f"s_and_b32 s{sT}, s2, 7", f"s_lshl_b32 s{sT}, s{sT}, 2", f"s_bfe_u32 s{sT2}, s2, 0x20003",
              f"s_add_u32 s{sH}, s{sT}, s{sT2}", f"s_lshr_b32 s{sI}, s2, 5", f"s_and_b32 s{sPar}, s{sW}, 1"])
    pre += L([f"v_add_u32 v{vX+j}, {4096*j}, v{vL16}" for j in range(4)])
    pre += L(w_dma_voff(vL, vWDq, vWDq+1, 8192, tA, tB) + w_dma_voff(vL, vWD1, vWD1+1, 2752, tA, tB))
    pre += L([f"s_lshl_b32 s{sT}, s{sI}, 3", f"s_lshl_b32 s{sT2}, s{sW}, 1", f"s_add_u32 s{sT3}, s{sT}, s{sT2}",
              f"s_sub_u32 s{sT}, 120, s{sT}", f"s_add_u32 s{sT}, s{sT}, s{sT2}",
              f"s_lshl_b32 s{sXN}, s{sT3}, 14", f"s_add_u32 s{sXN+1}, s{sXN}, 16384",
              f"s_lshl_b32 s{sXN+2}, s{sT}, 14", f"s_add_u32 s{sXN+3}, s{sXN+2}, 16384",
              f"s_mul_i32 s{sAct}, s{sT3}, {CA_RB}", f"s_mul_i32 s{sAct+4}, s{sT}, {CA_RB}",
              f"s_lshl_b32 s{sC['a']}, s{sT3}, 4", f"s_lshl_b32 s{sC['b']}, s{sT}, 4",
              f"s_lshl_b32 s{sWm}, s{sW}, 11", f"s_lshl_b32 s{sWoQ}, s{sW}, 17", f"s_mul_i32 s{sWo1}, s{sW}, {16*2752}",
              f"s_lshl_b32 s{sT}, s{sH}, 8", f"s_lshl_b32 s{sT2}, s{sH}, 7"])
    pre += L(["s_waitcnt lgkmcnt(0)"]) + stamp(1)
    pre += L(srd(S_WS, 66, 67, WS_SIZE))
    def ldX(s):
        return [T(f"buffer_load_dwordx4 {ar((mbx*16+ks)*4)}, v{vX+ks//4}, {sr(S_WS)}, s{sXN+mbx} offen offset:{WS_XN + (ks%4)*1024}", ('X', s))
                for ks in (2*s, 2*s+1) for mbx in range(4)]
    ring = [0, 1, 2, 3, 4, 5, 8, 9, 10, 11, 12, 13]
    pslot = lambda p, u: ring[((p % 6)*2 + u)]*8192
    hslot = [6, 7, 14, 15, 16, 17, 18, 19]
    def dmaUT(which, ksl, colb, ldsoff, tag):
        sd, vd, so, pitch = (S_W1, vWD1, sWo1, 2752) if which == 1 else (S_WQ, vWDq, sWoQ, 8192)
        return [I(f"s_add_u32 m0, s{sWm}, {ldsoff}"), I(f"s_add_u32 s{sT3}, s{so}, {ksl*64*pitch + colb}"),
                T(f"buffer_load_dwordx4 v{vd}, {sr(sd)}, s{sT3} offen lds", tag),
                T(f"buffer_load_dwordx4 v{vd+1}, {sr(sd)}, s{sT3} offen offset:1024 lds", tag)]
    def dmaP(p): return [x for u in range(2) for x in dmaUT(1 if p % 2 == 0 else 0, (p//2)*2 + u, 0, pslot(p, u), ('W', p))]
    def dmaH(ks): return [x for k in ks for x in dmaUT(0, k, 128, hslot[k]*8192, 'WH')]
    pre += ldX(0)
    pre += L(srd_off(S_W1, 68, 69, sT2, 512*2752) + srd_off(S_WQ, 64, 65, sT, 0x400000))
    pre += dmaP(0) + ldX(1)
    pre += L([f"s_mov_b32 s{S_B1}, s26", f"s_mov_b32 s{S_B1+1}, s27", f"s_mov_b32 s{S_B1+2}, 2752", f"s_mov_b32 s{S_B1+3}, 0x00020000",
              f"v_lshrrev_b32 v{tA}, 4, v{vL}", f"v_lshlrev_b32 v{tA}, 3, v{tA}"])
    BI = QO + 32
    pre += [T(f"buffer_load_dwordx2 {vr(BI+16+2*fb, 2)}, v{tA}, {sr(S_B1)}, s{sT2} offen offset:{fb*32}", 'bias') for fb in range(4)]
    pre += dmaP(1) + stamp(2)
    pre += L(w_tr_addr(vL, vT, tA, tB)) + L([f"v_add_u32 v{vTh+c}, 0x10000, v{vT+c}" for c in range(4)] + [f"v_add_u32 v{vTt+c}, 0x20000, v{vT+c}" for c in range(4)])
    pre += L([f"s_lshl_b32 s{sT}, s{sH}, 19", f"s_lshl_b32 s{sT2}, s{sI}, 15", f"s_sub_u32 s{sT2}, 0x80000, s{sT2}",
              f"s_add_u32 s{sT3}, s{sT}, {WS_KF}", f"s_add_u32 s{S_K}, s66, s{sT3}", f"s_addc_u32 s{S_K+1}, s67, 0", f"s_mov_b32 s{S_K+2}, s{sT2}", f"s_mov_b32 s{S_K+3}, 0x00020000",
              f"s_add_u32 s{sT3}, s{sT}, {WS_VF}", f"s_add_u32 s{S_V}, s66, s{sT3}", f"s_addc_u32 s{S_V+1}, s67, 0", f"s_mov_b32 s{S_V+2}, s{sT2}", f"s_mov_b32 s{S_V+3}, 0x00020000"])
    pre += L([f"s_add_u32 s{sAct+2}, s{sAct}, {CA_RB}", f"s_add_u32 s{sAct+6}, s{sAct+4}, {CA_RB}",
              f"s_lshl_b32 s{sT}, s{sH}, 11", f"s_add_u32 s{sT}, s{sT}, {WS_CA + 128*1024}",
              f"s_lshl_b32 s{sT2}, s{sH}, 12", f"s_add_u32 s{sT2}, s{sT2}, {WS_CA}"])
    ctxoff = []
    for mbx in range(4):
        ctxoff += L([f"s_add_u32 s{sXN+mbx}, s{sAct+2*mbx}, s{sT2}"])
    actoff = []
    for mbx in range(4):
        actoff += L([f"s_add_u32 s{sAct+2*mbx}, s{sAct+2*mbx}, s{sT}", f"s_add_u32 s{sAct+2*mbx+1}, s{sAct+2*mbx}, 1024",
                     f"s_cmp_gt_u32 s{sH}, 21", f"s_cselect_b32 s{sAct+2*mbx}, 0x10000000, s{sAct+2*mbx}",
                     f"s_cmp_gt_u32 s{sH}, 20", f"s_cselect_b32 s{sAct+2*mbx+1}, 0x10000000, s{sAct+2*mbx+1}"])
    pre += L([f"s_mov_b32 s{sKr}, s{sT}", f"s_mov_b32 s{sVr}, s{sT2}"])
    fix = lambda lst: [I(x.text.replace(f"s{sT2}", f"s{sVr}").replace(f"s{sT}", f"s{sKr}")) for x in lst]
    ctxoff, actoff = fix(ctxoff), fix(actoff)
    pre += L([f"v_lshl_add_u32 v{vDM}, s{sW}, 12, v{vL16}" if False else f"v_mov_b32 v{tA}, s{sW}", f"v_lshl_add_u32 v{vDM}, v{tA}, 12, v{vL16}",
              f"v_and_b32 v{tA}, 15, v{vL}", f"v_lshrrev_b32 v{tB}, 4, v{vL}", f"v_lshlrev_b32 v{tB}, 2, v{tB}", f"v_sub_u32 v{vLB}, v{tA}, v{tB}",
              f"v_mov_b32 v{vNI}, {NEGINF}", f"s_mov_b32 s{sThr}, {THR:#x}"])
    pre += ldX(2) + ldX(3)
    pre += [Wait(vm='bias')]
    for fb in range(4):
        for hw in range(2):
            pre += L([f"v_lshlrev_b32 v{BI+4*fb+2*hw}, 16, v{BI+16+2*fb+hw}", f"v_and_b32 v{BI+4*fb+2*hw+1}, 0xffff0000, v{BI+16+2*fb+hw}"])
    pre += stamp(3)
    xfr = lambda mbx, ks: ar((mbx*16 + ks)*4)
    def tra(o, cb): return ((vT, vTh, vTt)[o >> 16] + cb, o & 0xffff)
    qacc = lambda db, mbx: (QE if db % 2 == 0 else QO) + ((db//2)*4 + mbx)*4
    groups = []
    for p in range(8):
        st = p//2
        for cb in range(4):
            fr = [tra(pslot(p, j//2) + (j % 2)*4096, cb) for j in range(4)]
            chains = []
            for mbx in range(4):
                if p % 2 == 0: D = HA + (cb*4 + mbx)*4; C0 = vr(BI + 4*cb)
                else: D = qacc(cb, mbx); C0 = '0'
                chains.append([(lambda f, D=D, mbx=mbx, ks=st*4+j, C0=C0: f"{MF} {vr(D)}, {vr(f)}, {xfr(mbx, ks)}, {C0 if ks == 0 else vr(D)}") for j in range(4)])
            gr = dict(frags=fr, chains=chains)
            if cb == 0:
                gr['sync'] = [Wait(vm=('W', p)), I("s_barrier")]; gr['pair'] = p
                if p % 2 == 0: gr['xwait'] = 2*st+1
            groups.append(gr)
    for cb in range(4):
        for kq in range(4):
            fr = [tra(hslot[(kq*4+j)//2]*8192 + (j % 2)*4096, cb) for j in range(4)]
            chains = []
            for mbx in range(4):
                D = qacc(4+cb, mbx)
                chains.append([(lambda f, D=D, mbx=mbx, ks=kq*4+j: f"{MF} {vr(D)}, {vr(f)}, {xfr(mbx, ks)}, {'0' if ks == 0 else vr(D)}") for j in range(4)])
            gr = dict(frags=fr, chains=chains)
            if cb == 0 and kq == 0: gr['sync'] = [Wait(vm='WH'), I("s_barrier")]; gr['pair'] = 8
            groups.append(gr)
    G = Gaps(768)
    starts, gend = gemm_groups(G, 0, groups, WF, pre)
    assert gend == 768
    for n, gr in enumerate(groups):
        if 'xwait' in gr: G.before(starts[n], Wait(vm=('X', gr['xwait'])))
    bar = {gr['pair']: gr['syncgap'] for gr in groups if 'pair' in gr}
    def dmaKV(which, t):
        sd, base = (S_K, 0) if which == 'K' else (S_V, 65536)
        return [I(f"s_lshl_b32 s{sT3}, s{sW}, 12"), I(f"s_add_u32 m0, s{sT3}, {base + t*16384}"), I(f"s_mov_b32 s{sT3}, {t*16384}")] + \
               [T(f"buffer_load_dwordx4 v{vDM}, {sr(sd)}, s{sT3} offen offset:{j*1024} lds", ('KV', which, t)) for j in range(4)]
    stream = [(0, dmaP(2) + ldX(4) + dmaP(3) + ldX(5) + dmaP(4) + ldX(6) + dmaP(5) + ldX(7)),
              (bar[2], dmaP(6)), (bar[3], dmaP(7) + dmaH(range(8))),
              (bar[5], dmaKV('K', 2)), (bar[7], dmaKV('V', 0)), (bar[8], dmaKV('V', 1)),
              (bar[8] + 20, [])]
    end = place_stream(G, stream, 4, start=4)
    print("K2 prologue dma stream (part 1) ends at gap", end)
    gb = 512 + 40
    G.before(gb, I("s_barrier"))
    end = place_stream(G, [(gb, dmaKV('K', 0) + dmaKV('K', 1) + dmaKV('V', 2))], 5, start=max(gb, end))
    print("K2 prologue dma stream ends at gap", end)
    for j, x in enumerate(ctxoff + actoff): G.put(300 + (j//2), x)
    ins = []
    for js in range(2):
        for mbx in range(4):
            E, Od = qf(mbx, js), QO + (js*4 + mbx)*4
            ins += L([f"v_cvt_pk_bf16_f32 v{E}, v{E}, v{E+1}", f"v_cvt_pk_bf16_f32 v{E+1}, v{E+2}, v{E+3}",
                      f"v_cvt_pk_bf16_f32 v{E+2}, v{Od}, v{Od+1}", f"v_cvt_pk_bf16_f32 v{E+3}, v{Od+2}, v{Od+3}"])
    LOG2E = f2u(math.log2(math.e))
    mish = []
    for fbp in range(2):
        for mbx in range(4):
            D0, D1 = HA + ((2*fbp)*4 + mbx)*4, HA + ((2*fbp+1)*4 + mbx)*4
            regs = [D0+r for r in range(4)] + [D1+r for r in range(4)]
            for a, b in zip(regs[0::2], regs[1::2]):
                mish += L([f"v_mul_f32 v{tA}, {LOG2E:#x}, v{a}", f"v_mul_f32 v{tB}, {LOG2E:#x}, v{b}",
                           f"v_exp_f32 v{tA}, v{tA}", f"v_exp_f32 v{tB}, v{tB}",
                           f"v_add_f32 v0, 2.0, v{tA}", f"v_add_f32 v1, 2.0, v{tB}",
                           f"v_fma_f32 v{tA}, v{tA}, v0, 2.0", f"v_fma_f32 v{tB}, v{tB}, v1, 2.0",
                           f"v_rcp_f32 v{tA}, v{tA}", f"v_rcp_f32 v{tB}, v{tB}",
                           f"v_mul_f32 v{tA}, v{tA}, v{a}", f"v_mul_f32 v{tB}, v{tB}, v{b}",
                           f"v_fma_f32 v{a}, v{tA}, -2.0, v{a}", f"v_fma_f32 v{b}, v{tB}, -2.0, v{b}"])
            mish += L([f"v_cvt_pk_bf16_f32 v{D0}, v{D0}, v{D0+1}", f"v_cvt_pk_bf16_f32 v{D0+1}, v{D0+2}, v{D0+3}",
                       f"v_cvt_pk_bf16_f32 v{D0+2}, v{D1}, v{D1+1}", f"v_cvt_pk_bf16_f32 v{D0+3}, v{D1+2}, v{D1+3}",
                       f"buffer_store_dwordx4 {vr(D0)}, v{vL16}, {sr(S_WS)}, s{sAct+2*mbx+fbp} offen"])
    spread(G, mish, 456, 740)
    spread(G, ins, 520, 760)
    post = []
    for js in range(2, 4):
        for mbx in (2, 3, 0, 1):
            E, Od = qf(mbx, js), QO + (js*4 + mbx)*4
            post += L([f"v_cvt_pk_bf16_f32 v{E}, v{E}, v{E+1}", f"v_cvt_pk_bf16_f32 v{E+1}, v{E+2}, v{E+3}",
                       f"v_cvt_pk_bf16_f32 v{E+2}, v{Od}, v{Od+1}", f"v_cvt_pk_bf16_f32 v{E+3}, v{Od+2}, v{Od+3}"])
    XB = 131072
    post += [Wait(vm=('KV', 'K', 0)), I("s_barrier")]
    post += L([f"v_mov_b32 v{vKr}, v{vL16}", f"v_lshlrev_b32 v{tA}, 1, v{vDM}", f"v_sub_u32 v{tA}, v{tA}, v{vL16}", f"v_add_u32 v{tA}, {XB}, v{tA}",
               f"v_xor_b32 v{tB}, 0x2000, v{tA}"])
    kread = lambda f: T(f"ds_read_b128 {ar(KF_+4*f)}, v{vKr} offset:{f*1024}", ('kf', f))
    post += [kread(f) for f in range(16)]
    post += [T(f"ds_write_b128 v{tA}, {vr(Qreg['b'](nb, js))} offset:{(js*2+nb)*1024}", 'qw') for js in range(4) for nb in range(2)]
    post += L([f"v_accvgpr_write_b32 a{r}, 0" for r in range(128)])
    post += L([f"v_mov_b32 v{LS[s]+nb}, 0" for s in 'ab' for nb in range(2)])
    post += L([f"s_lshl_b32 s{sT}, s{sW}, 12", f"s_add_u32 s{sKd}, s{sT}, {3*16384}", f"s_add_u32 s{sVd}, s{sT}, {3*16384}", f"v_add_u32 v{vX}, 0x10000, v{vL16}",
               f"s_mov_b32 s{sGd}, {3*16384}", f"s_mov_b32 s{sKr}, 16384", f"s_mov_b32 s{sVr}, 0", f"s_mov_b32 s{sVk}, 16384",
               f"s_lshl_b32 s{sCnt}, s{sI}, 1"])
    sreg = lambda s, mb, nb: S[s] + (mb*2 + nb)*4
    def prepass_mfma(s, q):
        return [I(f"{MF} {vr(sreg(s,0,nb))}, {ar(KF_+4*js)}, {vr(Qreg[q](nb, js))}, {'0' if js == 0 else vr(sreg(s,0,nb))}") for nb in range(2) for js in range(4)]
    def maskops(s, mbs, dq):
        o = []
        prs = [(mb, nb, r) for mb in mbs for nb in range(2) for r in range(4)]
        pend = []
        sp = ['vcc', 's[70:71]' if False else f"s[{sRet}:{sRet+1}]"]
        for k, (mb, nb, r) in enumerate(prs):
            m = 'vcc'
            o += L([f"v_cmp_le_i32 vcc, {16*mb + r - 16*nb}, v{dq}", f"v_cndmask_b32 v{sreg(s,mb,nb)+r}, v{vNI}, v{sreg(s,mb,nb)+r}, vcc"])
        return o
    def xmax(v, t):
        return L([f"v_mov_b32 v{t}, v{v}", f"v_permlane16_swap_b32 v{t}, v{v}", f"v_max_f32 v{v}, v{v}, v{t}",
                  f"v_mov_b32 v{t}, v{v}", f"v_permlane32_swap_b32 v{t}, v{v}", f"v_max_f32 v{v}, v{v}, v{t}"])
    def xadd(v, t):
        return L([f"v_mov_b32 v{t}, v{v}", f"v_permlane16_swap_b32 v{t}, v{v}", f"v_add_f32 v{v}, v{v}, v{t}",
                  f"v_mov_b32 v{t}, v{v}", f"v_permlane32_swap_b32 v{t}, v{v}", f"v_add_f32 v{v}, v{v}, v{t}"])
    def prepass_init(s, mask):
        o = []
        if mask: o += L([f"v_add_u32 v{tA}, s{sC[s]}, v{vLB}"]) + maskops(s, [0], tA)
        for nb in range(2):
            b = sreg(s, 0, nb); m = MS[s] + nb
            o += L([f"v_max3_f32 v{m}, v{b}, v{b+1}, v{b+2}", f"v_max_f32 v{m}, v{m}, v{b+3}"]) + xmax(m, tB)
            o += L([f"v_max_f32 v{m}, {f2u(-1e30):#x}, v{m}"] + [f"v_sub_f32 v{NM[s]+4*nb+r}, 0, v{m}" for r in range(4)])
        return o
    post += [Wait(lg=('kf', 3))] + prepass_mfma('b', 'b') + prepass_mfma('a', 'a') + prepass_init('b', False) + prepass_init('a', True)

    stubs = []
    def body(name, qa, ntile, vmw, stepk):
        B = Gaps(128)
        cls = {}
        def put(g, x, c, f=None):
            x = I(x) if isinstance(x, str) else x
            (f or B.put)(g % 128, x); cls[id(x)] = (c, g >= 128); return x
        for s, g0, q in (('a', 0, qa), ('b', 64, 'b')):
            g = g0
            for mb in range(4):
                for nb in range(2):
                    for js in range(4):
                        D = vr(sreg(s, mb, nb))
                        B.mf[g] = I(f"{MF} {D}, {ar(KF_+4*(mb*4+js))}, {vr(Qreg[q](nb, js))}, {vr(NM[s]+4*nb) if js == 0 else D}")
                        cls[id(B.mf[g])] = ('qk'+s, False); g += 1
            g = (g0 + 96) % 128
            for db in range(8):
                for nb in range(2):
                    for ks in range(2):
                        D = ar(O[s] + (db*2+nb)*4)
                        B.mf[g] = I(f"{MF} {D}, {ar(VF_+4*(db*2+ks))}, {vr(P[s]+(nb*2+ks)*4)}, {D}")
                        cls[id(B.mf[g])] = ('pv'+s, s == 'b'); g += 1
            E0 = g0 + 20
            for e in range(32):
                mb, nb, r = e//8, (e//4) % 2, e % 4
                src = sreg(s, mb, nb) + r; t = ET + (e % 4)
                put(E0 + 2*e, f"v_exp_f32 v{t}, v{src}", 'sm'+s)
                ts = TS[s] + nb
                if mb == 0 and r == 0: pass
                elif mb == 0 and r == 1: put(E0 + 2*e + 1, f"v_add_f32 v{ts}, v{t-1}, v{t}", 'sm'+s)
                else: put(E0 + 2*e + 1, f"v_add_f32 v{ts}, v{ts}, v{t}", 'sm'+s)
                if r % 2 == 1:
                    pd = P[s] + (nb*2 + mb//2)*4 + (mb % 2)*2 + r//2
                    put(E0 + 2*e + (1 if (mb == 0 and r == 1) or True else 3), f"v_cvt_pk_bf16_f32 v{pd}, v{t-1}, v{t}", 'sm'+s)
            for hk, gh, lim in ((0, E0, 0), (1, E0 + 32, 32)):
                lab = f"{name}_mk{s}{hk}"
                put(gh, f"s_cmp_le_i32 s{sC[s]}, {lim}", 'sm'+s); put(gh, f"s_cbranch_scc1 {lab}", 'sm'+s); put(gh, f"{lab}_r:", 'sm'+s)
            gc = E0 + 65
            lab = f"{name}_rd{s}"
            put(gc, f"v_max_f32 v1, v{TS[s]}, v{TS[s]+1}", 'sm'+s)
            put(gc, f"v_cmp_lt_f32 vcc, s{sThr}, v1", 'sm'+s)
            put(gc+1, f"s_cbranch_vccnz {lab}", 'sm'+s); put(gc+1, f"{lab}_r:", 'sm'+s)
            put(gc+1, f"v_add_f32 v{LS[s]}, v{LS[s]}, v{TS[s]}", 'sm'+s); put(gc+1, f"v_add_f32 v{LS[s]+1}, v{LS[s]+1}, v{TS[s]+1}", 'sm'+s)
        put(0, "s_waitcnt lgkmcnt(0)", 'mem', B.before)
        put(4, f"s_waitcnt vmcnt({vmw})", 'mem', B.before); put(4, "s_barrier", 'mem', B.before)
        st = []
        for which, sd, sD, lo, hi in (('K', S_K, sKd, 0, 65536), ('V', S_V, sVd, 65536, 163840)):
            for t in range(ntile):
                grp = [I(f"s_mov_b32 m0, s{sD}" if which == 'K' else f"s_add_u32 m0, s{sD}, 0x10000")]
                if t: grp += L([f"s_add_u32 s{sT3}, s{sGd}, 16384"])
                grp += [I(f"buffer_load_dwordx4 v{vDM}, {sr(sd)}, s{sT3 if t else sGd} offen offset:{j*1024} lds") for j in range(4)]
                st += grp
                if which == 'K': st += L([f"s_add_u32 s{sD}, s{sD}, 16384", f"s_and_b32 s{sD}, s{sD}, 0xffff"])
                else: st += L([f"s_add_u32 s{sD}, s{sD}, 16384", f"s_sub_u32 s{sT}, s{sD}, 98304", f"s_min_u32 s{sD}, s{sD}, s{sT}"])
        tailsalu = []
        while st[-1].kind != 'vmem': tailsalu.insert(0, st.pop())
        for x in st + tailsalu: cls[id(x)] = ('mem', False)
        endg = place_stream(B, [(5, st)], 14//ntile, start=6)
        assert endg <= 124, endg
        for j, x in enumerate(tailsalu): B.put(120 + j, x)
        put(44, f"v_add_u32 v{vVr}, s{sVr}, v{vX}", 'mem'); put(78, f"v_add_u32 v{vKr}, s{sKr}, v{vL16}", 'mem')
        for f in range(16):
            put(47 + 2*f, f"ds_read_b128 {ar(VF_+4*f)}, v{vVr} offset:{f*1024}", 'mem')
            put(81 + 2*f, f"ds_read_b128 {ar(KF_+4*f)}, v{vKr} offset:{f*1024}", 'mem')
        put(96, "s_waitcnt lgkmcnt(8)", 'mem', B.before)
        upd = [f"s_add_u32 s{sGd}, s{sGd}, {ntile*16384}", f"s_mov_b32 s{sVr}, s{sVk}",
               f"s_add_u32 s{sKr}, s{sKr}, {stepk*16384}", f"s_and_b32 s{sKr}, s{sKr}, 0xffff",
               f"s_add_u32 s{sVk}, s{sVk}, {stepk*16384}", f"s_sub_u32 s{sT2}, s{sVk}, 98304", f"s_min_u32 s{sVk}, s{sVk}, s{sT2}"]
        for j, x in enumerate(upd): put((124 if j == 0 else 112) + (0 if j == 0 else j), x, 'mem')
        return B, cls
    def cupd(B, cls, step):
        for s, g in (('a', 60), ('b', 125)):
            x = I(f"s_sub_u32 s{sC[s]}, s{sC[s]}, {step}"); B.put(g, x); cls[id(x)] = ('cu'+s, False)
    def mkstubs(name, qa, which='ab'):
        o = []
        for s in which:
            for hk in range(2):
                lab = f"{name}_mk{s}{hk}"
                o += L([f"{lab}:", f"v_add_u32 v{tA}, s{sC[s]}, v{vLB}"]) + maskops(s, [2*hk, 2*hk+1], tA) + L([f"s_branch {lab}_r"])
            lab = f"{name}_rd{s}"
            o += L([f"{lab}:", f"s_call_b64 s[{sRet}:{sRet+1}], K2_REDO_{s}", f"s_branch {lab}_r"])
        return o
    def redo(s):
        o = L([f"K2_REDO_{s}:", "s_nop 7"])
        for nb in range(2):
            vals = [sreg(s, mb, nb) + r for mb in range(4) for r in range(4)]
            o += L([f"v_max3_f32 v{tA}, v{vals[0]}, v{vals[1]}, v{vals[2]}"] + [f"v_max3_f32 v{tA}, v{tA}, v{vals[k]}, v{vals[k+1]}" for k in range(3, 15, 2)]
                   + [f"v_max_f32 v{tA}, v{tA}, v{vals[15]}"]) + xmax(tA, tB)
            o += L([f"v_max_f32 v{tA}, 0, v{tA}", f"v_add_f32 v{MS[s]+nb}, v{MS[s]+nb}, v{tA}", f"v_sub_f32 v{tB}, 0, v{tA}", f"v_exp_f32 v{tB}, v{tB}"])
            o += L([f"v_sub_f32 v{NM[s]+4*nb+r}, 0, v{MS[s]+nb}" for r in range(4)])
            o += L([f"v_mul_f32 v{LS[s]+nb}, v{LS[s]+nb}, v{tB}"])
            o += L([f"v_sub_f32 v{v}, v{v}, v{tA}" for v in vals])
            for db in range(8):
                for r in range(4):
                    a = O[s] + (db*2+nb)*4 + r
                    o += L([f"v_accvgpr_read_b32 v0, a{a}", f"v_mul_f32 v0, v0, v{tB}", f"v_accvgpr_write_b32 a{a}, v0"])
            o += L([f"v_mov_b32 v{TS[s]+nb}, 0"])
            for mb in range(4):
                for r in (0, 2):
                    b = sreg(s, mb, nb) + r
                    pd = P[s] + (nb*2 + mb//2)*4 + (mb % 2)*2 + r//2
                    o += L([f"v_exp_f32 v{tA}, v{b}", f"v_exp_f32 v{tB}, v{b+1}", f"v_add_f32 v{TS[s]+nb}, v{TS[s]+nb}, v{tA}",
                            f"v_add_f32 v{TS[s]+nb}, v{TS[s]+nb}, v{tB}", f"v_cvt_pk_bf16_f32 v{pd}, v{tA}, v{tB}"])
        o += L(["s_nop 1", f"s_setpc_b64 s[{sRet}:{sRet+1}]"])
        return o

    def lin(B, cls, lo, hi, keep, ren=None):
        out = []
        for x in B.linear(lo, hi):
            c = cls.get(id(x), ('mem', False))
            if keep(c[0], c[1]):
                out.append(I(x.text.replace(*ren)) if ren else x)
        return out
    D, cD = body("D", 'a', 1, 4, 1); cupd(D, cD, 64)
    S1, c1 = body("S1", 'a', 2, 4, 2); cupd(S1, c1, 64)
    SS, cS = body("S", 'x', 2, 8, 2); cupd(SS, cS, 128)
    allk = lambda c, w: True
    pream = lin(D, cD, 0, 64, lambda c, w: c in ('qka', 'sma', 'mem', 'cua'), ("D_", "PR_"))
    k = [n for n, x in enumerate(pream) if x.op == 's_barrier'][0]
    pream[k+1:k+1] = [I(f"ds_read_b128 {vr(Qreg['x'](nb, js))}, v{tB} offset:{(js*2+nb)*1024}") for js in range(4) for nb in range(2)]
    pream[k+1:k+1] = L([f"v_lshlrev_b32 v{tB}, 1, v{vDM}", f"v_sub_u32 v{tB}, v{tB}, v{vL16}", f"v_add_u32 v{tB}, {XB}, v{tB}", f"v_xor_b32 v{tB}, 0x2000, v{tB}"])
    for n, x in enumerate(pream):
        if x.text.startswith("s_waitcnt vmcnt"): pream[n] = Wait(vm=[('KV', 'K', 1), ('KV', 'V', 0)], lg=0)
    head = pre + stamp(4) + G.linear(0, 512) + stamp(5) + G.linear(512, 768) + stamp(6) + post + stamp(7) + pream
    head = resolve_waits(head)
    head, n1 = fix_hazards(head)
    D1, D2 = lin(D, cD, 0, 64, allk), lin(D, cD, 64, 128, allk)
    dl = L(["K2_D:"]) + D1 + L(["K2_D_MID:"]) + D2 + L([f"s_sub_u32 s{sCnt}, s{sCnt}, 1", "s_cbranch_scc0 K2_D"])
    dl, n2 = fix_hazards(dl, pre=dl[-20:])
    chk, n2b = fix_hazards(L(["s_branch K2_D_MID"]) + D2[:24], pre=head[-20:]); assert n2b == 0, n2b
    mid = L([f"s_lshl_b32 s{sT}, s{sPar}, 14", f"s_add_u32 s{sKr}, s{sKr}, s{sT}", f"s_and_b32 s{sKr}, s{sKr}, 0xffff",
             f"s_add_u32 s{sVk}, s{sVk}, s{sT}", f"s_sub_u32 s{sT2}, s{sVk}, 98304", f"s_min_u32 s{sVk}, s{sVk}, s{sT2}"])
    mid += stamp(8) + lin(S1, c1, 0, 128, allk) + stamp(9)
    def finalize(s, so, zero, wts=None):
        o = []
        for j in range(4):
            for nb in range(2):
                t = ET if (j*2+nb) % 2 == 0 else 128
                t8 = 136 + ((j*2+nb) % 2)*8
                for hh in range(2):
                    for r in range(4):
                        a = O[s] + ((2*j+hh)*2+nb)*4 + r
                        o += L([f"v_accvgpr_read_b32 v{t8+hh*4+r}, a{a}"])
                        if zero: o += L([f"v_accvgpr_write_b32 a{a}, 0"])
                for k in range(8):
                    if wts is None: o += L([f"v_mul_f32 v{t8+k}, v{t8+k}, v{TS[s]+nb}"])
                    else:
                        x = wts + ((2*j + k//4)*2+nb)*4 + k % 4
                        o += L([f"v_mul_f32 v{t8+k}, v{t8+k}, v{TS['b']+nb}", f"v_fmac_f32 v{t8+k}, v{x}, v{TS['a']+nb}"])
                o += L([f"v_cvt_pk_bf16_f32 v{t+k}, v{t8+2*k}, v{t8+2*k+1}" for k in range(4)])
                o += L([f"buffer_store_dwordx4 {vr(t)}, v{vL16}, {sr(S_WS)}, s{so+nb} offen offset:{j*1024}"])
        return o
    tr = []
    for nb in range(2):
        tr += xadd(LS['a']+nb, tB) + L([f"v_rcp_f32 v{TS['a']+nb}, v{LS['a']+nb}", f"v_mov_b32 v{LS['a']+nb}, 0"])
    tr += finalize('a', sXN, True)
    tr += L([f"s_lshl_b32 s{sT}, s{sPar}, 6", f"s_sub_u32 s{sC['b']}, s{sC['b']}, s{sT}",
             f"s_add_u32 s{sC['a']}, s{sC['b']}, 32", f"s_sub_u32 s{sC['a']}, s{sC['a']}, s{sT}",
             f"s_lshl_b32 s{sCnt}, s{sI}, 1", f"s_sub_u32 s{sCnt}, 14, s{sCnt}", "s_waitcnt lgkmcnt(0)"])
    tr += prepass_mfma('a', 'x') + prepass_init('a', True)
    mid += tr + stamp(10)
    mid, n3 = fix_hazards(mid, pre=dl[-20:])
    sl = L(["K2_S:"]) + lin(SS, cS, 0, 128, allk) + L([f"s_sub_u32 s{sCnt}, s{sCnt}, 1", "s_cbranch_scc0 K2_S"])
    sl, n4 = fix_hazards(sl, pre=sl[-20:])
    chk, n4b = fix_hazards(sl[:24], pre=mid[-20:]); assert n4b == 0, n4b
    tail = lin(SS, cS, 0, 64, lambda c, w: c in ('smb', 'pvb'), ("S_", "TL_"))
    tail = L(["s_waitcnt vmcnt(0) lgkmcnt(0)", "s_barrier",
              f"v_lshlrev_b32 v{tA}, 2, v{vDM}", f"v_mul_u32_u24 v{tB}, 3, v{vL16}", f"v_sub_u32 v{vKr}, v{tA}, v{tB}",
              f"v_xor_b32 v{vVr}, 0x4000, v{vKr}",
              f"v_lshrrev_b32 v{vDM}, 2, v{vKr}", f"v_and_b32 v{vDM}, 0xfffff000, v{vDM}", f"v_add_u32 v{vDM}, v{vDM}, v{vL16}", f"v_add_u32 v{vDM}, 0x10000, v{vDM}"]) + \
           L([f"ds_write_b128 v{vKr}, {ar(O['a']+4*f)} offset:{f*1024}" for f in range(16)]) + \
           L([f"v_mov_b32 v{NM['a']}, v{MS['a']}", f"v_mov_b32 v{NM['a']+1}, v{MS['a']+1}", f"v_mov_b32 v{NM['a']+2}, v{LS['a']}", f"v_mov_b32 v{NM['a']+3}, v{LS['a']+1}",
              f"ds_write_b128 v{vDM}, {vr(NM['a'])}"]) + tail
    XO = 64
    tail += L(["s_waitcnt lgkmcnt(0)", "s_barrier", f"v_xor_b32 v{vDM}, 0x1000, v{vDM}", f"ds_read_b128 {vr(NM['a'])}, v{vDM}"])
    tail += L([f"ds_read_b128 {vr(XO+4*f)}, v{vVr} offset:{f*1024}" for f in range(16)])
    tail += L(["s_waitcnt lgkmcnt(15)"])
    for nb in range(2):
        mx, lx, mb_, lb = NM['a']+nb, NM['a']+2+nb, MS['b']+nb, LS['b']+nb
        tail += L([f"v_max_f32 v{tA}, v{mx}, v{mb_}", f"v_sub_f32 v{mx}, v{mx}, v{tA}", f"v_sub_f32 v{mb_}, v{mb_}, v{tA}",
                   f"v_exp_f32 v{mx}, v{mx}", f"v_exp_f32 v{mb_}, v{mb_}",
                   f"v_mul_f32 v{lb}, v{lb}, v{mb_}", f"v_fmac_f32 v{lb}, v{lx}, v{mx}"]) + xadd(lb, tB)
        tail += L([f"v_rcp_f32 v{lb}, v{lb}", f"v_mul_f32 v{TS['b']+nb}, v{mb_}, v{lb}", f"v_mul_f32 v{TS['a']+nb}, v{mx}, v{lb}"])
    tail += L(["s_waitcnt lgkmcnt(0)"]) + finalize('b', sXN+2, False, wts=XO)
    tail += prof_end(1, S_WS, sW, 4)
    tail, n5 = fix_hazards(tail, pre=sl[-20:])
    st = mkstubs("PR", 'a', 'a')[:]
    st = [x for x in st]
    alltext = "\n".join(x.text for x in head + dl + mid + sl + tail)
    stubs = []
    for nm in ("PR", "D", "S1", "S", "TL"):
        cur = []
        for x in mkstubs(nm, None):
            if x.kind == 'label':
                if cur and (cur[0].text[:-1] + "_r:") in alltext: stubs += fix_hazards(cur)[0]
                cur = []
            cur.append(x)
        if cur and (cur[0].text[:-1] + "_r:") in alltext: stubs += fix_hazards(cur)[0]
    stubs += fix_hazards(redo('a'))[0] + fix_hazards(redo('b'))[0]
    seq = head + L(["s_branch K2_D_MID"]) + dl + mid + sl + tail + L(["K2_END:", "s_endpgm"]) + stubs
    print("K2: instrs", len(seq), "nops head/D/mid/S/tail", n1, n2, n3, n4, n5)
    if os.environ.get("REPORT"): SS.report()
    return seq

if __name__ == "__main__":
    ks = [("kvproj_kernel", 256, 256, 163840, gen_k1(), 512, 256),
          ("attn_kernel", 256, 256, 163840, gen_k2(), 512, 256)]
    emit(ks, sys.argv[1] if len(sys.argv) > 1 else "k.s")
```

```python
from gen import *
from gen_k2 import gen_k2

def gen_k3():
    S_WS, S_WO, S_W2, S_X, S_OUT = 4, 8, 12, 16, 20
    sW, sTm, sTn = 24, 25, 26
    sT, sT2, sT3 = 27, 28, 29
    sM = 30
    sKK = 32
    NB = 4
    vL, vL16 = 2, 3
    vA = 4
    vWD = 8
    vT = 12
    tA, tB = 16, 17
    vXo, vXv = 18, 20
    WF = 24
    AF = 56
    ACC = 120
    pre = prof_begin()
    pre += L(["s_load_dwordx2 s[56:57], s[0:1], 0", "s_load_dwordx2 s[58:59], s[0:1], 40", "s_load_dwordx4 s[60:63], s[0:1], 72",
              "s_load_dwordx2 s[64:65], s[0:1], 96", "s_cmp_ge_u32 s2, 256", "s_cbranch_scc1 K3_END"])
    pre += code_prefetch(None, "K3_PC", 12288, 19, 18, nthreads=512, sp=66)
    pre += L(["v_lshrrev_b32 v1, 6, v0", f"v_and_b32 v{vL}, 63, v0", f"v_readfirstlane_b32 s{sW}, v1", f"v_lshlrev_b32 v{vL16}, 4, v{vL}",
              f"s_and_b32 s{sT}, s2, 7", f"s_lshl_b32 s{sT}, s{sT}, 2", f"s_bfe_u32 s{sT2}, s2, 0x20003", f"s_add_u32 s{sTm}, s{sT}, s{sT2}",
              f"s_lshr_b32 s{sTn}, s2, 5",
              f"s_lshl_b32 s{sT2}, s{sT2}, 1", f"s_add_u32 s{sT2}, s{sT2}, s{sTn}",
              f"s_lshl_b32 s{sT3}, s{sW}, 4", f"s_lshl_b32 s{sM}, s{sW}, 14"])
    for s in range(16):
        pre += L([f"s_add_u32 s{sT}, s{sT2}, {s}", f"s_and_b32 s{sT}, s{sT}, 7", f"s_add_u32 s{sT}, s{sT}, s{sT3}",
                  f"s_add_u32 s{sT}, s{sT}, {8*(s//8)}", f"s_lshl_b32 s{sKK+s}, s{sT}, 10"])
    pre += L([f"s_sub_u32 s{sT}, s{sT2}, 5", f"s_min_u32 s{sT2}, s{sT2}, s{sT}", f"s_sub_u32 s{sT}, s{sT2}, 5", f"s_min_u32 s{sT2}, s{sT2}, s{sT}",
              f"s_mul_i32 s{sT3}, s{sW}, 5"])
    for s in range(5):
        pre += L([f"s_add_u32 s{sT}, s{sT2}, {s}", f"s_sub_u32 s31, s{sT}, 5", f"s_min_u32 s{sT}, s{sT}, s31", f"s_add_u32 s{sT}, s{sT}, s{sT3}",
                  f"s_lshl_b32 s{sKK+16+s}, s{sT}, 10"])
    pre += L([f"s_add_u32 s{sT}, s{sW}, 40", f"s_min_u32 s{sT}, s{sT}, 43", f"s_lshl_b32 s{sKK+21}, s{sT}, 10"])
    pre += L([f"s_mul_i32 s{sT}, s{sTm}, {4*CA_RB}", f"s_add_u32 s{sT}, s{sT}, {WS_CA}", f"v_add_u32 v{vA}, s{sT}, v{vL16}"] +
             [f"v_add_u32 v{vA+r}, {r*CA_RB}, v{vA}" for r in range(1, 4)])
    pre += L([f"v_bfe_u32 v{tA}, v{vL}, 4, 2", f"v_lshlrev_b32 v{tA}, 1, v{tA}", f"v_and_b32 v{tB}, 7, v{vL}", f"v_xor_b32 v{tA}, v{tA}, v{tB}",
              f"v_lshlrev_b32 v{tA}, 4, v{tA}", f"v_lshrrev_b32 v{tB}, 3, v{vL}", f"v_lshl_add_u32 v{vWD}, v{tB}, 10, v{tA}",
              f"s_lshl_b32 s{sT}, s{sTn}, 7", f"v_add_u32 v{vWD}, s{sT}, v{vWD}"] + [f"v_add_u32 v{vWD+j}, {7168*j}, v{vWD}" for j in range(1, 4)])
    pre += L([f"v_lshrrev_b32 v{tA}, 2, v{vL}", f"v_lshlrev_b32 v{tA}, 7, v{tA}", f"v_and_b32 v{tB}, 3, v{vL}", f"v_lshl_add_u32 v{tA}, v{tB}, 3, v{tA}",
              f"v_bfe_u32 v{tB}, v{vL}, 3, 2", f"v_lshl_add_u32 v{tA}, v{tB}, 5, v{tA}", f"v_add_u32 v{vT}, s{sM}, v{tA}"] +
             [f"v_xor_b32 v{vT+c}, {c*32}, v{vT}" for c in range(1, 4)])
    pre += L(["s_waitcnt lgkmcnt(0)"]) + stamp(1)
    pre += L(srd(S_WS, 64, 65, WS_SIZE) + srd(S_WO, 58, 59, 0x400000))
    def loads(s):
        b = s % NB
        o = []
        if s < 16: o += L([f"s_lshl_b32 s{sT}, s{sKK+s}, 5"]); sd = S_WO; sa = sKK+s
        else:
            o += L([f"s_lshl_b32 s{sT}, s{sKK+s}, 5", f"s_add_u32 s{sKK+s}, s{sKK+s}, {128*1024}"]); sd = S_W2; sa = sKK+s
        o += L([f"s_add_u32 m0, s{sM}, {b*4096}"])
        o += [T(f"buffer_load_dwordx4 {vr(AF+16*b+4*r)}, v{vA+r}, {sr(S_WS)}, s{sa} offen", ('L', s)) for r in range(4)]
        o += [T(f"buffer_load_dwordx4 v{vWD+j}, {sr(sd)}, s{sT} offen offset:{j*1024} lds", ('L', s)) for j in range(4)]
        return o
    pre += loads(0)
    pre += L(srd(S_W2, 60, 61, 1376*1024) + srd(S_X, 56, 57, 0x200000) + srd(S_OUT, 62, 63, 0x200000))
    pre += loads(1) + loads(2)
    pre += L([f"v_lshrrev_b32 v{tA}, 3, v0", f"v_and_b32 v{tB}, 7, v0", f"v_lshlrev_b32 v{vXo}, 10, v{tA}", f"v_lshl_add_u32 v{vXo}, v{tB}, 4, v{vXo}",
              f"s_lshl_b32 s{sT2}, s{sTm}, 16", f"s_lshl_b32 s{sT3}, s{sTn}, 7", f"s_add_u32 s31, s{sT2}, s{sT3}"])
    pre += [T(f"buffer_load_dwordx4 {vr(vXv)}, v{vXo}, {sr(S_X)}, s31 offen", 'x')]
    def reads(s):
        b = s % NB
        return [T(f"ds_read_b64_tr_b16 {vr(WF+16*(s%2)+4*c+2*t, 2)}, v{vT+c} offset:{b*4096 + t*2048}", ('R', s, c)) for c in range(4) for t in range(2)]
    NS = 22
    G = Gaps(16*NS)
    pre += [Wait(vm=('L', 0))] + reads(0) + stamp(2)
    for s in range(NS):
        g = 16*s
        for c in range(4):
            for r in range(4):
                D = vr(ACC + (c*4+r)*4)
                G.mf[g + c*4 + r] = I(f"{MF} {D}, {vr(WF+16*(s%2)+4*c)}, {vr(AF+16*(s%NB)+4*r)}, {'0' if s == 0 else D}")
            G.before(g + c*4, Wait(lg=('R', s, c)))
        if s + 1 < NS:
            G.before(g + 6, Wait(vm=('L', s+1)))
            for j, x in enumerate(reads(s+1)): G.put(g + 6 + j, x)
        if s + 3 < NS:
            for j, x in enumerate(loads(s+3)): G.put(g + min(15, j + j//2), x)
    main = G.linear(0, 16*(NS-1))
    last = G.linear(16*(NS-1), 16*NS)
    fin = L(["s_waitcnt vmcnt(0) lgkmcnt(0)"]) + stamp(4)
    fin += L([f"v_and_b32 v{tA}, 15, v{vL}", f"v_lshrrev_b32 v{tB}, 4, v{vL}", f"v_xor_b32 v{tB}, v{tA}, v{tB}", f"v_lshlrev_b32 v{tB}, 4, v{tB}",
              f"v_lshl_add_u32 v{tA}, v{tA}, 8, v{tB}", f"v_add_u32 v{vT}, s{sM}, v{tA}"] + [f"v_xor_b32 v{vT+c}, {c*64}, v{vT}" for c in range(1, 4)])
    fin += L([f"ds_write_b128 v{vT+c}, {vr(ACC+(c*4+r)*4)} offset:{r*4096}" for c in range(4) for r in range(4)])
    fin += L([f"v_lshrrev_b32 v{tA}, 3, v0", f"v_and_b32 v{tB}, 7, v0", f"v_lshlrev_b32 v{tB}, 1, v{tB}", f"v_and_b32 v{vWD}, 15, v{tA}",
              f"v_xor_b32 v{tB}, v{tB}, v{vWD}", f"v_lshlrev_b32 v{tB}, 4, v{tB}", f"v_lshl_add_u32 v{vA}, v{tA}, 8, v{tB}", f"v_xor_b32 v{vA+1}, 16, v{vA}",
              f"v_add_u32 v{vA+2}, 0x10000, v{vA}", f"v_add_u32 v{vA+3}, 0x10000, v{vA+1}",
              "s_waitcnt lgkmcnt(0)", "s_barrier"])
    R = 56
    for p in range(8):
        for hh in range(2):
            fin += [T(f"ds_read_b128 {vr(R+8*p+4*hh)}, v{vA+hh+2*(p//4)} offset:{(p%4)*16384}", ('P', p))]
    for k in range(4):
        fin += L([f"v_lshlrev_b32 v{WF+2*k}, 16, v{vXv+k}", f"v_and_b32 v{WF+2*k+1}, 0xffff0000, v{vXv+k}"])
    for p in range(8):
        fin += [Wait(lg=('P', p))] + L([f"v_add_f32 v{WF+k}, v{WF+k}, v{R+8*p+k}" for k in range(8)])
    fin += L([f"v_cvt_pk_bf16_f32 v{vXv+k}, v{WF+2*k}, v{WF+2*k+1}" for k in range(4)])
    fin += L([f"buffer_store_dwordx4 {vr(vXv)}, v{vXo}, {sr(S_OUT)}, s31 offen"])
    seq = pre + main + stamp(3) + L([f"s_cmp_ge_u32 s{sW}, 3", "s_cbranch_scc1 K3_SKIP"]) + last + L(["K3_SKIP:", "s_nop 7"]) + fin + prof_end(2, S_WS, sW, 8, vtmp=56)
    seq = resolve_waits(seq)
    seq, n = fix_hazards(seq)
    print("K3: instrs", len(seq), "nops", n)
    return seq + L(["K3_END:", "s_endpgm"])

if __name__ == "__main__":
    ks = [("kvproj_kernel", 256, 256, 163840, gen_k1(), 512, 256),
          ("attn_kernel", 256, 256, 163840, gen_k2(), 512, 256),
          ("outproj_kernel", 256, 512, 131072, gen_k3(), 184, 184)]
    emit(ks, sys.argv[1] if len(sys.argv) > 1 else "k.s")
```

```python
import math, sys, struct, os
from asmlib import *

WS_XN = 0x0
WS_KF = 0x200000
WS_VF = 0x1200000
WS_CA = 0x2200000
CA_RB = 172*1024
WS_EX = 0x4000000
WS_FL = 0x5000000
WS_SIZE = 0x10000000
SCALE = math.log2(math.e) / math.sqrt(128.0)
def f2u(f): return struct.unpack('<I', struct.pack('<f', f))[0]
MF = "v_mfma_f32_16x16x32_bf16"
def vr(b, n=4): return f"v[{b}:{b+n-1}]"
def ar(b, n=4): return f"a[{b}:{b+n-1}]"
def sr(b, n=4): return f"s[{b}:{b+n-1}]"
def L(lines): return [I(x) if isinstance(x, str) else x for x in lines]

def srd(d, lo, hi, size):
    return [f"s_mov_b32 s{d}, s{lo}", f"s_mov_b32 s{d+1}, s{hi}",
            f"s_mov_b32 s{d+2}, {size}" , f"s_mov_b32 s{d+3}, 0x00020000"]
def srd_off(d, lo, hi, soff, size):
    return [f"s_add_u32 s{d}, s{lo}, s{soff}\n    s_addc_u32 s{d+1}, s{hi}, 0", f"s_sub_u32 s{d+2}, {size}, s{soff}", f"s_mov_b32 s{d+3}, 0x00020000"]

PROF = bool(os.environ.get("PROF"))
STF = os.environ.get("STF", " sc1")
STX = os.environ.get("STX", " sc1")
STF2 = os.environ.get("STF2", " sc1")
WS_PROF = 0xF000000
NSTAMP = 12
def stamp(k):
    return [I(f"s_memtime s[{72+2*k}:{73+2*k}]")] if PROF else []
def prof_begin():
    return ([I("s_memrealtime s[96:97]")] + [x for k in range(NSTAMP) for x in stamp(k)]) if PROF else []
def prof_end(kidx, S_WS, sW, nwaves, vtmp=0):
    if not PROF: return []
    o = L(["s_waitcnt vmcnt(0)", "s_memrealtime s[98:99]"]) + stamp(NSTAMP-1) + L(["s_waitcnt lgkmcnt(0)",
          f"s_mul_i32 s70, s2, {nwaves}", f"s_add_u32 s70, s70, s{sW}", "s_lshl_b32 s70, s70, 6",
          f"s_add_u32 s70, s70, {WS_PROF + kidx*0x40000}", f"v_mov_b32 v{vtmp+16}, 0"])
    regs = [96, 98] + [72+2*k for k in range(NSTAMP)] + [97, 99]
    for j, rg in enumerate(regs): o += L([f"v_mov_b32 v{vtmp+j}, s{rg}"])
    for j in range(4):
        o += L([f"buffer_store_dwordx4 {vr(vtmp+4*j)}, v{vtmp+16}, {sr(S_WS)}, s70 offen offset:{16*j}"])
    return o

def code_prefetch(label, here, wide, vdst, vaddr, sp, st, vtid=0):
    sh = 3 if wide else 2
    o = [f"s_getpc_b64 s[{sp}:{sp+1}]", f"{here}:"]
    if label is not None:
        o += [f"s_add_u32 s{sp}, s{sp}, {label}-{here}\n    s_addc_u32 s{sp+1}, s{sp+1}, 0"]
    o += [f"s_bfe_u32 s{st}, s2, 0x50003", f"s_lshl_b32 s{st}, s{st}, {8+sh}", f"v_lshlrev_b32 v{vaddr}, {sh}, v{vtid}", f"v_add_u32 v{vaddr}, s{st}, v{vaddr}",
          f"global_load_dwordx2 {vr(vdst, 2)}, v{vaddr}, s[{sp}:{sp+1}]" if wide else f"global_load_dword v{vdst}, v{vaddr}, s[{sp}:{sp+1}]"]
    return L(o)

def red32(v, t):
    dpp = " row_mask:0xf bank_mask:0xf"
    return [f"v_add_f32_dpp v{v}, v{v}, v{v} quad_perm:[1,0,3,2]{dpp}",
            f"v_add_f32_dpp v{v}, v{v}, v{v} quad_perm:[2,3,0,1]{dpp}",
            f"v_add_f32_dpp v{v}, v{v}, v{v} row_half_mirror{dpp}",
            f"v_add_f32_dpp v{v}, v{v}, v{v} row_mirror{dpp}",
            f"v_mov_b32 v{t}, v{v}",
            f"v_permlane16_swap_b32 v{t}, v{v}",
            f"v_add_f32 v{v}, v{v}, v{t}"]

def w_dma_voff(vlane, vd0, vd1, pitch, t1, t2):
    return [f"v_bfe_u32 v{t1}, v{vlane}, 4, 1", f"v_lshlrev_b32 v{t1}, 1, v{t1}", f"v_and_b32 v{t2}, 7, v{vlane}",
            f"v_xor_b32 v{t1}, v{t1}, v{t2}", f"v_lshlrev_b32 v{t1}, 4, v{t1}",
            f"v_lshrrev_b32 v{t2}, 3, v{vlane}", f"v_mul_u32_u24 v{t2}, {pitch}, v{t2}",
            f"v_add_u32 v{vd0}, v{t1}, v{t2}", f"v_xor_b32 v{t1}, 64, v{t1}", f"v_add_u32 v{vd1}, v{t1}, v{t2}",
            f"v_add_u32 v{vd1}, {8*pitch-1024}, v{vd1}"]
def w_tr_addr(vlane, vT, t1, t2):
    o = [f"v_lshrrev_b32 v{t1}, 4, v{vlane}", f"v_lshlrev_b32 v{t1}, 10, v{t1}",
         f"v_bfe_u32 v{t2}, v{vlane}, 2, 2", f"v_lshl_add_u32 v{t1}, v{t2}, 7, v{t1}",
         f"v_and_b32 v{t2}, 3, v{vlane}", f"v_lshl_add_u32 v{t1}, v{t2}, 3, v{t1}",
         f"v_bfe_u32 v{t2}, v{vlane}, 3, 2",
         f"v_lshl_add_u32 v{vT}, v{t2}, 5, v{t1}"]
    for cb in range(1, 4): o += [f"v_xor_b32 v{vT+cb}, {cb*32}, v{vT}"]
    return o

def gemm_groups(G, g0, groups, WF, pre, nbuf=2):
    starts = []; g = g0
    for gr in groups:
        starts.append(g); g += len(gr['frags'])*len(gr['chains'])
    for n, gr in enumerate(groups):
        CH = len(gr['frags'])
        base = WF + (n % nbuf)*4*gr.get('bufsz', CH)
        tagid = gr.setdefault('id', (g0, n))
        reads = []
        for j, (va, off) in enumerate(gr['frags']):
            for t in range(2):
                reads.append(T(f"ds_read_b64_tr_b16 {vr(base+4*j+2*t,2)}, v{va} offset:{off+t*512}", ('wf', tagid, j)))
        if n == 0:
            pre.extend(gr.get('sync') or []); pre.extend(reads); gr['syncgap'] = None
        else:
            ps = starts[n-1]; plen = starts[n] - ps
            first = ps + 1
            for x in (gr.get('sync') or []): G.before(first, x)
            gr['syncgap'] = first
            span = max(len(reads), (plen*3)//4 - 1)
            for i, x in enumerate(reads): G.put(first + (i*span)//len(reads), x)
        gg = starts[n]
        for c, ch in enumerate(gr['chains']):
            for j in range(CH):
                G.mf[gg] = I(ch[j](base + 4*j))
                if c == 0 and (j % 2 == 0):
                    G.before(gg, Wait(lg=[('wf', tagid, min(j+1, CH-1))] + (gr.get('lgwait', []) if j == 0 else [])))
                gg += 1
    return starts, g

def place_stream(G, groups, spacing, start=2):
    cur = start; last = start - 2
    for (e, ins) in groups:
        cur = max(cur, e + 2); last = max(last, e)
        pend = []
        for x in ins:
            if x.kind != 'vmem': pend.append(x); continue
            for j, y in enumerate(pend): G.nv[max(last, cur - len(pend) + j)].append(y)
            pend = []
            G.put(cur, x); last = cur; cur += spacing
    return cur

def spread(G, ins, g0, g1):
    for j, x in enumerate(ins):
        g = g0 + (j*(g1-g0))//len(ins)
        if x.kind == 'vmem' and not x.wr: G.put(g+1, x)
        else: G.put(g, x)

def gen_k1():
    S_CKV, S_WK, S_WV, S_WS, S_X = 4, 8, 12, 16, 20
    sW, sH, sR = 24, 25, 26
    sK, sV = 28, 32
    sAk, sWk = 40, 48
    sAm, sWm, sT, sT2, sFl, sSc, sLN, sH8 = 56, 57, 58, 59, 60, 61, 62, 63
    vL, vL16 = 2, 3
    vAD = 4; vAR = 8; vWD = 10; vT = 12; vTh = 16
    WF = 32; ACC1 = 96; ACC0 = 128
    CHV = 8
    pre = prof_begin()
    pre += L(["s_load_dwordx4 s[28:31], s[0:1], 0", "s_load_dwordx4 s[32:35], s[0:1], 24", "s_load_dwordx2 s[36:37], s[0:1], 96",
              "s_load_dwordx2 s[64:65], s[0:1], 16", "s_load_dwordx2 s[66:67], s[0:1], 56",
              "s_cmp_ge_u32 s2, 256", "s_cbranch_scc1 K1_END"])
    pre += code_prefetch(None, "K1_PC", False, 21, 24, 38, 27)
    pre += L(["v_lshrrev_b32 v1, 6, v0", f"v_and_b32 v{vL}, 63, v0", f"v_readfirstlane_b32 s{sW}, v1",
              f"v_lshlrev_b32 v{vL16}, 4, v{vL}",
              f"s_and_b32 s{sT}, s2, 7", f"s_lshl_b32 s{sT}, s{sT}, 2", f"s_bfe_u32 s{sT2}, s2, 0x20003",
              f"s_add_u32 s{sH}, s{sT}, s{sT2}", f"s_lshr_b32 s{sR}, s2, 5"])
    pre += L([f"v_lshrrev_b32 v24, 5, v{vL}", f"v_and_b32 v25, 31, v{vL}", "v_lshlrev_b32 v26, 10, v24",
              "v_lshl_add_u32 v26, v25, 5, v26",
              "v_lshlrev_b32 v27, 9, v25", "v_lshl_add_u32 v27, v24, 4, v27"])
    pre += L([f"v_lshrrev_b32 v24, 4, v{vL}", f"v_and_b32 v25, 7, v{vL}", "v_xor_b32 v24, v24, v25", "v_lshlrev_b32 v24, 4, v24",
              f"v_lshrrev_b32 v25, 3, v{vL}", f"v_lshl_add_u32 v{vAD}, v25, 10, v24",
              f"v_xor_b32 v{vAD+1}, 64, v{vAD}", f"v_add_u32 v{vAD+1}, {8192-1024}, v{vAD+1}",
              ])
    pre += L(w_dma_voff(vL, vWD, vWD+1, 8192, 24, 25))
    pre += L([f"s_lshl_b32 s{sT}, s{sR}, 18", f"s_lshl_b32 s{sT2}, s{sW}, 16", f"s_add_u32 s{sT}, s{sT}, s{sT2}",
              f"s_mul_i32 s{sT2}, s{sW}, 24576", f"s_add_u32 s{sT2}, s{sT2}, 65536"])
    for o in range(4):
        pre += L([f"s_add_u32 s27, s{sH}, {o}", "s_and_b32 s27, s27, 3", f"s_lshl_b32 s{sAk+o}, s27, 14", f"s_add_u32 s{sAk+o}, s{sAk+o}, s{sT}",
                  f"s_lshl_b32 s{sAk+4+o}, s27, 11", f"s_add_u32 s{sAk+4+o}, s{sAk+4+o}, s{sT2}"])
    pre += L([f"s_lshl_b32 s{sWk}, s{sW}, 17",
              f"s_lshl_b32 s{sWk+1}, s{sR}, 2", f"s_add_u32 s{sWk+1}, s{sWk+1}, s{sW}", f"s_lshl_b32 s{sWk+1}, s{sWk+1}, 15",
              f"v_lshrrev_b32 v24, 4, v{vL}", "v_lshlrev_b32 v24, 13, v24", f"v_and_b32 v25, 15, v{vL}", f"v_lshl_add_u32 v{vAD+2}, v25, 4, v24"])
    pre += L([f"s_mul_i32 s{sAm}, s{sW}, 24576", f"s_add_u32 s{sAm}, s{sAm}, 65536", f"s_lshl_b32 s{sWm}, s{sW}, 11",
              f"s_lshl_b32 s{sH8}, s{sH}, 8", f"s_and_b32 s{sFl}, s{sR}, 1", f"s_lshl_b32 s{sFl}, s{sFl}, 7",
              f"s_lshl_b32 s{sT}, s2, 3", f"s_lshl_b32 s{sT2}, s{sW}, 1", f"s_add_u32 s{sT}, s{sT}, s{sT2}", f"s_lshl_b32 s{sLN}, s{sT}, 10"])
    pre += L(["s_waitcnt lgkmcnt(0)"]) + stamp(1)
    pre += L(srd(S_CKV, 30, 31, 0x200000))
    def dmaA(s, os_):
        o = []
        for k in os_:
            o += [I(f"s_add_u32 m0, s{sAk+4+k}, {(s % 3)*8192}"), I(f"s_add_u32 s{sT}, s{sAk+k}, {s*128}"),
                  T(f"buffer_load_dwordx4 v{vAD}, {sr(S_CKV)}, s{sT} offen lds", ('A', s)),
                  T(f"buffer_load_dwordx4 v{vAD+1}, {sr(S_CKV)}, s{sT} offen offset:1024 lds", ('A', s))]
        return o
    own = lambda s: dmaA(s, [0]); rest = lambda s: dmaA(s, [1, 2, 3])
    def pfW(sd, st):
        return L([f"s_add_u32 s{sT2}, s{sWk+1}, {st*128*8192}", f"buffer_load_dwordx4 v[20:23], v{vAD+2}, {sr(sd)}, s{sT2} offen"])
    def dmaUT(sd, ksl, ch, ldsoff, tag):
        return [I(f"s_add_u32 m0, s{sWm}, {ldsoff}"), I(f"s_add_u32 s{sT2}, s{sWk}, {ksl*64*8192 + ch*128}"),
                T(f"buffer_load_dwordx4 v{vWD}, {sr(sd)}, s{sT2} offen lds", tag),
                T(f"buffer_load_dwordx4 v{vWD+1}, {sr(sd)}, s{sT2} offen offset:1024 lds", tag)]
    kslot = lambda p, u: ((p % 4)*2 + u)*8192
    def dmaWK(p): return [x for u in range(2) for x in dmaUT(S_WK, (p//2)*2 + u, p % 2, kslot(p, u), ('W', p))]
    aslot = lambda sl, w: 65536 + w*24576 + sl*8192
    vloc = {}
    for j in range(4): vloc[(0, j)] = aslot(2, j); vloc[(0, 4+j)] = aslot(0, j); vloc[(1, j)] = aslot(1, j)
    vloc[(1, 4)] = kslot(4, 0); vloc[(1, 5)] = kslot(4, 1); vloc[(1, 6)] = kslot(5, 0); vloc[(1, 7)] = kslot(5, 1)
    def dmaWV(ch, ksls): return [x for k in ksls for x in dmaUT(S_WV, k, ch, vloc[(ch, k)], ('V', ch))]
    if not os.environ.get("NOMW"):
        pre += L([f"buffer_load_dwordx4 v[20:23], v{vL16}, {sr(S_CKV)}, s{sLN} offen", f"buffer_load_dwordx4 v[20:23], v{vL16}, {sr(S_CKV)}, s{sLN} offen offset:1024"])
    pre += own(0) + own(1)
    pre += L(srd_off(S_WK, 32, 33, sH8, 0x400000))
    pre += pfW(S_WK, 0)
    pre += L(srd(S_X, 28, 29, 0x200000))
    pre += [T(f"buffer_load_dwordx4 v[128:131], v26, {sr(S_X)}, s{sLN} offen", 'ln'),
            T(f"buffer_load_dwordx4 v[132:135], v26, {sr(S_X)}, s{sLN} offen offset:16", 'ln')]
    pre += rest(0) + dmaWK(0) + rest(1) + stamp(2)
    pre += L(srd_off(S_WV, 34, 35, sH8, 0x400000) + srd(S_WS, 36, 37, WS_SIZE))
    pre += L(w_tr_addr(vL, vT, 24, 25)) + L([f"v_add_u32 v{vTh+c}, 0x10000, v{vT+c}" for c in range(4)] + [f"v_add_u32 v{28+c}, 0x20000, v{vT+c}" for c in range(4)])
    pre += L([f"v_and_b32 v24, 15, v{vL}", f"v_bfe_u32 v25, v{vL}, 1, 3", f"v_lshrrev_b32 v1, 4, v{vL}", "v_xor_b32 v25, v25, v1",
              "v_lshlrev_b32 v25, 4, v25", "v_lshl_add_u32 v24, v24, 7, v25", f"v_add_u32 v{vAR}, s{sAm}, v24",
              f"v_xor_b32 v{vAR+1}, 64, v{vAR}"])
    pre += L([f"s_lshl_b32 s{sT}, s{sH}, 19", f"s_lshl_b32 s{sT2}, s{sR}, 16", f"s_add_u32 s{sT}, s{sT}, s{sT2}",
              f"s_lshl_b32 s{sT2}, s{sW}, 14", f"s_add_u32 s{sT}, s{sT}, s{sT2}"])
    for j in range(4):
        pre += L([f"s_add_u32 s{sK+j}, s{sT}, {WS_KF + j*4096}", f"s_add_u32 s{sV+j}, s{sT}, {WS_VF + j*4096}"])
    pre += L([f"s_mov_b32 s{sSc}, {f2u(SCALE):#x}"])
    X = 144; R0 = 128; m, t, d, q = 136, 137, 138, 139
    ln = [Wait(vm='ln')] + stamp(3)
    for j in range(8):
        ln += L([f"v_lshlrev_b32 v{X+2*j}, 16, v{R0+j}", f"v_and_b32 v{X+2*j+1}, 0xffff0000, v{R0+j}"])
    ln += L([f"v_add_f32 v{m}, v{X}, v{X+1}"] + [f"v_add_f32 v{m}, v{m}, v{X+j}" for j in range(2, 16)])
    ln += L(red32(m, t))
    ln += L([f"v_mul_f32 v{m}, 0x3b000000, v{m}"])
    ln += L([f"v_sub_f32 v{d}, v{X}, v{m}", f"v_mul_f32 v{q}, v{d}, v{d}"])
    for j in range(1, 16):
        ln += L([f"v_sub_f32 v{d}, v{X+j}, v{m}", f"v_fmac_f32 v{q}, v{d}, v{d}"])
    ln += L(red32(q, t))
    ln += L([f"v_mul_f32 v{q}, 0x3b000000, v{q}", f"v_cvt_pk_bf16_f32 v{m}, v{m}, v{q}",
             f"v_and_b32 v{q}, 0xffff0000, v{m}", f"v_lshlrev_b32 v{m}, 16, v{m}",
             f"v_add_f32 v{q}, {f2u(1e-5):#x}, v{q}", f"v_cvt_pk_bf16_f32 v{q}, v{q}, v{q}", f"v_lshlrev_b32 v{q}, 16, v{q}",
             f"v_sqrt_f32 v{q}, v{q}", f"v_cvt_pk_bf16_f32 v{q}, v{q}, v{q}", f"v_lshlrev_b32 v{q}, 16, v{q}",
             f"v_rcp_f32 v{q}, v{q}"])
    for j in range(8):
        a, b = X+2*j, X+2*j+1
        ln += L([f"v_sub_f32 v{a}, v{a}, v{m}", f"v_sub_f32 v{b}, v{b}, v{m}", f"v_cvt_pk_bf16_f32 v{a}, v{a}, v{b}",
                 f"v_and_b32 v{b}, 0xffff0000, v{a}", f"v_lshlrev_b32 v{a}, 16, v{a}",
                 f"v_mul_f32 v{a}, v{a}, v{q}", f"v_mul_f32 v{b}, v{b}, v{q}", f"v_cvt_pk_bf16_f32 v{R0+j}, v{a}, v{b}"])
    more = own(2) + pfW(S_WK, 1) + dmaWK(1)
    ln2 = []; k = 0
    for i, x in enumerate(ln):
        ln2.append(x)
        if i >= 4 and i % 5 == 0 and k < len(more):
            ln2.append(more[k]); k += 1
            while k < len(more) and more[k-1].kind == 'salu': ln2.append(more[k]); k += 1
    ln2 += more[k:]
    ln2 += L([f"s_lshr_b32 s{sT}, s2, 1", f"s_lshl_b32 s{sT}, s{sT}, 14", f"s_and_b32 s{sT2}, s2, 1", f"s_lshl_b32 s{sT2}, s{sT2}, 7",
             f"s_add_u32 s{sT}, s{sT}, s{sT2}", f"s_lshl_b32 s{sT2}, s{sW}, 5", f"s_add_u32 s{sT}, s{sT}, s{sT2}"])
    ln2 += L([f"buffer_store_dwordx4 {vr(R0)}, v27, {sr(S_WS)}, s{sT} offen offset:{WS_XN}{STX}",
              f"buffer_store_dwordx4 {vr(R0+4)}, v27, {sr(S_WS)}, s{sT} offen offset:{WS_XN+256}{STX}"])
    ln2 += L([f"v_and_b32 v24, 31, v{vL}", "v_lshlrev_b32 v24, 2, v24", "v_mov_b32 v25, 0", f"s_lshl_b32 s{sT}, s2, 7", f"s_add_u32 s{sT}, s{sT}, {WS_FL}",
              f"buffer_store_dword v25, v24, {sr(S_WS)}, s{sT} offen sc1"])
    pre += ln2 + stamp(4)
    def readA(s):
        slot = s % 3
        return [T(f"ds_read_b128 {ar((mb*16 + s*2 + k)*4)}, v{vAR+k} offset:{slot*8192 + mb*2048}", ('Ar', s))
                for mb in range(4) for k in range(2)]
    pre += [Wait(vm=('A', 0))] + readA(0) + [Wait(vm=('A', 1))] + readA(1) + stamp(5)
    afr = lambda mb, ks: ar((mb*16 + ks)*4)
    groups = []
    for p in range(8):
        st, ch = p//2, p % 2
        for cb in range(4):
            db = ch*4 + cb
            fr = [(vT+cb, kslot(p, j//2) + (j % 2)*4096) for j in range(4)]
            chains = []
            for mb in range(4):
                D = ACC0 + (db*4 + mb)*4
                chains.append([(lambda f, D=D, mb=mb, ks=st*4+j: f"{MF} {vr(D)}, {vr(f)}, {afr(mb, ks)}, {'0' if ks == 0 else vr(D)}") for j in range(4)])
            gr = dict(frags=fr, chains=chains, bufsz=CHV)
            if cb == 0:
                gr['sync'] = [Wait(vm=('W', p)), I("s_barrier")]; gr['pair'] = p
                if ch == 0: gr['lgwait'] = [('Ar', 2*st+1)]
            groups.append(gr)
    nk = len(groups)
    for db in range(8):
        ch, cb = db//4, db % 4
        for kh in range(16//CHV):
            fr = []
            for j in range(CHV):
                ks = kh*CHV + j
                o = vloc[(ch, ks//2)] + (ks % 2)*4096
                fr.append(((vT, vTh, 28)[o >> 16] + cb, o & 0xffff))
            chains = []
            for mb in range(4):
                D = ACC1 + ((db % 2)*4 + mb)*4
                chains.append([(lambda f, D=D, mb=mb, ks=kh*CHV+j: f"{MF} {vr(D)}, {afr(mb, ks)}, {vr(f)}, {'0' if ks == 0 else vr(D)}") for j in range(CHV)])
            gr = dict(frags=fr, chains=chains, bufsz=CHV)
            if cb == 0 and kh == 0: gr['sync'] = [Wait(vm=('V', ch)), I("s_barrier")]; gr['vch'] = ch
            groups.append(gr)
    G = Gaps(1024)
    starts, gend = gemm_groups(G, 0, groups, WF, pre)
    assert gend == 1024
    bar = {gr['pair']: gr['syncgap'] for gr in groups if 'pair' in gr}
    rdg = {2: 72, 3: 100, 4: 200, 5: 228, 6: 328, 7: 356}
    for sl, g in rdg.items():
        G.before(g, Wait(vm=('A', sl)))
        for j, x in enumerate(readA(sl)): G.put(g + 2*j, x)
        if sl + 3 < 8: G.before(g + 18, Wait(lg=('Ar', sl)))
    stream = [(0, own(3) + own(4) + pfW(S_WK, 2) + rest(2) + dmaWK(2) + rest(3) + pfW(S_WK, 3) + dmaWK(3)),
              (rdg[2]+18, own(5) + pfW(S_WV, 0) + pfW(S_WV, 1)), (rdg[3]+18, own(6) + rest(4)), (bar[2], dmaWK(4) + pfW(S_WV, 2) + rest(5) + pfW(S_WV, 3)),
              (bar[3], dmaWK(5)), (rdg[4]+18, own(7) + rest(6)), (bar[4], dmaWK(6) + rest(7)),
              (bar[5], dmaWK(7) + dmaWV(0, range(0, 4))), (bar[6], dmaWV(0, range(4, 8)) + dmaWV(1, (4, 5))), (bar[7], dmaWV(1, range(0, 4)) + dmaWV(1, (6, 7)))]
    end = place_stream(G, stream, int(os.environ.get("SP", "4")), start=4)
    print("K1 dma stream ends at gap", end)
    pf = L(srd_off(S_X, 64, 65, sH8, 0x400000) + [f"s_lshr_b32 s{sT}, s{sH8}, 1"] + srd_off(S_CKV, 66, 67, sT, 512*2752))
    pf += L([f"v_lshrrev_b32 v24, 4, v{vL}", "v_lshlrev_b32 v24, 13, v24", f"v_and_b32 v25, 15, v{vL}", "v_lshl_add_u32 v24, v25, 4, v24",
             f"v_lshrrev_b32 v25, 3, v{vL}", "v_mul_u32_u24 v25, 2752, v25", f"v_and_b32 v26, 7, v{vL}", "v_lshl_add_u32 v25, v26, 4, v25",
             f"s_lshl_b32 s{sT}, s{sR}, 2", f"s_add_u32 s{sT}, s{sT}, s{sW}", f"s_mul_i32 s{sT2}, s{sT}, {16*2752}", f"s_lshl_b32 s{sT}, s{sT}, 17"])
    for k in range(4):
        pf += L([f"buffer_load_dwordx4 v[20:23], v24, {sr(S_X)}, s{sT} offen", f"s_add_u32 s{sT}, s{sT}, 32768"])
    for k in range(2):
        pf += L([f"buffer_load_dwordx4 v[20:23], v25, {sr(S_CKV)}, s{sT2} offen", f"s_add_u32 s{sT2}, s{sT2}, {8*2752}"])
    pf += code_prefetch("attn_kernel", "K1_PC2", True, 20, 24, 38, 27)
    g = int(os.environ.get('PFG', '514'))
    for x in pf:
        G.nv[g].append(x); g += 6 if x.kind == 'vmem' else (0 if x.kind == 'label' or x.op == 's_getpc_b64' else 1)
    assert g < 1000
    ins = []
    for js in range(4):
        for mb in range(4):
            D0, D1 = ACC0 + ((2*js)*4 + mb)*4, ACC0 + ((2*js+1)*4 + mb)*4
            ins += L([f"v_mul_f32 v{D+r}, s{sSc}, v{D+r}" for D in (D0, D1) for r in range(4)])
            ins += L([f"v_cvt_pk_bf16_f32 v{D0}, v{D0}, v{D0+1}", f"v_cvt_pk_bf16_f32 v{D0+1}, v{D0+2}, v{D0+3}",
                      f"v_cvt_pk_bf16_f32 v{D0+2}, v{D1}, v{D1+1}", f"v_cvt_pk_bf16_f32 v{D0+3}, v{D1+2}, v{D1+3}",
                      f"buffer_store_dwordx4 {vr(D0)}, v{vL16}, {sr(S_WS)}, s{sK+mb} offen offset:{js*1024}{STF}"])
    spread(G, ins, 560, 830)
    tail = []
    for db in range(8):
        ins = []
        for ks in range(2):
            D0, D1 = ACC1 + ((db % 2)*4 + 2*ks)*4, ACC1 + ((db % 2)*4 + 2*ks+1)*4
            ins += L([f"v_cvt_pk_bf16_f32 v{D0}, v{D0}, v{D0+1}", f"v_cvt_pk_bf16_f32 v{D0+1}, v{D0+2}, v{D0+3}",
                      f"v_cvt_pk_bf16_f32 v{D0+2}, v{D1}, v{D1+1}", f"v_cvt_pk_bf16_f32 v{D0+3}, v{D1+2}, v{D1+3}",
                      f"buffer_store_dwordx4 {vr(D0)}, v{vL16}, {sr(S_WS)}, s{sV+db//2} offen offset:{(db%2)*2048 + ks*1024}{STF}"])
        if db < 7: spread(G, ins, 512 + 64*(db+1) + 6, 512 + 64*(db+1) + 40)
        else: tail = ins
    if os.environ.get("K1FINE"):
        seq = list(pre)
        for p in range(8): seq += stamp(2+p) + G.linear(64*p, 64*p+64)
        seq += stamp(10) + G.linear(512, 1024) + tail + prof_end(0, S_WS, sW, 4)
    else:
        seq = pre + stamp(6) + G.linear(0, 64) + stamp(7) + G.linear(64, 512) + stamp(8) + G.linear(512, 1024) + stamp(9) + tail + stamp(10) + prof_end(0, S_WS, sW, 4)
    seq = resolve_waits(seq)
    seq, n = fix_hazards(seq)
    print("K1: instrs", len(seq), "nops", n)
    return seq + L(["K1_END:", "s_endpgm"])

def emit(kernels, path):
    hdr = open('parallel_sum__compressed_kv_cla__dense_activation_mish__prompt.s.ref').read().split('\n')
    out = [l for l in hdr[:14]]
    for (name, grid, block, lds, seq, nv, acc) in kernels:
        out.append(f"; @launch kernel={name} grid=({grid},1,1) block=({block},1,1) lds={lds}")
    out += ['.amdgcn_target "amdgcn-amd-amdhsa--gfx950"', ".text"]
    for (name, grid, block, lds, seq, nv, acc) in kernels:
        out += [f".globl {name}", ".p2align 8", f".type {name},@function", f"{name}:"]
        out += [("" if i.kind == 'label' else "    ") + i.text for i in seq]
    out.append(".fill 8192, 4, 0xbf800000")
    out.append('.section .rodata,"a"')
    for (name, grid, block, lds, seq, nv, acc) in kernels:
        out += [".p2align 6", f".amdhsa_kernel {name}", f"  .amdhsa_next_free_vgpr {nv}", "  .amdhsa_next_free_sgpr 102",
                f"  .amdhsa_accum_offset {acc}", "  .amdhsa_group_segment_fixed_size 0", "  .amdhsa_kernarg_size 104",
                "  .amdhsa_user_sgpr_count 2", "  .amdhsa_user_sgpr_kernarg_segment_ptr 1",
                "  .amdhsa_system_sgpr_workgroup_id_x 1", ".end_amdhsa_kernel"]
    open(path, "w").write("\n".join(out) + "\n")

if __name__ == "__main__":
    ks = [("kvproj_kernel", 256, 256, 163840, gen_k1(), 512, 256)]
    emit(ks, sys.argv[1] if len(sys.argv) > 1 else "k.s")
```

```python
from gen import *

NEGINF = "0xff800000"
THR = f2u(2.0**60)

def gen_k2():
    S_WS, S_WQ, S_W1, S_K, S_V, S_B1 = 4, 8, 12, 16, 20, 24
    sW, sH, sI, sPar = 28, 29, 30, 31
    sXN = 32
    sAct = 36
    sWm, sT, sT2, sT3 = 44, 45, 46, 47
    sWoQ, sWo1 = 48, 50
    sKd, sVd, sGd, sKr, sVr, sVk = 50, 51, 52, 53, 54, 55
    sC = {'a': 56, 'b': 57}
    sCnt, sThr, sRet = 58, 59, 60
    sPC = 62
    sKA = 64
    vL, vL16 = 2, 3
    vX = 4
    vWDq, vWD1 = 8, 10
    vT = 12; vTh = 16; vTt = 20
    vDM, vKr, vVr, vLB = 24, 25, 26, 27
    vNI = 28
    tA, tB = 29, 30
    WF = 32
    QE = 64
    QO = 128
    HA = 192
    P = {'a': 32, 'b': 48}
    S = {'a': 128, 'b': 160}
    QX = 192
    NM = {'a': 224, 'b': 232}
    ET = 240
    TS = {'a': 244, 'b': 246}; LS = {'a': 248, 'b': 250}; MS = {'a': 252, 'b': 254}
    O = {'a': 0, 'b': 64}; KF_, VF_ = 128, 192
    qf = lambda mbx, js: QE + (js*4 + mbx)*4
    Qreg = {'a': lambda nb, js: qf(nb, js), 'b': lambda nb, js: qf(2+nb, js), 'x': lambda nb, js: QX + (js*2+nb)*4}

    pre = prof_begin()
    pre += L([f"s_load_dwordx2 s[64:65], s[0:1], 16", "s_load_dwordx2 s[68:69], s[0:1], 56",
              "s_load_dwordx2 s[66:67], s[0:1], 96", "s_load_dwordx2 s[26:27], s[0:1], 64",
              "s_cmp_ge_u32 s2, 256", "s_cbranch_scc1 K2_END"])
    pre += L(["v_mov_b32 v31, v0", "v_lshrrev_b32 v1, 6, v0", f"v_and_b32 v{vL}, 63, v0", f"v_readfirstlane_b32 s{sW}, v1",
              f"v_lshlrev_b32 v{vL16}, 4, v{vL}",
              f"s_and_b32 s{sT}, s2, 7", f"s_lshl_b32 s{sT}, s{sT}, 2", f"s_bfe_u32 s{sT2}, s2, 0x20003",
              f"s_add_u32 s{sH}, s{sT}, s{sT2}", f"s_lshr_b32 s{sI}, s2, 5", f"s_and_b32 s{sPar}, s{sW}, 1"])
    for j in range(4):
        pre += L([f"s_add_u32 s{sT}, s{sH}, {j}", f"s_and_b32 s{sT}, s{sT}, 3", f"s_lshl_b32 s{sT}, s{sT}, 10", f"v_add_u32 v{vX+j}, s{sT}, v{vL16}"])
    for u in range(2):
        pre += L([f"s_lshr_b32 s{sT}, s{sW}, 1", f"s_add_u32 s{sT}, s{sT}, s{sH}", f"s_add_u32 s{sT}, s{sT}, {2*u}", f"s_and_b32 s{sT}, s{sT}, 3",
                  f"s_lshl_b32 s{sT}, s{sT}, 1", f"s_add_u32 s{sT}, s{sT}, s{sPar}", f"s_lshl_b32 s{sWoQ+u}, s{sT}, 17", f"s_mul_i32 s{sWo1+u}, s{sT}, {16*2752}"])
    pre += L(w_dma_voff(vL, vWDq, vWDq+1, 8192, tA, tB) + w_dma_voff(vL, vWD1, vWD1+1, 2752, tA, tB))
    pre += L([f"s_lshl_b32 s{sT}, s{sI}, 3", f"s_lshl_b32 s{sT2}, s{sW}, 1", f"s_add_u32 s{sT3}, s{sT}, s{sT2}",
              f"s_sub_u32 s{sT}, 120, s{sT}", f"s_add_u32 s{sT}, s{sT}, s{sT2}",
              f"s_lshl_b32 s{sXN}, s{sT3}, 14", f"s_add_u32 s{sXN+1}, s{sXN}, 16384",
              f"s_lshl_b32 s{sXN+2}, s{sT}, 14", f"s_add_u32 s{sXN+3}, s{sXN+2}, 16384",
              f"s_mul_i32 s{sAct}, s{sT3}, {CA_RB}", f"s_mul_i32 s{sAct+4}, s{sT}, {CA_RB}",
              f"s_lshl_b32 s{sC['a']}, s{sT3}, 4", f"s_lshl_b32 s{sC['b']}, s{sT}, 4",
              f"s_lshl_b32 s{sWm}, s{sW}, 11",
              f"s_lshl_b32 s{sT}, s{sH}, 8", f"s_lshl_b32 s{sT2}, s{sH}, 7"])
    pre += L(["s_waitcnt lgkmcnt(0)"]) + stamp(1)
    pre += L(srd(S_WS, 66, 67, WS_SIZE))
    def ldX(st, js):
        return [T(f"buffer_load_dwordx4 {ar((mbx*16+4*st+j)*4)}, v{vX+j}, {sr(S_WS)}, s{sXN+mbx} offen", ('X', st))
                for j in js for mbx in range(4)] + [I(f"v_add_u32 v{vX+j}, 4096, v{vX+j}") for j in js]
    own = lambda st: ldX(st, [0]); rest = lambda st: ldX(st, [1, 2, 3])
    ring = [0, 1, 2, 3, 4, 5, 8, 9, 10, 11, 12, 13]
    pslot = lambda p, u: ring[((p % 6)*2 + u)]*8192
    hslot = [6, 7, 14, 15, 16, 17, 18, 19]
    def dmaUT(which, ksl, colb, ldsoff, tag):
        sd, vd, so, pitch = (S_W1, vWD1, sWo1, 2752) if which == 1 else (S_WQ, vWDq, sWoQ, 8192)
        return [I(f"s_add_u32 m0, s{sWm}, {ldsoff}"), I(f"s_add_u32 s{sT3}, s{so + ksl % 2}, {(ksl//2)*128*pitch + colb}"),
                T(f"buffer_load_dwordx4 v{vd}, {sr(sd)}, s{sT3} offen lds", tag),
                T(f"buffer_load_dwordx4 v{vd+1}, {sr(sd)}, s{sT3} offen offset:1024 lds", tag)]
    def dmaP(p): return [x for u in range(2) for x in dmaUT(1 if p % 2 == 0 else 0, (p//2)*2 + u, 0, pslot(p, u), ('W', p))]
    def dmaH(ks): return [x for k in ks for x in dmaUT(0, k, 128, hslot[k]*8192, 'WH')]
    DIAG = os.environ.get('DIAG')
    dst = lambda k: (L(['s_waitcnt vmcnt(0)'] if DIAG == 'w' else []) + stamp(k)) if DIAG else []
    o01 = own(0)
    pre += (o01[:1] + dst(8) + o01[1:] + dst(9)) if DIAG == 'w' else o01
    pre += L(srd_off(S_W1, 68, 69, sT2, 512*2752) + srd_off(S_WQ, 64, 65, sT, 0x400000))
    pre += dmaP(0)
    pre += L([f"s_mov_b32 s{S_B1}, s26", f"s_mov_b32 s{S_B1+1}, s27", f"s_mov_b32 s{S_B1+2}, 2752", f"s_mov_b32 s{S_B1+3}, 0x00020000",
              f"v_lshrrev_b32 v{tA}, 4, v{vL}", f"v_lshlrev_b32 v{tA}, 3, v{tA}"])
    BI = QO + 32
    pre += [T(f"buffer_load_dwordx2 {vr(BI+16+2*fb, 2)}, v{tA}, {sr(S_B1)}, s{sT2} offen offset:{fb*32}", 'bias') for fb in range(4)]
    pre += dst(10) + rest(0) + stamp(2)
    pre += L(w_tr_addr(vL, vT, tA, tB)) + L([f"v_add_u32 v{vTh+c}, 0x10000, v{vT+c}" for c in range(4)] + [f"v_add_u32 v{vTt+c}, 0x20000, v{vT+c}" for c in range(4)])
    pre += L([f"s_lshl_b32 s{sT}, s{sH}, 19", f"s_lshl_b32 s{sT2}, s{sI}, 15", f"s_sub_u32 s{sT2}, 0x80000, s{sT2}",
              f"s_add_u32 s{sT3}, s{sT}, {WS_KF}", f"s_add_u32 s{S_K}, s66, s{sT3}", f"s_addc_u32 s{S_K+1}, s67, 0", f"s_mov_b32 s{S_K+2}, s{sT2}", f"s_mov_b32 s{S_K+3}, 0x00020000",
              f"s_add_u32 s{sT3}, s{sT}, {WS_VF}", f"s_add_u32 s{S_V}, s66, s{sT3}", f"s_addc_u32 s{S_V+1}, s67, 0", f"s_mov_b32 s{S_V+2}, s{sT2}", f"s_mov_b32 s{S_V+3}, 0x00020000"])
    pre += L([f"s_add_u32 s{sAct+2}, s{sAct}, {CA_RB}", f"s_add_u32 s{sAct+6}, s{sAct+4}, {CA_RB}",
              f"s_lshl_b32 s{sT}, s{sH}, 11", f"s_add_u32 s{sT}, s{sT}, {WS_CA + 128*1024}",
              f"s_lshl_b32 s{sT2}, s{sH}, 12", f"s_add_u32 s{sT2}, s{sT2}, {WS_CA}"])
    ctxoff = []
    for mbx in range(4):
        ctxoff += L([f"s_add_u32 s{sXN+mbx}, s{sAct+2*mbx}, s{sT2}"])
    actoff = []
    for mbx in range(4):
        actoff += L([f"s_add_u32 s{sAct+2*mbx}, s{sAct+2*mbx}, s{sT}", f"s_add_u32 s{sAct+2*mbx+1}, s{sAct+2*mbx}, 1024",
                     f"s_cmp_gt_u32 s{sH}, 21", f"s_cselect_b32 s{sAct+2*mbx}, 0x10000000, s{sAct+2*mbx}",
                     f"s_cmp_gt_u32 s{sH}, 20", f"s_cselect_b32 s{sAct+2*mbx+1}, 0x10000000, s{sAct+2*mbx+1}"])
    pre += L([f"s_mov_b32 s{sKr}, s{sT}", f"s_mov_b32 s{sVr}, s{sT2}"])
    fix = lambda lst: [I(x.text.replace(f"s{sT2}", f"s{sVr}").replace(f"s{sT}", f"s{sKr}")) for x in lst]
    ctxoff, actoff = fix(ctxoff), fix(actoff)
    pre += L([f"v_lshl_add_u32 v{vDM}, s{sW}, 12, v{vL16}" if False else f"v_mov_b32 v{tA}, s{sW}", f"v_lshl_add_u32 v{vDM}, v{tA}, 12, v{vL16}",
              f"v_and_b32 v{tA}, 15, v{vL}", f"v_lshrrev_b32 v{tB}, 4, v{vL}", f"v_lshlrev_b32 v{tB}, 2, v{tB}", f"v_sub_u32 v{vLB}, v{tA}, v{tB}",
              f"v_mov_b32 v{vNI}, {NEGINF}", f"s_mov_b32 s{sThr}, {THR:#x}"])
    pre += own(1) + dmaP(1)
    pre += [Wait(vm='bias')]
    for fb in range(4):
        for hw in range(2):
            pre += L([f"v_lshlrev_b32 v{BI+4*fb+2*hw}, 16, v{BI+16+2*fb+hw}", f"v_and_b32 v{BI+4*fb+2*hw+1}, 0xffff0000, v{BI+16+2*fb+hw}"])
    pre += stamp(3)
    xfr = lambda mbx, ks: ar((mbx*16 + ks)*4)
    def tra(o, cb): return ((vT, vTh, vTt)[o >> 16] + cb, o & 0xffff)
    qacc = lambda db, mbx: (QE if db % 2 == 0 else QO) + ((db//2)*4 + mbx)*4
    groups = []
    for p in range(8):
        st = p//2
        for cb in range(4):
            fr = [tra(pslot(p, j//2) + (j % 2)*4096, cb) for j in range(4)]
            chains = []
            for mbx in range(4):
                if p % 2 == 0: D = HA + (cb*4 + mbx)*4; C0 = vr(BI + 4*cb)
                else: D = qacc(cb, mbx); C0 = '0'
                chains.append([(lambda f, D=D, mbx=mbx, ks=st*4+j, C0=C0: f"{MF} {vr(D)}, {vr(f)}, {xfr(mbx, ks)}, {C0 if ks == 0 else vr(D)}") for j in range(4)])
            gr = dict(frags=fr, chains=chains)
            if cb == 0:
                gr['sync'] = [Wait(vm=('W', p)), I("s_barrier")]; gr['pair'] = p
                if p % 2 == 0: gr['xwait'] = st
            groups.append(gr)
    for cb in range(4):
        for kq in range(4):
            fr = [tra(hslot[(kq*4+j)//2]*8192 + (j % 2)*4096, cb) for j in range(4)]
            chains = []
            for mbx in range(4):
                D = qacc(4+cb, mbx)
                chains.append([(lambda f, D=D, mbx=mbx, ks=kq*4+j: f"{MF} {vr(D)}, {vr(f)}, {xfr(mbx, ks)}, {'0' if ks == 0 else vr(D)}") for j in range(4)])
            gr = dict(frags=fr, chains=chains)
            if cb == 0 and kq == 0: gr['sync'] = [Wait(vm='WH'), I("s_barrier")]; gr['pair'] = 8
            groups.append(gr)
    G = Gaps(768)
    starts, gend = gemm_groups(G, 0, groups, WF, pre)
    assert gend == 768
    for n, gr in enumerate(groups):
        if 'xwait' in gr: G.before(starts[n], Wait(vm=('X', gr['xwait'])))
    bar = {gr['pair']: gr['syncgap'] for gr in groups if 'pair' in gr}
    def dmaKV(which, t):
        sd, base = (S_K, 0) if which == 'K' else (S_V, 65536)
        return [I(f"s_lshl_b32 s{sT3}, s{sW}, 12"), I(f"s_add_u32 m0, s{sT3}, {base + t*16384}"), I(f"s_mov_b32 s{sT3}, {t*16384}")] + \
               [T(f"buffer_load_dwordx4 v{vDM}, {sr(sd)}, s{sT3} offen offset:{j*1024} lds", ('KV', which, t)) for j in range(4)]
    trail = lambda l: l + [I("s_nop 0")] if False else l
    stream = [(0, own(2) + rest(1) + dmaP(2) + dmaP(3) + own(3) + rest(2) + dmaP(4) + dmaP(5) + rest(3)[:-3]),
              (bar[2], dmaP(6)), (bar[3], dmaP(7) + dmaH(range(8))),
              (bar[5], dmaKV('K', 2)), (bar[7], dmaKV('V', 0)), (bar[8], dmaKV('V', 1)),
              (bar[8] + 20, [])]
    end = place_stream(G, stream, 4, start=4)
    print("K2 prologue dma stream (part 1) ends at gap", end)
    gb = 512 + 40
    G.before(gb, I("s_barrier"))
    end = place_stream(G, [(gb, dmaKV('K', 0) + dmaKV('K', 1) + dmaKV('V', 2))], 5, start=max(gb, end))
    print("K2 prologue dma stream ends at gap", end)
    for j, x in enumerate(ctxoff + actoff): G.put(300 + (j//2), x)
    ins = []
    for js in range(2):
        for mbx in range(4):
            E, Od = qf(mbx, js), QO + (js*4 + mbx)*4
            ins += L([f"v_cvt_pk_bf16_f32 v{E}, v{E}, v{E+1}", f"v_cvt_pk_bf16_f32 v{E+1}, v{E+2}, v{E+3}",
                      f"v_cvt_pk_bf16_f32 v{E+2}, v{Od}, v{Od+1}", f"v_cvt_pk_bf16_f32 v{E+3}, v{Od+2}, v{Od+3}"])
    LOG2E = f2u(math.log2(math.e))
    mish = []
    for fbp in range(2):
        for mbx in range(4):
            D0, D1 = HA + ((2*fbp)*4 + mbx)*4, HA + ((2*fbp+1)*4 + mbx)*4
            regs = [D0+r for r in range(4)] + [D1+r for r in range(4)]
            for a, b in zip(regs[0::2], regs[1::2]):
                mish += L([f"v_mul_f32 v{tA}, {LOG2E:#x}, v{a}", f"v_mul_f32 v{tB}, {LOG2E:#x}, v{b}",
                           f"v_exp_f32 v{tA}, v{tA}", f"v_exp_f32 v{tB}, v{tB}",
                           f"v_add_f32 v0, 2.0, v{tA}", f"v_add_f32 v1, 2.0, v{tB}",
                           f"v_fma_f32 v{tA}, v{tA}, v0, 2.0", f"v_fma_f32 v{tB}, v{tB}, v1, 2.0",
                           f"v_rcp_f32 v{tA}, v{tA}", f"v_rcp_f32 v{tB}, v{tB}",
                           f"v_mul_f32 v{tA}, v{tA}, v{a}", f"v_mul_f32 v{tB}, v{tB}, v{b}",
                           f"v_fma_f32 v{a}, v{tA}, -2.0, v{a}", f"v_fma_f32 v{b}, v{tB}, -2.0, v{b}"])
            mish += L([f"v_cvt_pk_bf16_f32 v{D0}, v{D0}, v{D0+1}", f"v_cvt_pk_bf16_f32 v{D0+1}, v{D0+2}, v{D0+3}",
                       f"v_cvt_pk_bf16_f32 v{D0+2}, v{D1}, v{D1+1}", f"v_cvt_pk_bf16_f32 v{D0+3}, v{D1+2}, v{D1+3}",
                       f"buffer_store_dwordx4 {vr(D0)}, v{vL16}, {sr(S_WS)}, s{sAct+2*mbx+fbp} offen{STF2}"])
    spread(G, mish, 456, 740)
    spread(G, ins, 520, 760)
    post = []
    for js in range(2, 4):
        for mbx in (2, 3, 0, 1):
            E, Od = qf(mbx, js), QO + (js*4 + mbx)*4
            post += L([f"v_cvt_pk_bf16_f32 v{E}, v{E}, v{E+1}", f"v_cvt_pk_bf16_f32 v{E+1}, v{E+2}, v{E+3}",
                       f"v_cvt_pk_bf16_f32 v{E+2}, v{Od}, v{Od+1}", f"v_cvt_pk_bf16_f32 v{E+3}, v{Od+2}, v{Od+3}"])
    XB = 131072
    post += [Wait(vm=('KV', 'K', 0)), I("s_barrier")]
    post += L([f"v_mov_b32 v{vKr}, v{vL16}", f"v_lshlrev_b32 v{tA}, 1, v{vDM}", f"v_sub_u32 v{tA}, v{tA}, v{vL16}", f"v_add_u32 v{tA}, {XB}, v{tA}",
               f"v_xor_b32 v{tB}, 0x2000, v{tA}"])
    kread = lambda f: T(f"ds_read_b128 {ar(KF_+4*f)}, v{vKr} offset:{f*1024}", ('kf', f))
    post += [kread(f) for f in range(16)]
    post += [T(f"ds_write_b128 v{tA}, {vr(Qreg['b'](nb, js))} offset:{(js*2+nb)*1024}", 'qw') for js in range(4) for nb in range(2)]
    ONE, ZR, T4 = 8, 20, 12
    sMk = 62
    zero_o = lambda s: [I(f"v_mfma_f32_32x32x16_bf16 {ar(O[s]+16*k, 16)}, {vr(ZR)}, {vr(ZR)}, 0") for k in range(4)]
    post += L([f"v_mov_b32 v{ZR+k}, 0" for k in range(4)] + [f"v_mov_b32 v{ONE+k}, 0x3f803f80" for k in range(4)])
    post += L(["s_load_dwordx2 s[8:9], s[0:1], 40", "s_load_dwordx2 s[12:13], s[0:1], 72"])
    post += zero_o('a') + zero_o('b')
    post += L([f"v_mov_b32 v{LS[s]+nb}, 0" for s in 'ab' for nb in range(2)])
    post += L([f"v_cmp_le_i32 s[{sMk+2*r}:{sMk+2*r+1}], {r}, v{vLB}" for r in range(4)])
    post += L([f"s_lshl_b32 s{sT}, s{sW}, 12", f"s_add_u32 s{sKd}, s{sT}, {3*16384}", f"s_add_u32 s{sVd}, s{sT}, {3*16384}", f"v_add_u32 v{vX}, 0x10000, v{vL16}",
               f"s_mov_b32 s{sGd}, {3*16384}", f"s_mov_b32 s{sKr}, 16384", f"s_mov_b32 s{sVr}, 0",
               f"s_lshl_b32 s{sCnt}, s{sI}, 1", f"s_sub_u32 s{sCnt}, s{sCnt}, 1"])
    sreg = lambda s, mb, nb: S[s] + (mb*2 + nb)*4
    def prepass_mfma(s, q):
        return [I(f"{MF} {vr(sreg(s,0,nb))}, {ar(KF_+4*js)}, {vr(Qreg[q](nb, js))}, {'0' if js == 0 else vr(sreg(s,0,nb))}") for nb in range(2) for js in range(4)]
    def xred(op, v, t):
        return L([f"v_mov_b32 v{t}, v{v}", f"v_permlane16_swap_b32 v{t}, v{v}", f"{op} v{v}, v{v}, v{t}",
                  f"v_mov_b32 v{t}, v{v}", f"v_permlane32_swap_b32 v{t}, v{v}", f"{op} v{v}, v{v}, v{t}"])
    def zipl(a, b):
        o = []
        for k in range(max(len(a), len(b))):
            o += a[k:k+1] + b[k:k+1]
        return o
    def prepass_init(s, mask):
        o = []
        if mask:
            o += L([f"v_add_u32 v{tA}, s{sC[s]}, v{vLB}"])
            prs = [(nb, r) for nb in range(2) for r in range(4)]
            pr = lambda k: "vcc" if k % 2 == 0 else f"s[{sRet}:{sRet+1}]"
            for k in range(0, 8, 2):
                o += L([f"v_cmp_le_i32 {pr(j)}, {prs[j][1] - 16*prs[j][0]}, v{tA}" for j in (k, k+1)])
                o += L([f"v_cndmask_b32 v{sreg(s,0,prs[j][0])+prs[j][1]}, v{vNI}, v{sreg(s,0,prs[j][0])+prs[j][1]}, {pr(j)}" for j in (k, k+1)])
        ch = []
        for nb in range(2):
            b = sreg(s, 0, nb); m = MS[s] + nb
            ch.append(L([f"v_max3_f32 v{m}, v{b}, v{b+1}, v{b+2}", f"v_max_f32 v{m}, v{m}, v{b+3}"]) + xred("v_max_f32", m, (tA, tB)[nb]) +
                      L([f"v_max_f32 v{m}, {f2u(-1e30):#x}, v{m}"] + [f"v_sub_f32 v{NM[s]+4*nb+r}, 0, v{m}" for r in range(4)]))
        return o + zipl(ch[0], ch[1])
    post += [Wait(lg=('kf', 3))] + prepass_mfma('b', 'b') + prepass_mfma('a', 'a') + prepass_init('b', False) + prepass_init('a', True)

    NG, HG = 136, 68
    def body(name, qa, ntile, vmw, hooks, kread_on=True):
        B = Gaps(NG); used = [0]*NG; cls = {}
        cost = lambda x: 0 if x.kind == 'label' else (2 if x.kind == 'trans' else 1)
        def put(g, x, c, where=None):
            x = I(x) if isinstance(x, str) else x
            g %= NG
            if where == 'pre': B.before(g, x); used[(g-1) % NG] += cost(x)
            elif where == 'nv': B.nv[g].append(x); used[g] += cost(x)
            else: B.put(g, x); used[g] += cost(x)
            cls[id(x)] = c; return x
        def free(g, x, c, lim=None):
            while used[g % NG] >= 2: g += 1
            assert lim is None or g <= lim, (name, x, g, lim)
            put(g, x, c, 'nv'); return g
        for s, g0, q in (('a', 0, qa), ('b', HG, 'b')):
            o = 'b' if s == 'a' else 'a'
            seq = []
            for mb in range(4):
                for nb in range(2):
                    D = vr(sreg(s, mb, nb))
                    seq += [(f"{MF} {D}, {ar(KF_+4*(mb*4+js))}, {vr(Qreg[q](nb, js))}, {vr(NM[s]+4*nb) if js == 0 else D}", 'qk'+s) for js in range(4)]
            ones = [(f"{MF} {vr(T4+4*nb)}, {vr(ONE)}, {vr(P[o]+(nb*2+ks)*4)}, {'0' if ks == 0 else vr(T4+4*nb)}", 'sm'+o) for nb in range(2) for ks in range(2)]
            seq[24:24] = ones
            for db in range(8):
                for nb in range(2):
                    D = ar(O[o] + (db*2+nb)*4)
                    seq += [(f"{MF} {D}, {ar(VF_+4*(db*2+ks))}, {vr(P[o]+(nb*2+ks)*4)}, {D}", 'pv'+o) for ks in range(2)]
            for k, (t, c) in enumerate(seq):
                B.mf[g0+k] = I(t); cls[id(B.mf[g0+k])] = c
            E0 = g0 + 26
            for e in range(32):
                mb, nb, r = e//8, (e//4) % 2, e % 4
                t = ET + (e % 4)
                put(E0 + 2*e, f"v_exp_f32 v{t}, v{sreg(s, mb, nb) + r}", 'sm'+s)
                if r % 2 == 1:
                    put(E0 + 2*e + 1, f"v_cvt_pk_bf16_f32 v{P[s] + (nb*2 + mb//2)*4 + (mb % 2)*2 + r//2}, v{t-1}, v{t}", 'sm'+s)
            if s not in hooks and s == 'a' and ntile == 1:
                for gh in (E0 - 1, E0 + 31): used[gh % NG] += 2
            if s in hooks:
                for hk, gh, lim in ((0, E0 - 1, 0), (1, E0 + 31, 32)):
                    lab = f"{name}_mk{s}{hk}"
                    put(gh, f"s_cmp_le_i32 s{sC[s]}, {lim}", 'sm'+s, 'nv'); put(gh, f"s_cbranch_scc1 {lab}", 'sm'+s, 'nv'); put(gh, f"{lab}_r:", 'sm'+s, 'nv')
            gc = g0 + HG + 31
            lab = f"{name}_rd{s}"
            put(gc, f"v_max_f32 v1, v{T4}, v{T4+4}", 'sm'+s); put(gc, f"v_cmp_lt_f32 vcc, s{sThr}, v1", 'sm'+s)
            put(gc+2, f"s_cbranch_vccnz {lab}", 'sm'+s, 'nv'); put(gc+2, f"{lab}_r:", 'sm'+s, 'nv')
            put(gc+4, f"v_add_f32 v{LS[s]}, v{LS[s]}, v{T4}", 'sm'+s); put(gc+4, f"v_add_f32 v{LS[s]+1}, v{LS[s]+1}, v{T4+4}", 'sm'+s)
        put(0, "s_waitcnt lgkmcnt(0)", 'mem', 'pre')
        put(4, f"s_waitcnt vmcnt({vmw})", 'mem', 'pre'); put(4, "s_barrier", 'mem', 'pre')
        free(40, f"v_add_u32 v{vVr}, s{sVr}, v{vX}", 'mem')
        g = 43
        for f in range(16):
            g = free(max(g, 40 + 2*f), f"ds_read_b128 {ar(VF_+4*f)}, v{vVr} offset:{f*1024}", 'mem', 92) + 1
        vlast = g
        nk_before = 0
        if kread_on:
            g = free(max(g, 80), f"v_add_u32 v{vKr}, s{sKr}, v{vL16}", 'mem') + 1
            for f in range(16):
                lastuse = HG + 8*(f//4) + 4 + f % 4 + (4 if 8*(f//4) + 4 + f % 4 >= 24 else 0)
                g = free(max(g, lastuse + 1), f"ds_read_b128 {ar(KF_+4*f)}, v{vKr} offset:{f*1024}", 'mem', 130)
                if g < 104: nk_before += 1
                g += 1
        put(104, f"s_waitcnt lgkmcnt({nk_before})", 'mem', 'pre')
        st = []
        if ntile == 1:
            st += [f"s_mov_b32 m0, s{sKd}"] + [f"buffer_load_dwordx4 v{vDM}, {sr(S_K)}, s{sGd} offen offset:{j*1024} lds" for j in range(4)]
            st += [f"s_add_u32 s{sKd}, s{sKd}, 16384", f"s_and_b32 s{sKd}, s{sKd}, 0xffff", f"s_add_u32 m0, s{sVd}, 0x10000"]
            st += [f"buffer_load_dwordx4 v{vDM}, {sr(S_V)}, s{sGd} offen offset:{j*1024} lds" for j in range(4)]
        elif ntile == 2:
            st += [f"s_add_u32 s{sT3}, s{sGd}, 16384", f"s_mov_b32 m0, s{sKd}"] + [f"buffer_load_dwordx4 v{vDM}, {sr(S_K)}, s{sGd} offen offset:{j*1024} lds" for j in range(4)]
            st += [f"s_add_u32 m0, s{sKd}, 16384"] + [f"buffer_load_dwordx4 v{vDM}, {sr(S_K)}, s{sT3} offen offset:{j*1024} lds" for j in range(4)]
            st += [f"s_xor_b32 s{sKd}, s{sKd}, 0x8000", f"s_add_u32 m0, s{sVd}, 0x10000"] + [f"buffer_load_dwordx4 v{vDM}, {sr(S_V)}, s{sGd} offen offset:{j*1024} lds" for j in range(4)]
            st += [f"s_add_u32 m0, s{sVd}, 0x14000"] + [f"buffer_load_dwordx4 v{vDM}, {sr(S_V)}, s{sT3} offen offset:{j*1024} lds" for j in range(4)]
        if ntile:
            st += [f"s_add_u32 s{sVd}, s{sVd}, {ntile*16384}", f"s_sub_u32 s{sT}, s{sVd}, 98304", f"s_min_u32 s{sVd}, s{sVd}, s{sT}", f"s_add_u32 s{sGd}, s{sGd}, {ntile*16384}"]
            g = 5; nd = 0; sp = 120/(4*2*ntile)
            for t in st:
                x = I(t)
                if x.kind == 'vmem':
                    g = free(max(g + 1, int(6 + nd*sp)), x, 'mem', NG-1); nd += 1
                else: g = free(g, x, 'mem', NG-1)
            step = ntile*16384
            g = 100
            ku = [f"s_add_u32 s{sKr}, s{sKr}, 16384", f"s_and_b32 s{sKr}, s{sKr}, 0xffff"] if ntile == 1 else [f"s_xor_b32 s{sKr}, s{sKr}, 0x8000"]
            for t in ku + [f"s_add_u32 s{sVr}, s{sVr}, {step}", f"s_sub_u32 s{sT2}, s{sVr}, 98304", f"s_min_u32 s{sVr}, s{sVr}, s{sT2}"]:
                g = free(g, t, 'mem', NG-1)
        if name == "Sf":
            pf = [f"s_and_b32 s{sT}, s2, 3", f"s_mul_i32 s{sT}, s{sT}, 1376", f"s_lshr_b32 s{sT2}, s2, 3", f"s_lshl_b32 s{sT2}, s{sT2}, 2", f"s_add_u32 s{sT2}, s{sT2}, s{sW}",
                  f"s_mul_i32 s{sT2}, s{sT2}, 11", f"s_add_u32 s{sT}, s{sT}, s{sT2}",
                  f"s_cmp_ge_u32 s{sT}, 4096\n    s_cselect_b32 s24, s12, s8\n    s_cselect_b32 s25, s13, s9\n    s_cselect_b32 s26, {1376*1024}, s27",
                  "s_mov_b32 s27, 0x00020000", f"s_and_b32 s{sT}, s{sT}, 4095", f"s_lshl_b32 s{sT}, s{sT}, 10"]
            g = free(5, "s_mov_b32 s27, 0x400000", 'mem')
            for t in pf: g = free(g, t, 'mem')
            for k in range(11):
                if k % 4 == 0 and k: g = free(g, f"s_add_u32 s{sT}, s{sT}, 4096", 'mem')
                g = free(g + 5, f"buffer_load_dwordx4 {vr(ZR)}, v{vL16}, s[24:27], s{sT} offen offset:{(k % 4)*1024}", 'mem', NG-1)
        over = [(g, u) for g, u in enumerate(used) if u > 2]
        print(f"  body {name}: slots used {sum(used)}/{2*NG}, overfull gaps {over}")
        return B, cls
    def mkstubs(name):
        o = []
        for s in 'ab':
            for hk in range(2):
                lab = f"{name}_mk{s}{hk}"; lo, hi = 2*hk, 2*hk+1
                o += L([f"{lab}:", f"s_cmp_lg_u32 s{sC[s]}, {32*hk}", f"s_cbranch_scc1 {lab}_all"])
                o += L([f"v_cndmask_b32 v{sreg(s,lo,0)+r}, v{vNI}, v{sreg(s,lo,0)+r}, s[{sMk+2*r}:{sMk+2*r+1}]" for r in range(4)])
                o += L([f"v_mov_b32 v{sreg(s,hi,0)+r}, v{vNI}" for r in range(4)])
                o += L([f"v_cndmask_b32 v{sreg(s,hi,1)+r}, v{vNI}, v{sreg(s,hi,1)+r}, s[{sMk+2*r}:{sMk+2*r+1}]" for r in range(4)])
                o += L([f"s_branch {lab}_r", f"{lab}_all:"] + [f"v_mov_b32 v{sreg(s,lo,0)+k}, v{vNI}" for k in range(16)] + [f"s_branch {lab}_r"])
            lab = f"{name}_rd{s}"
            o += L([f"{lab}:", f"s_call_b64 s[{sRet}:{sRet+1}], K2_REDO_{s}", f"s_branch {lab}_r"])
        return o
    def redo(s):
        o = L([f"K2_REDO_{s}:", "s_nop 7"])
        for nb in range(2):
            vals = [sreg(s, mb, nb) + r for mb in range(4) for r in range(4)]
            ts = T4 + 4*nb
            o += L([f"v_max3_f32 v{tA}, v{vals[0]}, v{vals[1]}, v{vals[2]}"] + [f"v_max3_f32 v{tA}, v{tA}, v{vals[k]}, v{vals[k+1]}" for k in range(3, 15, 2)]
                   + [f"v_max_f32 v{tA}, v{tA}, v{vals[15]}"]) + xred("v_max_f32", tA, tB)
            o += L([f"v_max_f32 v{tA}, 0, v{tA}", f"v_add_f32 v{MS[s]+nb}, v{MS[s]+nb}, v{tA}", f"v_sub_f32 v{tB}, 0, v{tA}", f"v_exp_f32 v{tB}, v{tB}"])
            o += L([f"v_sub_f32 v{NM[s]+4*nb+r}, 0, v{MS[s]+nb}" for r in range(4)])
            o += L([f"v_mul_f32 v{LS[s]+nb}, v{LS[s]+nb}, v{tB}"])
            o += L([f"v_sub_f32 v{v}, v{v}, v{tA}" for v in vals])
            for db in range(8):
                for r in range(4):
                    a = O[s] + (db*2+nb)*4 + r
                    o += L([f"v_accvgpr_read_b32 v0, a{a}", f"v_mul_f32 v0, v0, v{tB}", f"v_accvgpr_write_b32 a{a}, v0"])
            o += L([f"v_mov_b32 v{ts}, 0"])
            for mb in range(4):
                for r in (0, 2):
                    b = sreg(s, mb, nb) + r
                    pd = P[s] + (nb*2 + mb//2)*4 + (mb % 2)*2 + r//2
                    o += L([f"v_exp_f32 v{tA}, v{b}", f"v_exp_f32 v{tB}, v{b+1}", f"v_add_f32 v{ts}, v{ts}, v{tA}",
                            f"v_add_f32 v{ts}, v{ts}, v{tB}", f"v_cvt_pk_bf16_f32 v{pd}, v{tA}, v{tB}"])
            o += xred("v_add_f32", ts, tB)
        o += L(["s_nop 1", f"s_setpc_b64 s[{sRet}:{sRet+1}]"])
        return o
    def lin(Bc, lo, hi, keep=None, ren=None):
        B, cls = Bc
        out = []
        for x in B.linear(lo, hi):
            if keep is None or cls.get(id(x), 'mem') in keep:
                out.append(I(x.text.replace(*ren)) if ren else x)
        return out
    D = body("D", 'a', 1, 4, ''); Dm = body("Dm", 'a', 1, 4, 'a'); S1 = body("S1", 'a', 2, 4, 'a')
    SS = body("S", 'x', 2, 8, ''); Sf = body("Sf", 'x', 0, 0, 'ab', kread_on=False)
    pream = lin(Dm, 0, HG, ('qka', 'sma', 'mem'), ("Dm_", "PR_"))
    k = [n for n, x in enumerate(pream) if x.op == 's_barrier'][0]
    pream[k+1:k+1] = [I(f"ds_read_b128 {vr(Qreg['x'](nb, js))}, v{tB} offset:{(js*2+nb)*1024}") for js in range(4) for nb in range(2)]
    pream[k+1:k+1] = L([f"v_lshlrev_b32 v{tB}, 1, v{vDM}", f"v_sub_u32 v{tB}, v{tB}, v{vL16}", f"v_add_u32 v{tB}, {XB}, v{tB}", f"v_xor_b32 v{tB}, 0x2000, v{tB}"])
    for n, x in enumerate(pream):
        if x.text.startswith("s_waitcnt vmcnt"): pream[n] = Wait(vm=[('KV', 'K', 1), ('KV', 'V', 0)], lg=0)
    head = pre + stamp(4) + G.linear(0, 512) + stamp(5) + G.linear(512, 768) + stamp(6) + post + stamp(7) + pream
    head += L([f"s_lshl_b32 s{sC['a']}, s{sW}, 5", f"s_cmp_eq_u32 s{sI}, 0", "s_cbranch_scc1 K2_DM_MID", "s_branch K2_D_MID"])
    head = resolve_waits(head)
    head, n1 = fix_hazards(head)
    dl = L(["K2_D:"]) + lin(D, 0, HG) + L(["K2_D_MID:"]) + lin(D, HG, NG) + L([f"s_sub_u32 s{sCnt}, s{sCnt}, 1", "s_cbranch_scc0 K2_D"])
    dl, n2 = fix_hazards(dl, pre=dl[-20:])
    assert fix_hazards(lin(D, HG, HG+12), pre=head[-20:])[1] == 0 and fix_hazards(lin(Dm, HG, HG+12), pre=head[-20:])[1] == 0
    mid = lin(Dm, 0, HG) + L(["K2_DM_MID:"]) + lin(Dm, HG, NG)
    mid += L([f"s_lshl_b32 s{sT}, s{sPar}, 14", f"s_add_u32 s{sKr}, s{sKr}, s{sT}", f"s_and_b32 s{sKr}, s{sKr}, 0xffff", f"s_sub_u32 s{sC['a']}, s{sC['a']}, 64"])
    mid += (stamp(8) if not DIAG else []) + lin(S1, 0, NG) + (stamp(9) if not DIAG else [])
    def finalize(s, so, zero, wts=None):
        o = []
        for j in range(4):
            for nb in range(2):
                t = 132 if (j*2+nb) % 2 == 0 else 128
                t8 = 136 + ((j*2+nb) % 2)*8
                o += L([f"v_accvgpr_read_b32 v{t8+hh*4+r}, a{O[s] + ((2*j+hh)*2+nb)*4 + r}" for hh in range(2) for r in range(4)])
                sel = "op_sel_hi:[1,0]" if nb == 0 else "op_sel:[0,1] op_sel_hi:[1,1]"
                for k in range(0, 8, 2):
                    o += L([f"v_pk_mul_f32 {vr(t8+k,2)}, {vr(t8+k,2)}, {vr(TS[s],2)} {sel}"])
                    if wts is not None:
                        x = wts + ((2*j + k//4)*2+nb)*4 + k % 4
                        sel3 = "op_sel_hi:[1,0,1]" if nb == 0 else "op_sel:[0,1,0] op_sel_hi:[1,1,1]"
                        o += L([f"v_pk_fma_f32 {vr(t8+k,2)}, {vr(x,2)}, {vr(TS['a'],2)}, {vr(t8+k,2)} {sel3}"])
                o += L([f"v_cvt_pk_bf16_f32 v{t+k}, v{t8+2*k}, v{t8+2*k+1}" for k in range(4)])
                o += L([f"buffer_store_dwordx4 {vr(t)}, v{vL16}, {sr(S_WS)}, s{so+nb} offen offset:{j*1024}{STF2}"])
            if zero: o += [zero_o(s)[j]]
        return o
    tr = L([f"s_lshl_b32 s{sT}, s{sPar}, 14", f"s_add_u32 s{sVr}, s{sVr}, s{sT}", f"s_add_u32 s{sVr}, s{sVr}, {98304-16384}",
            f"s_sub_u32 s{sT2}, s{sVr}, 98304", f"s_min_u32 s{sVr}, s{sVr}, s{sT2}",
            f"s_lshl_b32 s{sT}, s{sI}, 7", f"s_sub_u32 s{sC['a']}, s{sC['b']}, s{sT}", f"s_lshl_b32 s{sT}, s{sPar}, 7", f"s_sub_u32 s{sC['a']}, s{sC['a']}, s{sT}",
            f"s_sub_u32 s{sC['a']}, s{sC['a']}, 96",
            f"s_lshl_b32 s{sCnt}, s{sI}, 1", f"s_sub_u32 s{sCnt}, 13, s{sCnt}", "s_waitcnt lgkmcnt(0)"])
    tr += L([f"v_rcp_f32 v{TS['a']+nb}, v{LS['a']+nb}" for nb in range(2)] + [f"v_mov_b32 v{LS['a']+nb}, 0" for nb in range(2)])
    fa = finalize('a', sXN, True)
    tr += fa + prepass_mfma('a', 'x') + prepass_init('a', True)
    tr += L([f"s_lshl_b32 s{sC['b']}, s{sW}, 5", f"s_lshl_b32 s{sT}, s{sPar}, 6", f"s_sub_u32 s{sC['b']}, s{sC['b']}, s{sT}",
             f"s_add_u32 s{sC['a']}, s{sC['b']}, 32", f"s_sub_u32 s{sC['a']}, s{sC['a']}, s{sT}"])
    mid += tr + (stamp(10) if not DIAG else []) + L([f"s_cmp_eq_u32 s{sI}, 7", "s_cbranch_scc1 K2_SF"])
    mid, n3 = fix_hazards(mid, pre=dl[-20:])
    sl = L(["K2_S:"]) + lin(SS, 0, NG) + L([f"s_sub_u32 s{sCnt}, s{sCnt}, 1", "s_cbranch_scc0 K2_S"])
    sl, n4 = fix_hazards(sl, pre=sl[-20:])
    assert fix_hazards(sl[:24], pre=mid[-20:])[1] == 0
    tail = L(["K2_SF:"]) + code_prefetch("outproj_kernel", "K2_PC2", False, 31, 31, sRet, sT3, vtid=31) + lin(Sf, 0, NG)
    assert fix_hazards(tail[:24], pre=mid[-20:])[1] == 0
    tb = lin(SS, 0, HG, ('smb', 'pvb'), ("S_", "TL_"))
    kq = [n for n, x in enumerate(tb) if x.kind == 'mfma' and x.wr[0].startswith('a')][0]
    tail += L(["s_barrier",
               f"v_lshlrev_b32 v{tA}, 2, v{vDM}", f"v_mul_u32_u24 v{tB}, 3, v{vL16}", f"v_sub_u32 v{vKr}, v{tA}, v{tB}",
               f"v_xor_b32 v{vVr}, 0x4000, v{vKr}", f"v_add_u32 v{vDM}, 0x10000, v{vDM}",
               f"v_mov_b32 v{NM['a']}, v{MS['a']}", f"v_mov_b32 v{NM['a']+1}, v{MS['a']+1}", f"v_mov_b32 v{NM['a']+2}, v{LS['a']}", f"v_mov_b32 v{NM['a']+3}, v{LS['a']+1}",
               f"ds_write_b128 v{vDM}, {vr(NM['a'])}"])
    wr = L([f"ds_write_b128 v{vKr}, {ar(O['a']+4*f)} offset:{f*1024}" for f in range(16)])
    tail += zipl(tb[:kq], wr)
    XO = 64
    pv = tb[kq:]
    tail += pv[:8] + L(["s_waitcnt lgkmcnt(0)", "s_barrier", f"v_xor_b32 v{vDM}, 0x1000, v{vDM}", f"ds_read_b128 {vr(NM['a'])}, v{vDM}"])
    rd = L([f"ds_read_b128 {vr(XO+4*f)}, v{vVr} offset:{f*1024}" for f in range(16)])
    wt = L(["s_waitcnt lgkmcnt(15)"])
    ch = []
    for nb in range(2):
        mx, lx, mb_, lb, t = NM['a']+nb, NM['a']+2+nb, MS['b']+nb, LS['b']+nb, (tA, tB)[nb]
        ch.append(L([f"v_max_f32 v{t}, v{mx}, v{mb_}", f"v_sub_f32 v{mx}, v{mx}, v{t}", f"v_sub_f32 v{mb_}, v{mb_}, v{t}",
                     f"v_exp_f32 v{mx}, v{mx}", f"v_exp_f32 v{mb_}, v{mb_}", f"v_mul_f32 v{lb}, v{lb}, v{mb_}", f"v_fmac_f32 v{lb}, v{lx}, v{mx}",
                     f"v_rcp_f32 v{lb}, v{lb}", f"v_mul_f32 v{TS['b']+nb}, v{mb_}, v{lb}", f"v_mul_f32 v{TS['a']+nb}, v{mx}, v{lb}"]))
    tail += zipl(pv[8:], rd + wt + zipl(ch[0], ch[1]))
    tail += L(["s_waitcnt lgkmcnt(0)"]) + finalize('b', sXN+2, False, wts=XO)
    tail += prof_end(1, S_WS, sW, 4)
    tail, n5 = fix_hazards(tail, pre=sl[-20:])
    alltext = "\n".join(x.text for x in head + dl + mid + sl + tail)
    stubs = []
    for nm in ("PR", "D", "Dm", "S1", "S", "Sf", "TL"):
        cur = []
        for x in mkstubs(nm) + L(["SENTINEL:"]):
            if x.kind == 'label' and not x.text.endswith("_all:"):
                if cur and ("\n" + cur[0].text[:-1] + "_r:") in alltext: stubs += fix_hazards(cur)[0]
                cur = []
            cur.append(x)
    stubs += fix_hazards(redo('a'))[0] + fix_hazards(redo('b'))[0]
    seq = head + dl + mid + sl + tail + L(["K2_END:", "s_endpgm"]) + stubs
    print("K2: instrs", len(seq), "nops head/D/mid/S/tail", n1, n2, n3, n4, n5)
    return seq

if __name__ == "__main__":
    ks = [("kvproj_kernel", 256, 256, 163840, gen_k1(), 512, 256),
          ("attn_kernel", 256, 256, 163840, gen_k2(), 512, 256)]
    emit(ks, sys.argv[1] if len(sys.argv) > 1 else "k.s")
```

```python
from gen import *
from gen_k2 import gen_k2

def gen_k3():
    S_WS, S_W, S_X, S_OUT = 4, 8, 16, 20
    sW, sTm, sTn, sKq = 24, 25, 26, 27
    sT, sT2, sT3, sKK = 28, 29, 30, 31
    sMA, sMW, sAb, sXo, sEx, sFl = 32, 33, 34, 35, 36, 37
    NS, NB = 43, 8
    vL, vL16 = 2, 3
    vWD = 4
    vAr = 8
    vT = 12
    tA, tB, vXo, vK = 16, 17, 18, 19
    vXv = 20
    WF = 32
    AF = 64
    ACC = 96
    RX = 160
    pre = prof_begin()
    pre += L(["s_load_dwordx2 s[56:57], s[0:1], 0", "s_load_dwordx2 s[58:59], s[0:1], 40", "s_load_dwordx4 s[60:63], s[0:1], 72",
              "s_load_dwordx2 s[64:65], s[0:1], 96", "s_cmp_ge_u32 s2, 256", "s_cbranch_scc1 K3_END"])
    pre += L(["v_lshrrev_b32 v1, 6, v0", f"v_and_b32 v{vL}, 63, v0", f"v_readfirstlane_b32 s{sW}, v1", f"v_lshlrev_b32 v{vL16}, 4, v{vL}",
              f"s_and_b32 s{sKq}, s2, 3", f"s_bfe_u32 s{sT}, s2, 0x10002", f"s_lshl_b32 s{sT}, s{sT}, 3", f"s_bfe_u32 s{sT2}, s2, 0x30003",
              f"s_add_u32 s{sTm}, s{sT}, s{sT2}", f"s_lshr_b32 s{sTn}, s2, 6",
              f"s_lshl_b32 s{sT3}, s{sTn}, 1", f"s_add_u32 s{sT2}, s{sT2}, s{sT3}", f"s_and_b32 s{sT2}, s{sT2}, 7",
              f"s_mul_i32 s{sT3}, s{sKq}, 43", f"s_cmp_eq_u32 s{sKq}, 3", f"s_cselect_b32 s{sT}, 42, 43"])
    a_, b_, c_, d_ = 96, 97, 98, 99
    pre += L([f"v_and_b32 v{a_}, -8, v{vL}", f"v_add_u32 v{b_}, 8, v{a_}", f"v_min_i32 v{b_}, s{sT}, v{b_}", f"v_sub_u32 v{b_}, v{b_}, v{a_}",
              f"v_mul_u32_u24 v{c_}, s{sT2}, v{b_}", f"v_lshrrev_b32 v{c_}, 3, v{c_}", f"v_and_b32 v{d_}, 7, v{vL}",
              f"v_add_u32 v{c_}, v{c_}, v{d_}", f"v_sub_u32 v{d_}, v{c_}, v{b_}", f"v_min_u32 v{c_}, v{c_}, v{d_}",
              f"v_add3_u32 v{vK}, v{c_}, v{a_}, s{sT3}", f"v_min_u32 v{vK}, 0xab, v{vK}"])
    pre += L([f"s_lshl_b32 s{sT}, s{sTm}, 3", f"s_lshl_b32 s{sT3}, s{sW}, 1", f"s_add_u32 s{sT}, s{sT}, s{sT3}", f"s_mul_i32 s{sAb}, s{sT}, {CA_RB}",
              f"s_add_u32 s{sAb}, s{sAb}, {WS_CA}", f"v_add_u32 v5, {CA_RB-1024}, v{vL16}",
              f"s_lshl_b32 s{sMA}, s{sW}, 11", f"s_lshl_b32 s{sMW}, s{sW}, 10", f"s_add_u32 s{sMW}, s{sMW}, 8192"])
    pre += L([f"v_bfe_u32 v{tA}, v{vL}, 4, 2", f"v_lshlrev_b32 v{tA}, 1, v{tA}", f"v_and_b32 v{tB}, 7, v{vL}", f"v_xor_b32 v{tA}, v{tA}, v{tB}",
              f"v_lshlrev_b32 v{tA}, 4, v{tA}", f"v_lshrrev_b32 v{tB}, 3, v{vL}", f"v_lshl_add_u32 v{vWD}, v{tB}, 10, v{tA}",
              f"s_lshl_b32 s{sT}, s{sTn}, 8", f"s_lshl_b32 s{sT3}, s{sW}, 13", f"s_add_u32 s{sT}, s{sT}, s{sT3}", f"v_add_u32 v{vWD}, s{sT}, v{vWD}"])
    pre += L([f"v_lshrrev_b32 v{tA}, 2, v{vL}", f"v_lshlrev_b32 v{tA}, 7, v{tA}", f"v_and_b32 v{tB}, 3, v{vL}", f"v_lshl_add_u32 v{tA}, v{tB}, 3, v{tA}",
              f"v_bfe_u32 v{tB}, v{vL}, 3, 2", f"v_lshl_add_u32 v{tA}, v{tB}, 5, v{tA}",
              f"s_and_b32 s{sT}, s{sW}, 1", f"s_lshl_b32 s{sT}, s{sT}, 12", f"s_add_u32 s{sT}, s{sT}, 8192", f"v_add_u32 v{vT}, s{sT}, v{tA}"] +
             [f"v_xor_b32 v{vT+c}, {c*32}, v{vT}" for c in range(1, 4)])
    for r in range(4):
        pre += L([f"s_add_u32 s{sT}, s{sKq}, {r}", f"s_and_b32 s{sT}, s{sT}, 3", f"s_lshr_b32 s{sT3}, s{sW}, 1", f"s_lshl_b32 s{sT3}, s{sT3}, 2",
                  f"s_add_u32 s{sT}, s{sT}, s{sT3}", f"s_lshl_b32 s{sT}, s{sT}, 10", f"v_add_u32 v{vAr+r}, s{sT}, v{vL16}"])
    hi = lambda v: v + 24
    vArH, vTH = 208, 212
    pre += L([f"v_add_u32 v{vArH+r}, 0x10000, v{vAr+r}" for r in range(4)] + [f"v_add_u32 v{vTH+c}, 0x10000, v{vT+c}" for c in range(4)])
    pre += L(["s_waitcnt lgkmcnt(0)"]) + stamp(1)
    pre += L(srd(S_WS, 64, 65, WS_SIZE) + srd(S_W, 58, 59, 0x400000) + ["s_mov_b32 s38, 0x400000"])
    def loads(s):
        b = (s % NB)*16384
        return L([f"v_readlane_b32 s{sT}, v{vK}, {s}", f"s_add_u32 m0, s{sMA}, {b}", f"s_lshl_b32 s{sKK}, s{sT}, 10", f"s_add_u32 s{sKK}, s{sKK}, s{sAb}"]) + \
          [T(f"buffer_load_dwordx4 v{vL16}, {sr(S_WS)}, s{sKK} offen lds", ('L', s)),
           T(f"buffer_load_dwordx4 v5, {sr(S_WS)}, s{sKK} offen offset:1024 lds", ('L', s))] + \
          L([f"s_cmp_ge_u32 s{sT}, 128\n    s_cselect_b32 s{S_W}, s60, s58\n    s_cselect_b32 s{S_W+1}, s61, s59\n    s_cselect_b32 s{S_W+2}, {1376*1024}, s38",
             f"s_and_b32 s{sT}, s{sT}, 127", f"s_lshl_b32 s{sT}, s{sT}, 15", f"s_add_u32 m0, s{sMW}, {b}"]) + \
          [T(f"buffer_load_dwordx4 v{vWD}, {sr(S_W)}, s{sT} offen lds", ('L', s))] + \
          L([f"s_add_u32 m0, s{sMW}, {b + 4096 - 128}", "s_nop 0"]) + \
          [T(f"buffer_load_dwordx4 v{vWD}, {sr(S_W)}, s{sT} offen offset:128 lds", ('L', s))]
    for s in range(4): pre += loads(s)
    pre += L(srd(S_X, 56, 57, 0x200000) + srd(S_OUT, 62, 63, 0x200000))
    pre += L([f"v_and_b32 v{tA}, 15, v{vL}", f"v_lshrrev_b32 v{tB}, 4, v{vL}", f"v_lshlrev_b32 v{vXo}, 10, v{tA}", f"v_lshl_add_u32 v{vXo}, v{tB}, 3, v{vXo}",
              f"s_lshl_b32 s{sXo}, s{sTm}, 17", f"s_lshr_b32 s{sT}, s{sW}, 1", f"s_lshl_b32 s{sT}, s{sT}, 16", f"s_add_u32 s{sXo}, s{sXo}, s{sT}",
              f"s_lshl_b32 s{sT}, s{sKq}, 14", f"s_add_u32 s{sXo}, s{sXo}, s{sT}", f"s_lshl_b32 s{sT}, s{sTn}, 8", f"s_add_u32 s{sXo}, s{sXo}, s{sT}",
              f"s_and_b32 s{sT}, s{sW}, 1", f"s_lshl_b32 s{sT}, s{sT}, 7", f"s_add_u32 s{sXo}, s{sXo}, s{sT}"])
    pre += [T(f"buffer_load_dwordx2 {vr(vXv+2*c, 2)}, v{vXo}, {sr(S_X)}, s{sXo} offen offset:{c*32}", 'x') for c in range(4)]
    pre += L([f"s_lshl_b32 s{sT}, s{sTm}, 2", f"s_add_u32 s{sT}, s{sT}, s{sTn}", f"s_lshl_b32 s{sFl}, s{sT}, 9", f"s_add_u32 s{sFl}, s{sFl}, {WS_FL}",
              f"s_lshl_b32 s{sEx}, s{sT}, 17", f"s_lshl_b32 s{sT}, s{sW}, 11", f"s_add_u32 s{sEx}, s{sEx}, s{sT}", f"s_add_u32 s{sEx}, s{sEx}, {WS_EX}"])
    for s in range(4, 6): pre += loads(s)
    def reads(s):
        b = (s % NB)*16384
        va, vt = (vAr, vT) if b < 65536 else (vArH, vTH)
        b &= 0xffff
        o = []
        for c in range(4):
            o += [T(f"ds_read_b128 {vr(AF+16*(s%2)+4*c)}, v{va+c} offset:{b}", ('R', s))]
            o += [T(f"ds_read_b64_tr_b16 {vr(WF+16*(s%2)+4*c+2*t, 2)}, v{vt+c} offset:{b + t*2048}", ('R', s)) for t in range(2)]
        return o
    G = Gaps(16*NS)
    pre += [Wait(vm=('L', 1)), I("s_barrier")] + reads(0) + stamp(2)
    stream = []
    for s in range(NS):
        g = 16*s
        for c in range(4):
            for r in range(4):
                D = vr(ACC + (r*4+c)*4)
                G.mf[g + c*4 + r] = I(f"{MF} {D}, {vr(WF+16*(s%2)+4*c)}, {vr(AF+16*(s%2)+4*r)}, {'0' if s == 0 else D}")
        G.before(g, Wait(lg=('R', s)))
        if s + 1 < NS:
            if s % 2 == 1:
                G.before(g + 1, Wait(vm=('L', min(s+2, NS-1)))); G.before(g + 1, I("s_barrier"))
                ld = []
                for s2 in (s+5, s+6):
                    if s2 < NS: ld += loads(s2)
                if ld: stream.append((g + 1, ld))
            for j, x in enumerate(reads(s+1)): G.put(g + 1 + j, x)
    place_stream(G, stream, 4, start=2)
    main = G.linear(0, 16*(NS-1)); last = G.linear(16*(NS-1), 16*NS)
    fin = stamp(3)
    for r in range(1, 4):
        fin += L([f"s_add_u32 s{sT}, s{sKq}, {r}", f"s_and_b32 s{sT}, s{sT}, 3", f"s_lshl_b32 s{sT}, s{sT}, 15", f"s_lshl_b32 s{sT2}, s{sKq}, 13",
                  f"s_add_u32 s{sT}, s{sT}, s{sT2}", f"s_add_u32 s{sT}, s{sT}, s{sEx}"])
        for hh in range(2):
            b = ACC + r*16 + hh*8
            fin += L([f"v_cvt_pk_bf16_f32 v{b+k}, v{b+2*k}, v{b+2*k+1}" for k in range(4)])
            fin += L([f"buffer_store_dwordx4 {vr(b)}, v{vL16}, {sr(S_WS)}, s{sT} offen offset:{hh*1024} sc1"])
    fin += L([f"v_and_b32 v{tB}, 3, v{vL}", f"v_lshlrev_b32 v{tB}, 7, v{tB}", f"v_mov_b32 v{tA}, 1", f"s_lshl_b32 s{sT}, s{sKq}, 7", f"s_add_u32 s{sT}, s{sT}, s{sFl}",
              "v_mov_b32 v1, 0"])
    for c in range(4):
        for hw in range(2):
            x = vXv + 2*c + hw
            fin += L([f"v_lshlrev_b32 v{WF}, 16, v{x}", f"v_and_b32 v{WF+1}, 0xffff0000, v{x}",
                      f"v_add_f32 v{ACC+4*c+2*hw}, v{ACC+4*c+2*hw}, v{WF}", f"v_add_f32 v{ACC+4*c+2*hw+1}, v{ACC+4*c+2*hw+1}, v{WF+1}"])
    fin += L(["s_waitcnt vmcnt(0)", "s_barrier"]) + stamp(4)
    fin += L([f"s_mov_b32 s{sT3}, 0x40000", f"s_cmp_lg_u32 s{sW}, 0", "s_cbranch_scc1 K3_POLL",
              f"buffer_store_dword v{tA}, v1, {sr(S_WS)}, s{sT} offen sc1",
              "K3_POLL:",
              f"buffer_load_dword v{vK}, v{tB}, {sr(S_WS)}, s{sFl} offen sc1", "s_waitcnt vmcnt(0)",
              f"v_cmp_ne_u32 vcc, 1, v{vK}", "s_cbranch_vccz K3_GO", "s_sleep 1", f"s_sub_u32 s{sT3}, s{sT3}, 1", "s_cbranch_scc0 K3_POLL", "K3_GO:"]) + stamp(5)
    for r in range(1, 4):
        fin += L([f"s_add_u32 s{sT}, s{sKq}, {r}", f"s_and_b32 s{sT}, s{sT}, 3", f"s_lshl_b32 s{sT}, s{sT}, 13", f"s_lshl_b32 s{sT2}, s{sKq}, 15",
                  f"s_add_u32 s{sT}, s{sT}, s{sT2}", f"s_add_u32 s{sT}, s{sT}, s{sEx}"])
        fin += L([f"buffer_load_dwordx4 {vr(RX+((r-1)*2+hh)*4)}, v{vL16}, {sr(S_WS)}, s{sT} offen offset:{hh*1024} sc1" for hh in range(2)])
    for r in range(1, 4):
        fin += L([f"s_waitcnt vmcnt({2*(3-r)})"])
        for k in range(8):
            x = RX + (r-1)*8 + k
            fin += L([f"v_lshlrev_b32 v{WF}, 16, v{x}", f"v_and_b32 v{WF+1}, 0xffff0000, v{x}",
                      f"v_add_f32 v{ACC+2*k}, v{ACC+2*k}, v{WF}", f"v_add_f32 v{ACC+2*k+1}, v{ACC+2*k+1}, v{WF+1}"])
    for c in range(4):
        fin += L([f"v_cvt_pk_bf16_f32 v{vXv+2*c}, v{ACC+4*c}, v{ACC+4*c+1}", f"v_cvt_pk_bf16_f32 v{vXv+2*c+1}, v{ACC+4*c+2}, v{ACC+4*c+3}",
                  f"buffer_store_dwordx2 {vr(vXv+2*c, 2)}, v{vXo}, {sr(S_OUT)}, s{sXo} offen offset:{c*32}"])
    seq = resolve_waits(pre + main) + L([f"s_cmp_eq_u32 s{sKq}, 3", "s_cbranch_scc1 K3_SKIP", "s_waitcnt lgkmcnt(0)"]) + \
          [x for x in last if not isinstance(x, Wait)] + L(["K3_SKIP:", "s_waitcnt lgkmcnt(0)", "s_nop 7"]) + fin + prof_end(2, S_WS, sW, 4, vtmp=56)
    seq, n = fix_hazards(seq)
    print("K3: instrs", len(seq), "nops", n)
    return seq + L(["K3_END:", "s_endpgm"])

if __name__ == "__main__":
    ks = [("kvproj_kernel", 256, 256, 163840, gen_k1(), 512, 256),
          ("attn_kernel", 256, 256, 163840, gen_k2(), 512, 256),
          ("outproj_kernel", 256, 256, 131072, gen_k3(), 216, 216)]
    emit(ks, sys.argv[1] if len(sys.argv) > 1 else "k.s")
```

```python
import math, sys, struct, os
from asmlib import *

WS_XN = 0x0
WS_KF = 0x200000
WS_VF = 0x1200000
WS_CA = 0x2200000
CA_RB = 172*1024
WS_EX = 0x4000000
WS_FL = 0x5000000
WS_SIZE = 0x10000000
SCALE = math.log2(math.e) / math.sqrt(128.0)
def f2u(f): return struct.unpack('<I', struct.pack('<f', f))[0]
MF = "v_mfma_f32_16x16x32_bf16"
def vr(b, n=4): return f"v[{b}:{b+n-1}]"
def ar(b, n=4): return f"a[{b}:{b+n-1}]"
def sr(b, n=4): return f"s[{b}:{b+n-1}]"
def L(lines): return [I(x) if isinstance(x, str) else x for x in lines]

def srd(d, lo, hi, size):
    return [f"s_mov_b32 s{d}, s{lo}", f"s_mov_b32 s{d+1}, s{hi}",
            f"s_mov_b32 s{d+2}, {size}" , f"s_mov_b32 s{d+3}, 0x00020000"]
def srd_off(d, lo, hi, soff, size):
    return [f"s_add_u32 s{d}, s{lo}, s{soff}\n    s_addc_u32 s{d+1}, s{hi}, 0", f"s_sub_u32 s{d+2}, {size}, s{soff}", f"s_mov_b32 s{d+3}, 0x00020000"]

PROF = bool(os.environ.get("PROF"))
STF = os.environ.get("STF", " sc1")
FUSED = os.environ.get("FUSED", "1") == "1"
LDF = " sc1" if FUSED else ""
FL_KV, FL_CX, FL_EX = WS_FL, WS_FL + 0x1000, WS_FL + 0x8000
STX = os.environ.get("STX", " sc1")
STF2 = os.environ.get("STF2", " sc1")
WS_PROF = 0xF000000
NSTAMP = 12
def stamp(k):
    return [I(f"s_memtime s[{72+2*k}:{73+2*k}]")] if PROF else []
def prof_begin():
    return ([I("s_memrealtime s[96:97]")] + [x for k in range(NSTAMP) for x in stamp(k)]) if PROF else []
def prof_end(kidx, S_WS, sW, nwaves, vtmp=0, drain=True):
    if not PROF: return []
    o = L((["s_waitcnt vmcnt(0)"] if drain else []) + ["s_memrealtime s[98:99]"]) + stamp(NSTAMP-1) + L(["s_waitcnt lgkmcnt(0)",
          f"s_mul_i32 s70, s2, {nwaves}", f"s_add_u32 s70, s70, s{sW}", "s_lshl_b32 s70, s70, 6",
          f"s_add_u32 s70, s70, {WS_PROF + kidx*0x40000}", f"v_mov_b32 v{vtmp+16}, 0"])
    regs = [96, 98] + [72+2*k for k in range(NSTAMP)] + [97, 99]
    for j, rg in enumerate(regs): o += L([f"v_mov_b32 v{vtmp+j}, s{rg}"])
    for j in range(4):
        o += L([f"buffer_store_dwordx4 {vr(vtmp+4*j)}, v{vtmp+16}, {sr(S_WS)}, s70 offen offset:{16*j}"])
    return o

def code_prefetch(label, here, wide, vdst, vaddr, sp, st, vtid=0):
    sh = 3 if wide else 2
    o = [f"s_getpc_b64 s[{sp}:{sp+1}]", f"{here}:"]
    if label is not None:
        o += [f"s_add_u32 s{sp}, s{sp}, {label}-{here}\n    s_addc_u32 s{sp+1}, s{sp+1}, 0"]
    o += [f"s_bfe_u32 s{st}, s2, 0x50003", f"s_lshl_b32 s{st}, s{st}, {8+sh}", f"v_lshlrev_b32 v{vaddr}, {sh}, v{vtid}", f"v_add_u32 v{vaddr}, s{st}, v{vaddr}",
          f"global_load_dwordx2 {vr(vdst, 2)}, v{vaddr}, s[{sp}:{sp+1}]" if wide else f"global_load_dword v{vdst}, v{vaddr}, s[{sp}:{sp+1}]"]
    return L(o)

def one_lane(ins, sW, lab, stmp):
    return L([f"s_cmp_lg_u32 s{sW}, 0\n    s_cbranch_scc1 {lab}\n    s_mov_b64 exec, 1"]) + ins + L(["s_mov_b64 exec, -1", f"{lab}:"])
def spin(lab, load, vdst, want, scnt):
    return L([f"s_mov_b32 s{scnt}, 0x40000", f"{lab}:", load, "s_waitcnt vmcnt(0)", f"v_cmp_ne_u32 vcc, {want}, v{vdst}", f"s_cbranch_vccz {lab}_ok",
              "s_sleep 1", f"s_sub_u32 s{scnt}, s{scnt}, 1", f"s_cbranch_scc0 {lab}", f"{lab}_ok:"])

def red32(v, t):
    dpp = " row_mask:0xf bank_mask:0xf"
    return [f"v_add_f32_dpp v{v}, v{v}, v{v} quad_perm:[1,0,3,2]{dpp}",
            f"v_add_f32_dpp v{v}, v{v}, v{v} quad_perm:[2,3,0,1]{dpp}",
            f"v_add_f32_dpp v{v}, v{v}, v{v} row_half_mirror{dpp}",
            f"v_add_f32_dpp v{v}, v{v}, v{v} row_mirror{dpp}",
            f"v_mov_b32 v{t}, v{v}",
            f"v_permlane16_swap_b32 v{t}, v{v}",
            f"v_add_f32 v{v}, v{v}, v{t}"]

def w_dma_voff(vlane, vd0, vd1, pitch, t1, t2):
    return [f"v_bfe_u32 v{t1}, v{vlane}, 4, 1", f"v_lshlrev_b32 v{t1}, 1, v{t1}", f"v_and_b32 v{t2}, 7, v{vlane}",
            f"v_xor_b32 v{t1}, v{t1}, v{t2}", f"v_lshlrev_b32 v{t1}, 4, v{t1}",
            f"v_lshrrev_b32 v{t2}, 3, v{vlane}", f"v_mul_u32_u24 v{t2}, {pitch}, v{t2}",
            f"v_add_u32 v{vd0}, v{t1}, v{t2}", f"v_xor_b32 v{t1}, 64, v{t1}", f"v_add_u32 v{vd1}, v{t1}, v{t2}",
            f"v_add_u32 v{vd1}, {8*pitch-1024}, v{vd1}"]
def w_tr_addr(vlane, vT, t1, t2):
    o = [f"v_lshrrev_b32 v{t1}, 4, v{vlane}", f"v_lshlrev_b32 v{t1}, 10, v{t1}",
         f"v_bfe_u32 v{t2}, v{vlane}, 2, 2", f"v_lshl_add_u32 v{t1}, v{t2}, 7, v{t1}",
         f"v_and_b32 v{t2}, 3, v{vlane}", f"v_lshl_add_u32 v{t1}, v{t2}, 3, v{t1}",
         f"v_bfe_u32 v{t2}, v{vlane}, 3, 2",
         f"v_lshl_add_u32 v{vT}, v{t2}, 5, v{t1}"]
    for cb in range(1, 4): o += [f"v_xor_b32 v{vT+cb}, {cb*32}, v{vT}"]
    return o

def gemm_groups(G, g0, groups, WF, pre, nbuf=2):
    starts = []; g = g0
    for gr in groups:
        starts.append(g); g += len(gr['frags'])*len(gr['chains'])
    for n, gr in enumerate(groups):
        CH = len(gr['frags'])
        base = WF + (n % nbuf)*4*gr.get('bufsz', CH)
        tagid = gr.setdefault('id', (g0, n))
        reads = []
        for j, (va, off) in enumerate(gr['frags']):
            for t in range(2):
                reads.append(T(f"ds_read_b64_tr_b16 {vr(base+4*j+2*t,2)}, v{va} offset:{off+t*512}", ('wf', tagid, j)))
        if n == 0:
            pre.extend(gr.get('sync') or []); pre.extend(reads); gr['syncgap'] = None
        else:
            ps = starts[n-1]; plen = starts[n] - ps
            first = ps + 1
            for x in (gr.get('sync') or []): G.before(first, x)
            gr['syncgap'] = first
            span = max(len(reads), (plen*3)//4 - 1)
            for i, x in enumerate(reads): G.put(first + (i*span)//len(reads), x)
        gg = starts[n]
        for c, ch in enumerate(gr['chains']):
            for j in range(CH):
                G.mf[gg] = I(ch[j](base + 4*j))
                if c == 0 and (j % 2 == 0):
                    G.before(gg, Wait(lg=[('wf', tagid, min(j+1, CH-1))] + (gr.get('lgwait', []) if j == 0 else [])))
                gg += 1
    return starts, g

def place_stream(G, groups, spacing, start=2):
    cur = start; last = start - 2
    for (e, ins) in groups:
        cur = max(cur, e + 2); last = max(last, e)
        pend = []
        for x in ins:
            if x.kind != 'vmem': pend.append(x); continue
            for j, y in enumerate(pend): G.nv[max(last, cur - len(pend) + j)].append(y)
            pend = []
            G.put(cur, x); last = cur; cur += spacing
    return cur

def spread(G, ins, g0, g1):
    for j, x in enumerate(ins):
        g = g0 + (j*(g1-g0))//len(ins)
        if x.kind == 'vmem' and not x.wr: G.put(g+1, x)
        else: G.put(g, x)

def KACC(db, mb):
    return ((96, 64)[db % 2] + (db//4)*64 + ((db//2) % 2)*16) + mb*4
def k_epilogue(js, sSc):
    o = []
    for mb in range(4):
        D0, D1 = KACC(2*js, mb), KACC(2*js+1, mb)
        o += L([f"v_mul_f32 v{D+r}, s{sSc}, v{D+r}" for D in (D0, D1) for r in range(4)])
        o += L([f"v_cvt_pk_bf16_f32 v{D0}, v{D0}, v{D0+1}", f"v_cvt_pk_bf16_f32 v{D0+1}, v{D0+2}, v{D0+3}",
                f"v_cvt_pk_bf16_f32 v{D0+2}, v{D1}, v{D1+1}", f"v_cvt_pk_bf16_f32 v{D0+3}, v{D1+2}, v{D1+3}"])
    return o
def gen_k1():
    S_CKV, S_WK, S_WV, S_WS, S_X = 4, 8, 12, 16, 20
    sW, sH, sR = 24, 25, 26
    sK, sV = 28, 32
    sAk, sWk = 40, 48
    sAm, sWm, sT, sT2, sFl, sSc, sLN, sH8 = 56, 57, 58, 59, 60, 61, 62, 63
    vL, vL16 = 2, 3
    vAD = 4; vAR = 8; vWD = 10; vT = 12; vTh = 16
    WF = 32; ACCK = 64; EP = 192; AR = 128
    pre = prof_begin()
    pre += L(["s_load_dwordx4 s[28:31], s[0:1], 0", "s_load_dwordx4 s[32:35], s[0:1], 24", "s_load_dwordx2 s[36:37], s[0:1], 96",
              "s_load_dwordx2 s[64:65], s[0:1], 16", "s_load_dwordx2 s[66:67], s[0:1], 56", "s_load_dwordx2 s[68:69], s[0:1], 88",
              "s_cmp_ge_u32 s2, 256", "s_cbranch_scc1 K3_END" if FUSED else "s_cbranch_scc1 K1_END"])
    pre += code_prefetch(None, "K1_PC", False, 21, 24, 38, 27)
    pre += L(["v_lshrrev_b32 v1, 6, v0", f"v_and_b32 v{vL}, 63, v0", f"v_readfirstlane_b32 s{sW}, v1",
              f"v_lshlrev_b32 v{vL16}, 4, v{vL}",
              f"s_and_b32 s{sT}, s2, 7", f"s_lshl_b32 s{sT}, s{sT}, 2", f"s_bfe_u32 s{sT2}, s2, 0x20003",
              f"s_add_u32 s{sH}, s{sT}, s{sT2}", f"s_lshr_b32 s{sR}, s2, 5"])
    pre += L([f"v_lshrrev_b32 v24, 5, v{vL}", f"v_and_b32 v25, 31, v{vL}", "v_lshlrev_b32 v26, 10, v24",
              "v_lshl_add_u32 v26, v25, 5, v26",
              "v_lshlrev_b32 v27, 9, v25", "v_lshl_add_u32 v27, v24, 4, v27"])
    pre += L([f"v_lshrrev_b32 v24, 4, v{vL}", f"v_and_b32 v25, 7, v{vL}", "v_xor_b32 v24, v24, v25", "v_lshlrev_b32 v24, 4, v24",
              f"v_lshrrev_b32 v25, 3, v{vL}", f"v_lshl_add_u32 v{vAD}, v25, 10, v24",
              f"v_xor_b32 v{vAD+1}, 64, v{vAD}", f"v_add_u32 v{vAD+1}, {8192-1024}, v{vAD+1}",
              ])
    pre += L(w_dma_voff(vL, vWD, vWD+1, 8192, 24, 25))
    pre += L([f"s_lshl_b32 s{sT}, s{sR}, 18", f"s_lshl_b32 s{sT2}, s{sW}, 16", f"s_add_u32 s{sT}, s{sT}, s{sT2}",
              f"s_lshl_b32 s{sT2}, s{sW}, 14", f"s_add_u32 s{sT2}, s{sT2}, 98304"])
    for o in range(4):
        pre += L([f"s_add_u32 s27, s{sH}, {o}", "s_and_b32 s27, s27, 3", f"s_lshl_b32 s{sAk+o}, s27, 14", f"s_add_u32 s{sAk+o}, s{sAk+o}, s{sT}",
                  f"s_lshl_b32 s{sAk+4+o}, s27, 11", f"s_add_u32 s{sAk+4+o}, s{sAk+4+o}, s{sT2}"])
    pre += L([f"s_lshl_b32 s{sWk}, s{sW}, 17",
              f"s_lshl_b32 s{sWk+1}, s{sR}, 2", f"s_add_u32 s{sWk+1}, s{sWk+1}, s{sW}", f"s_lshl_b32 s{sWk+1}, s{sWk+1}, 15",
              f"v_lshrrev_b32 v24, 4, v{vL}", "v_lshlrev_b32 v24, 13, v24", f"v_and_b32 v25, 15, v{vL}", f"v_lshl_add_u32 v{vAD+2}, v25, 4, v24"])
    pre += L([f"s_lshl_b32 s{sAm}, s{sW}, 14", f"s_add_u32 s{sAm}, s{sAm}, 98304", f"s_lshl_b32 s{sWm}, s{sW}, 11",
              f"s_lshl_b32 s{sH8}, s{sH}, 8", f"s_and_b32 s{sFl}, s{sR}, 1", f"s_lshl_b32 s{sFl}, s{sFl}, 7",
              f"s_lshl_b32 s{sT}, s2, 3", f"s_lshl_b32 s{sT2}, s{sW}, 1", f"s_add_u32 s{sT}, s{sT}, s{sT2}", f"s_lshl_b32 s{sLN}, s{sT}, 10"])
    pre += L(["s_waitcnt lgkmcnt(0)"]) + stamp(1)
    pre += L(srd(S_CKV, 30, 31, 0x200000))
    def dmaA(s, os_):
        o = []
        for k in os_:
            o += [I(f"s_add_u32 m0, s{sAk+4+k}, {(s % 2)*8192}"), I(f"s_add_u32 s{sT}, s{sAk+k}, {s*128}"),
                  T(f"buffer_load_dwordx4 v{vAD}, {sr(S_CKV)}, s{sT} offen lds", ('A', s)),
                  T(f"buffer_load_dwordx4 v{vAD+1}, {sr(S_CKV)}, s{sT} offen offset:1024 lds", ('A', s))]
        return o
    own = lambda s: dmaA(s, [0]); rest = lambda s: dmaA(s, [1, 2, 3])
    def pfW(sd, st):
        return L([f"s_add_u32 s{sT2}, s{sWk+1}, {st*128*8192}", f"buffer_load_dwordx4 v[20:23], v{vAD+2}, {sr(sd)}, s{sT2} offen"])
    def dmaUT(sd, ksl, ch, ldsoff, tag):
        return [I(f"s_add_u32 m0, s{sWm}, {ldsoff}"), I(f"s_add_u32 s{sT2}, s{sWk}, {ksl*64*8192 + ch*128}"),
                T(f"buffer_load_dwordx4 v{vWD}, {sr(sd)}, s{sT2} offen lds", tag),
                T(f"buffer_load_dwordx4 v{vWD+1}, {sr(sd)}, s{sT2} offen offset:1024 lds", tag)]
    kslot = lambda p, u: ((p % 6)*2 + u)*8192
    def dmaWP(p): return [x for u in range(2) for x in dmaUT(S_WV if p % 4 < 2 else S_WK, (p//4)*2 + u, p % 2, kslot(p, u), ('W', p))]
    pre += L([f"buffer_load_dwordx4 v[20:23], v{vL16}, {sr(S_CKV)}, s{sLN} offen", f"buffer_load_dwordx4 v[20:23], v{vL16}, {sr(S_CKV)}, s{sLN} offen offset:1024"])
    pre += own(0) + own(1)
    pre += L(srd_off(S_WV, 34, 35, sH8, 0x400000))
    pre += pfW(S_WV, 0)
    pre += L(srd(S_X, 28, 29, 0x200000) + srd_off(S_WK, 32, 33, sH8, 0x400000))
    pre += rest(0) + dmaWP(0) + rest(1) + pfW(S_WK, 0) + dmaWP(1) + stamp(2)
    pre += [T(f"buffer_load_dwordx4 v[192:195], v26, {sr(S_X)}, s{sLN} offen", 'ln'),
            T(f"buffer_load_dwordx4 v[196:199], v26, {sr(S_X)}, s{sLN} offen offset:16", 'ln')]
    pre += L(srd(S_WS, 36, 37, WS_SIZE))
    pre += L(w_tr_addr(vL, vT, 24, 25)) + L([f"v_add_u32 v{vTh+c}, 0x10000, v{vT+c}" for c in range(4)])
    pre += L([f"v_and_b32 v24, 15, v{vL}", f"v_bfe_u32 v25, v{vL}, 1, 3", f"v_lshrrev_b32 v1, 4, v{vL}", "v_xor_b32 v25, v25, v1",
              "v_lshlrev_b32 v25, 4, v25", "v_lshl_add_u32 v24, v24, 7, v25", f"v_add_u32 v{vAR}, s{sAm}, v24",
              f"v_xor_b32 v{vAR+1}, 64, v{vAR}"])
    pre += L([f"s_lshl_b32 s{sT}, s{sH}, 19", f"s_lshl_b32 s{sT2}, s{sR}, 16", f"s_add_u32 s{sT}, s{sT}, s{sT2}",
              f"s_lshl_b32 s{sT2}, s{sW}, 14", f"s_add_u32 s{sT}, s{sT}, s{sT2}"])
    for j in range(4):
        pre += L([f"s_add_u32 s{sV+j}, s{sT}, {WS_VF + j*4096}"])
    pre += L([f"s_mov_b32 s{sSc}, {f2u(SCALE):#x}"])
    X = 208; R0 = 192; m, t, d, q = 200, 201, 202, 203
    ln = []
    for j in range(8):
        ln += L([f"v_lshlrev_b32 v{X+2*j}, 16, v{R0+j}", f"v_and_b32 v{X+2*j+1}, 0xffff0000, v{R0+j}"])
    ln += L([f"v_add_f32 v{m}, v{X}, v{X+1}"] + [f"v_add_f32 v{m}, v{m}, v{X+j}" for j in range(2, 16)])
    ln += L(red32(m, t))
    ln += L([f"v_mul_f32 v{m}, 0x3b000000, v{m}"])
    ln += L([f"v_sub_f32 v{d}, v{X}, v{m}", f"v_mul_f32 v{q}, v{d}, v{d}"])
    for j in range(1, 16):
        ln += L([f"v_sub_f32 v{d}, v{X+j}, v{m}", f"v_fmac_f32 v{q}, v{d}, v{d}"])
    ln += L(red32(q, t))
    ln += L([f"v_mul_f32 v{q}, 0x3b000000, v{q}", f"v_cvt_pk_bf16_f32 v{m}, v{m}, v{q}",
             f"v_and_b32 v{q}, 0xffff0000, v{m}", f"v_lshlrev_b32 v{m}, 16, v{m}",
             f"v_add_f32 v{q}, {f2u(1e-5):#x}, v{q}", f"v_cvt_pk_bf16_f32 v{q}, v{q}, v{q}", f"v_lshlrev_b32 v{q}, 16, v{q}",
             f"v_sqrt_f32 v{q}, v{q}", f"v_cvt_pk_bf16_f32 v{q}, v{q}, v{q}", f"v_lshlrev_b32 v{q}, 16, v{q}",
             f"v_rcp_f32 v{q}, v{q}"])
    for j in range(8):
        a, b = X+2*j, X+2*j+1
        ln += L([f"v_sub_f32 v{a}, v{a}, v{m}", f"v_sub_f32 v{b}, v{b}, v{m}", f"v_cvt_pk_bf16_f32 v{a}, v{a}, v{b}",
                 f"v_and_b32 v{b}, 0xffff0000, v{a}", f"v_lshlrev_b32 v{a}, 16, v{a}",
                 f"v_mul_f32 v{a}, v{a}, v{q}", f"v_mul_f32 v{b}, v{b}, v{q}", f"v_cvt_pk_bf16_f32 v{R0+j}, v{a}, v{b}"])
    ln2 = []
    LX = kslot(5, 0)
    lnw = L([f"s_lshl_b32 s50, s{sW}, 11", f"s_add_u32 s50, s50, {LX}", "v_add_u32 v26, s50, v26",
             f"ds_write_b128 v26, {vr(R0)}", f"ds_write_b128 v26, {vr(R0+4)} offset:16",
             f"v_and_b32 v24, 7, v{vL}", f"v_lshrrev_b32 v25, 3, v{vL}", "v_lshlrev_b32 v26, 10, v24", "v_lshl_add_u32 v26, v25, 4, v26",
             f"s_lshl_b32 s50, s{sW}, 8", f"s_add_u32 s50, s50, {LX}", "v_add_u32 v26, s50, v26",
             "v_lshlrev_b32 v27, 8, v25", "v_lshl_add_u32 v27, v24, 4, v27"])
    lnw[4].tag = 'lnw'
    ln2 += [T(f"ds_read_b128 {vr(R0)}, v26", 'lnr'), T(f"ds_read_b128 {vr(R0+4)}, v26 offset:128", 'lnr')]
    ln2 += L([f"s_lshr_b32 s{sT}, s2, 1", f"s_lshl_b32 s{sT}, s{sT}, 14", f"s_and_b32 s{sT2}, s2, 1", f"s_lshl_b32 s{sT2}, s{sT2}, 7",
             f"s_add_u32 s{sT}, s{sT}, s{sT2}", f"s_lshl_b32 s{sT2}, s{sW}, 12", f"s_add_u32 s{sT}, s{sT}, s{sT2}"])
    ln2 += [Wait(lg='lnr')]
    ln2 += L([f"buffer_store_dwordx4 {vr(R0)}, v27, {sr(S_WS)}, s{sT} offen offset:{WS_XN}{STX}",
              f"buffer_store_dwordx4 {vr(R0+4)}, v27, {sr(S_WS)}, s{sT} offen offset:{WS_XN+2048}{STX}"])
    ln2 += L([f"s_lshl_b32 s{sT}, s{sH}, 7", f"s_lshl_b32 s{sT2}, s{sR}, 2", f"s_add_u32 s{sT}, s{sT}, s{sT2}", f"s_add_u32 s{sT}, s{sT}, {FL_KV}", f"v_mov_b32 v24, s{sT}",
              f"s_lshl_b32 s{sT}, s{sR}, 7", f"s_lshl_b32 s{sT2}, s{sH}, 2", f"s_add_u32 s27, s{sT}, s{sT2}", f"s_add_u32 s27, s27, {FL_CX}", "v_writelane_b32 v24, s27, 1",
              f"s_sub_u32 s27, s{sT2}, s{sT}", f"s_add_u32 s27, s27, {FL_CX + 15*128}", "v_writelane_b32 v24, s27, 2",
              f"s_bfe_u32 s{sT}, s2, 0x10002", f"s_lshl_b32 s{sT}, s{sT}, 3", f"s_bfe_u32 s{sT2}, s2, 0x30003", f"s_add_u32 s{sT}, s{sT}, s{sT2}",
              f"s_lshl_b32 s{sT}, s{sT}, 2", f"s_lshr_b32 s{sT2}, s2, 6", f"s_add_u32 s{sT}, s{sT}, s{sT2}", f"s_lshl_b32 s{sT}, s{sT}, 2",
              f"s_and_b32 s{sT2}, s2, 3", f"s_add_u32 s{sT}, s{sT}, s{sT2}", f"s_lshl_b32 s{sT}, s{sT}, 7", f"s_add_u32 s27, s{sT}, {FL_EX}", "v_writelane_b32 v24, s27, 3",
              "v_mov_b32 v25, 0", T(f"buffer_store_dword v25, v24, {sr(S_WS)}, 0 offen sc1", 'lnst'),
              "s_mov_b32 s70, 256", "s_mov_b32 s71, 0x00020000", "v_mov_b32 v26, 1"])
    ln2 = [x if isinstance(x, Wait) else I(x.text.replace(f's{sT2}', 's51').replace(f's{sT}', 's50'), x.tag) for x in ln2]
    kacc = lambda db, mb: KACC(db, mb)
    afr = lambda st, mb, j: ar(AR + (st % 2)*64 + (mb*4 + j)*4)
    def readA(s):
        return [T(f"ds_read_b128 {afr(s//2, mb, (s % 2)*2 + k)}, v{vAR+k} offset:{(s % 2)*8192 + mb*2048}", ('Ar', s))
                for mb in range(4) for k in range(2)]
    pre += [Wait(vm=('A', 0))] + readA(0) + [Wait(vm=('A', 1))] + readA(1) + stamp(5)
    groups = []
    for p in range(16):
        st, cq = p//4, p % 4
        for cb in range(4):
            db = (cq % 2)*4 + cb
            fr = []
            for j in range(4):
                o = kslot(p, j//2) + (j % 2)*4096
                fr.append(((vT, vTh)[o >> 16] + cb, o & 0xffff))
            chains = []
            for mb in range(4):
                if cq >= 2:
                    D = vr(kacc(db, mb))
                    chains.append([(lambda f, D=D, a=afr(st, mb, j), z=(st == 0 and j == 0): f"{MF} {D}, {vr(f)}, {a}, {'0' if z else D}") for j in range(4)])
                else:
                    D = ar((db*4 + mb)*4)
                    chains.append([(lambda f, D=D, a=afr(st, mb, j), z=(st == 0 and j == 0): f"{MF} {D}, {a}, {vr(f)}, {'0' if z else D}") for j in range(4)])
            gr = dict(frags=fr, chains=chains)
            if cb == 0:
                gr['sync'] = [Wait(vm=('W', p)), I("s_barrier")]; gr['pair'] = p
                if cq == 0: gr['lgwait'] = [('Ar', 2*st+1)]
            groups.append(gr)
    G = Gaps(1024)
    starts, gend = gemm_groups(G, 0, groups, WF, pre)
    assert gend == 1024
    bar = {gr['pair']: gr['syncgap'] for gr in groups if 'pair' in gr}
    ev = [(0, dmaWP(2))]
    for st in range(3):
        g = 256*st
        ev += [(g, own(2*st+2) + own(2*st+3))]
        if st == 0: ev += [(g + 10, pfW(S_WV, 1) + pfW(S_WK, 1))]
        if st < 2: ev += [(g + 150, pfW(S_WV, st+2) + pfW(S_WK, st+2))]
        ev += [(g + 70, rest(2*st+2)), (g + 125, rest(2*st+3))]
        for k in range(2):
            gr_ = g + 196 + 26*k
            G.before(gr_, Wait(vm=('A', 2*st+2+k)))
            for j, x in enumerate(readA(2*st+2+k)): G.put(gr_ + 2*j, x)
    for p in range(1, 14): ev += [(bar[p], dmaWP(p+2))]
    ev.sort(key=lambda e: e[0])
    end = place_stream(G, ev, int(os.environ.get("SP", "4")), start=2)
    print("K1 dma stream ends at gap", end)
    G.before(3, Wait(vm='ln'))
    spread(G, ln, 3, 92)
    for j, x in enumerate(lnw): G.va[92 + j].append(x)
    G.pre[bar[2]].insert(0, Wait(lg='lnw'))
    for j, x in enumerate(ln2): G.nv[bar[2] + j].append(x)
    if FUSED:
        for x in one_lane([T("buffer_atomic_add v26, v25, s[68:71], 0 offen sc1", 'NOCOUNT')], sW, "K1_SIG", sT): G.nv[bar[4]].append(x)
        G.pre[bar[4]].insert(0, Wait(vm='lnst'))
        G.put(960, T("buffer_load_dword v27, v25, s[68:71], 0 offen sc1", 'lnc'))
        XG = int(os.environ.get("XG", "0"))
        if XG:
            G.put(XG - 40, T("buffer_load_dword v27, v25, s[68:71], 0 offen sc1", 'lnc0'))
            xp = [Wait(vm='lnc0')] + L(["v_readfirstlane_b32 s52, v27", "s_bfe_u32 s53, s2, 0x50003", "s_lshl_b32 s53, s53, 16", f"s_lshl_b32 s54, s{sW}, 14", "s_add_u32 s53, s53, s54",
                                        "s_cmp_eq_u32 s52, 0x100\n    s_cselect_b32 s53, s53, 0x10000000"])
            for k in range(16):
                if k and k % 4 == 0: xp += L(["s_add_u32 s53, s53, 4096"])
                xp += L([f"buffer_load_dwordx4 v[20:23], v{vL16}, {sr(S_WS)}, s53 offen offset:{(k % 4)*1024} sc1"])
            g = XG
            for x in xp:
                G.nv[g].append(x); g += 8 if x.kind == 'vmem' else 1
    pf = L(srd_off(S_X, 64, 65, sH8, 0x400000) + [f"s_lshr_b32 s{sT}, s{sH8}, 1"] + srd_off(28, 66, 67, sT, 512*2752))
    pf += L([f"v_lshrrev_b32 v24, 4, v{vL}", "v_lshlrev_b32 v24, 13, v24", f"v_and_b32 v1, 15, v{vL}", "v_lshl_add_u32 v24, v1, 4, v24",
             f"v_lshrrev_b32 v26, 3, v{vL}", "v_mul_u32_u24 v26, 2752, v26", f"v_and_b32 v1, 7, v{vL}", "v_lshl_add_u32 v26, v1, 4, v26",
             f"s_lshl_b32 s{sT}, s{sR}, 2", f"s_add_u32 s{sT}, s{sT}, s{sW}", f"s_mul_i32 s{sT2}, s{sT}, {16*2752}", f"s_lshl_b32 s{sT}, s{sT}, 17"])
    for k in range(4):
        pf += L([f"buffer_load_dwordx4 v[20:23], v24, {sr(S_X)}, s{sT} offen", f"s_add_u32 s{sT}, s{sT}, 32768"])
    for k in range(2):
        pf += L([f"buffer_load_dwordx4 v[20:23], v26, {sr(28)}, s{sT2} offen", f"s_add_u32 s{sT2}, s{sT2}, {8*2752}"])
    pf = [I(x.text.replace(f"s{sT2}", "s53").replace(f"s{sT}", "s52")) for x in pf]
    pf += code_prefetch("K2_BEGIN" if FUSED else "attn_kernel", "K1_PC2", True, 20, 24, 38, 27)
    g = int(os.environ.get('PFG', '420'))
    for x in pf:
        G.nv[g].append(x); g += 4 if x.kind == 'vmem' else (0 if x.kind == 'label' or x.op == 's_getpc_b64' else 1)
    assert g < 1000
    for db in range(8):
        ins = []
        for ks in range(2):
            t = EP + ((db*2 + ks) % 8)*8
            ins += L([f"v_accvgpr_read_b32 v{t+k}, a{(db*4 + 2*ks)*4 + k}" for k in range(8)])
            ins += L([f"v_cvt_pk_bf16_f32 v{t+k}, v{t+2*k}, v{t+2*k+1}" for k in range(4)])
            ins += L([f"buffer_store_dwordx4 {vr(t)}, v{vL16}, {sr(S_WS)}, s{sV+db//2} offen offset:{(db%2)*2048 + ks*1024}{STF}"])
        spread(G, ins, 790 + 28*db, 790 + 28*db + 27)
    spread(G, k_epilogue(0, sSc) + k_epilogue(1, sSc), 964, 1022)
    tail = []
    assert FUSED
    if os.environ.get("K1FINE"):
        seq = list(pre)
        for p in range(8): seq += stamp(2+p) + G.linear(128*p, 128*p+128)
        seq += stamp(10) + tail + prof_end(0, S_WS, sW, 4, vtmp=32, drain=not FUSED)
    else:
        seq = pre + stamp(6) + G.linear(0, 64) + stamp(7) + G.linear(64, 512) + stamp(8) + G.linear(512, 1024) + stamp(9) + tail + stamp(10) + prof_end(0, S_WS, sW, 4, vtmp=32, drain=not FUSED)
    if FUSED:
        seq += [Wait(vm='lnc')] + L(["s_mov_b32 s70, 256", "s_movk_i32 s27, 0x100", "v_cmp_ne_u32 vcc, s27, v27", "s_cbranch_vccz K1_LNOK"])
        sp = spin("K1_LNSPIN", "buffer_load_dword v27, v25, s[68:71], 0 offen sc1", 27, "s27", sT)
        for x in sp:
            if x.kind == 'vmem': x.tag = 'NOCOUNT'
        seq += sp + L(["K1_LNOK:", "s_barrier"])
        return seq
    seq = resolve_waits(seq)
    seq, n = fix_hazards(seq)
    print("K1: instrs", len(seq), "nops", n)
    return seq + L(["K1_END:", "s_endpgm"])

def emit(kernels, path):
    hdr = open('parallel_sum__compressed_kv_cla__dense_activation_mish__prompt.s.ref').read().split('\n')
    out = [l for l in hdr[:14]]
    for (name, grid, block, lds, seq, nv, acc) in kernels:
        if len(kernels) == 1 and os.environ.get("PLAIN"): out.append(f"; @launch grid=({grid},1,1) block=({block},1,1) lds={lds}")
        else: out.append(f"; @launch kernel={name} grid=({grid},1,1) block=({block},1,1) lds={lds}")
    out += ['.amdgcn_target "amdgcn-amd-amdhsa--gfx950"', ".text"]
    for (name, grid, block, lds, seq, nv, acc) in kernels:
        out += [f".globl {name}", ".p2align 8", f".type {name},@function", f"{name}:"]
        out += [("" if i.kind == 'label' else "    ") + i.text for i in seq]
    out.append(".fill 8192, 4, 0xbf800000")
    out.append('.section .rodata,"a"')
    for (name, grid, block, lds, seq, nv, acc) in kernels:
        out += [".p2align 6", f".amdhsa_kernel {name}", f"  .amdhsa_next_free_vgpr {nv}", "  .amdhsa_next_free_sgpr 102",
                f"  .amdhsa_accum_offset {acc}", "  .amdhsa_group_segment_fixed_size 0", "  .amdhsa_kernarg_size 104",
                "  .amdhsa_user_sgpr_count 2", "  .amdhsa_user_sgpr_kernarg_segment_ptr 1",
                "  .amdhsa_system_sgpr_workgroup_id_x 1", ".end_amdhsa_kernel"]
    open(path, "w").write("\n".join(out) + "\n")

if __name__ == "__main__":
    ks = [("kvproj_kernel", 256, 256, 163840, gen_k1(), 512, 256)]
    emit(ks, sys.argv[1] if len(sys.argv) > 1 else "k.s")
```

```python
from gen import *

NEGINF = "0xff800000"
THR = f2u(2.0**60)

def gen_k2(prefix=None):
    S_WS, S_WQ, S_W1, S_K, S_V, S_B1 = 4, 8, 12, 16, 20, 24
    sW, sH, sI, sPar = 28, 29, 30, 31
    sXN = 32
    sAct = 36
    sWm, sT, sT2, sT3 = 44, 45, 46, 47
    sWoQ, sWo1 = 48, 50
    sKd, sVd, sGd, sKr, sVr, sVk = 50, 51, 52, 53, 54, 55
    sC = {'a': 56, 'b': 57}
    sCnt, sThr, sRet = 58, 59, 60
    sPC = 62
    sKA = 64
    vL, vL16 = 2, 3
    vX = 4
    vWDq, vWD1 = 8, 10
    vT = 12; vTh = 16; vTt = 20
    vDM, vKr, vVr, vLB = 24, 25, 26, 27
    vNI = 28
    tA, tB = 29, 30
    WF = 32
    QE = 64
    QO = 128
    HA = 192
    P = {'a': 32, 'b': 48}
    S = {'a': 128, 'b': 160}
    QX = 192
    NM = {'a': 224, 'b': 232}
    ET = 240
    TS = {'a': 244, 'b': 246}; LS = {'a': 248, 'b': 250}; MS = {'a': 252, 'b': 254}
    O = {'a': 0, 'b': 64}; KF_, VF_ = 128, 192
    qf = lambda mbx, js: QE + (js*4 + mbx)*4
    Qreg = {'a': lambda nb, js: qf(nb, js), 'b': lambda nb, js: qf(2+nb, js), 'x': lambda nb, js: QX + (js*2+nb)*4}

    pre = (prefix + L(["K2_BEGIN:"]) if prefix else []) + prof_begin()
    pre += L([f"s_load_dwordx2 s[64:65], s[0:1], 16", "s_load_dwordx2 s[68:69], s[0:1], 56",
              "s_load_dwordx2 s[66:67], s[0:1], 96", "s_load_dwordx2 s[26:27], s[0:1], 64",
              ] + ([] if FUSED else ["s_cmp_ge_u32 s2, 256", "s_cbranch_scc1 K2_END"]))
    pre += L(["v_mov_b32 v31, v0", "v_lshrrev_b32 v1, 6, v0", f"v_and_b32 v{vL}, 63, v0", f"v_readfirstlane_b32 s{sW}, v1",
              f"v_lshlrev_b32 v{vL16}, 4, v{vL}",
              f"s_and_b32 s{sT}, s2, 7", f"s_lshl_b32 s{sT}, s{sT}, 2", f"s_bfe_u32 s{sT2}, s2, 0x20003",
              f"s_add_u32 s{sH}, s{sT}, s{sT2}", f"s_lshr_b32 s{sI}, s2, 5", f"s_and_b32 s{sPar}, s{sW}, 1"])
    for j in range(4):
        pre += L([f"s_add_u32 s{sT}, s{sH}, {j}", f"s_and_b32 s{sT}, s{sT}, 3", f"s_lshl_b32 s{sT}, s{sT}, 10", f"v_add_u32 v{vX+j}, s{sT}, v{vL16}"])
    for u in range(2):
        pre += L([f"s_lshr_b32 s{sT}, s{sW}, 1", f"s_add_u32 s{sT}, s{sT}, s{sH}", f"s_add_u32 s{sT}, s{sT}, {2*u}", f"s_and_b32 s{sT}, s{sT}, 3",
                  f"s_lshl_b32 s{sT}, s{sT}, 1", f"s_add_u32 s{sT}, s{sT}, s{sPar}", f"s_lshl_b32 s{sWoQ+u}, s{sT}, 17", f"s_mul_i32 s{sWo1+u}, s{sT}, {16*2752}"])
    pre += L(w_dma_voff(vL, vWDq, vWDq+1, 8192, tA, tB) + w_dma_voff(vL, vWD1, vWD1+1, 2752, tA, tB))
    pre += L([f"s_lshl_b32 s{sT}, s{sI}, 3", f"s_lshl_b32 s{sT2}, s{sW}, 1", f"s_add_u32 s{sT3}, s{sT}, s{sT2}",
              f"s_sub_u32 s{sT}, 120, s{sT}", f"s_add_u32 s{sT}, s{sT}, s{sT2}",
              f"s_lshl_b32 s{sXN}, s{sT3}, 14", f"s_add_u32 s{sXN+1}, s{sXN}, 16384",
              f"s_lshl_b32 s{sXN+2}, s{sT}, 14", f"s_add_u32 s{sXN+3}, s{sXN+2}, 16384",
              f"s_mul_i32 s{sAct}, s{sT3}, {CA_RB}", f"s_mul_i32 s{sAct+4}, s{sT}, {CA_RB}",
              f"s_lshl_b32 s{sC['a']}, s{sT3}, 4", f"s_lshl_b32 s{sC['b']}, s{sT}, 4",
              f"s_lshl_b32 s{sWm}, s{sW}, 11",
              f"s_lshl_b32 s{sT}, s{sH}, 8", f"s_lshl_b32 s{sT2}, s{sH}, 7"])
    pre += L(["s_waitcnt lgkmcnt(0)"]) + stamp(1)
    pre += L(srd(S_WS, 66, 67, WS_SIZE))
    def ldX(st, js):
        return [T(f"buffer_load_dwordx4 {ar((mbx*16+4*st+j)*4)}, v{vX+j}, {sr(S_WS)}, s{sXN+mbx} offen{LDF}", ('X', st))
                for j in js for mbx in range(4)] + [I(f"v_add_u32 v{vX+j}, 4096, v{vX+j}") for j in js]
    own = lambda st: ldX(st, [0]); rest = lambda st: ldX(st, [1, 2, 3])
    ring = [0, 1, 2, 3, 4, 5, 8, 9, 10, 11, 12, 13]
    pslot = lambda p, u: ring[((p % 6)*2 + u)]*8192
    hslot = [6, 7, 14, 15, 16, 17, 18, 19]
    def dmaUT(which, ksl, colb, ldsoff, tag):
        sd, vd, so, pitch = (S_W1, vWD1, sWo1, 2752) if which == 1 else (S_WQ, vWDq, sWoQ, 8192)
        return [I(f"s_add_u32 m0, s{sWm}, {ldsoff}"), I(f"s_add_u32 s{sT3}, s{so + ksl % 2}, {(ksl//2)*128*pitch + colb}"),
                T(f"buffer_load_dwordx4 v{vd}, {sr(sd)}, s{sT3} offen lds", tag),
                T(f"buffer_load_dwordx4 v{vd+1}, {sr(sd)}, s{sT3} offen offset:1024 lds", tag)]
    def dmaP(p): return [x for u in range(2) for x in dmaUT(1 if p % 2 == 0 else 0, (p//2)*2 + u, 0, pslot(p, u), ('W', p))]
    def dmaH(ks): return [x for k in ks for x in dmaUT(0, k, 128, hslot[k]*8192, 'WH')]
    DIAG = os.environ.get('DIAG')
    dst = lambda k: (L(['s_waitcnt vmcnt(0)'] if DIAG == 'w' else []) + stamp(k)) if DIAG else []
    o01 = own(0)
    pre += (o01[:1] + dst(8) + o01[1:] + dst(9)) if DIAG == 'w' else o01
    pre += L(srd_off(S_W1, 68, 69, sT2, 512*2752) + srd_off(S_WQ, 64, 65, sT, 0x400000))
    pre += dmaP(0)
    pre += L([f"s_mov_b32 s{S_B1}, s26", f"s_mov_b32 s{S_B1+1}, s27", f"s_mov_b32 s{S_B1+2}, 2752", f"s_mov_b32 s{S_B1+3}, 0x00020000",
              f"v_lshrrev_b32 v{tA}, 4, v{vL}", f"v_lshlrev_b32 v{tA}, 3, v{tA}"])
    BI = 64
    pre += [T(f"buffer_load_dwordx2 {vr(BI+16+2*fb, 2)}, v{tA}, {sr(S_B1)}, s{sT2} offen offset:{fb*32}", 'bias') for fb in range(4)]
    pre += dst(10) + rest(0) + stamp(2)
    pre += L(w_tr_addr(vL, vT, tA, tB)) + L([f"v_add_u32 v{vTh+c}, 0x10000, v{vT+c}" for c in range(4)] + [f"v_add_u32 v{vTt+c}, 0x20000, v{vT+c}" for c in range(4)])
    pre += L([f"s_lshl_b32 s{sT}, s{sH}, 19", f"s_lshl_b32 s{sT2}, s{sI}, 15", f"s_sub_u32 s{sT2}, 0x80000, s{sT2}",
              f"s_add_u32 s{sT3}, s{sT}, {WS_KF}", f"s_add_u32 s{S_K}, s66, s{sT3}", f"s_addc_u32 s{S_K+1}, s67, 0", f"s_mov_b32 s{S_K+2}, s{sT2}", f"s_mov_b32 s{S_K+3}, 0x00020000",
              f"s_add_u32 s{sT3}, s{sT}, {WS_VF}", f"s_add_u32 s{S_V}, s66, s{sT3}", f"s_addc_u32 s{S_V+1}, s67, 0", f"s_mov_b32 s{S_V+2}, s{sT2}", f"s_mov_b32 s{S_V+3}, 0x00020000"])
    pre += L([f"s_add_u32 s{sAct+2}, s{sAct}, {CA_RB}", f"s_add_u32 s{sAct+6}, s{sAct+4}, {CA_RB}",
              f"s_lshl_b32 s{sT}, s{sH}, 11", f"s_add_u32 s{sT}, s{sT}, {WS_CA + 128*1024}",
              f"s_lshl_b32 s{sT2}, s{sH}, 12", f"s_add_u32 s{sT2}, s{sT2}, {WS_CA}"])
    ctxoff = []
    for mbx in range(4):
        ctxoff += L([f"s_add_u32 s{sXN+mbx}, s{sAct+2*mbx}, s{sT2}"])
    actoff = []
    for mbx in range(4):
        actoff += L([f"s_add_u32 s{sAct+2*mbx}, s{sAct+2*mbx}, s{sT}", f"s_add_u32 s{sAct+2*mbx+1}, s{sAct+2*mbx}, 1024",
                     f"s_cmp_gt_u32 s{sH}, 21", f"s_cselect_b32 s{sAct+2*mbx}, 0x10000000, s{sAct+2*mbx}",
                     f"s_cmp_gt_u32 s{sH}, 20", f"s_cselect_b32 s{sAct+2*mbx+1}, 0x10000000, s{sAct+2*mbx+1}"])
    pre += L([f"s_mov_b32 s{sKr}, s{sT}", f"s_mov_b32 s{sVr}, s{sT2}"])
    fix = lambda lst: [I(x.text.replace(f"s{sT2}", f"s{sVr}").replace(f"s{sT}", f"s{sKr}")) for x in lst]
    ctxoff, actoff = fix(ctxoff), fix(actoff)
    pre += L([f"v_lshl_add_u32 v{vDM}, s{sW}, 12, v{vL16}" if False else f"v_mov_b32 v{tA}, s{sW}", f"v_lshl_add_u32 v{vDM}, v{tA}, 12, v{vL16}",
              f"v_and_b32 v{tA}, 15, v{vL}", f"v_lshrrev_b32 v{tB}, 4, v{vL}", f"v_lshlrev_b32 v{tB}, 2, v{tB}", f"v_sub_u32 v{vLB}, v{tA}, v{tB}",
              f"v_mov_b32 v{vNI}, {NEGINF}", f"s_mov_b32 s{sThr}, {THR:#x}"])
    pre += own(1) + dmaP(1)
    pre += L([f"s_mov_b32 s{sRet}, {f2u(SCALE):#x}"]) + k_epilogue(2, sRet) + k_epilogue(3, sRet)
    pre += L([f"s_lshl_b32 s{sRet}, s{sH}, 19", f"s_lshl_b32 s{sRet+1}, s{sI}, 16", f"s_add_u32 s{sRet}, s{sRet}, s{sRet+1}",
              f"s_lshl_b32 s{sRet+1}, s{sW}, 14", f"s_add_u32 s{sRet}, s{sRet}, s{sRet+1}", f"s_add_u32 s{sRet}, s{sRet}, {WS_KF}"])
    kst = []
    for mb in range(4):
        for js in range(4):
            kst.append(([I(f"s_add_u32 s{sRet}, s{sRet}, 4096")] if (mb and js == 0) else []) +
                       [T(f"buffer_store_dwordx4 {vr(KACC(2*js, mb))}, v{vL16}, {sr(S_WS)}, s{sRet} offen offset:{js*1024}{STF}", 'kst')])
    pre += [Wait(vm='bias')]
    for fb in range(4):
        for hw in range(2):
            pre += L([f"v_lshlrev_b32 v{BI+4*fb+2*hw}, 16, v{BI+16+2*fb+hw}", f"v_and_b32 v{BI+4*fb+2*hw+1}, 0xffff0000, v{BI+16+2*fb+hw}"])
    pre += stamp(3)
    xfr = lambda mbx, ks: ar((mbx*16 + ks)*4)
    def tra(o, cb): return ((vT, vTh, vTt)[o >> 16] + cb, o & 0xffff)
    qacc = lambda db, mbx: (QE if db % 2 == 0 else QO) + ((db//2)*4 + mbx)*4
    groups = []
    for p in range(8):
        st = p//2
        for cb in range(4):
            fr = [tra(pslot(p, j//2) + (j % 2)*4096, cb) for j in range(4)]
            chains = []
            for mbx in range(4):
                if p % 2 == 0: D = HA + (cb*4 + mbx)*4; C0 = vr(BI + 4*cb)
                else: D = qacc(cb, mbx); C0 = '0'
                chains.append([(lambda f, D=D, mbx=mbx, ks=st*4+j, C0=C0: f"{MF} {vr(D)}, {vr(f)}, {xfr(mbx, ks)}, {C0 if ks == 0 else vr(D)}") for j in range(4)])
            gr = dict(frags=fr, chains=chains)
            if cb == 0:
                gr['sync'] = [Wait(vm=('W', p)), I("s_barrier")]; gr['pair'] = p
                if p % 2 == 0: gr['xwait'] = st
            groups.append(gr)
    for cb in range(4):
        for kq in range(4):
            fr = [tra(hslot[(kq*4+j)//2]*8192 + (j % 2)*4096, cb) for j in range(4)]
            chains = []
            for mbx in range(4):
                D = qacc(4+cb, mbx)
                chains.append([(lambda f, D=D, mbx=mbx, ks=kq*4+j: f"{MF} {vr(D)}, {vr(f)}, {xfr(mbx, ks)}, {'0' if ks == 0 else vr(D)}") for j in range(4)])
            gr = dict(frags=fr, chains=chains)
            if cb == 0 and kq == 0: gr['sync'] = [Wait(vm='WH'), I("s_barrier")]; gr['pair'] = 8
            groups.append(gr)
    G = Gaps(768)
    starts, gend = gemm_groups(G, 0, groups, WF, pre)
    assert gend == 768
    for n, gr in enumerate(groups):
        if 'xwait' in gr: G.before(starts[n], Wait(vm=('X', gr['xwait'])))
    bar = {gr['pair']: gr['syncgap'] for gr in groups if 'pair' in gr}
    for k, grp in enumerate(kst):
        for x in grp: G.nv[6 + 27*k].append(x)
    G.pre[bar[8]].insert(0, Wait(vm='kst'))
    sig = L([f"s_lshl_b32 s{sGd}, s{sH}, 7", f"s_add_u32 s{sGd}, s{sGd}, {FL_KV}", f"s_lshl_b32 s{sVk}, s{sI}, 2", f"s_add_u32 s{sVk}, s{sVk}, s{sGd}",
             f"v_mov_b32 v{vKr}, 1", f"v_mov_b32 v{vVr}, 0"])
    for j, x in enumerate(sig): G.nv[bar[8] - 12 + j].append(x)
    sig = one_lane([T(f"buffer_store_dword v{vKr}, v{vVr}, {sr(S_WS)}, s{sVk} offen sc1", 'NOCOUNT')], sW, "K2_SIG", sT)
    sig += L([f"v_and_b32 v{vVr}, 7, v{vL}", f"v_lshlrev_b32 v{vVr}, 2, v{vVr}"])
    for x in sig: G.nv[bar[8]].append(x)
    pl = f"buffer_load_dword v{vKr}, v{vVr}, {sr(S_WS)}, s{sGd} offen sc1"
    GP = int(os.environ.get("GP", "560"))
    G.put(GP, T(pl, 'kvf'))
    for x in [Wait(vm='kvf')] + L([f"v_cmp_ne_u32 vcc, 1, v{vKr}", "s_cbranch_vccnz K2_KVSPIN_E", "K2_KVOK:"]): G.before(GP + 40, x)
    kvstub = L(["K2_KVSPIN_E:"]) + spin("K2_KVSPIN", pl, vKr, 1, sCnt) + L(["s_branch K2_KVOK"])
    def dmaKV(which, t):
        sd, base = (S_K, 0) if which == 'K' else (S_V, 65536)
        return [I(f"s_lshl_b32 s{sT3}, s{sW}, 12"), I(f"s_add_u32 m0, s{sT3}, {base + t*16384}"), I(f"s_mov_b32 s{sT3}, {t*16384}")] + \
               [T(f"buffer_load_dwordx4 v{vDM}, {sr(sd)}, s{sT3} offen offset:{j*1024}{LDF} lds", ('KV', which, t)) for j in range(4)]
    trail = lambda l: l + [I("s_nop 0")] if False else l
    stream = [(0, own(2) + rest(1) + dmaP(2) + dmaP(3) + own(3) + rest(2) + dmaP(4) + dmaP(5) + rest(3)[:-3]),
              (bar[2], dmaP(6)), (bar[3], dmaP(7) + dmaH(range(8))),
              ]
    end = place_stream(G, stream, 4, start=4)
    print("K2 prologue dma stream (part 1) ends at gap", end)
    gb = 512 + 40
    G.before(gb, I("s_barrier"))
    end = place_stream(G, [(GP + 40, dmaKV('K', 0) + dmaKV('V', 0) + dmaKV('K', 1) + dmaKV('K', 2) + dmaKV('V', 1) + dmaKV('V', 2))], 6, start=GP + 40)
    print("K2 prologue dma stream ends at gap", end)
    for j, x in enumerate(ctxoff + actoff): G.put(300 + (j//2), x)
    ins = []
    for js in range(2):
        for mbx in range(4):
            E, Od = qf(mbx, js), QO + (js*4 + mbx)*4
            ins += L([f"v_cvt_pk_bf16_f32 v{E}, v{E}, v{E+1}", f"v_cvt_pk_bf16_f32 v{E+1}, v{E+2}, v{E+3}",
                      f"v_cvt_pk_bf16_f32 v{E+2}, v{Od}, v{Od+1}", f"v_cvt_pk_bf16_f32 v{E+3}, v{Od+2}, v{Od+3}"])
    LOG2E = f2u(math.log2(math.e))
    mish = []
    for fbp in range(2):
        for mbx in range(4):
            D0, D1 = HA + ((2*fbp)*4 + mbx)*4, HA + ((2*fbp+1)*4 + mbx)*4
            regs = [D0+r for r in range(4)] + [D1+r for r in range(4)]
            for a, b in zip(regs[0::2], regs[1::2]):
                mish += L([f"v_mul_f32 v{tA}, {LOG2E:#x}, v{a}", f"v_mul_f32 v{tB}, {LOG2E:#x}, v{b}",
                           f"v_exp_f32 v{tA}, v{tA}", f"v_exp_f32 v{tB}, v{tB}",
                           f"v_add_f32 v0, 2.0, v{tA}", f"v_add_f32 v1, 2.0, v{tB}",
                           f"v_fma_f32 v{tA}, v{tA}, v0, 2.0", f"v_fma_f32 v{tB}, v{tB}, v1, 2.0",
                           f"v_rcp_f32 v{tA}, v{tA}", f"v_rcp_f32 v{tB}, v{tB}",
                           f"v_mul_f32 v{tA}, v{tA}, v{a}", f"v_mul_f32 v{tB}, v{tB}, v{b}",
                           f"v_fma_f32 v{a}, v{tA}, -2.0, v{a}", f"v_fma_f32 v{b}, v{tB}, -2.0, v{b}"])
            mish += L([f"v_cvt_pk_bf16_f32 v{D0}, v{D0}, v{D0+1}", f"v_cvt_pk_bf16_f32 v{D0+1}, v{D0+2}, v{D0+3}",
                       f"v_cvt_pk_bf16_f32 v{D0+2}, v{D1}, v{D1+1}", f"v_cvt_pk_bf16_f32 v{D0+3}, v{D1+2}, v{D1+3}",
                       f"buffer_store_dwordx4 {vr(D0)}, v{vL16}, {sr(S_WS)}, s{sAct+2*mbx+fbp} offen{STF2}"])
    spread(G, mish, 456, 740)
    spread(G, ins, 520, 760)
    post = []
    for js in range(2, 4):
        for mbx in (2, 3, 0, 1):
            E, Od = qf(mbx, js), QO + (js*4 + mbx)*4
            post += L([f"v_cvt_pk_bf16_f32 v{E}, v{E}, v{E+1}", f"v_cvt_pk_bf16_f32 v{E+1}, v{E+2}, v{E+3}",
                       f"v_cvt_pk_bf16_f32 v{E+2}, v{Od}, v{Od+1}", f"v_cvt_pk_bf16_f32 v{E+3}, v{Od+2}, v{Od+3}"])
    XB = 131072
    post += [Wait(vm=('KV', 'K', 0)), I("s_barrier")]
    post += L([f"v_mov_b32 v{vKr}, v{vL16}", f"v_lshlrev_b32 v{tA}, 1, v{vDM}", f"v_sub_u32 v{tA}, v{tA}, v{vL16}", f"v_add_u32 v{tA}, {XB}, v{tA}",
               f"v_xor_b32 v{tB}, 0x2000, v{tA}"])
    kread = lambda f: T(f"ds_read_b128 {ar(KF_+4*f)}, v{vKr} offset:{f*1024}", ('kf', f))
    post += [kread(f) for f in range(16)]
    post += [T(f"ds_write_b128 v{tA}, {vr(Qreg['b'](nb, js))} offset:{(js*2+nb)*1024}", 'qw') for js in range(4) for nb in range(2)]
    ONE, ZR, T4 = 8, 20, 12
    sMk = 62
    zero_o = lambda s: [I(f"v_mfma_f32_32x32x16_bf16 {ar(O[s]+16*k, 16)}, {vr(ZR)}, {vr(ZR)}, 0") for k in range(4)]
    post += L([f"v_mov_b32 v{ZR+k}, 0" for k in range(4)] + [f"v_mov_b32 v{ONE+k}, 0x3f803f80" for k in range(4)])
    post += L(["s_load_dwordx2 s[8:9], s[0:1], 40", "s_load_dwordx2 s[12:13], s[0:1], 72"])
    post += zero_o('a') + zero_o('b')
    post += L([f"v_mov_b32 v{LS[s]+nb}, 0" for s in 'ab' for nb in range(2)])
    post += L([f"v_cmp_le_i32 s[{sMk+2*r}:{sMk+2*r+1}], {r}, v{vLB}" for r in range(4)])
    post += L([f"s_lshl_b32 s{sT}, s{sW}, 12", f"s_add_u32 s{sKd}, s{sT}, {3*16384}", f"s_add_u32 s{sVd}, s{sT}, {3*16384}", f"v_add_u32 v{vX}, 0x10000, v{vL16}",
               f"s_mov_b32 s{sGd}, {3*16384}", f"s_mov_b32 s{sKr}, 16384", f"s_mov_b32 s{sVr}, 0",
               f"s_lshl_b32 s{sCnt}, s{sI}, 1", f"s_sub_u32 s{sCnt}, s{sCnt}, 1"])
    sreg = lambda s, mb, nb: S[s] + (mb*2 + nb)*4
    def prepass_mfma(s, q):
        return [I(f"{MF} {vr(sreg(s,0,nb))}, {ar(KF_+4*js)}, {vr(Qreg[q](nb, js))}, {'0' if js == 0 else vr(sreg(s,0,nb))}") for nb in range(2) for js in range(4)]
    def xred(op, v, t):
        return L([f"v_mov_b32 v{t}, v{v}", f"v_permlane16_swap_b32 v{t}, v{v}", f"{op} v{v}, v{v}, v{t}",
                  f"v_mov_b32 v{t}, v{v}", f"v_permlane32_swap_b32 v{t}, v{v}", f"{op} v{v}, v{v}, v{t}"])
    def zipl(a, b):
        o = []
        for k in range(max(len(a), len(b))):
            o += a[k:k+1] + b[k:k+1]
        return o
    def prepass_init(s, mask):
        o = []
        if mask:
            o += L([f"v_add_u32 v{tA}, s{sC[s]}, v{vLB}"])
            prs = [(nb, r) for nb in range(2) for r in range(4)]
            pr = lambda k: "vcc" if k % 2 == 0 else f"s[{sRet}:{sRet+1}]"
            for k in range(0, 8, 2):
                o += L([f"v_cmp_le_i32 {pr(j)}, {prs[j][1] - 16*prs[j][0]}, v{tA}" for j in (k, k+1)])
                o += L([f"v_cndmask_b32 v{sreg(s,0,prs[j][0])+prs[j][1]}, v{vNI}, v{sreg(s,0,prs[j][0])+prs[j][1]}, {pr(j)}" for j in (k, k+1)])
        ch = []
        for nb in range(2):
            b = sreg(s, 0, nb); m = MS[s] + nb
            ch.append(L([f"v_max3_f32 v{m}, v{b}, v{b+1}, v{b+2}", f"v_max_f32 v{m}, v{m}, v{b+3}"]) + xred("v_max_f32", m, (tA, tB)[nb]) +
                      L([f"v_max_f32 v{m}, {f2u(-1e30):#x}, v{m}"] + [f"v_sub_f32 v{NM[s]+4*nb+r}, 0, v{m}" for r in range(4)]))
        return o + zipl(ch[0], ch[1])
    post += [Wait(lg=('kf', 3))] + prepass_mfma('b', 'b') + prepass_mfma('a', 'a') + prepass_init('b', False) + prepass_init('a', True)

    NG, HG = 136, 68
    def body(name, qa, ntile, vmw, hooks, kread_on=True):
        B = Gaps(NG); used = [0]*NG; cls = {}
        cost = lambda x: 0 if x.kind == 'label' else (2 if x.kind == 'trans' else 1)
        def put(g, x, c, where=None):
            x = I(x) if isinstance(x, str) else x
            g %= NG
            if where == 'pre': B.before(g, x); used[(g-1) % NG] += cost(x)
            elif where == 'nv': B.nv[g].append(x); used[g] += cost(x)
            else: B.put(g, x); used[g] += cost(x)
            cls[id(x)] = c; return x
        def free(g, x, c, lim=None):
            while used[g % NG] >= 2: g += 1
            assert lim is None or g <= lim, (name, x, g, lim)
            put(g, x, c, 'nv'); return g
        for s, g0, q in (('a', 0, qa), ('b', HG, 'b')):
            o = 'b' if s == 'a' else 'a'
            seq = []
            for mb in range(4):
                for nb in range(2):
                    D = vr(sreg(s, mb, nb))
                    seq += [(f"{MF} {D}, {ar(KF_+4*(mb*4+js))}, {vr(Qreg[q](nb, js))}, {vr(NM[s]+4*nb) if js == 0 else D}", 'qk'+s) for js in range(4)]
            ones = [(f"{MF} {vr(T4+4*nb)}, {vr(ONE)}, {vr(P[o]+(nb*2+ks)*4)}, {'0' if ks == 0 else vr(T4+4*nb)}", 'sm'+o) for nb in range(2) for ks in range(2)]
            seq[24:24] = ones
            for db in range(8):
                for nb in range(2):
                    D = ar(O[o] + (db*2+nb)*4)
                    seq += [(f"{MF} {D}, {ar(VF_+4*(db*2+ks))}, {vr(P[o]+(nb*2+ks)*4)}, {D}", 'pv'+o) for ks in range(2)]
            for k, (t, c) in enumerate(seq):
                B.mf[g0+k] = I(t); cls[id(B.mf[g0+k])] = c
            E0 = g0 + 26
            for e in range(32):
                mb, nb, r = e//8, (e//4) % 2, e % 4
                t = ET + (e % 4)
                put(E0 + 2*e, f"v_exp_f32 v{t}, v{sreg(s, mb, nb) + r}", 'sm'+s)
                if r % 2 == 1:
                    put(E0 + 2*e + 1, f"v_cvt_pk_bf16_f32 v{P[s] + (nb*2 + mb//2)*4 + (mb % 2)*2 + r//2}, v{t-1}, v{t}", 'sm'+s)
            if s not in hooks and s == 'a' and ntile == 1:
                for gh in (E0 - 1, E0 + 31): used[gh % NG] += 2
            if s in hooks:
                for hk, gh, lim in ((0, E0 - 1, 0), (1, E0 + 31, 32)):
                    lab = f"{name}_mk{s}{hk}"
                    put(gh, f"s_cmp_le_i32 s{sC[s]}, {lim}", 'sm'+s, 'nv'); put(gh, f"s_cbranch_scc1 {lab}", 'sm'+s, 'nv'); put(gh, f"{lab}_r:", 'sm'+s, 'nv')
            gc = g0 + HG + 31
            lab = f"{name}_rd{s}"
            put(gc, f"v_max_f32 v1, v{T4}, v{T4+4}", 'sm'+s); put(gc, f"v_cmp_lt_f32 vcc, s{sThr}, v1", 'sm'+s)
            put(gc+2, f"s_cbranch_vccnz {lab}", 'sm'+s, 'nv'); put(gc+2, f"{lab}_r:", 'sm'+s, 'nv')
            put(gc+4, f"v_add_f32 v{LS[s]}, v{LS[s]}, v{T4}", 'sm'+s); put(gc+4, f"v_add_f32 v{LS[s]+1}, v{LS[s]+1}, v{T4+4}", 'sm'+s)
        put(0, "s_waitcnt lgkmcnt(0)", 'mem', 'pre')
        put(4, f"s_waitcnt vmcnt({vmw})", 'mem', 'pre'); put(4, "s_barrier", 'mem', 'pre')
        free(40, f"v_add_u32 v{vVr}, s{sVr}, v{vX}", 'mem')
        g = 43
        for f in range(16):
            g = free(max(g, 40 + 2*f), f"ds_read_b128 {ar(VF_+4*f)}, v{vVr} offset:{f*1024}", 'mem', 92) + 1
        vlast = g
        nk_before = 0
        if kread_on:
            g = free(max(g, 80), f"v_add_u32 v{vKr}, s{sKr}, v{vL16}", 'mem') + 1
            for f in range(16):
                lastuse = HG + 8*(f//4) + 4 + f % 4 + (4 if 8*(f//4) + 4 + f % 4 >= 24 else 0)
                g = free(max(g, lastuse + 1), f"ds_read_b128 {ar(KF_+4*f)}, v{vKr} offset:{f*1024}", 'mem', 130)
                if g < 104: nk_before += 1
                g += 1
        put(104, f"s_waitcnt lgkmcnt({nk_before})", 'mem', 'pre')
        st = []
        if ntile == 1:
            st += [f"s_mov_b32 m0, s{sKd}"] + [f"buffer_load_dwordx4 v{vDM}, {sr(S_K)}, s{sGd} offen offset:{j*1024}{LDF} lds" for j in range(4)]
            st += [f"s_add_u32 s{sKd}, s{sKd}, 16384", f"s_and_b32 s{sKd}, s{sKd}, 0xffff", f"s_add_u32 m0, s{sVd}, 0x10000"]
            st += [f"buffer_load_dwordx4 v{vDM}, {sr(S_V)}, s{sGd} offen offset:{j*1024}{LDF} lds" for j in range(4)]
        elif ntile == 2:
            st += [f"s_add_u32 s{sT3}, s{sGd}, 16384", f"s_mov_b32 m0, s{sKd}"] + [f"buffer_load_dwordx4 v{vDM}, {sr(S_K)}, s{sGd} offen offset:{j*1024}{LDF} lds" for j in range(4)]
            st += [f"s_add_u32 m0, s{sKd}, 16384"] + [f"buffer_load_dwordx4 v{vDM}, {sr(S_K)}, s{sT3} offen offset:{j*1024}{LDF} lds" for j in range(4)]
            st += [f"s_xor_b32 s{sKd}, s{sKd}, 0x8000", f"s_add_u32 m0, s{sVd}, 0x10000"] + [f"buffer_load_dwordx4 v{vDM}, {sr(S_V)}, s{sGd} offen offset:{j*1024}{LDF} lds" for j in range(4)]
            st += [f"s_add_u32 m0, s{sVd}, 0x14000"] + [f"buffer_load_dwordx4 v{vDM}, {sr(S_V)}, s{sT3} offen offset:{j*1024}{LDF} lds" for j in range(4)]
        if ntile:
            st += [f"s_add_u32 s{sVd}, s{sVd}, {ntile*16384}", f"s_sub_u32 s{sT}, s{sVd}, 98304", f"s_min_u32 s{sVd}, s{sVd}, s{sT}", f"s_add_u32 s{sGd}, s{sGd}, {ntile*16384}"]
            g = 5; nd = 0; sp = 120/(4*2*ntile)
            for t in st:
                x = I(t)
                if x.kind == 'vmem':
                    g = free(max(g + 1, int(6 + nd*sp)), x, 'mem', NG-1); nd += 1
                else: g = free(g, x, 'mem', NG-1)
            step = ntile*16384
            g = 100
            ku = [f"s_add_u32 s{sKr}, s{sKr}, 16384", f"s_and_b32 s{sKr}, s{sKr}, 0xffff"] if ntile == 1 else [f"s_xor_b32 s{sKr}, s{sKr}, 0x8000"]
            for t in ku + [f"s_add_u32 s{sVr}, s{sVr}, {step}", f"s_sub_u32 s{sT2}, s{sVr}, 98304", f"s_min_u32 s{sVr}, s{sVr}, s{sT2}"]:
                g = free(g, t, 'mem', NG-1)
        if name == "Sf":
            pf = [f"s_and_b32 s{sT}, s2, 3", f"s_mul_i32 s{sT}, s{sT}, 1376", f"s_lshr_b32 s{sT2}, s2, 3", f"s_lshl_b32 s{sT2}, s{sT2}, 2", f"s_add_u32 s{sT2}, s{sT2}, s{sW}",
                  f"s_mul_i32 s{sT2}, s{sT2}, 11", f"s_add_u32 s{sT}, s{sT}, s{sT2}",
                  f"s_cmp_ge_u32 s{sT}, 4096\n    s_cselect_b32 s24, s12, s8\n    s_cselect_b32 s25, s13, s9\n    s_cselect_b32 s26, {1376*1024}, s27",
                  "s_mov_b32 s27, 0x00020000", f"s_and_b32 s{sT}, s{sT}, 4095", f"s_lshl_b32 s{sT}, s{sT}, 10"]
            g = free(5, "s_mov_b32 s27, 0x400000", 'mem')
            for t in pf: g = free(g, t, 'mem')
            for k in range(11):
                if k % 4 == 0 and k: g = free(g, f"s_add_u32 s{sT}, s{sT}, 4096", 'mem')
                g = free(g + 5, f"buffer_load_dwordx4 {vr(ZR)}, v{vL16}, s[24:27], s{sT} offen offset:{(k % 4)*1024}", 'mem', NG-1)
        over = [(g, u) for g, u in enumerate(used) if u > 2]
        print(f"  body {name}: slots used {sum(used)}/{2*NG}, overfull gaps {over}")
        return B, cls
    def mkstubs(name):
        o = []
        for s in 'ab':
            for hk in range(2):
                lab = f"{name}_mk{s}{hk}"; lo, hi = 2*hk, 2*hk+1
                o += L([f"{lab}:", f"s_cmp_lg_u32 s{sC[s]}, {32*hk}", f"s_cbranch_scc1 {lab}_all"])
                o += L([f"v_cndmask_b32 v{sreg(s,lo,0)+r}, v{vNI}, v{sreg(s,lo,0)+r}, s[{sMk+2*r}:{sMk+2*r+1}]" for r in range(4)])
                o += L([f"v_mov_b32 v{sreg(s,hi,0)+r}, v{vNI}" for r in range(4)])
                o += L([f"v_cndmask_b32 v{sreg(s,hi,1)+r}, v{vNI}, v{sreg(s,hi,1)+r}, s[{sMk+2*r}:{sMk+2*r+1}]" for r in range(4)])
                o += L([f"s_branch {lab}_r", f"{lab}_all:"] + [f"v_mov_b32 v{sreg(s,lo,0)+k}, v{vNI}" for k in range(16)] + [f"s_branch {lab}_r"])
            lab = f"{name}_rd{s}"
            o += L([f"{lab}:", f"s_call_b64 s[{sRet}:{sRet+1}], K2_REDO_{s}", f"s_branch {lab}_r"])
        return o
    def redo(s):
        o = L([f"K2_REDO_{s}:", "s_nop 7"])
        for nb in range(2):
            vals = [sreg(s, mb, nb) + r for mb in range(4) for r in range(4)]
            ts = T4 + 4*nb
            o += L([f"v_max3_f32 v{tA}, v{vals[0]}, v{vals[1]}, v{vals[2]}"] + [f"v_max3_f32 v{tA}, v{tA}, v{vals[k]}, v{vals[k+1]}" for k in range(3, 15, 2)]
                   + [f"v_max_f32 v{tA}, v{tA}, v{vals[15]}"]) + xred("v_max_f32", tA, tB)
            o += L([f"v_max_f32 v{tA}, 0, v{tA}", f"v_add_f32 v{MS[s]+nb}, v{MS[s]+nb}, v{tA}", f"v_sub_f32 v{tB}, 0, v{tA}", f"v_exp_f32 v{tB}, v{tB}"])
            o += L([f"v_sub_f32 v{NM[s]+4*nb+r}, 0, v{MS[s]+nb}" for r in range(4)])
            o += L([f"v_mul_f32 v{LS[s]+nb}, v{LS[s]+nb}, v{tB}"])
            o += L([f"v_sub_f32 v{v}, v{v}, v{tA}" for v in vals])
            for db in range(8):
                for r in range(4):
                    a = O[s] + (db*2+nb)*4 + r
                    o += L([f"v_accvgpr_read_b32 v0, a{a}", f"v_mul_f32 v0, v0, v{tB}", f"v_accvgpr_write_b32 a{a}, v0"])
            o += L([f"v_mov_b32 v{ts}, 0"])
            for mb in range(4):
                for r in (0, 2):
                    b = sreg(s, mb, nb) + r
                    pd = P[s] + (nb*2 + mb//2)*4 + (mb % 2)*2 + r//2
                    o += L([f"v_exp_f32 v{tA}, v{b}", f"v_exp_f32 v{tB}, v{b+1}", f"v_add_f32 v{ts}, v{ts}, v{tA}",
                            f"v_add_f32 v{ts}, v{ts}, v{tB}", f"v_cvt_pk_bf16_f32 v{pd}, v{tA}, v{tB}"])
            o += xred("v_add_f32", ts, tB)
        o += L(["s_nop 1", f"s_setpc_b64 s[{sRet}:{sRet+1}]"])
        return o
    def lin(Bc, lo, hi, keep=None, ren=None):
        B, cls = Bc
        out = []
        for x in B.linear(lo, hi):
            if keep is None or cls.get(id(x), 'mem') in keep:
                out.append(I(x.text.replace(*ren)) if ren else x)
        return out
    D = body("D", 'a', 1, 4, ''); Dm = body("Dm", 'a', 1, 4, 'a'); S1 = body("S1", 'a', 2, 4, 'a')
    SS = body("S", 'x', 2, 8, ''); Sf = body("Sf", 'x', 0, 0, 'ab', kread_on=False)
    pream = lin(Dm, 0, HG, ('qka', 'sma', 'mem'), ("Dm_", "PR_"))
    k = [n for n, x in enumerate(pream) if x.op == 's_barrier'][0]
    pream[k+1:k+1] = [I(f"ds_read_b128 {vr(Qreg['x'](nb, js))}, v{tB} offset:{(js*2+nb)*1024}") for js in range(4) for nb in range(2)]
    pream[k+1:k+1] = L([f"v_lshlrev_b32 v{tB}, 1, v{vDM}", f"v_sub_u32 v{tB}, v{tB}, v{vL16}", f"v_add_u32 v{tB}, {XB}, v{tB}", f"v_xor_b32 v{tB}, 0x2000, v{tB}"])
    for n, x in enumerate(pream):
        if x.text.startswith("s_waitcnt vmcnt"): pream[n] = Wait(vm=[('KV', 'K', 1), ('KV', 'V', 0)], lg=0)
    head = pre + stamp(4) + G.linear(0, 512) + stamp(5) + G.linear(512, 768) + stamp(6) + post + stamp(7) + pream
    head += L([f"s_lshl_b32 s{sC['a']}, s{sW}, 5", f"s_cmp_eq_u32 s{sI}, 0", "s_cbranch_scc1 K2_DM_MID", "s_branch K2_D_MID"])
    head = resolve_waits(head)
    head, n1 = fix_hazards(head)
    dl = L(["K2_D:"]) + lin(D, 0, HG) + L(["K2_D_MID:"]) + lin(D, HG, NG) + L([f"s_sub_u32 s{sCnt}, s{sCnt}, 1", "s_cbranch_scc0 K2_D"])
    dl, n2 = fix_hazards(dl, pre=dl[-20:])
    assert fix_hazards(lin(D, HG, HG+12), pre=head[-20:])[1] == 0 and fix_hazards(lin(Dm, HG, HG+12), pre=head[-20:])[1] == 0
    mid = lin(Dm, 0, HG) + L(["K2_DM_MID:"]) + lin(Dm, HG, NG)
    mid += L([f"s_lshl_b32 s{sT}, s{sPar}, 14", f"s_add_u32 s{sKr}, s{sKr}, s{sT}", f"s_and_b32 s{sKr}, s{sKr}, 0xffff", f"s_sub_u32 s{sC['a']}, s{sC['a']}, 64"])
    mid += (stamp(8) if not DIAG else []) + lin(S1, 0, NG) + (stamp(9) if not DIAG else [])
    def finalize(s, so, zero, wts=None):
        o = []
        for j in range(4):
            for nb in range(2):
                t = 132 if (j*2+nb) % 2 == 0 else 128
                t8 = 136 + ((j*2+nb) % 2)*8
                o += L([f"v_accvgpr_read_b32 v{t8+hh*4+r}, a{O[s] + ((2*j+hh)*2+nb)*4 + r}" for hh in range(2) for r in range(4)])
                sel = "op_sel_hi:[1,0]" if nb == 0 else "op_sel:[0,1] op_sel_hi:[1,1]"
                for k in range(0, 8, 2):
                    o += L([f"v_pk_mul_f32 {vr(t8+k,2)}, {vr(t8+k,2)}, {vr(TS[s],2)} {sel}"])
                    if wts is not None:
                        x = wts + ((2*j + k//4)*2+nb)*4 + k % 4
                        sel3 = "op_sel_hi:[1,0,1]" if nb == 0 else "op_sel:[0,1,0] op_sel_hi:[1,1,1]"
                        o += L([f"v_pk_fma_f32 {vr(t8+k,2)}, {vr(x,2)}, {vr(TS['a'],2)}, {vr(t8+k,2)} {sel3}"])
                o += L([f"v_cvt_pk_bf16_f32 v{t+k}, v{t8+2*k}, v{t8+2*k+1}" for k in range(4)])
                o += L([f"buffer_store_dwordx4 {vr(t)}, v{vL16}, {sr(S_WS)}, s{so+nb} offen offset:{j*1024}{STF2}"])
            if zero: o += [zero_o(s)[j]]
        return o
    tr = L([f"s_lshl_b32 s{sT}, s{sPar}, 14", f"s_add_u32 s{sVr}, s{sVr}, s{sT}", f"s_add_u32 s{sVr}, s{sVr}, {98304-16384}",
            f"s_sub_u32 s{sT2}, s{sVr}, 98304", f"s_min_u32 s{sVr}, s{sVr}, s{sT2}",
            f"s_lshl_b32 s{sT}, s{sI}, 7", f"s_sub_u32 s{sC['a']}, s{sC['b']}, s{sT}", f"s_lshl_b32 s{sT}, s{sPar}, 7", f"s_sub_u32 s{sC['a']}, s{sC['a']}, s{sT}",
            f"s_sub_u32 s{sC['a']}, s{sC['a']}, 96",
            f"s_lshl_b32 s{sCnt}, s{sI}, 1", f"s_sub_u32 s{sCnt}, 13, s{sCnt}", "s_waitcnt lgkmcnt(0)"])
    tr += L([f"v_rcp_f32 v{TS['a']+nb}, v{LS['a']+nb}" for nb in range(2)] + [f"v_mov_b32 v{LS['a']+nb}, 0" for nb in range(2)])
    fa = finalize('a', sXN, True)
    tr += fa + prepass_mfma('a', 'x') + prepass_init('a', True)
    tr += L([f"s_lshl_b32 s{sC['b']}, s{sW}, 5", f"s_lshl_b32 s{sT}, s{sPar}, 6", f"s_sub_u32 s{sC['b']}, s{sC['b']}, s{sT}",
             f"s_add_u32 s{sC['a']}, s{sC['b']}, 32", f"s_sub_u32 s{sC['a']}, s{sC['a']}, s{sT}"])
    mid += tr + (stamp(10) if not DIAG else []) + L([f"s_cmp_eq_u32 s{sI}, 7", "s_cbranch_scc1 K2_SF"])
    mid, n3 = fix_hazards(mid, pre=dl[-20:])
    sl = L(["K2_S:"]) + lin(SS, 0, NG) + L([f"s_sub_u32 s{sCnt}, s{sCnt}, 1", "s_cbranch_scc0 K2_S"])
    sl, n4 = fix_hazards(sl, pre=sl[-20:])
    assert fix_hazards(sl[:24], pre=mid[-20:])[1] == 0
    tail = L(["K2_SF:"]) + code_prefetch("K3_BEGIN" if FUSED else "outproj_kernel", "K2_PC2", False, tA, tA, sRet, sT3, vtid=31) + lin(Sf, 0, NG)
    assert fix_hazards(tail[:24], pre=mid[-20:])[1] == 0
    tb = lin(SS, 0, HG, ('smb', 'pvb'), ("S_", "TL_"))
    kq = [n for n, x in enumerate(tb) if x.kind == 'mfma' and x.wr[0].startswith('a')][0]
    tail += L(["s_barrier",
               f"v_lshlrev_b32 v{tA}, 2, v{vDM}", f"v_mul_u32_u24 v{tB}, 3, v{vL16}", f"v_sub_u32 v{vKr}, v{tA}, v{tB}",
               f"v_xor_b32 v{vVr}, 0x4000, v{vKr}", f"v_add_u32 v{vDM}, 0x10000, v{vDM}",
               f"v_mov_b32 v{NM['a']}, v{MS['a']}", f"v_mov_b32 v{NM['a']+1}, v{MS['a']+1}", f"v_mov_b32 v{NM['a']+2}, v{LS['a']}", f"v_mov_b32 v{NM['a']+3}, v{LS['a']+1}",
               f"ds_write_b128 v{vDM}, {vr(NM['a'])}"])
    wr = L([f"ds_write_b128 v{vKr}, {ar(O['a']+4*f)} offset:{f*1024}" for f in range(16)])
    tail += zipl(tb[:kq], wr)
    XO = 64
    pv = tb[kq:]
    tail += pv[:8] + L(["s_waitcnt lgkmcnt(0)", "s_barrier", f"v_xor_b32 v{vDM}, 0x1000, v{vDM}", f"ds_read_b128 {vr(NM['a'])}, v{vDM}"])
    rd = L([f"ds_read_b128 {vr(XO+4*f)}, v{vVr} offset:{f*1024}" for f in range(16)])
    wt = L(["s_waitcnt lgkmcnt(15)"])
    ch = []
    for nb in range(2):
        mx, lx, mb_, lb, t = NM['a']+nb, NM['a']+2+nb, MS['b']+nb, LS['b']+nb, (tA, tB)[nb]
        ch.append(L([f"v_max_f32 v{t}, v{mx}, v{mb_}", f"v_sub_f32 v{mx}, v{mx}, v{t}", f"v_sub_f32 v{mb_}, v{mb_}, v{t}",
                     f"v_exp_f32 v{mx}, v{mx}", f"v_exp_f32 v{mb_}, v{mb_}", f"v_mul_f32 v{lb}, v{lb}, v{mb_}", f"v_fmac_f32 v{lb}, v{lx}, v{mx}",
                     f"v_rcp_f32 v{lb}, v{lb}", f"v_mul_f32 v{TS['b']+nb}, v{mb_}, v{lb}", f"v_mul_f32 v{TS['a']+nb}, v{mx}, v{lb}"]))
    tail += zipl(pv[8:], rd + wt + zipl(ch[0], ch[1]))
    tail += L(["s_waitcnt lgkmcnt(0)"]) + finalize('b', sXN+2, False, wts=XO)
    tail += prof_end(1, S_WS, sW, 4, vtmp=32, drain=not FUSED)
    tail, n5 = fix_hazards(tail, pre=sl[-20:])
    alltext = "\n".join(x.text for x in head + dl + mid + sl + tail)
    stubs = []
    for nm in ("PR", "D", "Dm", "S1", "S", "Sf", "TL"):
        cur = []
        for x in mkstubs(nm) + L(["SENTINEL:"]):
            if x.kind == 'label' and not x.text.endswith("_all:"):
                if cur and ("\n" + cur[0].text[:-1] + "_r:") in alltext: stubs += fix_hazards(cur)[0]
                cur = []
            cur.append(x)
    stubs += fix_hazards(redo('a'))[0] + fix_hazards(redo('b'))[0]
    stubs += kvstub
    if FUSED:
        print("K1+K2: instrs", len(head + dl + mid + sl + tail + stubs), "nops head/D/mid/S/tail", n1, n2, n3, n4, n5)
        return head + dl + mid + sl + tail, stubs
    seq = head + dl + mid + sl + tail + L(["K2_END:", "s_endpgm"]) + stubs
    print("K2: instrs", len(seq), "nops head/D/mid/S/tail", n1, n2, n3, n4, n5)
    return seq

if __name__ == "__main__":
    ks = [("kvproj_kernel", 256, 256, 163840, gen_k1(), 512, 256),
          ("attn_kernel", 256, 256, 163840, gen_k2(), 512, 256)]
    emit(ks, sys.argv[1] if len(sys.argv) > 1 else "k.s")
```

```python
from gen import *
from gen_k2 import gen_k2

def gen_k3():
    S_WS, S_W, S_X, S_OUT = 4, 8, 16, 20
    sW, sTm, sTn, sKq = 24, 25, 26, 27
    sT, sT2, sT3, sKK = 28, 29, 30, 31
    sMA, sMW, sAb, sXo, sEx, sFl = 32, 33, 34, 35, 36, 37
    NS, NB = 43, 8
    vL, vL16 = 2, 3
    vWD = 4
    vAr = 8
    vT = 12
    tA, tB, vXo, vK = 16, 17, 18, 19
    vXv = 20
    WF = 32
    AF = 64
    ACC = 96
    RX = 160
    pre = (L(["K3_BEGIN:", "v_mov_b32 v0, v31"]) if FUSED else []) + prof_begin()
    pre += L(["s_load_dwordx2 s[56:57], s[0:1], 0", "s_load_dwordx2 s[58:59], s[0:1], 40", "s_load_dwordx4 s[60:63], s[0:1], 72",
              "s_load_dwordx2 s[64:65], s[0:1], 96"] + ([] if FUSED else ["s_cmp_ge_u32 s2, 256", "s_cbranch_scc1 K3_END"]))
    pre += L(["v_lshrrev_b32 v1, 6, v0", f"v_and_b32 v{vL}, 63, v0", f"v_readfirstlane_b32 s{sW}, v1", f"v_lshlrev_b32 v{vL16}, 4, v{vL}",
              f"s_and_b32 s{sKq}, s2, 3", f"s_bfe_u32 s{sT}, s2, 0x10002", f"s_lshl_b32 s{sT}, s{sT}, 3", f"s_bfe_u32 s{sT2}, s2, 0x30003",
              f"s_add_u32 s{sTm}, s{sT}, s{sT2}", f"s_lshr_b32 s{sTn}, s2, 6",
              f"s_lshl_b32 s{sT3}, s{sTn}, 1", f"s_add_u32 s{sT2}, s{sT2}, s{sT3}", f"s_and_b32 s{sT2}, s{sT2}, 7",
              f"s_mul_i32 s{sT3}, s{sKq}, 43", f"s_cmp_eq_u32 s{sKq}, 3", f"s_cselect_b32 s{sT}, 42, 43"])
    a_, b_, c_, d_ = 96, 97, 98, 99
    pre += L([f"v_and_b32 v{a_}, -8, v{vL}", f"v_add_u32 v{b_}, 8, v{a_}", f"v_min_i32 v{b_}, s{sT}, v{b_}", f"v_sub_u32 v{b_}, v{b_}, v{a_}",
              f"v_mul_u32_u24 v{c_}, s{sT2}, v{b_}", f"v_lshrrev_b32 v{c_}, 3, v{c_}", f"v_and_b32 v{d_}, 7, v{vL}",
              f"v_add_u32 v{c_}, v{c_}, v{d_}", f"v_sub_u32 v{d_}, v{c_}, v{b_}", f"v_min_u32 v{c_}, v{c_}, v{d_}",
              f"v_add3_u32 v{vK}, v{c_}, v{a_}, s{sT3}", f"v_min_u32 v{vK}, 0xab, v{vK}"])
    pre += L([f"s_lshl_b32 s{sT}, s{sTm}, 3", f"s_lshl_b32 s{sT3}, s{sW}, 1", f"s_add_u32 s{sT}, s{sT}, s{sT3}", f"s_mul_i32 s{sAb}, s{sT}, {CA_RB}",
              f"s_add_u32 s{sAb}, s{sAb}, {WS_CA}", f"v_add_u32 v5, {CA_RB-1024}, v{vL16}",
              f"s_lshl_b32 s{sMA}, s{sW}, 11", f"s_lshl_b32 s{sMW}, s{sW}, 10", f"s_add_u32 s{sMW}, s{sMW}, 8192"])
    pre += L([f"v_bfe_u32 v{tA}, v{vL}, 4, 2", f"v_lshlrev_b32 v{tA}, 1, v{tA}", f"v_and_b32 v{tB}, 7, v{vL}", f"v_xor_b32 v{tA}, v{tA}, v{tB}",
              f"v_lshlrev_b32 v{tA}, 4, v{tA}", f"v_lshrrev_b32 v{tB}, 3, v{vL}", f"v_lshl_add_u32 v{vWD}, v{tB}, 10, v{tA}",
              f"s_lshl_b32 s{sT}, s{sTn}, 8", f"s_lshl_b32 s{sT3}, s{sW}, 13", f"s_add_u32 s{sT}, s{sT}, s{sT3}", f"v_add_u32 v{vWD}, s{sT}, v{vWD}"])
    pre += L([f"v_lshrrev_b32 v{tA}, 2, v{vL}", f"v_lshlrev_b32 v{tA}, 7, v{tA}", f"v_and_b32 v{tB}, 3, v{vL}", f"v_lshl_add_u32 v{tA}, v{tB}, 3, v{tA}",
              f"v_bfe_u32 v{tB}, v{vL}, 3, 2", f"v_lshl_add_u32 v{tA}, v{tB}, 5, v{tA}",
              f"s_and_b32 s{sT}, s{sW}, 1", f"s_lshl_b32 s{sT}, s{sT}, 12", f"s_add_u32 s{sT}, s{sT}, 8192", f"v_add_u32 v{vT}, s{sT}, v{tA}"] +
             [f"v_xor_b32 v{vT+c}, {c*32}, v{vT}" for c in range(1, 4)])
    for r in range(4):
        pre += L([f"s_add_u32 s{sT}, s{sKq}, {r}", f"s_and_b32 s{sT}, s{sT}, 3", f"s_lshr_b32 s{sT3}, s{sW}, 1", f"s_lshl_b32 s{sT3}, s{sT3}, 2",
                  f"s_add_u32 s{sT}, s{sT}, s{sT3}", f"s_lshl_b32 s{sT}, s{sT}, 10", f"v_add_u32 v{vAr+r}, s{sT}, v{vL16}"])
    hi = lambda v: v + 24
    vArH, vTH = 208, 212
    pre += L([f"v_add_u32 v{vArH+r}, 0x10000, v{vAr+r}" for r in range(4)] + [f"v_add_u32 v{vTH+c}, 0x10000, v{vT+c}" for c in range(4)])
    pre += L(["s_waitcnt lgkmcnt(0)"]) + stamp(1)
    pre += L(srd(S_WS, 64, 65, WS_SIZE) + srd(S_W, 58, 59, 0x400000) + ["s_mov_b32 s38, 0x400000"])
    def loadsA(s):
        b = (s % NB)*16384
        return L([f"v_readlane_b32 s{sT}, v{vK}, {s}", f"s_add_u32 m0, s{sMA}, {b}", f"s_lshl_b32 s{sKK}, s{sT}, 10", f"s_add_u32 s{sKK}, s{sKK}, s{sAb}"]) + \
          [T(f"buffer_load_dwordx4 v{vL16}, {sr(S_WS)}, s{sKK} offen{LDF} lds", ('L', s)),
           T(f"buffer_load_dwordx4 v5, {sr(S_WS)}, s{sKK} offen offset:1024{LDF} lds", ('L', s))]
    def loadsW(s, rl=False):
        b = (s % NB)*16384
        return (L([f"v_readlane_b32 s{sT}, v{vK}, {s}", "s_nop 0"]) if rl else []) + \
          L([f"s_cmp_ge_u32 s{sT}, 128\n    s_cselect_b32 s{S_W}, s60, s58\n    s_cselect_b32 s{S_W+1}, s61, s59\n    s_cselect_b32 s{S_W+2}, {1376*1024}, s38",
             f"s_and_b32 s{sT}, s{sT}, 127", f"s_lshl_b32 s{sT}, s{sT}, 15", f"s_add_u32 m0, s{sMW}, {b}"]) + \
          [T(f"buffer_load_dwordx4 v{vWD}, {sr(S_W)}, s{sT} offen lds", ('L', s))] + \
          L([f"s_add_u32 m0, s{sMW}, {b + 4096 - 128}", "s_nop 0"]) + \
          [T(f"buffer_load_dwordx4 v{vWD}, {sr(S_W)}, s{sT} offen offset:128 lds", ('L', s))]
    loads = lambda s: loadsA(s) + loadsW(s)
    if FUSED:
        pre += L(["s_barrier"])
        for s in range(6): pre += loadsW(s, True)
    else:
        for s in range(4): pre += loads(s)
    pre += L(srd(S_X, 56, 57, 0x200000) + srd(S_OUT, 62, 63, 0x200000))
    pre += L([f"v_and_b32 v{tA}, 15, v{vL}", f"v_lshrrev_b32 v{tB}, 4, v{vL}", f"v_lshlrev_b32 v{vXo}, 10, v{tA}", f"v_lshl_add_u32 v{vXo}, v{tB}, 3, v{vXo}",
              f"s_lshl_b32 s{sXo}, s{sTm}, 17", f"s_lshr_b32 s{sT}, s{sW}, 1", f"s_lshl_b32 s{sT}, s{sT}, 16", f"s_add_u32 s{sXo}, s{sXo}, s{sT}",
              f"s_lshl_b32 s{sT}, s{sKq}, 14", f"s_add_u32 s{sXo}, s{sXo}, s{sT}", f"s_lshl_b32 s{sT}, s{sTn}, 8", f"s_add_u32 s{sXo}, s{sXo}, s{sT}",
              f"s_and_b32 s{sT}, s{sW}, 1", f"s_lshl_b32 s{sT}, s{sT}, 7", f"s_add_u32 s{sXo}, s{sXo}, s{sT}"])
    pre += [T(f"buffer_load_dwordx2 {vr(vXv+2*c, 2)}, v{vXo}, {sr(S_X)}, s{sXo} offen offset:{c*32}", 'x') for c in range(4)]
    pre += L([f"s_lshl_b32 s{sT}, s{sTm}, 2", f"s_add_u32 s{sT}, s{sT}, s{sTn}", f"s_lshl_b32 s{sFl}, s{sT}, 9", f"s_add_u32 s{sFl}, s{sFl}, {FL_EX}",
              f"s_lshl_b32 s{sEx}, s{sT}, 17", f"s_lshl_b32 s{sT}, s{sW}, 11", f"s_add_u32 s{sEx}, s{sEx}, s{sT}", f"s_add_u32 s{sEx}, s{sEx}, {WS_EX}"])
    if FUSED:
        pre += L([f"s_and_b32 s{sT}, s2, 7", f"s_lshl_b32 s{sT}, s{sT}, 2", f"s_bfe_u32 s{sT2}, s2, 0x20003", f"s_add_u32 s{sT}, s{sT}, s{sT2}", f"s_lshl_b32 s{sT}, s{sT}, 2",
                  f"s_add_u32 s{sT}, s{sT}, {FL_CX}", f"s_lshr_b32 s{sT2}, s2, 5", f"s_lshl_b32 s{sT2}, s{sT2}, 7", f"s_sub_u32 s{sT3}, {15*128}, s{sT2}",
                  f"v_mov_b32 v{tA}, s{sT2}", f"v_writelane_b32 v{tA}, s{sT3}, 1", f"v_mov_b32 v{tB}, 1",
                  f"v_and_b32 v6, 31, v{vL}", "v_lshlrev_b32 v6, 2, v6", f"s_lshl_b32 s{sT3}, s{sTm}, 7", f"s_add_u32 s{sT3}, s{sT3}, {FL_CX}",
                  "s_waitcnt vmcnt(16)", "s_barrier",
                  f"s_cmp_lg_u32 s{sW}, 0", "s_cbranch_scc1 K3_SIG", "s_mov_b64 exec, 3",
                  T(f"buffer_store_dword v{tB}, v{tA}, {sr(S_WS)}, s{sT} offen sc1", 'NOCOUNT'), "s_mov_b64 exec, -1", "K3_SIG:"]) + stamp(6)
        sp = spin("K3_CXSPIN", f"buffer_load_dword v7, v6, {sr(S_WS)}, s{sT3} offen sc1", 7, 1, sKK)
        for x in sp:
            if x.kind == 'vmem': x.tag = 'NOCOUNT'
        pre += sp + stamp(7)
        for s in range(6): pre += loadsA(s)
    else:
        for s in range(4, 6): pre += loads(s)
    def reads(s):
        b = (s % NB)*16384
        va, vt = (vAr, vT) if b < 65536 else (vArH, vTH)
        b &= 0xffff
        o = []
        for c in range(4):
            o += [T(f"ds_read_b128 {vr(AF+16*(s%2)+4*c)}, v{va+c} offset:{b}", ('R', s))]
            o += [T(f"ds_read_b64_tr_b16 {vr(WF+16*(s%2)+4*c+2*t, 2)}, v{vt+c} offset:{b + t*2048}", ('R', s)) for t in range(2)]
        return o
    G = Gaps(16*NS)
    pre += [Wait(vm=('L', 1)), I("s_barrier")] + reads(0) + stamp(2)
    stream = []
    for s in range(NS):
        g = 16*s
        for c in range(4):
            for r in range(4):
                D = vr(ACC + (r*4+c)*4)
                G.mf[g + c*4 + r] = I(f"{MF} {D}, {vr(WF+16*(s%2)+4*c)}, {vr(AF+16*(s%2)+4*r)}, {'0' if s == 0 else D}")
        G.before(g, Wait(lg=('R', s)))
        if s + 1 < NS:
            if s % 2 == 1:
                G.before(g + 1, Wait(vm=('L', min(s+2, NS-1)))); G.before(g + 1, I("s_barrier"))
                ld = []
                for s2 in (s+5, s+6):
                    if s2 < NS: ld += loads(s2)
                if ld: stream.append((g + 1, ld))
            for j, x in enumerate(reads(s+1)): G.put(g + 1 + j, x)
    place_stream(G, stream, 4, start=2)
    main = G.linear(0, 16*(NS-1)); last = G.linear(16*(NS-1), 16*NS)
    fin = stamp(3)
    for r in range(1, 4):
        fin += L([f"s_add_u32 s{sT}, s{sKq}, {r}", f"s_and_b32 s{sT}, s{sT}, 3", f"s_lshl_b32 s{sT}, s{sT}, 15", f"s_lshl_b32 s{sT2}, s{sKq}, 13",
                  f"s_add_u32 s{sT}, s{sT}, s{sT2}", f"s_add_u32 s{sT}, s{sT}, s{sEx}"])
        for hh in range(2):
            b = ACC + r*16 + hh*8
            fin += L([f"v_cvt_pk_bf16_f32 v{b+k}, v{b+2*k}, v{b+2*k+1}" for k in range(4)])
            fin += L([f"buffer_store_dwordx4 {vr(b)}, v{vL16}, {sr(S_WS)}, s{sT} offen offset:{hh*1024} sc1"])
    fin += L([f"v_and_b32 v{tB}, 3, v{vL}", f"v_lshlrev_b32 v{tB}, 7, v{tB}", f"v_mov_b32 v{tA}, 1", f"s_lshl_b32 s{sT}, s{sKq}, 7", f"s_add_u32 s{sT}, s{sT}, s{sFl}",
              "v_mov_b32 v1, 0"])
    for c in range(4):
        for hw in range(2):
            x = vXv + 2*c + hw
            fin += L([f"v_lshlrev_b32 v{WF}, 16, v{x}", f"v_and_b32 v{WF+1}, 0xffff0000, v{x}",
                      f"v_add_f32 v{ACC+4*c+2*hw}, v{ACC+4*c+2*hw}, v{WF}", f"v_add_f32 v{ACC+4*c+2*hw+1}, v{ACC+4*c+2*hw+1}, v{WF+1}"])
    fin += L(["s_waitcnt vmcnt(0)", "s_barrier"]) + stamp(4)
    fin += L([f"s_mov_b32 s{sT3}, 0x40000", f"s_cmp_lg_u32 s{sW}, 0", "s_cbranch_scc1 K3_POLL",
              f"buffer_store_dword v{tA}, v1, {sr(S_WS)}, s{sT} offen sc1",
              "K3_POLL:",
              f"buffer_load_dword v{vK}, v{tB}, {sr(S_WS)}, s{sFl} offen sc1", "s_waitcnt vmcnt(0)",
              f"v_cmp_ne_u32 vcc, 1, v{vK}", "s_cbranch_vccz K3_GO", "s_sleep 1", f"s_sub_u32 s{sT3}, s{sT3}, 1", "s_cbranch_scc0 K3_POLL", "K3_GO:"]) + stamp(5)
    for r in range(1, 4):
        fin += L([f"s_add_u32 s{sT}, s{sKq}, {r}", f"s_and_b32 s{sT}, s{sT}, 3", f"s_lshl_b32 s{sT}, s{sT}, 13", f"s_lshl_b32 s{sT2}, s{sKq}, 15",
                  f"s_add_u32 s{sT}, s{sT}, s{sT2}", f"s_add_u32 s{sT}, s{sT}, s{sEx}"])
        fin += L([f"buffer_load_dwordx4 {vr(RX+((r-1)*2+hh)*4)}, v{vL16}, {sr(S_WS)}, s{sT} offen offset:{hh*1024} sc1" for hh in range(2)])
    for r in range(1, 4):
        fin += L([f"s_waitcnt vmcnt({2*(3-r)})"])
        for k in range(8):
            x = RX + (r-1)*8 + k
            fin += L([f"v_lshlrev_b32 v{WF}, 16, v{x}", f"v_and_b32 v{WF+1}, 0xffff0000, v{x}",
                      f"v_add_f32 v{ACC+2*k}, v{ACC+2*k}, v{WF}", f"v_add_f32 v{ACC+2*k+1}, v{ACC+2*k+1}, v{WF+1}"])
    for c in range(4):
        fin += L([f"v_cvt_pk_bf16_f32 v{vXv+2*c}, v{ACC+4*c}, v{ACC+4*c+1}", f"v_cvt_pk_bf16_f32 v{vXv+2*c+1}, v{ACC+4*c+2}, v{ACC+4*c+3}",
                  f"buffer_store_dwordx2 {vr(vXv+2*c, 2)}, v{vXo}, {sr(S_OUT)}, s{sXo} offen offset:{c*32}"])
    seq = resolve_waits(pre + main) + L([f"s_cmp_eq_u32 s{sKq}, 3", "s_cbranch_scc1 K3_SKIP", "s_waitcnt lgkmcnt(0)"]) + \
          [x for x in last if not isinstance(x, Wait)] + L(["K3_SKIP:", "s_waitcnt lgkmcnt(0)", "s_nop 7"]) + fin + prof_end(2, S_WS, sW, 4, vtmp=56)
    seq, n = fix_hazards(seq)
    print("K3: instrs", len(seq), "nops", n)
    return seq + L(["K3_END:", "s_endpgm"])

NAME = "parallel_sum__compressed_kv_cla__dense_activation_mish__prompt_kernel"
if __name__ == "__main__":
    if FUSED:
        body, stubs = gen_k2(gen_k1())
        ks = [(NAME, 256, 256, 163840, body + gen_k3() + stubs, 512, 256)]
    else:
        ks = [("kvproj_kernel", 256, 256, 163840, gen_k1(), 512, 256),
              ("attn_kernel", 256, 256, 163840, gen_k2(), 512, 256),
              ("outproj_kernel", 256, 256, 131072, gen_k3(), 216, 216)]
    emit(ks, sys.argv[1] if len(sys.argv) > 1 else "k.s")
```

```python
import math, sys, struct, os
from asmlib import *

WS_XN = 0x0
WS_KF = 0x200000
WS_VF = 0x1200000
WS_CA = 0x2200000
CA_RB = 172*1024
WS_EX = 0x4000000
WS_FL = 0x5000000
WS_SIZE = 0x10000000
SCALE = math.log2(math.e) / math.sqrt(128.0)
def f2u(f): return struct.unpack('<I', struct.pack('<f', f))[0]
MF = "v_mfma_f32_16x16x32_bf16"
def vr(b, n=4): return f"v[{b}:{b+n-1}]"
def ar(b, n=4): return f"a[{b}:{b+n-1}]"
def sr(b, n=4): return f"s[{b}:{b+n-1}]"
def L(lines): return [I(x) if isinstance(x, str) else x for x in lines]

def srd(d, lo, hi, size):
    return [f"s_mov_b32 s{d}, s{lo}", f"s_mov_b32 s{d+1}, s{hi}",
            f"s_mov_b32 s{d+2}, {size}" , f"s_mov_b32 s{d+3}, 0x00020000"]
def srd_off(d, lo, hi, soff, size):
    return [f"s_add_u32 s{d}, s{lo}, s{soff}\n    s_addc_u32 s{d+1}, s{hi}, 0", f"s_sub_u32 s{d+2}, {size}, s{soff}", f"s_mov_b32 s{d+3}, 0x00020000"]

PROF = bool(os.environ.get("PROF"))
STF = os.environ.get("STF", " sc1")
FUSED = os.environ.get("FUSED", "1") == "1"
LDF = " sc1" if FUSED else ""
FL_KV, FL_AC, FL_CX, FL_EX = WS_FL, WS_FL + 0x1000, WS_FL + 0x40000, WS_FL + 0x80000
STX = os.environ.get("STX", " sc1")
STF2 = os.environ.get("STF2", " sc1")
WS_PROF = 0xF000000
NSTAMP = 12
def stamp(k):
    return [I(f"s_memtime s[{72+2*k}:{73+2*k}]")] if PROF else []
def prof_begin():
    return ([I("s_memrealtime s[96:97]")] + [x for k in range(NSTAMP) for x in stamp(k)]) if PROF else []
def prof_end(kidx, S_WS, sW, nwaves, vtmp=0, drain=True):
    if not PROF: return []
    o = L((["s_waitcnt vmcnt(0)"] if drain else []) + ["s_memrealtime s[98:99]"]) + stamp(NSTAMP-1) + L(["s_waitcnt lgkmcnt(0)",
          f"s_mul_i32 s70, s2, {nwaves}", f"s_add_u32 s70, s70, s{sW}", "s_lshl_b32 s70, s70, 6",
          f"s_add_u32 s70, s70, {WS_PROF + kidx*0x40000}", f"v_mov_b32 v{vtmp+16}, 0"])
    regs = [96, 98] + [72+2*k for k in range(NSTAMP)] + [97, 99]
    for j, rg in enumerate(regs): o += L([f"v_mov_b32 v{vtmp+j}, s{rg}"])
    for j in range(4):
        o += L([f"buffer_store_dwordx4 {vr(vtmp+4*j)}, v{vtmp+16}, {sr(S_WS)}, s70 offen offset:{16*j}"])
    return o

def code_prefetch(label, here, wide, vdst, vaddr, sp, st, vtid=0):
    sh = 3 if wide else 2
    o = [f"s_getpc_b64 s[{sp}:{sp+1}]", f"{here}:"]
    if label is not None:
        o += [f"s_add_u32 s{sp}, s{sp}, {label}-{here}\n    s_addc_u32 s{sp+1}, s{sp+1}, 0"]
    o += [f"s_bfe_u32 s{st}, s2, 0x50003", f"s_lshl_b32 s{st}, s{st}, {8+sh}", f"v_lshlrev_b32 v{vaddr}, {sh}, v{vtid}", f"v_add_u32 v{vaddr}, s{st}, v{vaddr}",
          f"global_load_dwordx2 {vr(vdst, 2)}, v{vaddr}, s[{sp}:{sp+1}]" if wide else f"global_load_dword v{vdst}, v{vaddr}, s[{sp}:{sp+1}]"]
    return L(o)

def one_lane(ins, sW, lab, stmp):
    return L([f"s_cmp_lg_u32 s{sW}, 0\n    s_cbranch_scc1 {lab}\n    s_mov_b64 exec, 1"]) + ins + L(["s_mov_b64 exec, -1", f"{lab}:"])
def spin(lab, load, vdst, want, scnt):
    return L([f"s_mov_b32 s{scnt}, 0x40000", f"{lab}:", load, "s_waitcnt vmcnt(0)", f"v_cmp_ne_u32 vcc, {want}, v{vdst}", f"s_cbranch_vccz {lab}_ok",
              f"s_sleep {os.environ.get('SLP', '1')}", f"s_sub_u32 s{scnt}, s{scnt}, 1", f"s_cbranch_scc0 {lab}", f"{lab}_ok:"])

def red32(v, t):
    dpp = " row_mask:0xf bank_mask:0xf"
    return [f"v_add_f32_dpp v{v}, v{v}, v{v} quad_perm:[1,0,3,2]{dpp}",
            f"v_add_f32_dpp v{v}, v{v}, v{v} quad_perm:[2,3,0,1]{dpp}",
            f"v_add_f32_dpp v{v}, v{v}, v{v} row_half_mirror{dpp}",
            f"v_add_f32_dpp v{v}, v{v}, v{v} row_mirror{dpp}",
            f"v_mov_b32 v{t}, v{v}",
            f"v_permlane16_swap_b32 v{t}, v{v}",
            f"v_add_f32 v{v}, v{v}, v{t}"]

def w_dma_voff(vlane, vd0, vd1, pitch, t1, t2):
    return [f"v_bfe_u32 v{t1}, v{vlane}, 4, 1", f"v_lshlrev_b32 v{t1}, 1, v{t1}", f"v_and_b32 v{t2}, 7, v{vlane}",
            f"v_xor_b32 v{t1}, v{t1}, v{t2}", f"v_lshlrev_b32 v{t1}, 4, v{t1}",
            f"v_lshrrev_b32 v{t2}, 3, v{vlane}", f"v_mul_u32_u24 v{t2}, {pitch}, v{t2}",
            f"v_add_u32 v{vd0}, v{t1}, v{t2}", f"v_xor_b32 v{t1}, 64, v{t1}", f"v_add_u32 v{vd1}, v{t1}, v{t2}",
            f"v_add_u32 v{vd1}, {8*pitch-1024}, v{vd1}"]
def w_tr_addr(vlane, vT, t1, t2):
    o = [f"v_lshrrev_b32 v{t1}, 4, v{vlane}", f"v_lshlrev_b32 v{t1}, 10, v{t1}",
         f"v_bfe_u32 v{t2}, v{vlane}, 2, 2", f"v_lshl_add_u32 v{t1}, v{t2}, 7, v{t1}",
         f"v_and_b32 v{t2}, 3, v{vlane}", f"v_lshl_add_u32 v{t1}, v{t2}, 3, v{t1}",
         f"v_bfe_u32 v{t2}, v{vlane}, 3, 2",
         f"v_lshl_add_u32 v{vT}, v{t2}, 5, v{t1}"]
    for cb in range(1, 4): o += [f"v_xor_b32 v{vT+cb}, {cb*32}, v{vT}"]
    return o

def gemm_groups(G, g0, groups, WF, pre, nbuf=2):
    starts = []; g = g0
    for gr in groups:
        starts.append(g); g += len(gr['frags'])*len(gr['chains'])
    for n, gr in enumerate(groups):
        CH = len(gr['frags'])
        base = WF + (n % nbuf)*4*gr.get('bufsz', CH)
        tagid = gr.setdefault('id', (g0, n))
        reads = []
        for j, (va, off) in enumerate(gr['frags']):
            for t in range(2):
                reads.append(T(f"ds_read_b64_tr_b16 {vr(base+4*j+2*t,2)}, v{va} offset:{off+t*512}", ('wf', tagid, j)))
        if n == 0:
            pre.extend(gr.get('sync') or []); pre.extend(reads); gr['syncgap'] = None
        else:
            ps = starts[n-1]; plen = starts[n] - ps
            first = ps + 1
            for x in (gr.get('sync') or []): G.before(first, x)
            gr['syncgap'] = first
            span = max(len(reads), (plen*3)//4 - 1)
            for i, x in enumerate(reads): G.put(first + (i*span)//len(reads), x)
        gg = starts[n]
        for c, ch in enumerate(gr['chains']):
            for j in range(CH):
                G.mf[gg] = I(ch[j](base + 4*j))
                if c == 0 and (j % 2 == 0):
                    G.before(gg, Wait(lg=[('wf', tagid, min(j+1, CH-1))] + (gr.get('lgwait', []) if j == 0 else [])))
                gg += 1
    return starts, g

def place_stream(G, groups, spacing, start=2):
    cur = start; last = start - 2
    for (e, ins) in groups:
        cur = max(cur, e + 2); last = max(last, e)
        pend = []
        for x in ins:
            if x.kind != 'vmem': pend.append(x); continue
            for j, y in enumerate(pend): G.nv[max(last, cur - len(pend) + j)].append(y)
            pend = []
            G.put(cur, x); last = cur; cur += spacing
    return cur

def spread(G, ins, g0, g1):
    for j, x in enumerate(ins):
        g = g0 + (j*(g1-g0))//len(ins)
        if x.kind == 'vmem' and not x.wr: G.put(g+1, x)
        else: G.put(g, x)

def KACC(db, mb):
    return ((96, 64)[db % 2] + (db//4)*64 + ((db//2) % 2)*16) + mb*4
def k_epilogue(js, sSc):
    o = []
    for mb in range(4):
        D0, D1 = KACC(2*js, mb), KACC(2*js+1, mb)
        o += L([f"v_mul_f32 v{D+r}, s{sSc}, v{D+r}" for D in (D0, D1) for r in range(4)])
        o += L([f"v_cvt_pk_bf16_f32 v{D0}, v{D0}, v{D0+1}", f"v_cvt_pk_bf16_f32 v{D0+1}, v{D0+2}, v{D0+3}",
                f"v_cvt_pk_bf16_f32 v{D0+2}, v{D1}, v{D1+1}", f"v_cvt_pk_bf16_f32 v{D0+3}, v{D1+2}, v{D1+3}"])
    return o
def gen_k1():
    S_CKV, S_WK, S_WV, S_WS, S_X = 4, 8, 12, 16, 20
    sW, sH, sR = 24, 25, 26
    sK, sV = 28, 32
    sAk, sWk = 40, 48
    sAm, sWm, sT, sT2, sFl, sSc, sLN, sH8 = 56, 57, 58, 59, 60, 61, 62, 63
    vL, vL16 = 2, 3
    vAD = 4; vAR = 8; vWD = 10; vT = 12; vTh = 16
    WF = 32; ACCK = 64; EP = 192; AR = 128
    pre = prof_begin()
    pre += L(["s_load_dwordx4 s[28:31], s[0:1], 0", "s_load_dwordx4 s[32:35], s[0:1], 24", "s_load_dwordx2 s[36:37], s[0:1], 96",
              "s_load_dwordx2 s[64:65], s[0:1], 16", "s_load_dwordx2 s[66:67], s[0:1], 56", "s_load_dwordx2 s[68:69], s[0:1], 88",
              "s_cmp_ge_u32 s2, 256", "s_cbranch_scc1 K3_END" if FUSED else "s_cbranch_scc1 K1_END"])
    pre += code_prefetch(None, "K1_PC", False, 21, 24, 38, 27)
    pre += L(["v_lshrrev_b32 v1, 6, v0", f"v_and_b32 v{vL}, 63, v0", f"v_readfirstlane_b32 s{sW}, v1",
              f"v_lshlrev_b32 v{vL16}, 4, v{vL}",
              f"s_and_b32 s{sT}, s2, 7", f"s_lshl_b32 s{sT}, s{sT}, 2", f"s_bfe_u32 s{sT2}, s2, 0x20003",
              f"s_add_u32 s{sH}, s{sT}, s{sT2}", f"s_lshr_b32 s{sR}, s2, 5"])
    pre += L([f"v_lshrrev_b32 v24, 5, v{vL}", f"v_and_b32 v25, 31, v{vL}", "v_lshlrev_b32 v26, 10, v24",
              "v_lshl_add_u32 v26, v25, 5, v26",
              "v_lshlrev_b32 v27, 9, v25", "v_lshl_add_u32 v27, v24, 4, v27"])
    pre += L([f"v_lshrrev_b32 v24, 4, v{vL}", f"v_and_b32 v25, 7, v{vL}", "v_xor_b32 v24, v24, v25", "v_lshlrev_b32 v24, 4, v24",
              f"v_lshrrev_b32 v25, 3, v{vL}", f"v_lshl_add_u32 v{vAD}, v25, 10, v24",
              f"v_xor_b32 v{vAD+1}, 64, v{vAD}", f"v_add_u32 v{vAD+1}, {8192-1024}, v{vAD+1}",
              ])
    pre += L(w_dma_voff(vL, vWD, vWD+1, 8192, 24, 25))
    pre += L([f"s_lshl_b32 s{sT}, s{sR}, 18", f"s_lshl_b32 s{sT2}, s{sW}, 16", f"s_add_u32 s{sT}, s{sT}, s{sT2}",
              f"s_lshl_b32 s{sT2}, s{sW}, 14", f"s_add_u32 s{sT2}, s{sT2}, 98304"])
    for o in range(4):
        pre += L([f"s_add_u32 s27, s{sH}, {o}", "s_and_b32 s27, s27, 3", f"s_lshl_b32 s{sAk+o}, s27, 14", f"s_add_u32 s{sAk+o}, s{sAk+o}, s{sT}",
                  f"s_lshl_b32 s{sAk+4+o}, s27, 11", f"s_add_u32 s{sAk+4+o}, s{sAk+4+o}, s{sT2}"])
    pre += L([f"s_lshl_b32 s{sWk}, s{sW}, 17",
              f"s_lshl_b32 s{sWk+1}, s{sR}, 2", f"s_add_u32 s{sWk+1}, s{sWk+1}, s{sW}", f"s_lshl_b32 s{sWk+1}, s{sWk+1}, 15",
              f"v_lshrrev_b32 v24, 4, v{vL}", "v_lshlrev_b32 v24, 13, v24", f"v_and_b32 v25, 15, v{vL}", f"v_lshl_add_u32 v{vAD+2}, v25, 4, v24"])
    pre += L([f"s_lshl_b32 s{sAm}, s{sW}, 14", f"s_add_u32 s{sAm}, s{sAm}, 98304", f"s_lshl_b32 s{sWm}, s{sW}, 11",
              f"s_lshl_b32 s{sH8}, s{sH}, 8", f"s_and_b32 s{sFl}, s{sR}, 1", f"s_lshl_b32 s{sFl}, s{sFl}, 7",
              f"s_lshl_b32 s{sT}, s2, 3", f"s_lshl_b32 s{sT2}, s{sW}, 1", f"s_add_u32 s{sT}, s{sT}, s{sT2}", f"s_lshl_b32 s{sLN}, s{sT}, 10"])
    pre += L(["s_waitcnt lgkmcnt(0)"]) + stamp(1)
    pre += L(srd(S_CKV, 30, 31, 0x200000))
    def dmaA(s, os_):
        o = []
        for k in os_:
            o += [I(f"s_add_u32 m0, s{sAk+4+k}, {(s % 2)*8192}"), I(f"s_add_u32 s{sT}, s{sAk+k}, {s*128}"),
                  T(f"buffer_load_dwordx4 v{vAD}, {sr(S_CKV)}, s{sT} offen lds", ('A', s)),
                  T(f"buffer_load_dwordx4 v{vAD+1}, {sr(S_CKV)}, s{sT} offen offset:1024 lds", ('A', s))]
        return o
    own = lambda s: dmaA(s, [0]); rest = lambda s: dmaA(s, [1, 2, 3])
    def pfW(sd, st):
        return L([f"s_add_u32 s{sT2}, s{sWk+1}, {st*128*8192}", f"buffer_load_dwordx4 v[20:23], v{vAD+2}, {sr(sd)}, s{sT2} offen"])
    def dmaUT(sd, ksl, ch, ldsoff, tag):
        return [I(f"s_add_u32 m0, s{sWm}, {ldsoff}"), I(f"s_add_u32 s{sT2}, s{sWk}, {ksl*64*8192 + ch*128}"),
                T(f"buffer_load_dwordx4 v{vWD}, {sr(sd)}, s{sT2} offen lds", tag),
                T(f"buffer_load_dwordx4 v{vWD+1}, {sr(sd)}, s{sT2} offen offset:1024 lds", tag)]
    kslot = lambda p, u: ((p % 6)*2 + u)*8192
    def dmaWP(p): return [x for u in range(2) for x in dmaUT(S_WV if p % 4 < 2 else S_WK, (p//4)*2 + u, p % 2, kslot(p, u), ('W', p))]
    pre += L([f"buffer_load_dwordx4 v[20:23], v{vL16}, {sr(S_CKV)}, s{sLN} offen", f"buffer_load_dwordx4 v[20:23], v{vL16}, {sr(S_CKV)}, s{sLN} offen offset:1024"])
    pre += own(0) + own(1)
    pre += L(srd_off(S_WV, 34, 35, sH8, 0x400000))
    pre += pfW(S_WV, 0)
    pre += L(srd(S_X, 28, 29, 0x200000) + srd_off(S_WK, 32, 33, sH8, 0x400000))
    pre += rest(0) + dmaWP(0) + rest(1) + pfW(S_WK, 0) + dmaWP(1) + stamp(2)
    pre += [T(f"buffer_load_dwordx4 v[192:195], v26, {sr(S_X)}, s{sLN} offen", 'ln'),
            T(f"buffer_load_dwordx4 v[196:199], v26, {sr(S_X)}, s{sLN} offen offset:16", 'ln')]
    pre += L(srd(S_WS, 36, 37, WS_SIZE))
    pre += L(w_tr_addr(vL, vT, 24, 25)) + L([f"v_add_u32 v{vTh+c}, 0x10000, v{vT+c}" for c in range(4)])
    pre += L([f"v_and_b32 v24, 15, v{vL}", f"v_bfe_u32 v25, v{vL}, 1, 3", f"v_lshrrev_b32 v1, 4, v{vL}", "v_xor_b32 v25, v25, v1",
              "v_lshlrev_b32 v25, 4, v25", "v_lshl_add_u32 v24, v24, 7, v25", f"v_add_u32 v{vAR}, s{sAm}, v24",
              f"v_xor_b32 v{vAR+1}, 64, v{vAR}"])
    pre += L([f"s_lshl_b32 s{sT}, s{sH}, 19", f"s_lshl_b32 s{sT2}, s{sR}, 16", f"s_add_u32 s{sT}, s{sT}, s{sT2}",
              f"s_lshl_b32 s{sT2}, s{sW}, 14", f"s_add_u32 s{sT}, s{sT}, s{sT2}"])
    for j in range(4):
        pre += L([f"s_add_u32 s{sV+j}, s{sT}, {WS_VF + j*4096}"])
    pre += L([f"s_mov_b32 s{sSc}, {f2u(SCALE):#x}"])
    X = 208; R0 = 192; m, t, d, q = 200, 201, 202, 203
    ln = []
    for j in range(8):
        ln += L([f"v_lshlrev_b32 v{X+2*j}, 16, v{R0+j}", f"v_and_b32 v{X+2*j+1}, 0xffff0000, v{R0+j}"])
    ln += L([f"v_add_f32 v{m}, v{X}, v{X+1}"] + [f"v_add_f32 v{m}, v{m}, v{X+j}" for j in range(2, 16)])
    ln += L(red32(m, t))
    ln += L([f"v_mul_f32 v{m}, 0x3b000000, v{m}"])
    ln += L([f"v_sub_f32 v{d}, v{X}, v{m}", f"v_mul_f32 v{q}, v{d}, v{d}"])
    for j in range(1, 16):
        ln += L([f"v_sub_f32 v{d}, v{X+j}, v{m}", f"v_fmac_f32 v{q}, v{d}, v{d}"])
    ln += L(red32(q, t))
    ln += L([f"v_mul_f32 v{q}, 0x3b000000, v{q}", f"v_cvt_pk_bf16_f32 v{m}, v{m}, v{q}",
             f"v_and_b32 v{q}, 0xffff0000, v{m}", f"v_lshlrev_b32 v{m}, 16, v{m}",
             f"v_add_f32 v{q}, {f2u(1e-5):#x}, v{q}", f"v_cvt_pk_bf16_f32 v{q}, v{q}, v{q}", f"v_lshlrev_b32 v{q}, 16, v{q}",
             f"v_sqrt_f32 v{q}, v{q}", f"v_cvt_pk_bf16_f32 v{q}, v{q}, v{q}", f"v_lshlrev_b32 v{q}, 16, v{q}",
             f"v_rcp_f32 v{q}, v{q}"])
    for j in range(8):
        a, b = X+2*j, X+2*j+1
        ln += L([f"v_sub_f32 v{a}, v{a}, v{m}", f"v_sub_f32 v{b}, v{b}, v{m}", f"v_cvt_pk_bf16_f32 v{a}, v{a}, v{b}",
                 f"v_and_b32 v{b}, 0xffff0000, v{a}", f"v_lshlrev_b32 v{a}, 16, v{a}",
                 f"v_mul_f32 v{a}, v{a}, v{q}", f"v_mul_f32 v{b}, v{b}, v{q}", f"v_cvt_pk_bf16_f32 v{R0+j}, v{a}, v{b}"])
    ln2 = []
    LX = kslot(5, 0)
    lnw = L([f"s_lshl_b32 s50, s{sW}, 11", f"s_add_u32 s50, s50, {LX}", "v_add_u32 v26, s50, v26",
             f"ds_write_b128 v26, {vr(R0)}", f"ds_write_b128 v26, {vr(R0+4)} offset:16",
             f"v_and_b32 v24, 7, v{vL}", f"v_lshrrev_b32 v25, 3, v{vL}", "v_lshlrev_b32 v26, 10, v24", "v_lshl_add_u32 v26, v25, 4, v26",
             f"s_lshl_b32 s50, s{sW}, 8", f"s_add_u32 s50, s50, {LX}", "v_add_u32 v26, s50, v26",
             "v_lshlrev_b32 v27, 8, v25", "v_lshl_add_u32 v27, v24, 4, v27"])
    lnw[4].tag = 'lnw'
    ln2 += [T(f"ds_read_b128 {vr(R0)}, v26", 'lnr'), T(f"ds_read_b128 {vr(R0+4)}, v26 offset:128", 'lnr')]
    ln2 += L([f"s_lshr_b32 s{sT}, s2, 1", f"s_lshl_b32 s{sT}, s{sT}, 14", f"s_and_b32 s{sT2}, s2, 1", f"s_lshl_b32 s{sT2}, s{sT2}, 7",
             f"s_add_u32 s{sT}, s{sT}, s{sT2}", f"s_lshl_b32 s{sT2}, s{sW}, 12", f"s_add_u32 s{sT}, s{sT}, s{sT2}"])
    ln2 += [Wait(lg='lnr')]
    ln2 += L([f"buffer_store_dwordx4 {vr(R0)}, v27, {sr(S_WS)}, s{sT} offen offset:{WS_XN}{STX}",
              f"buffer_store_dwordx4 {vr(R0+4)}, v27, {sr(S_WS)}, s{sT} offen offset:{WS_XN+2048}{STX}"])
    ln2 += L([f"s_lshl_b32 s{sT}, s{sH}, 7", f"s_lshl_b32 s{sT2}, s{sR}, 2", f"s_add_u32 s{sT}, s{sT}, s{sT2}", f"s_add_u32 s{sT}, s{sT}, {FL_KV}", f"v_mov_b32 v24, s{sT}",
              f"s_lshl_b32 s{sT}, s{sR}, 7", f"s_lshl_b32 s{sT2}, s{sH}, 2", f"s_add_u32 s27, s{sT}, s{sT2}", f"s_add_u32 s27, s27, {FL_AC}", "v_writelane_b32 v24, s27, 1",
              f"s_sub_u32 s27, s{sT2}, s{sT}", f"s_add_u32 s27, s27, {FL_AC + 15*128}", "v_writelane_b32 v24, s27, 2",
              f"s_lshl_b32 s27, s{sW}, 7", f"s_add_u32 s{sT2}, s{sT2}, s27", f"s_lshl_b32 s{sT2}, s{sT2}, 5", f"s_lshl_b32 s{sT}, s{sT}, 7",
              f"s_add_u32 s27, s{sT}, s{sT2}", f"s_add_u32 s27, s27, {FL_CX}", "v_writelane_b32 v24, s27, 3",
              f"s_sub_u32 s27, s{sT2}, s{sT}", f"s_add_u32 s27, s27, {FL_CX + 15*16384}", "v_writelane_b32 v24, s27, 4",
              f"s_bfe_u32 s{sT}, s2, 0x10002", f"s_lshl_b32 s{sT}, s{sT}, 3", f"s_bfe_u32 s{sT2}, s2, 0x30003", f"s_add_u32 s{sT}, s{sT}, s{sT2}",
              f"s_lshl_b32 s{sT}, s{sT}, 2", f"s_lshr_b32 s{sT2}, s2, 6", f"s_add_u32 s{sT}, s{sT}, s{sT2}", f"s_lshl_b32 s{sT}, s{sT}, 2",
              f"s_and_b32 s{sT2}, s2, 3", f"s_add_u32 s{sT}, s{sT}, s{sT2}", f"s_lshl_b32 s{sT}, s{sT}, 9", f"s_lshl_b32 s{sT2}, s{sW}, 7", f"s_add_u32 s{sT}, s{sT}, s{sT2}",
              f"s_add_u32 s27, s{sT}, {FL_EX}", "v_writelane_b32 v24, s27, 5",
              "v_mov_b32 v25, 0", T(f"buffer_store_dword v25, v24, {sr(S_WS)}, 0 offen sc1", 'lnst'),
              "s_mov_b32 s70, 256", "s_mov_b32 s71, 0x00020000", "v_mov_b32 v26, 1"])
    ln2 = [x if isinstance(x, Wait) else I(x.text.replace(f's{sT2}', 's51').replace(f's{sT}', 's50'), x.tag) for x in ln2]
    kacc = lambda db, mb: KACC(db, mb)
    afr = lambda st, mb, j: ar(AR + (st % 2)*64 + (mb*4 + j)*4)
    def readA(s):
        return [T(f"ds_read_b128 {afr(s//2, mb, (s % 2)*2 + k)}, v{vAR+k} offset:{(s % 2)*8192 + mb*2048}", ('Ar', s))
                for mb in range(4) for k in range(2)]
    pre += [Wait(vm=('A', 0))] + readA(0) + [Wait(vm=('A', 1))] + readA(1) + stamp(5)
    groups = []
    for p in range(16):
        st, cq = p//4, p % 4
        for cb in range(4):
            db = (cq % 2)*4 + cb
            fr = []
            for j in range(4):
                o = kslot(p, j//2) + (j % 2)*4096
                fr.append(((vT, vTh)[o >> 16] + cb, o & 0xffff))
            chains = []
            for mb in range(4):
                if cq >= 2:
                    D = vr(kacc(db, mb))
                    chains.append([(lambda f, D=D, a=afr(st, mb, j), z=(st == 0 and j == 0): f"{MF} {D}, {vr(f)}, {a}, {'0' if z else D}") for j in range(4)])
                else:
                    D = ar((db*4 + mb)*4)
                    chains.append([(lambda f, D=D, a=afr(st, mb, j), z=(st == 0 and j == 0): f"{MF} {D}, {a}, {vr(f)}, {'0' if z else D}") for j in range(4)])
            gr = dict(frags=fr, chains=chains)
            if cb == 0:
                gr['sync'] = [Wait(vm=('W', p)), I("s_barrier")]; gr['pair'] = p
                if cq == 0: gr['lgwait'] = [('Ar', 2*st+1)]
            groups.append(gr)
    G = Gaps(1024)
    starts, gend = gemm_groups(G, 0, groups, WF, pre)
    assert gend == 1024
    bar = {gr['pair']: gr['syncgap'] for gr in groups if 'pair' in gr}
    ev = [(0, dmaWP(2))]
    for st in range(3):
        g = 256*st
        ev += [(g, own(2*st+2) + own(2*st+3))]
        if st == 0: ev += [(g + 10, pfW(S_WV, 1) + pfW(S_WK, 1))]
        if st < 2: ev += [(g + 150, pfW(S_WV, st+2) + pfW(S_WK, st+2))]
        ev += [(g + 70, rest(2*st+2)), (g + 125, rest(2*st+3))]
        for k in range(2):
            gr_ = g + 196 + 26*k
            G.before(gr_, Wait(vm=('A', 2*st+2+k)))
            for j, x in enumerate(readA(2*st+2+k)): G.put(gr_ + 2*j, x)
    for p in range(1, 14): ev += [(bar[p], dmaWP(p+2))]
    ev.sort(key=lambda e: e[0])
    end = place_stream(G, ev, int(os.environ.get("SP", "4")), start=2)
    print("K1 dma stream ends at gap", end)
    G.before(3, Wait(vm='ln'))
    spread(G, ln, 3, 92)
    for j, x in enumerate(lnw): G.va[92 + j].append(x)
    G.pre[bar[2]].insert(0, Wait(lg='lnw'))
    for j, x in enumerate(ln2): G.nv[bar[2] + j].append(x)
    if FUSED:
        for x in one_lane([T("buffer_atomic_add v26, v25, s[68:71], 0 offen sc1", 'NOCOUNT')], sW, "K1_SIG", sT): G.nv[bar[4]].append(x)
        G.pre[bar[4]].insert(0, Wait(vm='lnst'))
        G.put(960, T("buffer_load_dword v27, v25, s[68:71], 0 offen sc1", 'lnc'))
        XG = int(os.environ.get("XG", "0"))
        if XG:
            G.put(XG - 40, T("buffer_load_dword v27, v25, s[68:71], 0 offen sc1", 'lnc0'))
            xp = [Wait(vm='lnc0')] + L(["v_readfirstlane_b32 s52, v27", "s_bfe_u32 s53, s2, 0x50003", "s_lshl_b32 s53, s53, 16", f"s_lshl_b32 s54, s{sW}, 14", "s_add_u32 s53, s53, s54",
                                        "s_cmp_eq_u32 s52, 0x100\n    s_cselect_b32 s53, s53, 0x10000000"])
            for k in range(16):
                if k and k % 4 == 0: xp += L(["s_add_u32 s53, s53, 4096"])
                xp += L([f"buffer_load_dwordx4 v[20:23], v{vL16}, {sr(S_WS)}, s53 offen offset:{(k % 4)*1024} sc1"])
            g = XG
            for x in xp:
                G.nv[g].append(x); g += 8 if x.kind == 'vmem' else 1
    pf = L(srd_off(S_X, 64, 65, sH8, 0x400000) + [f"s_lshr_b32 s{sT}, s{sH8}, 1"] + srd_off(28, 66, 67, sT, 512*2752))
    pf += L([f"v_lshrrev_b32 v24, 4, v{vL}", "v_lshlrev_b32 v24, 13, v24", f"v_and_b32 v1, 15, v{vL}", "v_lshl_add_u32 v24, v1, 4, v24",
             f"v_lshrrev_b32 v26, 3, v{vL}", "v_mul_u32_u24 v26, 2752, v26", f"v_and_b32 v1, 7, v{vL}", "v_lshl_add_u32 v26, v1, 4, v26",
             f"s_lshl_b32 s{sT}, s{sR}, 2", f"s_add_u32 s{sT}, s{sT}, s{sW}", f"s_mul_i32 s{sT2}, s{sT}, {16*2752}", f"s_lshl_b32 s{sT}, s{sT}, 17"])
    for k in range(4):
        pf += L([f"buffer_load_dwordx4 v[20:23], v24, {sr(S_X)}, s{sT} offen", f"s_add_u32 s{sT}, s{sT}, 32768"])
    for k in range(2):
        pf += L([f"buffer_load_dwordx4 v[20:23], v26, {sr(28)}, s{sT2} offen", f"s_add_u32 s{sT2}, s{sT2}, {8*2752}"])
    pf = [I(x.text.replace(f"s{sT2}", "s53").replace(f"s{sT}", "s52")) for x in pf]
    pf += code_prefetch("K2_BEGIN" if FUSED else "attn_kernel", "K1_PC2", True, 20, 24, 38, 27)
    g = int(os.environ.get('PFG', '420'))
    for x in pf:
        G.nv[g].append(x); g += 4 if x.kind == 'vmem' else (0 if x.kind == 'label' or x.op == 's_getpc_b64' else 1)
    assert g < 1000
    for db in range(8):
        ins = []
        for ks in range(2):
            t = EP + ((db*2 + ks) % 8)*8
            ins += L([f"v_accvgpr_read_b32 v{t+k}, a{(db*4 + 2*ks)*4 + k}" for k in range(8)])
            ins += L([f"v_cvt_pk_bf16_f32 v{t+k}, v{t+2*k}, v{t+2*k+1}" for k in range(4)])
            ins += L([f"buffer_store_dwordx4 {vr(t)}, v{vL16}, {sr(S_WS)}, s{sV+db//2} offen offset:{(db%2)*2048 + ks*1024}{STF}"])
        spread(G, ins, 790 + 28*db, 790 + 28*db + 27)
    spread(G, k_epilogue(0, sSc) + k_epilogue(1, sSc), 964, 1022)
    tail = []
    assert FUSED
    if os.environ.get("K1FINE"):
        seq = list(pre)
        for p in range(8): seq += stamp(2+p) + G.linear(128*p, 128*p+128)
        seq += stamp(10) + tail + prof_end(0, S_WS, sW, 4, vtmp=32, drain=not FUSED)
    else:
        seq = pre + stamp(6) + G.linear(0, 64) + stamp(7) + G.linear(64, 512) + stamp(8) + G.linear(512, 1024) + stamp(9) + tail + stamp(10) + prof_end(0, S_WS, sW, 4, vtmp=32, drain=not FUSED)
    if FUSED:
        seq += [Wait(vm='lnc')] + L(["s_mov_b32 s70, 256", "s_movk_i32 s27, 0x100", "v_cmp_gt_u32 vcc, s27, v27", "s_cbranch_vccz K1_LNOK"])
        sp = spin("K1_LNSPIN", "buffer_load_dword v27, v25, s[68:71], 0 offen sc1", 27, "s27", sT)
        sp = [I(x.text.replace("v_cmp_ne_u32", "v_cmp_gt_u32"), 'NOCOUNT') for x in sp]
        seq += sp + L(["K1_LNOK:", "s_barrier"])
        return seq
    seq = resolve_waits(seq)
    seq, n = fix_hazards(seq)
    print("K1: instrs", len(seq), "nops", n)
    return seq + L(["K1_END:", "s_endpgm"])

def emit(kernels, path):
    hdr = open('parallel_sum__compressed_kv_cla__dense_activation_mish__prompt.s.ref').read().split('\n')
    out = [l for l in hdr[:14]]
    for (name, grid, block, lds, seq, nv, acc) in kernels:
        if len(kernels) == 1 and os.environ.get("PLAIN"): out.append(f"; @launch grid=({grid},1,1) block=({block},1,1) lds={lds}")
        else: out.append(f"; @launch kernel={name} grid=({grid},1,1) block=({block},1,1) lds={lds}")
    out += ['.amdgcn_target "amdgcn-amd-amdhsa--gfx950"', ".text"]
    for (name, grid, block, lds, seq, nv, acc) in kernels:
        out += [f".globl {name}", ".p2align 8", f".type {name},@function", f"{name}:"]
        out += [("" if i.kind == 'label' else "    ") + i.text for i in seq]
    out.append(".fill 8192, 4, 0xbf800000")
    out.append('.section .rodata,"a"')
    for (name, grid, block, lds, seq, nv, acc) in kernels:
        out += [".p2align 6", f".amdhsa_kernel {name}", f"  .amdhsa_next_free_vgpr {nv}", "  .amdhsa_next_free_sgpr 102",
                f"  .amdhsa_accum_offset {acc}", "  .amdhsa_group_segment_fixed_size 0", "  .amdhsa_kernarg_size 104",
                "  .amdhsa_user_sgpr_count 2", "  .amdhsa_user_sgpr_kernarg_segment_ptr 1",
                "  .amdhsa_system_sgpr_workgroup_id_x 1", ".end_amdhsa_kernel"]
    open(path, "w").write("\n".join(out) + "\n")

if __name__ == "__main__":
    ks = [("kvproj_kernel", 256, 256, 163840, gen_k1(), 512, 256)]
    emit(ks, sys.argv[1] if len(sys.argv) > 1 else "k.s")
```

```python
from gen import *

NEGINF = "0xff800000"
THR = f2u(2.0**60)

def gen_k2(prefix, K3):
    S_WS, S_WQ, S_W1, S_K, S_V, S_B1 = 4, 8, 12, 16, 20, 24
    sW, sH, sI, sPar = 28, 29, 30, 31
    sXN = 32
    sAct = 36
    sWm, sT, sT2, sT3 = 44, 45, 46, 47
    sWoQ, sWo1 = 48, 50
    sKd, sVd, sGd, sKr, sVr, sVk = 50, 51, 52, 53, 54, 55
    sC = {'a': 56, 'b': 57}
    sCnt, sThr, sRet = 58, 59, 60
    sPC = 62
    sKA = 64
    vL, vL16 = 2, 3
    vX = 4
    vWDq, vWD1 = 8, 10
    vT = 12; vTh = 16; vTt = 20
    vDM, vKr, vVr, vLB = 24, 25, 26, 27
    vNI = 28
    tA, tB = 29, 30
    WF = 32
    QE = 64
    QO = 128
    HA = 192
    P = {'a': 32, 'b': 48}
    S = {'a': 128, 'b': 160}
    QX = 192
    NM = {'a': 224, 'b': 232}
    ET = 240
    TS = {'a': 244, 'b': 246}; LS = {'a': 248, 'b': 250}; MS = {'a': 252, 'b': 254}
    O = {'a': 0, 'b': 64}; KF_, VF_ = 128, 192
    qf = lambda mbx, js: QE + (js*4 + mbx)*4
    Qreg = {'a': lambda nb, js: qf(nb, js), 'b': lambda nb, js: qf(2+nb, js), 'x': lambda nb, js: QX + (js*2+nb)*4}

    pre = (prefix + L(["K2_BEGIN:"]) if prefix else []) + prof_begin()
    pre += L([f"s_load_dwordx2 s[64:65], s[0:1], 16", "s_load_dwordx2 s[68:69], s[0:1], 56",
              "s_load_dwordx2 s[66:67], s[0:1], 96", "s_load_dwordx2 s[26:27], s[0:1], 64",
              ] + ([] if FUSED else ["s_cmp_ge_u32 s2, 256", "s_cbranch_scc1 K2_END"]))
    pre += L(["v_mov_b32 v31, v0", "v_lshrrev_b32 v1, 6, v0", f"v_and_b32 v{vL}, 63, v0", f"v_readfirstlane_b32 s{sW}, v1",
              f"v_lshlrev_b32 v{vL16}, 4, v{vL}",
              f"s_and_b32 s{sT}, s2, 7", f"s_lshl_b32 s{sT}, s{sT}, 2", f"s_bfe_u32 s{sT2}, s2, 0x20003",
              f"s_add_u32 s{sH}, s{sT}, s{sT2}", f"s_lshr_b32 s{sI}, s2, 5", f"s_and_b32 s{sPar}, s{sW}, 1"])
    for j in range(4):
        pre += L([f"s_add_u32 s{sT}, s{sH}, {j}", f"s_and_b32 s{sT}, s{sT}, 3", f"s_lshl_b32 s{sT}, s{sT}, 10", f"v_add_u32 v{vX+j}, s{sT}, v{vL16}"])
    for u in range(2):
        pre += L([f"s_lshr_b32 s{sT}, s{sW}, 1", f"s_add_u32 s{sT}, s{sT}, s{sH}", f"s_add_u32 s{sT}, s{sT}, {2*u}", f"s_and_b32 s{sT}, s{sT}, 3",
                  f"s_lshl_b32 s{sT}, s{sT}, 1", f"s_add_u32 s{sT}, s{sT}, s{sPar}", f"s_lshl_b32 s{sWoQ+u}, s{sT}, 17", f"s_mul_i32 s{sWo1+u}, s{sT}, {16*2752}"])
    pre += L(w_dma_voff(vL, vWDq, vWDq+1, 8192, tA, tB) + w_dma_voff(vL, vWD1, vWD1+1, 2752, tA, tB))
    pre += L([f"s_lshl_b32 s{sT}, s{sI}, 3", f"s_lshl_b32 s{sT2}, s{sW}, 1", f"s_add_u32 s{sT3}, s{sT}, s{sT2}",
              f"s_sub_u32 s{sT}, 120, s{sT}", f"s_add_u32 s{sT}, s{sT}, s{sT2}",
              f"s_lshl_b32 s{sXN}, s{sT3}, 14", f"s_add_u32 s{sXN+1}, s{sXN}, 16384",
              f"s_lshl_b32 s{sXN+2}, s{sT}, 14", f"s_add_u32 s{sXN+3}, s{sXN+2}, 16384",
              f"s_mul_i32 s{sAct}, s{sT3}, {CA_RB}", f"s_mul_i32 s{sAct+4}, s{sT}, {CA_RB}",
              f"s_lshl_b32 s{sC['a']}, s{sT3}, 4", f"s_lshl_b32 s{sC['b']}, s{sT}, 4",
              f"s_lshl_b32 s{sWm}, s{sW}, 11",
              f"s_lshl_b32 s{sT}, s{sH}, 8", f"s_lshl_b32 s{sT2}, s{sH}, 7"])
    pre += L(["s_waitcnt lgkmcnt(0)"]) + stamp(1)
    pre += L(srd(S_WS, 66, 67, WS_SIZE))
    def ldX(st, js):
        return [T(f"buffer_load_dwordx4 {ar((mbx*16+4*st+j)*4)}, v{vX+j}, {sr(S_WS)}, s{sXN+mbx} offen{LDF}", ('X', st))
                for j in js for mbx in range(4)] + [I(f"v_add_u32 v{vX+j}, 4096, v{vX+j}") for j in js]
    own = lambda st: ldX(st, [0]); rest = lambda st: ldX(st, [1, 2, 3])
    ring = [0, 1, 2, 3, 4, 5, 8, 9, 10, 11, 12, 13]
    pslot = lambda p, u: ring[((p % 6)*2 + u)]*8192
    hslot = [6, 7, 14, 15, 16, 17, 18, 19]
    def dmaUT(which, ksl, colb, ldsoff, tag):
        sd, vd, so, pitch = (S_W1, vWD1, sWo1, 2752) if which == 1 else (S_WQ, vWDq, sWoQ, 8192)
        return [I(f"s_add_u32 m0, s{sWm}, {ldsoff}"), I(f"s_add_u32 s{sT3}, s{so + ksl % 2}, {(ksl//2)*128*pitch + colb}"),
                T(f"buffer_load_dwordx4 v{vd}, {sr(sd)}, s{sT3} offen lds", tag),
                T(f"buffer_load_dwordx4 v{vd+1}, {sr(sd)}, s{sT3} offen offset:1024 lds", tag)]
    def dmaP(p): return [x for u in range(2) for x in dmaUT(1 if p % 2 == 0 else 0, (p//2)*2 + u, 0, pslot(p, u), ('W', p))]
    def dmaH(ks): return [x for k in ks for x in dmaUT(0, k, 128, hslot[k]*8192, 'WH')]
    DIAG = os.environ.get('DIAG')
    dst = lambda k: (L(['s_waitcnt vmcnt(0)'] if DIAG == 'w' else []) + stamp(k)) if DIAG else []
    o01 = own(0)
    pre += (o01[:1] + dst(8) + o01[1:] + dst(9)) if DIAG == 'w' else o01
    pre += L(srd_off(S_W1, 68, 69, sT2, 512*2752) + srd_off(S_WQ, 64, 65, sT, 0x400000))
    pre += dmaP(0)
    pre += L([f"s_mov_b32 s{S_B1}, s26", f"s_mov_b32 s{S_B1+1}, s27", f"s_mov_b32 s{S_B1+2}, 2752", f"s_mov_b32 s{S_B1+3}, 0x00020000",
              f"v_lshrrev_b32 v{tA}, 4, v{vL}", f"v_lshlrev_b32 v{tA}, 3, v{tA}"])
    BI = 64
    pre += [T(f"buffer_load_dwordx2 {vr(BI+16+2*fb, 2)}, v{tA}, {sr(S_B1)}, s{sT2} offen offset:{fb*32}", 'bias') for fb in range(4)]
    pre += dst(10) + rest(0) + stamp(2)
    pre += L(w_tr_addr(vL, vT, tA, tB)) + L([f"v_add_u32 v{vTh+c}, 0x10000, v{vT+c}" for c in range(4)] + [f"v_add_u32 v{vTt+c}, 0x20000, v{vT+c}" for c in range(4)])
    pre += L([f"s_lshl_b32 s{sT}, s{sH}, 19", f"s_lshl_b32 s{sT2}, s{sI}, 15", f"s_sub_u32 s{sT2}, 0x80000, s{sT2}",
              f"s_add_u32 s{sT3}, s{sT}, {WS_KF}", f"s_add_u32 s{S_K}, s66, s{sT3}", f"s_addc_u32 s{S_K+1}, s67, 0", f"s_mov_b32 s{S_K+2}, s{sT2}", f"s_mov_b32 s{S_K+3}, 0x00020000",
              f"s_add_u32 s{sT3}, s{sT}, {WS_VF}", f"s_add_u32 s{S_V}, s66, s{sT3}", f"s_addc_u32 s{S_V+1}, s67, 0", f"s_mov_b32 s{S_V+2}, s{sT2}", f"s_mov_b32 s{S_V+3}, 0x00020000"])
    pre += L([f"s_add_u32 s{sAct+2}, s{sAct}, {CA_RB}", f"s_add_u32 s{sAct+6}, s{sAct+4}, {CA_RB}",
              f"s_lshl_b32 s{sT}, s{sH}, 11", f"s_add_u32 s{sT}, s{sT}, {WS_CA + 128*1024}",
              f"s_lshl_b32 s{sT2}, s{sH}, 12", f"s_add_u32 s{sT2}, s{sT2}, {WS_CA}"])
    ctxoff = []
    for mbx in range(4):
        ctxoff += L([f"s_add_u32 s{sXN+mbx}, s{sAct+2*mbx}, s{sT2}"])
    actoff = []
    for mbx in range(4):
        actoff += L([f"s_add_u32 s{sAct+2*mbx}, s{sAct+2*mbx}, s{sT}", f"s_add_u32 s{sAct+2*mbx+1}, s{sAct+2*mbx}, 1024",
                     f"s_cmp_gt_u32 s{sH}, 21", f"s_cselect_b32 s{sAct+2*mbx}, 0x10000000, s{sAct+2*mbx}",
                     f"s_cmp_gt_u32 s{sH}, 20", f"s_cselect_b32 s{sAct+2*mbx+1}, 0x10000000, s{sAct+2*mbx+1}"])
    pre += L([f"s_mov_b32 s{sKr}, s{sT}", f"s_mov_b32 s{sVr}, s{sT2}"])
    fix = lambda lst: [I(x.text.replace(f"s{sT2}", f"s{sVr}").replace(f"s{sT}", f"s{sKr}")) for x in lst]
    ctxoff, actoff = fix(ctxoff), fix(actoff)
    pre += L([f"v_lshl_add_u32 v{vDM}, s{sW}, 12, v{vL16}" if False else f"v_mov_b32 v{tA}, s{sW}", f"v_lshl_add_u32 v{vDM}, v{tA}, 12, v{vL16}",
              f"v_and_b32 v{tA}, 15, v{vL}", f"v_lshrrev_b32 v{tB}, 4, v{vL}", f"v_lshlrev_b32 v{tB}, 2, v{tB}", f"v_sub_u32 v{vLB}, v{tA}, v{tB}",
              f"v_mov_b32 v{vNI}, {NEGINF}", f"s_mov_b32 s{sThr}, {THR:#x}"])
    pre += own(1) + dmaP(1)
    pre += L([f"s_mov_b32 s{sRet}, {f2u(SCALE):#x}"]) + k_epilogue(2, sRet) + k_epilogue(3, sRet)
    pre += L([f"s_lshl_b32 s{sRet}, s{sH}, 19", f"s_lshl_b32 s{sRet+1}, s{sI}, 16", f"s_add_u32 s{sRet}, s{sRet}, s{sRet+1}",
              f"s_lshl_b32 s{sRet+1}, s{sW}, 14", f"s_add_u32 s{sRet}, s{sRet}, s{sRet+1}", f"s_add_u32 s{sRet}, s{sRet}, {WS_KF}"])
    kst = []
    for mb in range(4):
        for js in range(4):
            kst.append(([I(f"s_add_u32 s{sRet}, s{sRet}, 4096")] if (mb and js == 0) else []) +
                       [T(f"buffer_store_dwordx4 {vr(KACC(2*js, mb))}, v{vL16}, {sr(S_WS)}, s{sRet} offen offset:{js*1024}{STF}", 'kst')])
    pre += [Wait(vm='bias')]
    for fb in range(4):
        for hw in range(2):
            pre += L([f"v_lshlrev_b32 v{BI+4*fb+2*hw}, 16, v{BI+16+2*fb+hw}", f"v_and_b32 v{BI+4*fb+2*hw+1}, 0xffff0000, v{BI+16+2*fb+hw}"])
    pre += stamp(3)
    xfr = lambda mbx, ks: ar((mbx*16 + ks)*4)
    def tra(o, cb): return ((vT, vTh, vTt)[o >> 16] + cb, o & 0xffff)
    qacc = lambda db, mbx: (QE if db % 2 == 0 else QO) + ((db//2)*4 + mbx)*4
    groups = []
    for p in range(8):
        st = p//2
        for cb in range(4):
            fr = [tra(pslot(p, j//2) + (j % 2)*4096, cb) for j in range(4)]
            chains = []
            for mbx in range(4):
                if p % 2 == 0: D = HA + (cb*4 + mbx)*4; C0 = vr(BI + 4*cb)
                else: D = qacc(cb, mbx); C0 = '0'
                chains.append([(lambda f, D=D, mbx=mbx, ks=st*4+j, C0=C0: f"{MF} {vr(D)}, {vr(f)}, {xfr(mbx, ks)}, {C0 if ks == 0 else vr(D)}") for j in range(4)])
            gr = dict(frags=fr, chains=chains)
            if cb == 0:
                gr['sync'] = [Wait(vm=('W', p)), I("s_barrier")]; gr['pair'] = p
                if p % 2 == 0: gr['xwait'] = st
            groups.append(gr)
    for cb in range(4):
        for kq in range(4):
            fr = [tra(hslot[(kq*4+j)//2]*8192 + (j % 2)*4096, cb) for j in range(4)]
            chains = []
            for mbx in range(4):
                D = qacc(4+cb, mbx)
                chains.append([(lambda f, D=D, mbx=mbx, ks=kq*4+j: f"{MF} {vr(D)}, {vr(f)}, {xfr(mbx, ks)}, {'0' if ks == 0 else vr(D)}") for j in range(4)])
            gr = dict(frags=fr, chains=chains)
            if cb == 0 and kq == 0: gr['sync'] = [Wait(vm='WH'), I("s_barrier")]; gr['pair'] = 8
            groups.append(gr)
    G = Gaps(768)
    starts, gend = gemm_groups(G, 0, groups, WF, pre)
    assert gend == 768
    for n, gr in enumerate(groups):
        if 'xwait' in gr: G.before(starts[n], Wait(vm=('X', gr['xwait'])))
    bar = {gr['pair']: gr['syncgap'] for gr in groups if 'pair' in gr}
    for k, grp in enumerate(kst):
        for x in grp: G.nv[6 + 27*k].append(x)
    G.pre[bar[8]].insert(0, Wait(vm='kst'))
    sig = L([f"s_lshl_b32 s{sGd}, s{sH}, 7", f"s_add_u32 s{sGd}, s{sGd}, {FL_KV}", f"s_lshl_b32 s{sVk}, s{sI}, 2", f"s_add_u32 s{sVk}, s{sVk}, s{sGd}",
             f"v_mov_b32 v{vKr}, 1", f"v_mov_b32 v{vVr}, 0"])
    for j, x in enumerate(sig): G.nv[bar[8] - 12 + j].append(x)
    sig = one_lane([T(f"buffer_store_dword v{vKr}, v{vVr}, {sr(S_WS)}, s{sVk} offen sc1", 'NOCOUNT')], sW, "K2_SIG", sT)
    sig += L([f"v_and_b32 v{vVr}, 7, v{vL}", f"v_lshlrev_b32 v{vVr}, 2, v{vVr}"])
    for x in sig: G.nv[bar[8]].append(x)
    pl = f"buffer_load_dword v{vKr}, v{vVr}, {sr(S_WS)}, s{sGd} offen sc1"
    GP = int(os.environ.get("GP", "560"))
    G.put(GP, T(pl, 'kvf'))
    for x in [Wait(vm='kvf')] + L([f"v_cmp_ne_u32 vcc, 1, v{vKr}", "s_cbranch_vccnz K2_KVSPIN_E", "K2_KVOK:"]): G.before(GP + 40, x)
    kvstub = L(["K2_KVSPIN_E:"]) + spin("K2_KVSPIN", pl, vKr, 1, sCnt) + L(["s_branch K2_KVOK"])
    def dmaKV(which, t):
        sd, base = (S_K, 0) if which == 'K' else (S_V, 65536)
        return [I(f"s_lshl_b32 s{sT3}, s{sW}, 12"), I(f"s_add_u32 m0, s{sT3}, {base + t*16384}"), I(f"s_mov_b32 s{sT3}, {t*16384}")] + \
               [T(f"buffer_load_dwordx4 v{vDM}, {sr(sd)}, s{sT3} offen offset:{j*1024}{LDF} lds", ('KV', which, t)) for j in range(4)]
    trail = lambda l: l + [I("s_nop 0")] if False else l
    stream = [(0, own(2) + rest(1) + dmaP(2) + dmaP(3) + own(3) + rest(2) + dmaP(4) + dmaP(5) + rest(3)[:-3]),
              (bar[2], dmaP(6)), (bar[3], dmaP(7) + dmaH(range(8))),
              ]
    end = place_stream(G, stream, 4, start=4)
    print("K2 prologue dma stream (part 1) ends at gap", end)
    gb = 512 + 40
    G.before(gb, I("s_barrier"))
    end = place_stream(G, [(GP + 40, dmaKV('K', 0) + dmaKV('V', 0) + dmaKV('K', 1) + dmaKV('K', 2) + dmaKV('V', 1) + dmaKV('V', 2))], 6, start=GP + 40)
    print("K2 prologue dma stream ends at gap", end)
    for j, x in enumerate(ctxoff + actoff): G.put(300 + (j//2), x)
    ins = []
    for js in range(2):
        for mbx in range(4):
            E, Od = qf(mbx, js), QO + (js*4 + mbx)*4
            ins += L([f"v_cvt_pk_bf16_f32 v{E}, v{E}, v{E+1}", f"v_cvt_pk_bf16_f32 v{E+1}, v{E+2}, v{E+3}",
                      f"v_cvt_pk_bf16_f32 v{E+2}, v{Od}, v{Od+1}", f"v_cvt_pk_bf16_f32 v{E+3}, v{Od+2}, v{Od+3}"])
    LOG2E = f2u(math.log2(math.e))
    mish = []
    for fbp in range(2):
        for mbx in range(4):
            D0, D1 = HA + ((2*fbp)*4 + mbx)*4, HA + ((2*fbp+1)*4 + mbx)*4
            regs = [D0+r for r in range(4)] + [D1+r for r in range(4)]
            for a, b in zip(regs[0::2], regs[1::2]):
                mish += L([f"v_mul_f32 v{tA}, {LOG2E:#x}, v{a}", f"v_mul_f32 v{tB}, {LOG2E:#x}, v{b}",
                           f"v_exp_f32 v{tA}, v{tA}", f"v_exp_f32 v{tB}, v{tB}",
                           f"v_add_f32 v0, 2.0, v{tA}", f"v_add_f32 v1, 2.0, v{tB}",
                           f"v_fma_f32 v{tA}, v{tA}, v0, 2.0", f"v_fma_f32 v{tB}, v{tB}, v1, 2.0",
                           f"v_rcp_f32 v{tA}, v{tA}", f"v_rcp_f32 v{tB}, v{tB}",
                           f"v_mul_f32 v{tA}, v{tA}, v{a}", f"v_mul_f32 v{tB}, v{tB}, v{b}",
                           f"v_fma_f32 v{a}, v{tA}, -2.0, v{a}", f"v_fma_f32 v{b}, v{tB}, -2.0, v{b}"])
            mish += L([f"v_cvt_pk_bf16_f32 v{D0}, v{D0}, v{D0+1}", f"v_cvt_pk_bf16_f32 v{D0+1}, v{D0+2}, v{D0+3}",
                       f"v_cvt_pk_bf16_f32 v{D0+2}, v{D1}, v{D1+1}", f"v_cvt_pk_bf16_f32 v{D0+3}, v{D1+2}, v{D1+3}",
                       f"buffer_store_dwordx4 {vr(D0)}, v{vL16}, {sr(S_WS)}, s{sAct+2*mbx+fbp} offen{STF2}"])
    spread(G, mish, 456, 740)
    spread(G, ins, 520, 760)
    post = []
    for js in range(2, 4):
        for mbx in (2, 3, 0, 1):
            E, Od = qf(mbx, js), QO + (js*4 + mbx)*4
            post += L([f"v_cvt_pk_bf16_f32 v{E}, v{E}, v{E+1}", f"v_cvt_pk_bf16_f32 v{E+1}, v{E+2}, v{E+3}",
                       f"v_cvt_pk_bf16_f32 v{E+2}, v{Od}, v{Od+1}", f"v_cvt_pk_bf16_f32 v{E+3}, v{Od+2}, v{Od+3}"])
    XB = 131072
    post += [Wait(vm=('KV', 'K', 0)), I("s_barrier")]
    post += L([f"v_mov_b32 v{vKr}, v{vL16}", f"v_lshlrev_b32 v{tA}, 1, v{vDM}", f"v_sub_u32 v{tA}, v{tA}, v{vL16}", f"v_add_u32 v{tA}, {XB}, v{tA}",
               f"v_xor_b32 v{tB}, 0x2000, v{tA}"])
    kread = lambda f: T(f"ds_read_b128 {ar(KF_+4*f)}, v{vKr} offset:{f*1024}", ('kf', f))
    post += [kread(f) for f in range(16)]
    post += [T(f"ds_write_b128 v{tA}, {vr(Qreg['b'](nb, js))} offset:{(js*2+nb)*1024}", 'qw') for js in range(4) for nb in range(2)]
    ONE, ZR, T4 = 8, 20, 12
    sMk = 62
    zero_o = lambda s: [I(f"v_mfma_f32_32x32x16_bf16 {ar(O[s]+16*k, 16)}, {vr(ZR)}, {vr(ZR)}, 0") for k in range(4)]
    post += L([f"v_mov_b32 v{ZR+k}, 0" for k in range(4)] + [f"v_mov_b32 v{ONE+k}, 0x3f803f80" for k in range(4)])
    post += L(["s_load_dwordx2 s[8:9], s[0:1], 40", "s_load_dwordx2 s[12:13], s[0:1], 72"])
    post += L([f"s_and_b32 s26, s2, 3", f"s_lshr_b32 s27, s2, 3", f"s_lshl_b32 s27, s27, 2", f"s_add_u32 s27, s27, s{sW}",
               f"s_mul_i32 s24, s26, 352", f"s_mul_i32 s25, s27, 3", "s_add_u32 s24, s24, s25", "s_lshl_b32 s24, s24, 10",
               f"s_lshl_b32 s26, s26, 20", f"s_lshl_b32 s27, s27, 13", f"s_add_u32 s26, s26, s27",
               "s_add_u32 s10, s26, 8192", "s_mov_b32 s11, 0x00020000", "s_add_u32 s14, s24, 3072", f"s_min_u32 s14, s14, {1376*1024}", "s_mov_b32 s15, 0x00020000"])
    post += zero_o('a') + zero_o('b')
    post += L([f"v_mov_b32 v{LS[s]+nb}, 0" for s in 'ab' for nb in range(2)])
    post += L([f"v_cmp_le_i32 s[{sMk+2*r}:{sMk+2*r+1}], {r}, v{vLB}" for r in range(4)])
    post += L([f"s_lshl_b32 s{sT}, s{sW}, 12", f"s_add_u32 s{sKd}, s{sT}, {3*16384}", f"s_add_u32 s{sVd}, s{sT}, {3*16384}", f"v_add_u32 v{vX}, 0x10000, v{vL16}",
               f"s_mov_b32 s{sGd}, {3*16384}", f"s_mov_b32 s{sKr}, 16384", f"s_mov_b32 s{sVr}, 0",
               f"s_lshl_b32 s{sCnt}, s{sI}, 1", f"s_sub_u32 s{sCnt}, s{sCnt}, 1"])
    sreg = lambda s, mb, nb: S[s] + (mb*2 + nb)*4
    def prepass_mfma(s, q):
        return [I(f"{MF} {vr(sreg(s,0,nb))}, {ar(KF_+4*js)}, {vr(Qreg[q](nb, js))}, {'0' if js == 0 else vr(sreg(s,0,nb))}") for nb in range(2) for js in range(4)]
    def xred(op, v, t):
        return L([f"v_mov_b32 v{t}, v{v}", f"v_permlane16_swap_b32 v{t}, v{v}", f"{op} v{v}, v{v}, v{t}",
                  f"v_mov_b32 v{t}, v{v}", f"v_permlane32_swap_b32 v{t}, v{v}", f"{op} v{v}, v{v}, v{t}"])
    def zipl(a, b):
        def grp(l):
            g = []
            for x in l:
                if x.kind == 'label' and g: g[-1].append(x)
                else: g.append([x])
            return g
        a, b = grp(a), grp(b)
        o = []
        for k in range(max(len(a), len(b))):
            for y in a[k:k+1] + b[k:k+1]: o += y
        return o
    def prepass_init(s, mask):
        o = []
        if mask:
            o += L([f"v_add_u32 v{tA}, s{sC[s]}, v{vLB}"])
            prs = [(nb, r) for nb in range(2) for r in range(4)]
            pr = lambda k: "vcc" if k % 2 == 0 else f"s[{sRet}:{sRet+1}]"
            for k in range(0, 8, 2):
                o += L([f"v_cmp_le_i32 {pr(j)}, {prs[j][1] - 16*prs[j][0]}, v{tA}" for j in (k, k+1)])
                o += L([f"v_cndmask_b32 v{sreg(s,0,prs[j][0])+prs[j][1]}, v{vNI}, v{sreg(s,0,prs[j][0])+prs[j][1]}, {pr(j)}" for j in (k, k+1)])
        ch = []
        for nb in range(2):
            b = sreg(s, 0, nb); m = MS[s] + nb
            ch.append(L([f"v_max3_f32 v{m}, v{b}, v{b+1}, v{b+2}", f"v_max_f32 v{m}, v{m}, v{b+3}"]) + xred("v_max_f32", m, (tA, tB)[nb]) +
                      L([f"v_max_f32 v{m}, {f2u(-1e30):#x}, v{m}"] + [f"v_sub_f32 v{NM[s]+4*nb+r}, 0, v{m}" for r in range(4)]))
        return o + zipl(ch[0], ch[1])
    post += [Wait(lg=('kf', 3))] + prepass_mfma('b', 'b') + prepass_mfma('a', 'a') + prepass_init('b', False) + prepass_init('a', True)

    NG, HG = 136, 68
    def body(name, qa, ntile, vmw, hooks, kread_on=True):
        B = Gaps(NG); used = [0]*NG; cls = {}
        cost = lambda x: 0 if x.kind == 'label' else (2 if x.kind == 'trans' else 1)
        def put(g, x, c, where=None):
            x = I(x) if isinstance(x, str) else x
            g %= NG
            if where == 'pre': B.before(g, x); used[(g-1) % NG] += cost(x)
            elif where == 'nv': B.nv[g].append(x); used[g] += cost(x)
            else: B.put(g, x); used[g] += cost(x)
            cls[id(x)] = c; return x
        def free(g, x, c, lim=None):
            while used[g % NG] >= 2: g += 1
            assert lim is None or g <= lim, (name, x, g, lim)
            put(g, x, c, 'nv'); return g
        for s, g0, q in (('a', 0, qa), ('b', HG, 'b')):
            o = 'b' if s == 'a' else 'a'
            seq = []
            for mb in range(4):
                for nb in range(2):
                    D = vr(sreg(s, mb, nb))
                    seq += [(f"{MF} {D}, {ar(KF_+4*(mb*4+js))}, {vr(Qreg[q](nb, js))}, {vr(NM[s]+4*nb) if js == 0 else D}", 'qk'+s) for js in range(4)]
            ones = [(f"{MF} {vr(T4+4*nb)}, {vr(ONE)}, {vr(P[o]+(nb*2+ks)*4)}, {'0' if ks == 0 else vr(T4+4*nb)}", 'sm'+o) for nb in range(2) for ks in range(2)]
            seq[24:24] = ones
            for db in range(8):
                for nb in range(2):
                    D = ar(O[o] + (db*2+nb)*4)
                    seq += [(f"{MF} {D}, {ar(VF_+4*(db*2+ks))}, {vr(P[o]+(nb*2+ks)*4)}, {D}", 'pv'+o) for ks in range(2)]
            for k, (t, c) in enumerate(seq):
                B.mf[g0+k] = I(t); cls[id(B.mf[g0+k])] = c
            E0 = g0 + 26
            for e in range(32):
                mb, nb, r = e//8, (e//4) % 2, e % 4
                t = ET + (e % 4)
                put(E0 + 2*e, f"v_exp_f32 v{t}, v{sreg(s, mb, nb) + r}", 'sm'+s)
                if r % 2 == 1:
                    put(E0 + 2*e + 1, f"v_cvt_pk_bf16_f32 v{P[s] + (nb*2 + mb//2)*4 + (mb % 2)*2 + r//2}, v{t-1}, v{t}", 'sm'+s)
            if s not in hooks and s == 'a' and ntile == 1:
                for gh in (E0 - 1, E0 + 31): used[gh % NG] += 2
            if s in hooks:
                for hk, gh, lim in ((0, E0 - 1, 0), (1, E0 + 31, 32)):
                    lab = f"{name}_mk{s}{hk}"
                    put(gh, f"s_cmp_le_i32 s{sC[s]}, {lim}", 'sm'+s, 'nv'); put(gh, f"s_cbranch_scc1 {lab}", 'sm'+s, 'nv'); put(gh, f"{lab}_r:", 'sm'+s, 'nv')
            gc = g0 + HG + 31
            lab = f"{name}_rd{s}"
            put(gc, f"v_max_f32 v1, v{T4}, v{T4+4}", 'sm'+s); put(gc, f"v_cmp_lt_f32 vcc, s{sThr}, v1", 'sm'+s)
            put(gc+2, f"s_cbranch_vccnz {lab}", 'sm'+s, 'nv'); put(gc+2, f"{lab}_r:", 'sm'+s, 'nv')
            put(gc+4, f"v_add_f32 v{LS[s]}, v{LS[s]}, v{T4}", 'sm'+s); put(gc+4, f"v_add_f32 v{LS[s]+1}, v{LS[s]+1}, v{T4+4}", 'sm'+s)
        put(0, "s_waitcnt lgkmcnt(0)", 'mem', 'pre')
        put(4, f"s_waitcnt vmcnt({vmw})", 'mem', 'pre'); put(4, "s_barrier", 'mem', 'pre')
        free(40, f"v_add_u32 v{vVr}, s{sVr}, v{vX}", 'mem')
        g = 43
        for f in range(16):
            g = free(max(g, 40 + 2*f), f"ds_read_b128 {ar(VF_+4*f)}, v{vVr} offset:{f*1024}", 'mem', 92) + 1
        vlast = g
        nk_before = 0
        if kread_on:
            g = free(max(g, 80), f"v_add_u32 v{vKr}, s{sKr}, v{vL16}", 'mem') + 1
            for f in range(16):
                lastuse = HG + 8*(f//4) + 4 + f % 4 + (4 if 8*(f//4) + 4 + f % 4 >= 24 else 0)
                g = free(max(g, lastuse + 1), f"ds_read_b128 {ar(KF_+4*f)}, v{vKr} offset:{f*1024}", 'mem', 130)
                if g < 104: nk_before += 1
                g += 1
        put(104, f"s_waitcnt lgkmcnt({nk_before})", 'mem', 'pre')
        st = []
        wpf = [f"buffer_load_dword v5, v{vL16}, s[8:11], s26 offen", f"buffer_load_dword v6, v{vL16}, s[12:15], s24 offen", "s_add_u32 s26, s26, 1024", "s_add_u32 s24, s24, 1024"]
        if ntile == 1:
            st += [f"s_mov_b32 m0, s{sKd}"] + [f"buffer_load_dwordx4 v{vDM}, {sr(S_K)}, s{sGd} offen offset:{j*1024}{LDF} lds" for j in range(4)]
            st += wpf + [f"s_add_u32 s{sKd}, s{sKd}, 16384", f"s_and_b32 s{sKd}, s{sKd}, 0xffff", f"s_add_u32 m0, s{sVd}, 0x10000"]
            st += [f"buffer_load_dwordx4 v{vDM}, {sr(S_V)}, s{sGd} offen offset:{j*1024}{LDF} lds" for j in range(4)]
        elif ntile == 2:
            st += [f"s_add_u32 s{sT3}, s{sGd}, 16384", f"s_mov_b32 m0, s{sKd}"] + [f"buffer_load_dwordx4 v{vDM}, {sr(S_K)}, s{sGd} offen offset:{j*1024}{LDF} lds" for j in range(4)]
            st += [f"s_add_u32 m0, s{sKd}, 16384"] + [f"buffer_load_dwordx4 v{vDM}, {sr(S_K)}, s{sT3} offen offset:{j*1024}{LDF} lds" for j in range(4)]
            st += wpf + [f"s_xor_b32 s{sKd}, s{sKd}, 0x8000", f"s_add_u32 m0, s{sVd}, 0x10000"] + [f"buffer_load_dwordx4 v{vDM}, {sr(S_V)}, s{sGd} offen offset:{j*1024}{LDF} lds" for j in range(4)]
            st += [f"s_add_u32 m0, s{sVd}, 0x14000"] + [f"buffer_load_dwordx4 v{vDM}, {sr(S_V)}, s{sT3} offen offset:{j*1024}{LDF} lds" for j in range(4)]
        if ntile:
            st += [f"s_add_u32 s{sVd}, s{sVd}, {ntile*16384}", f"s_sub_u32 s{sT}, s{sVd}, 98304", f"s_min_u32 s{sVd}, s{sVd}, s{sT}", f"s_add_u32 s{sGd}, s{sGd}, {ntile*16384}"]
            g = 5; nd = 0; sp = 120/(4*2*ntile)
            for t in st:
                x = I(t)
                if x.kind == 'vmem' and x.op == 'buffer_load_dword': g = free(g + 1, x, 'mem', NG-1)
                elif x.kind == 'vmem':
                    g = free(max(g + 1, int(6 + nd*sp)), x, 'mem', NG-1); nd += 1
                else: g = free(g, x, 'mem', NG-1)
            step = ntile*16384
            g = 100
            ku = [f"s_add_u32 s{sKr}, s{sKr}, 16384", f"s_and_b32 s{sKr}, s{sKr}, 0xffff"] if ntile == 1 else [f"s_xor_b32 s{sKr}, s{sKr}, 0x8000"]
            for t in ku + [f"s_add_u32 s{sVr}, s{sVr}, {step}", f"s_sub_u32 s{sT2}, s{sVr}, 98304", f"s_min_u32 s{sVr}, s{sVr}, s{sT2}"]:
                g = free(g, t, 'mem', NG-1)
        if name == "Sf":
            ea = K3['early']
            first = ea[:9] + ea[-6:]; rest_ = ea[9:-6]
            g = 5
            for x in first: g = free(g, x, 'mem', NG-1)
            g = max(g, 41); K3['spill'] = []
            for x in rest_:
                while g < NG and used[g] >= 2: g += 1
                if g < NG: put(g, x, 'mem', 'nv')
                else: K3['spill'].append(x)
        over = [(g, u) for g, u in enumerate(used) if u > 2]
        print(f"  body {name}: slots used {sum(used)}/{2*NG}, overfull gaps {over}")
        return B, cls
    def mkstubs(name):
        o = []
        for s in 'ab':
            for hk in range(2):
                lab = f"{name}_mk{s}{hk}"; lo, hi = 2*hk, 2*hk+1
                o += L([f"{lab}:", f"s_cmp_lg_u32 s{sC[s]}, {32*hk}", f"s_cbranch_scc1 {lab}_all"])
                o += L([f"v_cndmask_b32 v{sreg(s,lo,0)+r}, v{vNI}, v{sreg(s,lo,0)+r}, s[{sMk+2*r}:{sMk+2*r+1}]" for r in range(4)])
                o += L([f"v_mov_b32 v{sreg(s,hi,0)+r}, v{vNI}" for r in range(4)])
                o += L([f"v_cndmask_b32 v{sreg(s,hi,1)+r}, v{vNI}, v{sreg(s,hi,1)+r}, s[{sMk+2*r}:{sMk+2*r+1}]" for r in range(4)])
                o += L([f"s_branch {lab}_r", f"{lab}_all:"] + [f"v_mov_b32 v{sreg(s,lo,0)+k}, v{vNI}" for k in range(16)] + [f"s_branch {lab}_r"])
            lab = f"{name}_rd{s}"
            o += L([f"{lab}:", f"s_call_b64 s[{sRet}:{sRet+1}], K2_REDO_{s}", f"s_branch {lab}_r"])
        return o
    def redo(s):
        o = L([f"K2_REDO_{s}:", "s_nop 7"])
        for nb in range(2):
            vals = [sreg(s, mb, nb) + r for mb in range(4) for r in range(4)]
            ts = T4 + 4*nb
            o += L([f"v_max3_f32 v{tA}, v{vals[0]}, v{vals[1]}, v{vals[2]}"] + [f"v_max3_f32 v{tA}, v{tA}, v{vals[k]}, v{vals[k+1]}" for k in range(3, 15, 2)]
                   + [f"v_max_f32 v{tA}, v{tA}, v{vals[15]}"]) + xred("v_max_f32", tA, tB)
            o += L([f"v_max_f32 v{tA}, 0, v{tA}", f"v_add_f32 v{MS[s]+nb}, v{MS[s]+nb}, v{tA}", f"v_sub_f32 v{tB}, 0, v{tA}", f"v_exp_f32 v{tB}, v{tB}"])
            o += L([f"v_sub_f32 v{NM[s]+4*nb+r}, 0, v{MS[s]+nb}" for r in range(4)])
            o += L([f"v_mul_f32 v{LS[s]+nb}, v{LS[s]+nb}, v{tB}"])
            o += L([f"v_sub_f32 v{v}, v{v}, v{tA}" for v in vals])
            for db in range(8):
                for r in range(4):
                    a = O[s] + (db*2+nb)*4 + r
                    o += L([f"v_accvgpr_read_b32 v0, a{a}", f"v_mul_f32 v0, v0, v{tB}", f"v_accvgpr_write_b32 a{a}, v0"])
            o += L([f"v_mov_b32 v{ts}, 0"])
            for mb in range(4):
                for r in (0, 2):
                    b = sreg(s, mb, nb) + r
                    pd = P[s] + (nb*2 + mb//2)*4 + (mb % 2)*2 + r//2
                    o += L([f"v_exp_f32 v{tA}, v{b}", f"v_exp_f32 v{tB}, v{b+1}", f"v_add_f32 v{ts}, v{ts}, v{tA}",
                            f"v_add_f32 v{ts}, v{ts}, v{tB}", f"v_cvt_pk_bf16_f32 v{pd}, v{tA}, v{tB}"])
            o += xred("v_add_f32", ts, tB)
        o += L(["s_nop 1", f"s_setpc_b64 s[{sRet}:{sRet+1}]"])
        return o
    def lin(Bc, lo, hi, keep=None, ren=None):
        B, cls = Bc
        out = []
        for x in B.linear(lo, hi):
            if keep is None or cls.get(id(x), 'mem') in keep:
                out.append(I(x.text.replace(*ren)) if ren else x)
        return out
    D = body("D", 'a', 1, 6, ''); Dm = body("Dm", 'a', 1, 6, 'a'); S1 = body("S1", 'a', 2, 6, 'a')
    SS = body("S", 'x', 2, 10, ''); Sf = body("Sf", 'x', 0, 0, 'ab', kread_on=False)
    pream = lin(Dm, 0, HG, ('qka', 'sma', 'mem'), ("Dm_", "PR_"))
    k = [n for n, x in enumerate(pream) if x.op == 's_barrier'][0]
    pream[k+1:k+1] = [I(f"ds_read_b128 {vr(Qreg['x'](nb, js))}, v{tB} offset:{(js*2+nb)*1024}") for js in range(4) for nb in range(2)]
    pream[k+1:k+1] = L([f"v_lshlrev_b32 v{tB}, 1, v{vDM}", f"v_sub_u32 v{tB}, v{tB}, v{vL16}", f"v_add_u32 v{tB}, {XB}, v{tB}", f"v_xor_b32 v{tB}, 0x2000, v{tB}"])
    for n, x in enumerate(pream):
        if x.text.startswith("s_waitcnt vmcnt"): pream[n] = Wait(vm=[('KV', 'K', 1), ('KV', 'V', 0)], lg=0)
    head = pre + stamp(4) + G.linear(0, 512) + stamp(5) + G.linear(512, 768) + stamp(6) + post + stamp(7) + pream
    head += L([f"s_lshl_b32 s{sC['a']}, s{sW}, 5", f"s_cmp_eq_u32 s{sI}, 0", "s_cbranch_scc1 K2_DM_MID", "s_branch K2_D_MID"])
    head = resolve_waits(head)
    head, n1 = fix_hazards(head)
    dl = L(["K2_D:"]) + lin(D, 0, HG) + L(["K2_D_MID:"]) + lin(D, HG, NG) + L([f"s_sub_u32 s{sCnt}, s{sCnt}, 1", "s_cbranch_scc0 K2_D"])
    dl, n2 = fix_hazards(dl, pre=dl[-20:])
    assert fix_hazards(lin(D, HG, HG+12), pre=head[-20:])[1] == 0 and fix_hazards(lin(Dm, HG, HG+12), pre=head[-20:])[1] == 0
    mid = lin(Dm, 0, HG) + L(["K2_DM_MID:"]) + lin(Dm, HG, NG)
    mid += L([f"s_lshl_b32 s{sT}, s{sPar}, 14", f"s_add_u32 s{sKr}, s{sKr}, s{sT}", f"s_and_b32 s{sKr}, s{sKr}, 0xffff", f"s_sub_u32 s{sC['a']}, s{sC['a']}, 64"])
    mid += (stamp(8) if not DIAG else []) + lin(S1, 0, NG) + (stamp(9) if not DIAG else [])
    def finalize(s, so, zero, wts=None):
        o = []
        for j in range(4):
            for nb in range(2):
                t = 132 if (j*2+nb) % 2 == 0 else 128
                t8 = 136 + ((j*2+nb) % 2)*8
                o += L([f"v_accvgpr_read_b32 v{t8+hh*4+r}, a{O[s] + ((2*j+hh)*2+nb)*4 + r}" for hh in range(2) for r in range(4)])
                sel = "op_sel_hi:[1,0]" if nb == 0 else "op_sel:[0,1] op_sel_hi:[1,1]"
                for k in range(0, 8, 2):
                    o += L([f"v_pk_mul_f32 {vr(t8+k,2)}, {vr(t8+k,2)}, {vr(TS[s],2)} {sel}"])
                    if wts is not None:
                        x = wts + ((2*j + k//4)*2+nb)*4 + k % 4
                        sel3 = "op_sel_hi:[1,0,1]" if nb == 0 else "op_sel:[0,1,0] op_sel_hi:[1,1,1]"
                        o += L([f"v_pk_fma_f32 {vr(t8+k,2)}, {vr(x,2)}, {vr(TS['a'],2)}, {vr(t8+k,2)} {sel3}"])
                o += L([f"v_cvt_pk_bf16_f32 v{t+k}, v{t8+2*k}, v{t8+2*k+1}" for k in range(4)])
                o += L([f"buffer_store_dwordx4 {vr(t)}, v{vL16}, {sr(S_WS)}, s{so+nb} offen offset:{j*1024}{STF2}"])
            if zero: o += [zero_o(s)[j]]
        return o
    tr = L([f"s_lshl_b32 s{sT}, s{sPar}, 14", f"s_add_u32 s{sVr}, s{sVr}, s{sT}", f"s_add_u32 s{sVr}, s{sVr}, {98304-16384}",
            f"s_sub_u32 s{sT2}, s{sVr}, 98304", f"s_min_u32 s{sVr}, s{sVr}, s{sT2}",
            f"s_lshl_b32 s{sT}, s{sI}, 7", f"s_sub_u32 s{sC['a']}, s{sC['b']}, s{sT}", f"s_lshl_b32 s{sT}, s{sPar}, 7", f"s_sub_u32 s{sC['a']}, s{sC['a']}, s{sT}",
            f"s_sub_u32 s{sC['a']}, s{sC['a']}, 96",
            f"s_lshl_b32 s{sCnt}, s{sI}, 1", f"s_sub_u32 s{sCnt}, 13, s{sCnt}", "s_waitcnt lgkmcnt(0)"])
    tr += L([f"v_rcp_f32 v{TS['a']+nb}, v{LS['a']+nb}" for nb in range(2)] + [f"v_mov_b32 v{LS['a']+nb}, 0" for nb in range(2)])
    tr += L([f"s_lshl_b32 s{sT}, s{sH}, 2", f"s_add_u32 s{sT}, s{sT}, {FL_AC}", f"s_lshl_b32 s{sT2}, s{sI}, 7", f"s_sub_u32 s{sT3}, {15*128}, s{sT2}",
             f"v_mov_b32 v{tA}, s{sT2}", f"v_writelane_b32 v{tA}, s{sT3}, 1", f"v_mov_b32 v{tB}, 1",
             f"s_cmp_lg_u32 s{sW}, 0", "s_cbranch_scc1 K2_SIGA", "s_mov_b64 exec, 3", f"buffer_store_dword v{tB}, v{tA}, {sr(S_WS)}, s{sT} offen sc1", "s_mov_b64 exec, -1", "K2_SIGA:"])
    fa = finalize('a', sXN, True)
    tr += fa + prepass_mfma('a', 'x') + prepass_init('a', True)
    tr += L([f"s_lshl_b32 s{sC['b']}, s{sW}, 5", f"s_lshl_b32 s{sT}, s{sPar}, 6", f"s_sub_u32 s{sC['b']}, s{sC['b']}, s{sT}",
             f"s_add_u32 s{sC['a']}, s{sC['b']}, 32", f"s_sub_u32 s{sC['a']}, s{sC['a']}, s{sT}"])
    mid += tr + (stamp(10) if not DIAG else []) + L([f"s_cmp_eq_u32 s{sI}, 7", "s_cbranch_scc1 K2_SF"])
    mid, n3 = fix_hazards(mid, pre=dl[-20:])
    sl = L(["K2_S:"]) + lin(SS, 0, NG) + L([f"s_sub_u32 s{sCnt}, s{sCnt}, 1", "s_cbranch_scc0 K2_S"])
    sl, n4 = fix_hazards(sl, pre=sl[-20:])
    assert fix_hazards(sl[:24], pre=mid[-20:])[1] == 0
    tail = L(["K2_SF:"]) + code_prefetch("K3_BEGIN" if FUSED else "outproj_kernel", "K2_PC2", False, tA, tA, sRet, sT3, vtid=31) + lin(Sf, 0, NG)
    assert fix_hazards(tail[:24], pre=mid[-20:])[1] == 0
    tb = lin(SS, 0, HG, ('smb', 'pvb'), ("S_", "TL_"))
    kq = [n for n, x in enumerate(tb) if x.kind == 'mfma' and x.wr[0].startswith('a')][0]
    tail += L(["s_barrier",
               f"v_lshlrev_b32 v{tA}, 2, v{vDM}", f"v_mul_u32_u24 v{tB}, 3, v{vL16}", f"v_sub_u32 v{vKr}, v{tA}, v{tB}",
               f"v_xor_b32 v{vVr}, 0x4000, v{vKr}", f"v_add_u32 v{vDM}, 0x10000, v{vDM}",
               f"v_mov_b32 v{NM['a']}, v{MS['a']}", f"v_mov_b32 v{NM['a']+1}, v{MS['a']+1}", f"v_mov_b32 v{NM['a']+2}, v{LS['a']}", f"v_mov_b32 v{NM['a']+3}, v{LS['a']+1}",
               f"ds_write_b128 v{vDM}, {vr(NM['a'])}"])
    wr = L([f"ds_write_b128 v{vKr}, {ar(O['a']+4*f)} offset:{f*1024}" for f in range(16)])
    tail += zipl(zipl(tb[:kq], wr), K3['spill'] + K3['acheck'] + K3['loads'])
    XO = 64
    pv = tb[kq:]
    n0 = K3['need0']
    tail += zipl(pv[:8], zipl(n0[0:16:2], n0[1:16:2])[:0] + n0[:8]) + L(["s_waitcnt lgkmcnt(0)", "s_barrier", f"v_xor_b32 v{vDM}, 0x1000, v{vDM}", f"ds_read_b128 {vr(NM['a'])}, v{vDM}"])
    rd = L([f"ds_read_b128 {vr(XO+4*f)}, v{vVr} offset:{f*1024}" for f in range(16)])
    wt = L(["s_waitcnt lgkmcnt(15)"])
    ch = []
    for nb in range(2):
        mx, lx, mb_, lb, t = NM['a']+nb, NM['a']+2+nb, MS['b']+nb, LS['b']+nb, (tA, tB)[nb]
        ch.append(L([f"v_max_f32 v{t}, v{mx}, v{mb_}", f"v_sub_f32 v{mx}, v{mx}, v{t}", f"v_sub_f32 v{mb_}, v{mb_}, v{t}",
                     f"v_exp_f32 v{mx}, v{mx}", f"v_exp_f32 v{mb_}, v{mb_}", f"v_mul_f32 v{lb}, v{lb}, v{mb_}", f"v_fmac_f32 v{lb}, v{lx}, v{mx}",
                     f"v_rcp_f32 v{lb}, v{lb}", f"v_mul_f32 v{TS['b']+nb}, v{mb_}, v{lb}", f"v_mul_f32 v{TS['a']+nb}, v{mx}, v{lb}"]))
    fl = rd + wt + zipl(ch[0], ch[1]) + n0[8:]
    pvr = pv[8:]
    for k, x in enumerate(pvr): tail += [x] + fl[2*k:2*k+2]
    tail += fl[2*len(pvr):]
    fb = finalize('b', sXN+2, False, wts=XO)
    for x in fb:
        if x.kind == 'vmem': x.tag = 'cst'
    tail += L(["s_waitcnt lgkmcnt(0)"]) + fb
    tail += prof_end(1, S_WS, sW, 4, vtmp=32, drain=not FUSED)
    tail, n5 = fix_hazards(resolve_waits(tail + K3['main']), pre=sl[-20:])
    alltext = "\n".join(x.text for x in head + dl + mid + sl + tail)
    stubs = []
    for nm in ("PR", "D", "Dm", "S1", "S", "Sf", "TL"):
        cur = []
        for x in mkstubs(nm) + L(["SENTINEL:"]):
            if x.kind == 'label' and not x.text.endswith("_all:"):
                if cur and ("\n" + cur[0].text[:-1] + "_r:") in alltext: stubs += fix_hazards(cur)[0]
                cur = []
            cur.append(x)
    stubs += fix_hazards(redo('a'))[0] + fix_hazards(redo('b'))[0]
    stubs += kvstub + K3['stubs']
    seq = head + dl + mid + sl + tail + stubs
    print("total instrs", len(seq), "nops head/D/mid/S/tail", n1, n2, n3, n4, n5)
    return seq
```

```python
from gen import *

def k3_parts():
    S_WS, S_WO, S_W2, S_X, S_OUT = 4, 16, 20, 8, 12
    sW, sTm, sTn, sKq = 28, 36, 37, 38
    sT, sT2, sT3, sA, sB, sM = 39, 40, 41, 42, 43, 44
    sXo, sEx, sFl, sCx, sOw, sSr = 48, 49, 50, 51, 52, 52
    NS, NA = 43, 11
    SLOT = [80, 96, 112, 128, 144, 0, 16, 32, 48, 64]; NB = len(SLOT)
    slot = lambda s: SLOT[s % NB]*1024
    vL, vL16 = 2, 3
    vKA, vKW, vA1, vW0, vW1, vPo, vPd = 192, 193, 194, 195, 196, 197, 198
    a_, b_, c_, d_ = 199, 200, 201, 202
    vAr = [8, 208, 216]; vT = [12, 212, 220]
    tA, tB, vXo, vXv = 16, 17, 18, 20
    WF = 32; AF = 64; ACC = 96; RX = 160
    P = {}
    e = [f"s_and_b32 s{sKq}, s2, 3", f"s_bfe_u32 s{sT}, s2, 0x10002", f"s_lshl_b32 s{sT}, s{sT}, 3", f"s_bfe_u32 s{sT2}, s2, 0x30003",
         f"s_add_u32 s{sTm}, s{sT}, s{sT2}", f"s_lshr_b32 s{sTn}, s2, 6",
         f"s_lshl_b32 s{sT3}, s{sTn}, 1", f"s_add_u32 s{sT2}, s{sT2}, s{sT3}", f"s_and_b32 s{sT2}, s{sT2}, 7",
         f"v_and_b32 v{vPo}, 31, v{vL}", f"v_lshlrev_b32 v{vPo}, 2, v{vPo}", f"s_lshl_b32 s{sCx}, s{sTm}, 7", f"s_add_u32 s{sOw}, s{sCx}, {FL_AC}"]
    apoll = f"buffer_load_dword v{vPd}, v{vPo}, {sr(S_WS)}, s{sOw} offen sc1"
    e += [T(apoll, 'ap')]
    e += [f"v_add_u32 v{a_}, s{sT2}, v{vL}", f"v_subrev_u32 v{b_}, 11, v{a_}", f"v_min_u32 v{c_}, v{a_}, v{b_}",
          f"s_mul_i32 s{sT}, s{sKq}, 11", f"v_add_u32 v{c_}, s{sT}, v{c_}",
          f"v_and_b32 v{b_}, 7, v{b_}", f"v_subrev_u32 v{d_}, 11, v{vL}", f"v_and_b32 v{d_}, 24, v{d_}", f"v_add_u32 v{b_}, v{b_}, v{d_}",
          f"s_lshl_b32 s{sT}, s{sKq}, 5", f"v_add_u32 v{b_}, s{sT}, v{b_}",
          f"v_cmp_gt_u32 s[54:55], 11, v{vL}", f"v_min_u32 v{a_}, 42, v{c_}", f"v_add_u32 v{a_}, 0x80, v{a_}",
          f"v_cndmask_b32 v{vKW}, v{b_}, v{c_}, s[54:55]", f"v_cndmask_b32 v{vKA}, v{b_}, v{a_}, s[54:55]",
          f"v_lshlrev_b32 v{vKW}, 15, v{vKW}", f"v_lshlrev_b32 v{vKA}, 10, v{vKA}",
          f"s_lshl_b32 s{sT}, s{sTm}, 3", f"s_lshl_b32 s{sT3}, s{sW}, 1", f"s_add_u32 s{sT}, s{sT}, s{sT3}", f"s_mul_i32 s{sT}, s{sT}, {CA_RB}",
          f"s_add_u32 s{sT}, s{sT}, {WS_CA}", f"v_add_u32 v{vKA}, s{sT}, v{vKA}",
          f"v_add_u32 v{vA1}, {CA_RB-1024}, v{vL16}", f"s_lshl_b32 s{sM}, s{sW}, 12"]
    e += [f"v_bfe_u32 v{a_}, v{vL}, 4, 2", f"v_lshlrev_b32 v{a_}, 1, v{a_}", f"v_and_b32 v{b_}, 7, v{vL}", f"v_xor_b32 v{a_}, v{a_}, v{b_}",
          f"v_lshlrev_b32 v{a_}, 4, v{a_}", f"v_lshrrev_b32 v{b_}, 3, v{vL}", f"v_lshl_add_u32 v{vW1}, v{b_}, 10, v{a_}",
          f"s_lshl_b32 s{sT}, s{sTn}, 8", f"s_lshl_b32 s{sT3}, s{sW}, 13", f"s_add_u32 s{sT}, s{sT}, s{sT3}", f"v_add_u32 v{vW1}, s{sT}, v{vW1}",
          f"v_add_u32 v{vW0}, 1024, v{vW1}", f"v_add_u32 v{vW1}, 128, v{vW1}",
          f"s_sub_u32 s{S_WO}, s8, 3072\n    s_subb_u32 s{S_WO+1}, s9, 0", f"s_mov_b32 s{S_WO+2}, {0x400000+3072}", f"s_mov_b32 s{S_WO+3}, 0x00020000",
          f"s_sub_u32 s{S_W2}, s12, 3072\n    s_subb_u32 s{S_W2+1}, s13, 0", f"s_mov_b32 s{S_W2+2}, {1376*1024+3072}", f"s_mov_b32 s{S_W2+3}, 0x00020000"]
    P['early'] = L(e)
    P['acheck'] = [Wait(vm='ap')] + L([f"v_cmp_ne_u32 vcc, 1, v{vPd}", "s_cbranch_vccnz K3_ASPIN_E", "K3_AOK:"])
    stubs = L(["K3_ASPIN_E:"]) + spin("K3_ASPIN", apoll, vPd, 1, sA) + L(["s_branch K3_AOK"])
    def loads(s):
        sd = S_W2 if s < NA else S_WO
        return L([f"v_readlane_b32 s{sA}, v{vKA}, {s}", f"v_readlane_b32 s{sB}, v{vKW}, {s}", f"s_add_u32 m0, s{sM}, {slot(s)}"]) + \
          [T(f"buffer_load_dwordx4 v{vL16}, {sr(S_WS)}, s{sA} offen sc1 lds", ('L', s)),
           T(f"buffer_load_dwordx4 v{vA1}, {sr(S_WS)}, s{sA} offen offset:1024 sc1 lds", ('L', s)),
           T(f"buffer_load_dwordx4 v{vW0}, {sr(sd)}, s{sB} offen offset:2048 lds", ('L', s)),
           T(f"buffer_load_dwordx4 v{vW1}, {sr(sd)}, s{sB} offen offset:3072 lds", ('L', s))]
    NE = int(os.environ.get('NEARLY', '2'))
    P['loads'] = [x for s in range(NE) for x in loads(s)]
    l = ["s_load_dwordx2 s[56:57], s[0:1], 0", "s_load_dwordx2 s[62:63], s[0:1], 80",
         f"v_lshrrev_b32 v{tA}, 5, v{vL}", f"v_lshlrev_b32 v{tA}, 12, v{tA}", f"v_bfe_u32 v{tB}, v{vL}, 2, 3", f"v_lshl_add_u32 v{tA}, v{tB}, 7, v{tA}",
         f"v_and_b32 v{tB}, 3, v{vL}", f"v_lshl_add_u32 v{tA}, v{tB}, 3, v{tA}", f"v_bfe_u32 v{tB}, v{vL}, 3, 2", f"v_lshl_add_u32 v{tA}, v{tB}, 5, v{tA}",
         f"s_and_b32 s{sT}, s{sW}, 1", f"s_lshl_b32 s{sT}, s{sT}, 10", f"s_add_u32 s{sT}, s{sT}, 2048", f"v_add_u32 v{vT[0]}, s{sT}, v{tA}"] + \
        [f"v_xor_b32 v{vT[0]+c}, {c*32}, v{vT[0]}" for c in range(1, 4)]
    l += [f"s_lshl_b32 s{sT}, s{sKq}, 2", f"s_lshr_b32 s{sT}, 0x54105410, s{sT}", f"s_and_b32 s{sT3}, s{sW}, 2", f"s_lshl_b32 s{sT3}, s{sT3}, 12", f"v_add_u32 v{tA}, s{sT3}, v{vL16}"]
    for r in range(4):
        l += [f"s_bfe_u32 s{sT3}, s{sT}, {0x40000 + 4*r:#x}", f"v_lshl_add_u32 v{vAr[0]+r}, s{sT3}, 10, v{tA}"]
    for k in (1, 2):
        l += [f"v_add_u32 v{vAr[k]+r}, {k*0x10000}, v{vAr[0]+r}" for r in range(4)] + [f"v_add_u32 v{vT[k]+c}, {k*0x10000}, v{vT[0]+c}" for c in range(4)]
    P['need0'] = L(l)
    l = [f"v_and_b32 v{tA}, 15, v{vL}", f"v_lshrrev_b32 v{tB}, 4, v{vL}", f"v_lshlrev_b32 v{vXo}, 10, v{tA}", f"v_lshl_add_u32 v{vXo}, v{tB}, 3, v{vXo}",
          f"s_lshl_b32 s{sXo}, s{sTm}, 17", f"s_lshr_b32 s{sT}, s{sW}, 1", f"s_lshl_b32 s{sT}, s{sT}, 16", f"s_add_u32 s{sXo}, s{sXo}, s{sT}",
          f"s_lshl_b32 s{sT}, s{sKq}, 14", f"s_add_u32 s{sXo}, s{sXo}, s{sT}", f"s_lshl_b32 s{sT}, s{sTn}, 8", f"s_add_u32 s{sXo}, s{sXo}, s{sT}",
          f"s_and_b32 s{sT}, s{sW}, 1", f"s_lshl_b32 s{sT}, s{sT}, 7", f"s_add_u32 s{sXo}, s{sXo}, s{sT}",
          f"s_lshl_b32 s{sT}, s{sTm}, 2", f"s_add_u32 s{sT}, s{sT}, s{sTn}", f"s_lshl_b32 s{sFl}, s{sT}, 11", f"s_add_u32 s{sFl}, s{sFl}, {FL_EX}",
          f"s_lshl_b32 s{sEx}, s{sT}, 17", f"s_lshl_b32 s{sT}, s{sW}, 11", f"s_add_u32 s{sEx}, s{sEx}, s{sT}", f"s_add_u32 s{sEx}, s{sEx}, {WS_EX}",
          f"s_lshl_b32 s{sT}, s{sW}, 7", f"s_add_u32 s{sFl}, s{sFl}, s{sT}",
          f"s_and_b32 s{sT}, s2, 7", f"s_lshl_b32 s{sT}, s{sT}, 2", f"s_bfe_u32 s{sT2}, s2, 0x20003", f"s_add_u32 s{sT}, s{sT}, s{sT2}", f"s_lshl_b32 s{sT}, s{sT}, 7",
          f"s_lshl_b32 s{sT3}, s{sW}, 12", f"s_add_u32 s{sT}, s{sT}, s{sT3}", f"s_add_u32 s{sOw}, s{sT}, {FL_CX}",
          f"s_lshr_b32 s{sT2}, s2, 5", f"s_lshl_b32 s{sT2}, s{sT2}, 14", f"s_sub_u32 s{sT}, {15*16384}, s{sT2}",
          f"v_mov_b32 v19, s{sT2}", f"v_writelane_b32 v19, s{sT}, 1", f"v_mov_b32 v29, 1",
          f"v_and_b32 v{vPo}, 28, v{vPo}", f"v_lshlrev_b32 v{vPo}, 5, v{vPo}", f"s_lshl_b32 s{sCx}, s{sCx}, 7", f"s_add_u32 s{sCx}, s{sCx}, s{sT3}",
          f"s_lshl_b32 s{sT}, s{sKq}, 10", f"s_add_u32 s{sCx}, s{sCx}, s{sT}", f"s_add_u32 s{sCx}, s{sCx}, {FL_CX}"]
    k = [n for n, x in enumerate(l) if x.startswith(f"s_and_b32 s{sT}, s2, 7")][0]
    l = l[k:] + l[:k]
    late = L(l + srd(S_X, 56, 57, 0x200000) + srd(S_OUT, 62, 63, 0x200000))
    def reads(s):
        b = slot(s); va, vt = vAr[b >> 16], vT[b >> 16]; b &= 0xffff
        o = []
        for c in range(4):
            o += [T(f"ds_read_b128 {vr(AF+16*(s%2)+4*c)}, v{va+c} offset:{b}", ('R', s))]
            o += [T(f"ds_read_b64_tr_b16 {vr(WF+16*(s%2)+4*c+2*t, 2)}, v{vt+c} offset:{b + t*8192}", ('R', s)) for t in range(2)]
        return o
    pre = L(["K3_BEGIN:"]) + prof_begin()
    for s in range(NE, 5): pre += loads(s)
    pre += [Wait(vm=('L', 1)), I("s_barrier")] + reads(0) + stamp(2)
    G = Gaps(16*NS)
    stream = [(0, loads(5) + loads(6))]
    cpoll = f"buffer_load_dword v{vPd}, v{vPo}, {sr(S_WS)}, s{sCx} offen sc1"
    SP_, SC_ = int(os.environ.get("K3PUB", "14")), int(os.environ.get("K3CHK", "7"))
    nxt = 7
    for s in range(NS):
        g = 16*s
        for c in range(4):
            for r in range(4):
                D = vr(ACC + (r*4+c)*4)
                G.mf[g + c*4 + r] = I(f"{MF} {D}, {vr(WF+16*(s%2)+4*c)}, {vr(AF+16*(s%2)+4*r)}, {'0' if s == 0 else D}")
        G.before(g, Wait(lg=('R', s)))
        if s + 1 < NS:
            if s % 2 == 1:
                G.before(g + 1, Wait(vm=('L', min(s+2, NS-1)))); G.before(g + 1, I("s_barrier"))
                ld = []
                if s == SC_ - 2: ld += [T(cpoll, 'cp')]
                if s == SC_:
                    for x in [Wait(vm='cp')] + L([f"v_cmp_ne_u32 vcc, 1, v{vPd}", "s_cbranch_vccnz K3_CSPIN_E", "K3_COK:"]) + stamp(6): G.before(g + 1, x)
                    stubs += L(["K3_CSPIN_E:"]) + spin("K3_CSPIN", cpoll, vPd, 1, sA) + L(["s_branch K3_COK"])
                lim = min(s + 7, NS - 1) if s >= SC_ else min(s + 7, NA - 1)
                k = 0
                while nxt <= lim and k < 3: ld += loads(nxt); nxt += 1; k += 1
                if s == 13: ld += [T(f"buffer_load_dwordx2 {vr(vXv+2*c, 2)}, v{vXo}, {sr(S_X)}, s{sXo} offen offset:{c*32}", 'x') for c in range(4)]
                if ld: stream.append((g + 1, ld))
            for j, x in enumerate(reads(s+1)): G.put(g + 1 + j, x)
    assert nxt == NS
    place_stream(G, stream, 3, start=2)
    for j, x in enumerate(late): G.nv[(j if j < 40 else 2*j)//2].append(x)
    for x in [Wait(vm='cst')] + L(["s_mov_b64 exec, 3", f"buffer_store_dword v29, v19, {sr(S_WS)}, s{sOw} offen sc1", "s_mov_b64 exec, -1"]): G.before(SP_, x)
    fin = stamp(3)
    for r in range(1, 4):
        fin += L([f"s_add_u32 s{sT}, s{sKq}, {r}", f"s_and_b32 s{sT}, s{sT}, 3", f"s_lshl_b32 s{sT}, s{sT}, 15", f"s_lshl_b32 s{sT2}, s{sKq}, 13",
                  f"s_add_u32 s{sT}, s{sT}, s{sT2}", f"s_add_u32 s{sT}, s{sT}, s{sEx}"])
        for hh in range(2):
            b = ACC + r*16 + hh*8
            fin += L([f"v_cvt_pk_bf16_f32 v{b+k}, v{b+2*k}, v{b+2*k+1}" for k in range(4)])
            fin += L([f"buffer_store_dwordx4 {vr(b)}, v{vL16}, {sr(S_WS)}, s{sT} offen offset:{hh*1024} sc1"])
    fin += L([f"v_and_b32 v{vPo}, 3, v{vL}", f"v_lshlrev_b32 v{vPo}, 9, v{vPo}", f"s_lshl_b32 s{sT}, s{sKq}, 9", f"s_add_u32 s{sT}, s{sT}, s{sFl}", "v_mov_b32 v1, 0"])
    for c in range(4):
        for hw in range(2):
            x = vXv + 2*c + hw
            fin += L([f"v_lshlrev_b32 v{WF}, 16, v{x}", f"v_and_b32 v{WF+1}, 0xffff0000, v{x}",
                      f"v_add_f32 v{ACC+4*c+2*hw}, v{ACC+4*c+2*hw}, v{WF}", f"v_add_f32 v{ACC+4*c+2*hw+1}, v{ACC+4*c+2*hw+1}, v{WF+1}"])
    for r in range(1, 4):
        fin += L([f"s_add_u32 s{sSr+r}, s{sKq}, {r}", f"s_and_b32 s{sSr+r}, s{sSr+r}, 3", f"s_lshl_b32 s{sSr+r}, s{sSr+r}, 13", f"s_lshl_b32 s{sT2}, s{sKq}, 15",
                  f"s_add_u32 s{sSr+r}, s{sSr+r}, s{sT2}", f"s_add_u32 s{sSr+r}, s{sSr+r}, s{sEx}"])
    fin += L(["s_waitcnt vmcnt(0)", "s_mov_b64 exec, 1", f"buffer_store_dword v29, v1, {sr(S_WS)}, s{sT} offen sc1", "s_mov_b64 exec, -1"]) + stamp(4)
    fin += spin("K3_XSPIN", f"buffer_load_dword v{vPd}, v{vPo}, {sr(S_WS)}, s{sFl} offen sc1", vPd, 1, sA) + stamp(5)
    for r in range(1, 4):
        fin += L([f"buffer_load_dwordx4 {vr(RX+((r-1)*2+hh)*4)}, v{vL16}, {sr(S_WS)}, s{sSr+r} offen offset:{hh*1024} sc1" for hh in range(2)])
    for r in range(1, 4):
        fin += L([f"s_waitcnt vmcnt({2*(3-r)})"])
        for k in range(8):
            x = RX + (r-1)*8 + k
            fin += L([f"v_lshlrev_b32 v{WF}, 16, v{x}", f"v_and_b32 v{WF+1}, 0xffff0000, v{x}",
                      f"v_add_f32 v{ACC+2*k}, v{ACC+2*k}, v{WF}", f"v_add_f32 v{ACC+2*k+1}, v{ACC+2*k+1}, v{WF+1}"])
    for c in range(4):
        fin += L([f"v_cvt_pk_bf16_f32 v{vXv+2*c}, v{ACC+4*c}, v{ACC+4*c+1}", f"v_cvt_pk_bf16_f32 v{vXv+2*c+1}, v{ACC+4*c+2}, v{ACC+4*c+3}",
                  f"buffer_store_dwordx2 {vr(vXv+2*c, 2)}, v{vXo}, {sr(S_OUT)}, s{sXo} offen offset:{c*32}"])
    P['main'] = pre + G.linear() + fin + prof_end(2, S_WS, sW, 4, vtmp=56) + L(["K3_END:", "s_endpgm"])
    P['stubs'] = stubs
    return P

NAME = "parallel_sum__compressed_kv_cla__dense_activation_mish__prompt_kernel"
if __name__ == "__main__":
    from gen_k2 import gen_k2
    seq = gen_k2(gen_k1(), k3_parts())
    emit([(NAME, 256, 256, 163840, seq, 512, 256)], sys.argv[1] if len(sys.argv) > 1 else "k.s")
```

```python
import math, sys, struct, os
from asmlib import *

WS_XN = 0x0
WS_KF = 0x200000
WS_VF = 0x1200000
WS_CA = 0x2200000
CA_RB = 172*1024
WS_EX = 0x4000000
WS_FL = 0x5000000
WS_SIZE = 0x10000000
SCALE = math.log2(math.e) / math.sqrt(128.0)
def f2u(f): return struct.unpack('<I', struct.pack('<f', f))[0]
MF = "v_mfma_f32_16x16x32_bf16"
def vr(b, n=4): return f"v[{b}:{b+n-1}]"
def ar(b, n=4): return f"a[{b}:{b+n-1}]"
def sr(b, n=4): return f"s[{b}:{b+n-1}]"
def L(lines): return [I(x) if isinstance(x, str) else x for x in lines]

def srd(d, lo, hi, size):
    return [f"s_mov_b32 s{d}, s{lo}", f"s_mov_b32 s{d+1}, s{hi}",
            f"s_mov_b32 s{d+2}, {size}" , f"s_mov_b32 s{d+3}, 0x00020000"]
def srd_off(d, lo, hi, soff, size):
    return [f"s_add_u32 s{d}, s{lo}, s{soff}\n    s_addc_u32 s{d+1}, s{hi}, 0", f"s_sub_u32 s{d+2}, {size}, s{soff}", f"s_mov_b32 s{d+3}, 0x00020000"]

PROF = bool(os.environ.get("PROF"))
STF = os.environ.get("STF", " sc1")
FUSED = os.environ.get("FUSED", "1") == "1"
LDF = " sc1" if FUSED else ""
FL_KV, FL_AC, FL_CX, FL_EX = WS_FL, WS_FL + 0x1000, WS_FL + 0x40000, WS_FL + 0x80000
STX = os.environ.get("STX", " sc1")
STF2 = os.environ.get("STF2", " sc1")
WS_PROF = 0xF000000
NSTAMP = 12
def stamp(k):
    return [I(f"s_memtime s[{72+2*k}:{73+2*k}]")] if PROF else []
def prof_begin():
    return ([I("s_memrealtime s[96:97]")] + [x for k in range(NSTAMP) for x in stamp(k)]) if PROF else []
def prof_end(kidx, S_WS, sW, nwaves, vtmp=0, drain=True):
    if not PROF: return []
    o = L((["s_waitcnt vmcnt(0)"] if drain else []) + ["s_memrealtime s[98:99]"]) + stamp(NSTAMP-1) + L(["s_waitcnt lgkmcnt(0)",
          f"s_mul_i32 s70, s2, {nwaves}", f"s_add_u32 s70, s70, s{sW}", "s_lshl_b32 s70, s70, 6",
          f"s_add_u32 s70, s70, {WS_PROF + kidx*0x40000}", f"v_mov_b32 v{vtmp+16}, 0"])
    regs = [96, 98] + [72+2*k for k in range(NSTAMP)] + [97, 99]
    for j, rg in enumerate(regs): o += L([f"v_mov_b32 v{vtmp+j}, s{rg}"])
    for j in range(4):
        o += L([f"buffer_store_dwordx4 {vr(vtmp+4*j)}, v{vtmp+16}, {sr(S_WS)}, s70 offen offset:{16*j}"])
    return o

def code_prefetch(label, here, wide, vdst, vaddr, sp, st, vtid=0):
    sh = 3 if wide else 2
    o = [f"s_getpc_b64 s[{sp}:{sp+1}]", f"{here}:"]
    if label is not None:
        o += [f"s_add_u32 s{sp}, s{sp}, {label}-{here}\n    s_addc_u32 s{sp+1}, s{sp+1}, 0"]
    o += [f"s_bfe_u32 s{st}, s2, 0x50003", f"s_lshl_b32 s{st}, s{st}, {8+sh}", f"v_lshlrev_b32 v{vaddr}, {sh}, v{vtid}", f"v_add_u32 v{vaddr}, s{st}, v{vaddr}",
          f"global_load_dwordx2 {vr(vdst, 2)}, v{vaddr}, s[{sp}:{sp+1}]" if wide else f"global_load_dword v{vdst}, v{vaddr}, s[{sp}:{sp+1}]"]
    return L(o)

def one_lane(ins, sW, lab, stmp):
    return L([f"s_cmp_lg_u32 s{sW}, 0\n    s_cbranch_scc1 {lab}\n    s_mov_b64 exec, 1"]) + ins + L(["s_mov_b64 exec, -1", f"{lab}:"])
def spin(lab, load, vdst, want, scnt):
    return L([f"s_mov_b32 s{scnt}, 0x40000", f"{lab}:", load, "s_waitcnt vmcnt(0)", f"v_cmp_ne_u32 vcc, {want}, v{vdst}", f"s_cbranch_vccz {lab}_ok",
              f"s_sleep {os.environ.get('SLP', '1')}", f"s_sub_u32 s{scnt}, s{scnt}, 1", f"s_cbranch_scc0 {lab}", f"{lab}_ok:"])

def red32(v, t):
    dpp = " row_mask:0xf bank_mask:0xf"
    return [f"v_add_f32_dpp v{v}, v{v}, v{v} quad_perm:[1,0,3,2]{dpp}",
            f"v_add_f32_dpp v{v}, v{v}, v{v} quad_perm:[2,3,0,1]{dpp}",
            f"v_add_f32_dpp v{v}, v{v}, v{v} row_half_mirror{dpp}",
            f"v_add_f32_dpp v{v}, v{v}, v{v} row_mirror{dpp}",
            f"v_mov_b32 v{t}, v{v}",
            f"v_permlane16_swap_b32 v{t}, v{v}",
            f"v_add_f32 v{v}, v{v}, v{t}"]

def w_dma_voff(vlane, vd0, vd1, pitch, t1, t2):
    return [f"v_bfe_u32 v{t1}, v{vlane}, 4, 1", f"v_lshlrev_b32 v{t1}, 1, v{t1}", f"v_and_b32 v{t2}, 7, v{vlane}",
            f"v_xor_b32 v{t1}, v{t1}, v{t2}", f"v_lshlrev_b32 v{t1}, 4, v{t1}",
            f"v_lshrrev_b32 v{t2}, 3, v{vlane}", f"v_mul_u32_u24 v{t2}, {pitch}, v{t2}",
            f"v_add_u32 v{vd0}, v{t1}, v{t2}", f"v_xor_b32 v{t1}, 64, v{t1}", f"v_add_u32 v{vd1}, v{t1}, v{t2}",
            f"v_add_u32 v{vd1}, {8*pitch-1024}, v{vd1}"]
def w_tr_addr(vlane, vT, t1, t2):
    o = [f"v_lshrrev_b32 v{t1}, 4, v{vlane}", f"v_lshlrev_b32 v{t1}, 10, v{t1}",
         f"v_bfe_u32 v{t2}, v{vlane}, 2, 2", f"v_lshl_add_u32 v{t1}, v{t2}, 7, v{t1}",
         f"v_and_b32 v{t2}, 3, v{vlane}", f"v_lshl_add_u32 v{t1}, v{t2}, 3, v{t1}",
         f"v_bfe_u32 v{t2}, v{vlane}, 3, 2",
         f"v_lshl_add_u32 v{vT}, v{t2}, 5, v{t1}"]
    for cb in range(1, 4): o += [f"v_xor_b32 v{vT+cb}, {cb*32}, v{vT}"]
    return o

def gemm_groups(G, g0, groups, WF, pre, nbuf=2):
    starts = []; g = g0
    for gr in groups:
        starts.append(g); g += len(gr['frags'])*len(gr['chains'])
    for n, gr in enumerate(groups):
        CH = len(gr['frags'])
        base = WF + (n % nbuf)*4*gr.get('bufsz', CH)
        tagid = gr.setdefault('id', (g0, n))
        reads = []
        for j, (va, off) in enumerate(gr['frags']):
            for t in range(2):
                reads.append(T(f"ds_read_b64_tr_b16 {vr(base+4*j+2*t,2)}, v{va} offset:{off+t*512}", ('wf', tagid, j)))
        if n == 0:
            pre.extend(gr.get('sync') or []); pre.extend(reads); gr['syncgap'] = None
        else:
            ps = starts[n-1]; plen = starts[n] - ps
            first = ps + 1
            for x in (gr.get('sync') or []): G.before(first, x)
            gr['syncgap'] = first
            span = max(len(reads), (plen*3)//4 - 1)
            for i, x in enumerate(reads): G.put(first + (i*span)//len(reads), x)
        gg = starts[n]
        for c, ch in enumerate(gr['chains']):
            for j in range(CH):
                G.mf[gg] = I(ch[j](base + 4*j))
                if c == 0 and (j % 2 == 0):
                    G.before(gg, Wait(lg=[('wf', tagid, min(j+1, CH-1))] + (gr.get('lgwait', []) if j == 0 else [])))
                gg += 1
    return starts, g

def place_stream(G, groups, spacing, start=2):
    cur = start; last = start - 2
    for (e, ins) in groups:
        cur = max(cur, e + 2); last = max(last, e)
        pend = []
        for x in ins:
            if x.kind != 'vmem': pend.append(x); continue
            for j, y in enumerate(pend): G.nv[max(last, cur - len(pend) + j)].append(y)
            pend = []
            G.put(cur, x); last = cur; cur += spacing
    return cur

def spread(G, ins, g0, g1):
    for j, x in enumerate(ins):
        g = g0 + (j*(g1-g0))//len(ins)
        if x.kind == 'vmem' and not x.wr: G.put(g+1, x)
        else: G.put(g, x)

def KACC(db, mb):
    return ((96, 64)[db % 2] + (db//4)*64 + ((db//2) % 2)*16) + mb*4
def k_epilogue(js, sSc):
    o = []
    for mb in range(4):
        D0, D1 = KACC(2*js, mb), KACC(2*js+1, mb)
        o += L([f"v_mul_f32 v{D+r}, s{sSc}, v{D+r}" for D in (D0, D1) for r in range(4)])
        o += L([f"v_cvt_pk_bf16_f32 v{D0}, v{D0}, v{D0+1}", f"v_cvt_pk_bf16_f32 v{D0+1}, v{D0+2}, v{D0+3}",
                f"v_cvt_pk_bf16_f32 v{D0+2}, v{D1}, v{D1+1}", f"v_cvt_pk_bf16_f32 v{D0+3}, v{D1+2}, v{D1+3}"])
    return o
def gen_k1():
    S_CKV, S_WK, S_WV, S_WS, S_X = 4, 8, 12, 16, 20
    sW, sH, sR = 24, 25, 26
    sK, sV = 28, 32
    sAk, sWk = 40, 48
    sAm, sWm, sT, sT2, sFl, sSc, sLN, sH8 = 56, 57, 58, 59, 60, 61, 62, 63
    vL, vL16 = 2, 3
    vAD = 4; vAR = 8; vWD = 10; vT = 12; vTh = 16
    WF = 32; ACCK = 64; EP = 192; AR = 128
    pre = prof_begin()
    pre += L(["s_load_dwordx4 s[28:31], s[0:1], 0", "s_load_dwordx4 s[32:35], s[0:1], 24", "s_load_dwordx2 s[36:37], s[0:1], 96",
              "s_load_dwordx2 s[64:65], s[0:1], 16", "s_load_dwordx2 s[66:67], s[0:1], 56", "s_load_dwordx2 s[68:69], s[0:1], 88",
              "s_cmp_ge_u32 s2, 256", "s_cbranch_scc1 K3_END" if FUSED else "s_cbranch_scc1 K1_END"])
    pre += code_prefetch(None, "K1_PC", False, 21, 24, 38, 27)
    pre += L(["v_lshrrev_b32 v1, 6, v0", f"v_and_b32 v{vL}, 63, v0", f"v_readfirstlane_b32 s{sW}, v1",
              f"v_lshlrev_b32 v{vL16}, 4, v{vL}",
              f"s_and_b32 s{sT}, s2, 7", f"s_lshl_b32 s{sT}, s{sT}, 2", f"s_bfe_u32 s{sT2}, s2, 0x20003",
              f"s_add_u32 s{sH}, s{sT}, s{sT2}", f"s_lshr_b32 s{sR}, s2, 5"])
    pre += L([f"v_lshrrev_b32 v24, 5, v{vL}", f"v_and_b32 v25, 31, v{vL}", "v_lshlrev_b32 v26, 10, v24",
              "v_lshl_add_u32 v26, v25, 5, v26",
              "v_lshlrev_b32 v27, 9, v25", "v_lshl_add_u32 v27, v24, 4, v27"])
    pre += L([f"v_lshrrev_b32 v24, 4, v{vL}", f"v_and_b32 v25, 7, v{vL}", "v_xor_b32 v24, v24, v25", "v_lshlrev_b32 v24, 4, v24",
              f"v_lshrrev_b32 v25, 3, v{vL}", f"v_lshl_add_u32 v{vAD}, v25, 10, v24",
              f"v_xor_b32 v{vAD+1}, 64, v{vAD}", f"v_add_u32 v{vAD+1}, {8192-1024}, v{vAD+1}",
              ])
    pre += L(w_dma_voff(vL, vWD, vWD+1, 8192, 24, 25))
    pre += L([f"s_lshl_b32 s{sT}, s{sR}, 18", f"s_lshl_b32 s{sT2}, s{sW}, 16", f"s_add_u32 s{sT}, s{sT}, s{sT2}",
              f"s_lshl_b32 s{sT2}, s{sW}, 14", f"s_add_u32 s{sT2}, s{sT2}, 98304"])
    for o in range(4):
        pre += L([f"s_add_u32 s27, s{sH}, {o}", "s_and_b32 s27, s27, 3", f"s_lshl_b32 s{sAk+o}, s27, 14", f"s_add_u32 s{sAk+o}, s{sAk+o}, s{sT}",
                  f"s_lshl_b32 s{sAk+4+o}, s27, 11", f"s_add_u32 s{sAk+4+o}, s{sAk+4+o}, s{sT2}"])
    pre += L([f"s_lshl_b32 s{sWk}, s{sW}, 17",
              f"s_lshl_b32 s{sWk+1}, s{sR}, 2", f"s_add_u32 s{sWk+1}, s{sWk+1}, s{sW}", f"s_lshl_b32 s{sWk+1}, s{sWk+1}, 15",
              f"v_lshrrev_b32 v24, 4, v{vL}", "v_lshlrev_b32 v24, 13, v24", f"v_and_b32 v25, 15, v{vL}", f"v_lshl_add_u32 v{vAD+2}, v25, 4, v24"])
    pre += L([f"s_lshl_b32 s{sAm}, s{sW}, 14", f"s_add_u32 s{sAm}, s{sAm}, 98304", f"s_lshl_b32 s{sWm}, s{sW}, 11",
              f"s_lshl_b32 s{sH8}, s{sH}, 8", f"s_and_b32 s{sFl}, s{sR}, 1", f"s_lshl_b32 s{sFl}, s{sFl}, 7",
              f"s_lshl_b32 s{sT}, s2, 3", f"s_lshl_b32 s{sT2}, s{sW}, 1", f"s_add_u32 s{sT}, s{sT}, s{sT2}", f"s_lshl_b32 s{sLN}, s{sT}, 10"])
    pre += L(["s_waitcnt lgkmcnt(0)"]) + stamp(1)
    pre += L(srd(S_CKV, 30, 31, 0x200000))
    def dmaA(s, os_):
        o = []
        for k in os_:
            o += [I(f"s_add_u32 m0, s{sAk+4+k}, {(s % 2)*8192}"), I(f"s_add_u32 s{sT}, s{sAk+k}, {s*128}"),
                  T(f"buffer_load_dwordx4 v{vAD}, {sr(S_CKV)}, s{sT} offen lds", ('A', s)),
                  T(f"buffer_load_dwordx4 v{vAD+1}, {sr(S_CKV)}, s{sT} offen offset:1024 lds", ('A', s))]
        return o
    own = lambda s: dmaA(s, [0]); rest = lambda s: dmaA(s, [1, 2, 3])
    def pfW(sd, st):
        return L([f"s_add_u32 s{sT2}, s{sWk+1}, {st*128*8192}", f"buffer_load_dwordx4 v[20:23], v{vAD+2}, {sr(sd)}, s{sT2} offen"])
    def dmaUT(sd, ksl, ch, ldsoff, tag):
        return [I(f"s_add_u32 m0, s{sWm}, {ldsoff}"), I(f"s_add_u32 s{sT2}, s{sWk}, {ksl*64*8192 + ch*128}"),
                T(f"buffer_load_dwordx4 v{vWD}, {sr(sd)}, s{sT2} offen lds", tag),
                T(f"buffer_load_dwordx4 v{vWD+1}, {sr(sd)}, s{sT2} offen offset:1024 lds", tag)]
    kslot = lambda p, u: ((p % 6)*2 + u)*8192
    def dmaWP(p): return [x for u in range(2) for x in dmaUT(S_WV if p % 4 < 2 else S_WK, (p//4)*2 + u, p % 2, kslot(p, u), ('W', p))]
    warm = L([f"buffer_load_dwordx4 v[20:23], v{vL16}, {sr(S_CKV)}, s{sLN} offen", f"buffer_load_dwordx4 v[20:23], v{vL16}, {sr(S_CKV)}, s{sLN} offen offset:1024"])
    lnld = [T(f"buffer_load_dwordx4 v[192:195], v26, {sr(S_X)}, s{sLN} offen", 'ln'),
            T(f"buffer_load_dwordx4 v[196:199], v26, {sr(S_X)}, s{sLN} offen offset:16", 'ln')]
    pre += warm + own(0) + own(1)
    pre += L(srd_off(S_WV, 34, 35, sH8, 0x400000))
    pre += pfW(S_WV, 0)
    pre += L(srd(S_X, 28, 29, 0x200000) + srd_off(S_WK, 32, 33, sH8, 0x400000))
    pre += rest(0) + dmaWP(0) + rest(1) + pfW(S_WK, 0)
    pre += dmaWP(1) + lnld + stamp(2)
    if os.environ.get("K1DIAG"):
        for k, n in enumerate((27, 24, 23, 17, 13, 7, 6, 2, 0)):
            pre += L([f"s_waitcnt vmcnt({n})"]) + stamp(3+k if k < 8 else 10)
    pre += L(srd(S_WS, 36, 37, WS_SIZE))
    pre += L(w_tr_addr(vL, vT, 24, 25)) + L([f"v_add_u32 v{vTh+c}, 0x10000, v{vT+c}" for c in range(4)])
    pre += L([f"v_and_b32 v24, 15, v{vL}", f"v_bfe_u32 v25, v{vL}, 1, 3", f"v_lshrrev_b32 v1, 4, v{vL}", "v_xor_b32 v25, v25, v1",
              "v_lshlrev_b32 v25, 4, v25", "v_lshl_add_u32 v24, v24, 7, v25", f"v_add_u32 v{vAR}, s{sAm}, v24",
              f"v_xor_b32 v{vAR+1}, 64, v{vAR}"])
    pre += L([f"s_lshl_b32 s{sT}, s{sH}, 19", f"s_lshl_b32 s{sT2}, s{sR}, 16", f"s_add_u32 s{sT}, s{sT}, s{sT2}",
              f"s_lshl_b32 s{sT2}, s{sW}, 14", f"s_add_u32 s{sT}, s{sT}, s{sT2}"])
    for j in range(4):
        pre += L([f"s_add_u32 s{sV+j}, s{sT}, {WS_VF + j*4096}"])
    pre += L([f"s_mov_b32 s{sSc}, {f2u(SCALE):#x}"])
    X = 208; R0 = 192; m, t, d, q = 200, 201, 202, 203
    ln = []
    for j in range(8):
        ln += L([f"v_lshlrev_b32 v{X+2*j}, 16, v{R0+j}", f"v_and_b32 v{X+2*j+1}, 0xffff0000, v{R0+j}"])
    ln += L([f"v_add_f32 v{m}, v{X}, v{X+1}"] + [f"v_add_f32 v{m}, v{m}, v{X+j}" for j in range(2, 16)])
    ln += L(red32(m, t))
    ln += L([f"v_mul_f32 v{m}, 0x3b000000, v{m}"])
    ln += L([f"v_sub_f32 v{d}, v{X}, v{m}", f"v_mul_f32 v{q}, v{d}, v{d}"])
    for j in range(1, 16):
        ln += L([f"v_sub_f32 v{d}, v{X+j}, v{m}", f"v_fmac_f32 v{q}, v{d}, v{d}"])
    ln += L(red32(q, t))
    ln += L([f"v_mul_f32 v{q}, 0x3b000000, v{q}", f"v_cvt_pk_bf16_f32 v{m}, v{m}, v{q}",
             f"v_and_b32 v{q}, 0xffff0000, v{m}", f"v_lshlrev_b32 v{m}, 16, v{m}",
             f"v_add_f32 v{q}, {f2u(1e-5):#x}, v{q}", f"v_cvt_pk_bf16_f32 v{q}, v{q}, v{q}", f"v_lshlrev_b32 v{q}, 16, v{q}",
             f"v_sqrt_f32 v{q}, v{q}", f"v_cvt_pk_bf16_f32 v{q}, v{q}, v{q}", f"v_lshlrev_b32 v{q}, 16, v{q}",
             f"v_rcp_f32 v{q}, v{q}"])
    for j in range(8):
        a, b = X+2*j, X+2*j+1
        ln += L([f"v_sub_f32 v{a}, v{a}, v{m}", f"v_sub_f32 v{b}, v{b}, v{m}", f"v_cvt_pk_bf16_f32 v{a}, v{a}, v{b}",
                 f"v_and_b32 v{b}, 0xffff0000, v{a}", f"v_lshlrev_b32 v{a}, 16, v{a}",
                 f"v_mul_f32 v{a}, v{a}, v{q}", f"v_mul_f32 v{b}, v{b}, v{q}", f"v_cvt_pk_bf16_f32 v{R0+j}, v{a}, v{b}"])
    ln2 = []
    LX = kslot(5, 0)
    lnw = L([f"s_lshl_b32 s50, s{sW}, 11", f"s_add_u32 s50, s50, {LX}", "v_add_u32 v26, s50, v26",
             f"ds_write_b128 v26, {vr(R0)}", f"ds_write_b128 v26, {vr(R0+4)} offset:16",
             f"v_and_b32 v24, 7, v{vL}", f"v_lshrrev_b32 v25, 3, v{vL}", "v_lshlrev_b32 v26, 10, v24", "v_lshl_add_u32 v26, v25, 4, v26",
             f"s_lshl_b32 s50, s{sW}, 8", f"s_add_u32 s50, s50, {LX}", "v_add_u32 v26, s50, v26",
             "v_lshlrev_b32 v27, 8, v25", "v_lshl_add_u32 v27, v24, 4, v27"])
    lnw[4].tag = 'lnw'
    ln2 += [T(f"ds_read_b128 {vr(R0)}, v26", 'lnr'), T(f"ds_read_b128 {vr(R0+4)}, v26 offset:128", 'lnr')]
    ln2 += L([f"s_lshr_b32 s{sT}, s2, 1", f"s_lshl_b32 s{sT}, s{sT}, 14", f"s_and_b32 s{sT2}, s2, 1", f"s_lshl_b32 s{sT2}, s{sT2}, 7",
             f"s_add_u32 s{sT}, s{sT}, s{sT2}", f"s_lshl_b32 s{sT2}, s{sW}, 12", f"s_add_u32 s{sT}, s{sT}, s{sT2}"])
    ln2 += [Wait(lg='lnr')]
    ln2 += L([f"buffer_store_dwordx4 {vr(R0)}, v27, {sr(S_WS)}, s{sT} offen offset:{WS_XN}{STX}",
              f"buffer_store_dwordx4 {vr(R0+4)}, v27, {sr(S_WS)}, s{sT} offen offset:{WS_XN+2048}{STX}"])
    ln2 += L([f"s_lshl_b32 s{sT}, s{sH}, 7", f"s_lshl_b32 s{sT2}, s{sR}, 2", f"s_add_u32 s{sT}, s{sT}, s{sT2}", f"s_add_u32 s{sT}, s{sT}, {FL_KV}", f"v_mov_b32 v24, s{sT}",
              f"s_lshl_b32 s{sT}, s{sR}, 7", f"s_lshl_b32 s{sT2}, s{sH}, 2", f"s_add_u32 s27, s{sT}, s{sT2}", f"s_add_u32 s27, s27, {FL_AC}", "v_writelane_b32 v24, s27, 1",
              f"s_sub_u32 s27, s{sT2}, s{sT}", f"s_add_u32 s27, s27, {FL_AC + 15*128}", "v_writelane_b32 v24, s27, 2",
              f"s_lshl_b32 s27, s{sW}, 7", f"s_add_u32 s{sT2}, s{sT2}, s27", f"s_lshl_b32 s{sT2}, s{sT2}, 5", f"s_lshl_b32 s{sT}, s{sT}, 7",
              f"s_add_u32 s27, s{sT}, s{sT2}", f"s_add_u32 s27, s27, {FL_CX}", "v_writelane_b32 v24, s27, 3",
              f"s_sub_u32 s27, s{sT2}, s{sT}", f"s_add_u32 s27, s27, {FL_CX + 15*16384}", "v_writelane_b32 v24, s27, 4",
              f"s_bfe_u32 s{sT}, s2, 0x10002", f"s_lshl_b32 s{sT}, s{sT}, 3", f"s_bfe_u32 s{sT2}, s2, 0x30003", f"s_add_u32 s{sT}, s{sT}, s{sT2}",
              f"s_lshl_b32 s{sT}, s{sT}, 2", f"s_lshr_b32 s{sT2}, s2, 6", f"s_add_u32 s{sT}, s{sT}, s{sT2}", f"s_lshl_b32 s{sT}, s{sT}, 2",
              f"s_and_b32 s{sT2}, s2, 3", f"s_add_u32 s{sT}, s{sT}, s{sT2}", f"s_lshl_b32 s{sT}, s{sT}, 9", f"s_lshl_b32 s{sT2}, s{sW}, 7", f"s_add_u32 s{sT}, s{sT}, s{sT2}",
              f"s_add_u32 s27, s{sT}, {FL_EX}", "v_writelane_b32 v24, s27, 5",
              "v_mov_b32 v25, 0", T(f"buffer_store_dword v25, v24, {sr(S_WS)}, 0 offen sc1", 'lnst'),
              "s_mov_b32 s70, 256", "s_mov_b32 s71, 0x00020000", "v_mov_b32 v26, 1"])
    ln2 = [x if isinstance(x, Wait) else I(x.text.replace(f's{sT2}', 's51').replace(f's{sT}', 's50'), x.tag) for x in ln2]
    kacc = lambda db, mb: KACC(db, mb)
    afr = lambda st, mb, j: ar(AR + (st % 2)*64 + (mb*4 + j)*4)
    def readA(s):
        return [T(f"ds_read_b128 {afr(s//2, mb, (s % 2)*2 + k)}, v{vAR+k} offset:{(s % 2)*8192 + mb*2048}", ('Ar', s))
                for mb in range(4) for k in range(2)]
    pre += [Wait(vm=('A', 0))] + readA(0) + [Wait(vm=('A', 1))] + readA(1) + (stamp(5) if not os.environ.get('K1DIAG') else [])
    groups = []
    for p in range(16):
        st, cq = p//4, p % 4
        for cb in range(4):
            db = (cq % 2)*4 + cb
            fr = []
            for j in range(4):
                o = kslot(p, j//2) + (j % 2)*4096
                fr.append(((vT, vTh)[o >> 16] + cb, o & 0xffff))
            chains = []
            for mb in range(4):
                if cq >= 2:
                    D = vr(kacc(db, mb))
                    chains.append([(lambda f, D=D, a=afr(st, mb, j), z=(st == 0 and j == 0): f"{MF} {D}, {vr(f)}, {a}, {'0' if z else D}") for j in range(4)])
                else:
                    D = ar((db*4 + mb)*4)
                    chains.append([(lambda f, D=D, a=afr(st, mb, j), z=(st == 0 and j == 0): f"{MF} {D}, {a}, {vr(f)}, {'0' if z else D}") for j in range(4)])
            gr = dict(frags=fr, chains=chains)
            if cb == 0:
                gr['sync'] = [Wait(vm=('W', p)), I("s_barrier")]; gr['pair'] = p
                if cq == 0: gr['lgwait'] = [('Ar', 2*st+1)]
            groups.append(gr)
    G = Gaps(1024)
    starts, gend = gemm_groups(G, 0, groups, WF, pre)
    assert gend == 1024
    bar = {gr['pair']: gr['syncgap'] for gr in groups if 'pair' in gr}
    WL = int(os.environ.get('WL', '3'))
    ev = [(4*k, dmaWP(2+k)) for k in range(WL-1)]
    for st in range(3):
        g = 256*st
        ev += [(g, own(2*st+2) + own(2*st+3))]
        if st == 0: ev += [(g + 10, pfW(S_WV, 1) + pfW(S_WK, 1))]
        if st < 2: ev += [(g + int(os.environ.get('PW', '150')), pfW(S_WV, st+2) + pfW(S_WK, st+2))]
        ev += [(g + 70, rest(2*st+2)), (g + 125, rest(2*st+3))]
        for k in range(2):
            gr_ = g + 196 + 26*k
            G.before(gr_, Wait(vm=('A', 2*st+2+k)))
            for j, x in enumerate(readA(2*st+2+k)): G.put(gr_ + 2*j, x)
    for p in range(1, 16-WL): ev += [(bar[p] if p + WL != 5 else max(bar[p], bar[3]), dmaWP(p+WL))]
    ev.sort(key=lambda e: e[0])
    end = place_stream(G, ev, int(os.environ.get("SP", "4")), start=2)
    print("K1 dma stream ends at gap", end)
    G.before(3, Wait(vm='ln'))
    spread(G, ln, 3, 92)
    for j, x in enumerate(lnw): G.va[92 + j].append(x)
    G.pre[bar[2]].insert(0, Wait(lg='lnw'))
    for j, x in enumerate(ln2): G.nv[bar[2] + j].append(x)
    if FUSED:
        for x in one_lane([T("buffer_atomic_add v26, v25, s[68:71], 0 offen sc1", 'NOCOUNT')], sW, "K1_SIG", sT): G.nv[bar[4]].append(x)
        G.pre[bar[4]].insert(0, Wait(vm='lnst'))
        G.put(960, T("buffer_load_dword v27, v25, s[68:71], 0 offen sc1", 'lnc'))
        XG = int(os.environ.get("XG", "0"))
        if XG:
            G.put(XG - 40, T("buffer_load_dword v27, v25, s[68:71], 0 offen sc1", 'lnc0'))
            xp = [Wait(vm='lnc0')] + L(["v_readfirstlane_b32 s52, v27", "s_bfe_u32 s53, s2, 0x50003", "s_lshl_b32 s53, s53, 16", f"s_lshl_b32 s54, s{sW}, 14", "s_add_u32 s53, s53, s54",
                                        "s_cmp_eq_u32 s52, 0x100\n    s_cselect_b32 s53, s53, 0x10000000"])
            for k in range(16):
                if k and k % 4 == 0: xp += L(["s_add_u32 s53, s53, 4096"])
                xp += L([f"buffer_load_dwordx4 v[20:23], v{vL16}, {sr(S_WS)}, s53 offen offset:{(k % 4)*1024} sc1"])
            g = XG
            for x in xp:
                G.nv[g].append(x); g += 8 if x.kind == 'vmem' else 1
    pf = L(srd_off(S_X, 64, 65, sH8, 0x400000) + [f"s_lshr_b32 s{sT}, s{sH8}, 1"] + srd_off(28, 66, 67, sT, 512*2752))
    pf += L([f"v_lshrrev_b32 v24, 4, v{vL}", "v_lshlrev_b32 v24, 13, v24", f"v_and_b32 v1, 15, v{vL}", "v_lshl_add_u32 v24, v1, 4, v24",
             f"v_lshrrev_b32 v26, 3, v{vL}", "v_mul_u32_u24 v26, 2752, v26", f"v_and_b32 v1, 7, v{vL}", "v_lshl_add_u32 v26, v1, 4, v26",
             f"s_lshl_b32 s{sT}, s{sR}, 2", f"s_add_u32 s{sT}, s{sT}, s{sW}", f"s_mul_i32 s{sT2}, s{sT}, {16*2752}", f"s_lshl_b32 s{sT}, s{sT}, 17"])
    for k in range(4):
        pf += L([f"buffer_load_dwordx4 v[20:23], v24, {sr(S_X)}, s{sT} offen", f"s_add_u32 s{sT}, s{sT}, 32768"])
    for k in range(2):
        pf += L([f"buffer_load_dwordx4 v[20:23], v26, {sr(28)}, s{sT2} offen", f"s_add_u32 s{sT2}, s{sT2}, {8*2752}"])
    pf = [I(x.text.replace(f"s{sT2}", "s53").replace(f"s{sT}", "s52")) for x in pf]
    pf += code_prefetch("K2_BEGIN" if FUSED else "attn_kernel", "K1_PC2", True, 20, 24, 38, 27)
    g = int(os.environ.get('PFG', '420'))
    for x in pf:
        G.nv[g].append(x); g += 4 if x.kind == 'vmem' else (0 if x.kind == 'label' or x.op == 's_getpc_b64' else 1)
    assert g < 1000
    for db in range(8):
        ins = []
        for ks in range(2):
            t = EP + ((db*2 + ks) % 8)*8
            ins += L([f"v_accvgpr_read_b32 v{t+k}, a{(db*4 + 2*ks)*4 + k}" for k in range(8)])
            ins += L([f"v_cvt_pk_bf16_f32 v{t+k}, v{t+2*k}, v{t+2*k+1}" for k in range(4)])
            ins += L([f"buffer_store_dwordx4 {vr(t)}, v{vL16}, {sr(S_WS)}, s{sV+db//2} offen offset:{(db%2)*2048 + ks*1024}{STF}"])
        spread(G, ins, 790 + 28*db, 790 + 28*db + 27)
    spread(G, k_epilogue(0, sSc) + k_epilogue(1, sSc), 964, 1022)
    tail = []
    assert FUSED
    if os.environ.get("K1FINE"):
        seq = list(pre)
        for p in range(8): seq += stamp(2+p) + G.linear(128*p, 128*p+128)
        seq += stamp(10) + tail + prof_end(0, S_WS, sW, 4, vtmp=32, drain=not FUSED)
    else:
        if os.environ.get("K1DIAG"): stamp_ = lambda k: []
        else: stamp_ = stamp
        seq = pre + stamp_(6) + G.linear(0, 64) + stamp_(7) + G.linear(64, 512) + stamp_(8) + G.linear(512, 1024) + stamp_(9) + tail + stamp_(10) + prof_end(0, S_WS, sW, 4, vtmp=32, drain=not FUSED)
    if FUSED:
        seq += [Wait(vm='lnc')] + L(["s_mov_b32 s70, 256", "s_movk_i32 s27, 0x100", "v_cmp_gt_u32 vcc, s27, v27", "s_cbranch_vccz K1_LNOK"])
        sp = spin("K1_LNSPIN", "buffer_load_dword v27, v25, s[68:71], 0 offen sc1", 27, "s27", sT)
        sp = [I(x.text.replace("v_cmp_ne_u32", "v_cmp_gt_u32"), 'NOCOUNT') for x in sp]
        seq += sp + L(["K1_LNOK:", "s_barrier"])
        return seq
    seq = resolve_waits(seq)
    seq, n = fix_hazards(seq)
    print("K1: instrs", len(seq), "nops", n)
    return seq + L(["K1_END:", "s_endpgm"])

def emit(kernels, path):
    hdr = open('parallel_sum__compressed_kv_cla__dense_activation_mish__prompt.s.ref').read().split('\n')
    out = [l for l in hdr[:14]]
    for (name, grid, block, lds, seq, nv, acc) in kernels:
        if len(kernels) == 1 and os.environ.get("PLAIN"): out.append(f"; @launch grid=({grid},1,1) block=({block},1,1) lds={lds}")
        else: out.append(f"; @launch kernel={name} grid=({grid},1,1) block=({block},1,1) lds={lds}")
    out += ['.amdgcn_target "amdgcn-amd-amdhsa--gfx950"', ".text"]
    for (name, grid, block, lds, seq, nv, acc) in kernels:
        out += [f".globl {name}", ".p2align 8", f".type {name},@function", f"{name}:"]
        out += [("" if i.kind == 'label' else "    ") + i.text for i in seq]
    out.append(".fill 8192, 4, 0xbf800000")
    out.append('.section .rodata,"a"')
    for (name, grid, block, lds, seq, nv, acc) in kernels:
        out += [".p2align 6", f".amdhsa_kernel {name}", f"  .amdhsa_next_free_vgpr {nv}", "  .amdhsa_next_free_sgpr 102",
                f"  .amdhsa_accum_offset {acc}", "  .amdhsa_group_segment_fixed_size 0", "  .amdhsa_kernarg_size 104",
                "  .amdhsa_user_sgpr_count 2", "  .amdhsa_user_sgpr_kernarg_segment_ptr 1",
                "  .amdhsa_system_sgpr_workgroup_id_x 1", ".end_amdhsa_kernel"]
    open(path, "w").write("\n".join(out) + "\n")

if __name__ == "__main__":
    ks = [("kvproj_kernel", 256, 256, 163840, gen_k1(), 512, 256)]
    emit(ks, sys.argv[1] if len(sys.argv) > 1 else "k.s")
```

```python
from gen import *

NEGINF = "0xff800000"
THR = f2u(2.0**60)

def gen_k2(prefix, K3):
    S_WS, S_WQ, S_W1, S_K, S_V, S_B1 = 4, 8, 12, 16, 20, 24
    sW, sH, sI, sPar = 28, 29, 30, 31
    sXN = 32
    sAct = 36
    sWm, sT, sT2, sT3 = 44, 45, 46, 47
    sWoQ, sWo1 = 48, 50
    sKd, sVd, sGd, sKr, sVr, sVk = 50, 51, 52, 53, 54, 55
    sC = {'a': 56, 'b': 57}
    sCnt, sThr, sRet = 58, 59, 60
    sPC = 62
    sKA = 64
    vL, vL16 = 2, 3
    vX = 4
    vWDq, vWD1 = 8, 10
    vT = 12; vTh = 16; vTt = 20
    vDM, vKr, vVr, vLB = 24, 25, 26, 27
    vNI = 28
    tA, tB = 29, 30
    WF = 32
    QE = 64
    QO = 128
    HA = 192
    P = {'a': 32, 'b': 48}
    S = {'a': 128, 'b': 160}
    QX = 192
    NM = {'a': 224, 'b': 232}
    ET = 240
    TS = {'a': 244, 'b': 246}; LS = {'a': 248, 'b': 250}; MS = {'a': 252, 'b': 254}
    O = {'a': 0, 'b': 64}; KF_, VF_ = 128, 192
    qf = lambda mbx, js: QE + (js*4 + mbx)*4
    Qreg = {'a': lambda nb, js: qf(nb, js), 'b': lambda nb, js: qf(2+nb, js), 'x': lambda nb, js: QX + (js*2+nb)*4}

    pre = (prefix + L(["K2_BEGIN:"]) if prefix else []) + prof_begin()
    pre += L([f"s_load_dwordx2 s[64:65], s[0:1], 16", "s_load_dwordx2 s[68:69], s[0:1], 56",
              "s_load_dwordx2 s[66:67], s[0:1], 96", "s_load_dwordx2 s[26:27], s[0:1], 64",
              ] + ([] if FUSED else ["s_cmp_ge_u32 s2, 256", "s_cbranch_scc1 K2_END"]))
    pre += L(["v_mov_b32 v31, v0", "v_lshrrev_b32 v1, 6, v0", f"v_and_b32 v{vL}, 63, v0", f"v_readfirstlane_b32 s{sW}, v1",
              f"v_lshlrev_b32 v{vL16}, 4, v{vL}",
              f"s_and_b32 s{sT}, s2, 7", f"s_lshl_b32 s{sT}, s{sT}, 2", f"s_bfe_u32 s{sT2}, s2, 0x20003",
              f"s_add_u32 s{sH}, s{sT}, s{sT2}", f"s_lshr_b32 s{sI}, s2, 5", f"s_and_b32 s{sPar}, s{sW}, 1"])
    for j in range(4):
        pre += L([f"s_add_u32 s{sT}, s{sH}, {j}", f"s_and_b32 s{sT}, s{sT}, 3", f"s_lshl_b32 s{sT}, s{sT}, 10", f"v_add_u32 v{vX+j}, s{sT}, v{vL16}"])
    for u in range(2):
        pre += L([f"s_lshr_b32 s{sT}, s{sW}, 1", f"s_add_u32 s{sT}, s{sT}, s{sH}", f"s_add_u32 s{sT}, s{sT}, {2*u}", f"s_and_b32 s{sT}, s{sT}, 3",
                  f"s_lshl_b32 s{sT}, s{sT}, 1", f"s_add_u32 s{sT}, s{sT}, s{sPar}", f"s_lshl_b32 s{sWoQ+u}, s{sT}, 17", f"s_mul_i32 s{sWo1+u}, s{sT}, {16*2752}"])
    pre += L(w_dma_voff(vL, vWDq, vWDq+1, 8192, tA, tB) + w_dma_voff(vL, vWD1, vWD1+1, 2752, tA, tB))
    pre += L([f"s_lshl_b32 s{sT}, s{sI}, 3", f"s_lshl_b32 s{sT2}, s{sW}, 1", f"s_add_u32 s{sT3}, s{sT}, s{sT2}",
              f"s_sub_u32 s{sT}, 120, s{sT}", f"s_add_u32 s{sT}, s{sT}, s{sT2}",
              f"s_lshl_b32 s{sXN}, s{sT3}, 14", f"s_add_u32 s{sXN+1}, s{sXN}, 16384",
              f"s_lshl_b32 s{sXN+2}, s{sT}, 14", f"s_add_u32 s{sXN+3}, s{sXN+2}, 16384",
              f"s_mul_i32 s{sAct}, s{sT3}, {CA_RB}", f"s_mul_i32 s{sAct+4}, s{sT}, {CA_RB}",
              f"s_lshl_b32 s{sC['a']}, s{sT3}, 4", f"s_lshl_b32 s{sC['b']}, s{sT}, 4",
              f"s_lshl_b32 s{sWm}, s{sW}, 11",
              f"s_lshl_b32 s{sT}, s{sH}, 8", f"s_lshl_b32 s{sT2}, s{sH}, 7"])
    pre += L(["s_waitcnt lgkmcnt(0)"]) + stamp(1)
    pre += L(srd(S_WS, 66, 67, WS_SIZE))
    def ldX(st, js):
        return [T(f"buffer_load_dwordx4 {ar((mbx*16+4*st+j)*4)}, v{vX+j}, {sr(S_WS)}, s{sXN+mbx} offen{LDF}", ('X', st))
                for j in js for mbx in range(4)] + [I(f"v_add_u32 v{vX+j}, 4096, v{vX+j}") for j in js]
    own = lambda st: ldX(st, [0]); rest = lambda st: ldX(st, [1, 2, 3])
    ring = [0, 1, 2, 3, 4, 5, 8, 9, 10, 11, 12, 13]
    pslot = lambda p, u: ring[((p % 6)*2 + u)]*8192
    hslot = [6, 7, 14, 15, 16, 17, 18, 19]
    def dmaUT(which, ksl, colb, ldsoff, tag):
        sd, vd, so, pitch = (S_W1, vWD1, sWo1, 2752) if which == 1 else (S_WQ, vWDq, sWoQ, 8192)
        return [I(f"s_add_u32 m0, s{sWm}, {ldsoff}"), I(f"s_add_u32 s{sT3}, s{so + ksl % 2}, {(ksl//2)*128*pitch + colb}"),
                T(f"buffer_load_dwordx4 v{vd}, {sr(sd)}, s{sT3} offen lds", tag),
                T(f"buffer_load_dwordx4 v{vd+1}, {sr(sd)}, s{sT3} offen offset:1024 lds", tag)]
    def dmaP(p): return [x for u in range(2) for x in dmaUT(1 if p % 2 == 0 else 0, (p//2)*2 + u, 0, pslot(p, u), ('W', p))]
    def dmaH(ks): return [x for k in ks for x in dmaUT(0, k, 128, hslot[k]*8192, 'WH')]
    DIAG = os.environ.get('DIAG')
    dst = lambda k: (L(['s_waitcnt vmcnt(0)'] if DIAG == 'w' else []) + stamp(k)) if DIAG else []
    o01 = own(0)
    pre += (o01[:1] + dst(8) + o01[1:] + dst(9)) if DIAG == 'w' else o01
    pre += L(srd_off(S_W1, 68, 69, sT2, 512*2752) + srd_off(S_WQ, 64, 65, sT, 0x400000))
    pre += dmaP(0)
    pre += L([f"s_mov_b32 s{S_B1}, s26", f"s_mov_b32 s{S_B1+1}, s27", f"s_mov_b32 s{S_B1+2}, 2752", f"s_mov_b32 s{S_B1+3}, 0x00020000",
              f"v_lshrrev_b32 v{tA}, 4, v{vL}", f"v_lshlrev_b32 v{tA}, 3, v{tA}"])
    BI = 64
    pre += [T(f"buffer_load_dwordx2 {vr(BI+16+2*fb, 2)}, v{tA}, {sr(S_B1)}, s{sT2} offen offset:{fb*32}", 'bias') for fb in range(4)]
    pre += dst(10) + rest(0) + stamp(2)
    pre += L(w_tr_addr(vL, vT, tA, tB)) + L([f"v_add_u32 v{vTh+c}, 0x10000, v{vT+c}" for c in range(4)] + [f"v_add_u32 v{vTt+c}, 0x20000, v{vT+c}" for c in range(4)])
    pre += L([f"s_lshl_b32 s{sT}, s{sH}, 19", f"s_lshl_b32 s{sT2}, s{sI}, 15", f"s_sub_u32 s{sT2}, 0x80000, s{sT2}",
              f"s_add_u32 s{sT3}, s{sT}, {WS_KF}", f"s_add_u32 s{S_K}, s66, s{sT3}", f"s_addc_u32 s{S_K+1}, s67, 0", f"s_mov_b32 s{S_K+2}, s{sT2}", f"s_mov_b32 s{S_K+3}, 0x00020000",
              f"s_add_u32 s{sT3}, s{sT}, {WS_VF}", f"s_add_u32 s{S_V}, s66, s{sT3}", f"s_addc_u32 s{S_V+1}, s67, 0", f"s_mov_b32 s{S_V+2}, s{sT2}", f"s_mov_b32 s{S_V+3}, 0x00020000"])
    pre += L([f"s_add_u32 s{sAct+2}, s{sAct}, {CA_RB}", f"s_add_u32 s{sAct+6}, s{sAct+4}, {CA_RB}",
              f"s_lshl_b32 s{sT}, s{sH}, 11", f"s_add_u32 s{sT}, s{sT}, {WS_CA + 128*1024}",
              f"s_lshl_b32 s{sT2}, s{sH}, 12", f"s_add_u32 s{sT2}, s{sT2}, {WS_CA}"])
    ctxoff = []
    for mbx in range(4):
        ctxoff += L([f"s_add_u32 s{sXN+mbx}, s{sAct+2*mbx}, s{sT2}"])
    actoff = []
    for mbx in range(4):
        actoff += L([f"s_add_u32 s{sAct+2*mbx}, s{sAct+2*mbx}, s{sT}", f"s_add_u32 s{sAct+2*mbx+1}, s{sAct+2*mbx}, 1024",
                     f"s_cmp_gt_u32 s{sH}, 21", f"s_cselect_b32 s{sAct+2*mbx}, 0x10000000, s{sAct+2*mbx}",
                     f"s_cmp_gt_u32 s{sH}, 20", f"s_cselect_b32 s{sAct+2*mbx+1}, 0x10000000, s{sAct+2*mbx+1}"])
    pre += L([f"s_mov_b32 s{sKr}, s{sT}", f"s_mov_b32 s{sVr}, s{sT2}"])
    fix = lambda lst: [I(x.text.replace(f"s{sT2}", f"s{sVr}").replace(f"s{sT}", f"s{sKr}")) for x in lst]
    ctxoff, actoff = fix(ctxoff), fix(actoff)
    pre += L([f"v_lshl_add_u32 v{vDM}, s{sW}, 12, v{vL16}" if False else f"v_mov_b32 v{tA}, s{sW}", f"v_lshl_add_u32 v{vDM}, v{tA}, 12, v{vL16}",
              f"v_and_b32 v{tA}, 15, v{vL}", f"v_lshrrev_b32 v{tB}, 4, v{vL}", f"v_lshlrev_b32 v{tB}, 2, v{tB}", f"v_sub_u32 v{vLB}, v{tA}, v{tB}",
              f"v_mov_b32 v{vNI}, {NEGINF}", f"s_mov_b32 s{sThr}, {THR:#x}"])
    pre += own(1) + dmaP(1)
    pre += L([f"s_mov_b32 s{sRet}, {f2u(SCALE):#x}"]) + k_epilogue(2, sRet) + k_epilogue(3, sRet)
    pre += L([f"s_lshl_b32 s{sRet}, s{sH}, 19", f"s_lshl_b32 s{sRet+1}, s{sI}, 16", f"s_add_u32 s{sRet}, s{sRet}, s{sRet+1}",
              f"s_lshl_b32 s{sRet+1}, s{sW}, 14", f"s_add_u32 s{sRet}, s{sRet}, s{sRet+1}", f"s_add_u32 s{sRet}, s{sRet}, {WS_KF}"])
    kst = []
    for mb in range(4):
        for js in range(4):
            kst.append(([I(f"s_add_u32 s{sRet}, s{sRet}, 4096")] if (mb and js == 0) else []) +
                       [T(f"buffer_store_dwordx4 {vr(KACC(2*js, mb))}, v{vL16}, {sr(S_WS)}, s{sRet} offen offset:{js*1024}{STF}", 'kst')])
    pre += [Wait(vm='bias')]
    for fb in range(4):
        for hw in range(2):
            pre += L([f"v_lshlrev_b32 v{BI+4*fb+2*hw}, 16, v{BI+16+2*fb+hw}", f"v_and_b32 v{BI+4*fb+2*hw+1}, 0xffff0000, v{BI+16+2*fb+hw}"])
    pre += stamp(3)
    xfr = lambda mbx, ks: ar((mbx*16 + ks)*4)
    def tra(o, cb): return ((vT, vTh, vTt)[o >> 16] + cb, o & 0xffff)
    qacc = lambda db, mbx: (QE if db % 2 == 0 else QO) + ((db//2)*4 + mbx)*4
    groups = []
    for p in range(8):
        st = p//2
        for cb in range(4):
            fr = [tra(pslot(p, j//2) + (j % 2)*4096, cb) for j in range(4)]
            chains = []
            for mbx in range(4):
                if p % 2 == 0: D = HA + (cb*4 + mbx)*4; C0 = vr(BI + 4*cb)
                else: D = qacc(cb, mbx); C0 = '0'
                chains.append([(lambda f, D=D, mbx=mbx, ks=st*4+j, C0=C0: f"{MF} {vr(D)}, {vr(f)}, {xfr(mbx, ks)}, {C0 if ks == 0 else vr(D)}") for j in range(4)])
            gr = dict(frags=fr, chains=chains)
            if cb == 0:
                gr['sync'] = [Wait(vm=('W', p)), I("s_barrier")]; gr['pair'] = p
                if p % 2 == 0: gr['xwait'] = st
            groups.append(gr)
    for cb in range(4):
        for kq in range(4):
            fr = [tra(hslot[(kq*4+j)//2]*8192 + (j % 2)*4096, cb) for j in range(4)]
            chains = []
            for mbx in range(4):
                D = qacc(4+cb, mbx)
                chains.append([(lambda f, D=D, mbx=mbx, ks=kq*4+j: f"{MF} {vr(D)}, {vr(f)}, {xfr(mbx, ks)}, {'0' if ks == 0 else vr(D)}") for j in range(4)])
            gr = dict(frags=fr, chains=chains)
            if cb == 0 and kq == 0: gr['sync'] = [Wait(vm='WH'), I("s_barrier")]; gr['pair'] = 8
            groups.append(gr)
    G = Gaps(768)
    starts, gend = gemm_groups(G, 0, groups, WF, pre)
    assert gend == 768
    for n, gr in enumerate(groups):
        if 'xwait' in gr: G.before(starts[n], Wait(vm=('X', gr['xwait'])))
    bar = {gr['pair']: gr['syncgap'] for gr in groups if 'pair' in gr}
    for k, grp in enumerate(kst):
        for x in grp: G.nv[6 + 27*k].append(x)
    G.pre[bar[8]].insert(0, Wait(vm='kst'))
    sig = L([f"s_lshl_b32 s{sGd}, s{sH}, 7", f"s_add_u32 s{sGd}, s{sGd}, {FL_KV}", f"s_lshl_b32 s{sVk}, s{sI}, 2", f"s_add_u32 s{sVk}, s{sVk}, s{sGd}",
             f"v_mov_b32 v{vKr}, 1", f"v_mov_b32 v{vVr}, 0"])
    for j, x in enumerate(sig): G.nv[bar[8] - 12 + j].append(x)
    sig = one_lane([T(f"buffer_store_dword v{vKr}, v{vVr}, {sr(S_WS)}, s{sVk} offen sc1", 'NOCOUNT')], sW, "K2_SIG", sT)
    sig += L([f"v_and_b32 v{vVr}, 7, v{vL}", f"v_lshlrev_b32 v{vVr}, 2, v{vVr}"])
    for x in sig: G.nv[bar[8]].append(x)
    pl = f"buffer_load_dword v{vKr}, v{vVr}, {sr(S_WS)}, s{sGd} offen sc1"
    GP = int(os.environ.get("GP", "600"))
    G.put(GP, T(pl, 'kvf'))
    for x in [Wait(vm='kvf')] + L([f"v_cmp_ne_u32 vcc, 1, v{vKr}", "s_cbranch_vccnz K2_KVSPIN_E", "K2_KVOK:"]) + (stamp(3) if os.environ.get("KVST") else []): G.before(GP + 40, x)
    if os.environ.get("KVST"):
        for x in stamp(2): G.before(GP + 39, x)
        for x in stamp(1): G.before(bar[8] - 1, x)
        for x in stamp(4): G.nv[bar[8]].append(x)
    kvstub = L(["K2_KVSPIN_E:"]) + spin("K2_KVSPIN", pl, vKr, 1, sCnt) + L(["s_branch K2_KVOK"])
    def dmaKV(which, t):
        sd, base = (S_K, 0) if which == 'K' else (S_V, 65536)
        return [I(f"s_lshl_b32 s{sT3}, s{sW}, 12"), I(f"s_add_u32 m0, s{sT3}, {base + t*16384}"), I(f"s_mov_b32 s{sT3}, {t*16384}")] + \
               [T(f"buffer_load_dwordx4 v{vDM}, {sr(sd)}, s{sT3} offen offset:{j*1024}{LDF} lds", ('KV', which, t)) for j in range(4)]
    trail = lambda l: l + [I("s_nop 0")] if False else l
    stream = [(0, own(2) + rest(1) + dmaP(2) + dmaP(3) + own(3) + rest(2) + dmaP(4) + dmaP(5) + rest(3)[:-3]),
              (bar[2], dmaP(6)), (bar[3], dmaP(7) + dmaH(range(8))),
              ]
    end = place_stream(G, stream, 4, start=4)
    print("K2 prologue dma stream (part 1) ends at gap", end)
    gb = 512 + 40
    G.before(gb, I("s_barrier"))
    end = place_stream(G, [(GP + 40, dmaKV('K', 0) + dmaKV('V', 0) + dmaKV('K', 1) + dmaKV('K', 2) + dmaKV('V', 1) + dmaKV('V', 2))], int(os.environ.get('KVSP', '4')), start=GP + 40)
    print("K2 prologue dma stream ends at gap", end)
    for j, x in enumerate(ctxoff + actoff): G.put(300 + (j//2), x)
    ins = []
    for js in range(2):
        for mbx in range(4):
            E, Od = qf(mbx, js), QO + (js*4 + mbx)*4
            ins += L([f"v_cvt_pk_bf16_f32 v{E}, v{E}, v{E+1}", f"v_cvt_pk_bf16_f32 v{E+1}, v{E+2}, v{E+3}",
                      f"v_cvt_pk_bf16_f32 v{E+2}, v{Od}, v{Od+1}", f"v_cvt_pk_bf16_f32 v{E+3}, v{Od+2}, v{Od+3}"])
    LOG2E = f2u(math.log2(math.e))
    mish = []
    for fbp in range(2):
        for mbx in range(4):
            D0, D1 = HA + ((2*fbp)*4 + mbx)*4, HA + ((2*fbp+1)*4 + mbx)*4
            regs = [D0+r for r in range(4)] + [D1+r for r in range(4)]
            for a, b in zip(regs[0::2], regs[1::2]):
                mish += L([f"v_mul_f32 v{tA}, {LOG2E:#x}, v{a}", f"v_mul_f32 v{tB}, {LOG2E:#x}, v{b}",
                           f"v_exp_f32 v{tA}, v{tA}", f"v_exp_f32 v{tB}, v{tB}",
                           f"v_add_f32 v0, 2.0, v{tA}", f"v_add_f32 v1, 2.0, v{tB}",
                           f"v_fma_f32 v{tA}, v{tA}, v0, 2.0", f"v_fma_f32 v{tB}, v{tB}, v1, 2.0",
                           f"v_rcp_f32 v{tA}, v{tA}", f"v_rcp_f32 v{tB}, v{tB}",
                           f"v_mul_f32 v{tA}, v{tA}, v{a}", f"v_mul_f32 v{tB}, v{tB}, v{b}",
                           f"v_fma_f32 v{a}, v{tA}, -2.0, v{a}", f"v_fma_f32 v{b}, v{tB}, -2.0, v{b}"])
            mish += L([f"v_cvt_pk_bf16_f32 v{D0}, v{D0}, v{D0+1}", f"v_cvt_pk_bf16_f32 v{D0+1}, v{D0+2}, v{D0+3}",
                       f"v_cvt_pk_bf16_f32 v{D0+2}, v{D1}, v{D1+1}", f"v_cvt_pk_bf16_f32 v{D0+3}, v{D1+2}, v{D1+3}",
                       f"buffer_store_dwordx4 {vr(D0)}, v{vL16}, {sr(S_WS)}, s{sAct+2*mbx+fbp} offen{STF2}"])
    spread(G, mish, 456, 740)
    spread(G, ins, 520, 640)
    def qcvt(js, mbx):
        E, Od = qf(mbx, js), QO + (js*4 + mbx)*4
        return L([f"v_cvt_pk_bf16_f32 v{E}, v{E}, v{E+1}", f"v_cvt_pk_bf16_f32 v{E+1}, v{E+2}, v{E+3}",
                  f"v_cvt_pk_bf16_f32 v{E+2}, v{Od}, v{Od+1}", f"v_cvt_pk_bf16_f32 v{E+3}, v{Od+2}, v{Od+3}"])
    spread(G, [x for mbx in (2, 3, 0, 1) for x in qcvt(2, mbx)], 648, 716)
    ONE, ZR, T4 = 8, 20, 12
    sMk = 62
    vXB = 5
    zero_o = lambda s: [I(f"v_mfma_f32_32x32x16_bf16 {ar(O[s]+16*k, 16)}, {vr(ZR)}, {vr(ZR)}, 0") for k in range(4)]
    su = L(["s_load_dwordx2 s[8:9], s[0:1], 40", "s_load_dwordx2 s[12:13], s[0:1], 72",
            f"s_and_b32 s26, s2, 3", f"s_lshr_b32 s27, s2, 3", f"s_lshl_b32 s27, s27, 2", f"s_add_u32 s27, s27, s{sW}",
            f"s_mul_i32 s24, s26, 352", f"s_mul_i32 s25, s27, 3", "s_add_u32 s24, s24, s25", "s_lshl_b32 s24, s24, 10",
            f"s_lshl_b32 s26, s26, 20", f"s_lshl_b32 s27, s27, 13", f"s_add_u32 s26, s26, s27",
            "s_add_u32 s10, s26, 8192", "s_mov_b32 s11, 0x00020000", "s_add_u32 s14, s24, 3072", f"s_min_u32 s14, s14, {1376*1024}", "s_mov_b32 s15, 0x00020000"] +
           [f"v_mov_b32 v{ONE+k}, 0x3f803f80" for k in range(4)] +
           [f"v_cmp_le_i32 s[{sMk+2*r}:{sMk+2*r+1}], {r}, v{vLB}" for r in range(4)] +
           [f"s_lshl_b32 s{sKd}, s{sW}, 12", f"s_add_u32 s{sKd}, s{sKd}, {3*16384}", f"s_mov_b32 s{sVd}, s{sKd}", f"v_add_u32 v{vX}, 0x10000, v{vL16}",
            f"s_mov_b32 s{sKr}, 16384", f"s_mov_b32 s{sVr}, 0",
            f"s_lshl_b32 s27, s{sPar}, 13", f"s_lshr_b32 s25, s{sW}, 1", "s_lshl_b32 s25, s25, 16", "s_add_u32 s27, s27, s25", f"s_add_u32 s27, s27, {49152}",
            f"v_add_u32 v{vXB}, s27, v{vL16}"])
    for j, x in enumerate(su): G.nv[360 + 2*j].append(x)
    kread = lambda f: T(f"ds_read_b128 {ar(KF_+4*f)}, v{vL16} offset:{f*1024}", ('kf', f))
    qw = lambda js, nb: T(f"ds_write_b128 v{vXB}, {vr(Qreg['b'](nb, js))} offset:{(js*2+nb)*1024}", 'qw')
    for x in [Wait(vm=('KV', 'K', 0), lg=0), I("s_barrier")]: G.before(722, x)
    for f in range(12): G.put(724 + 16*(f//4) + 2*(f % 4), kread(f))
    for k in range(6): G.put(725 + 4*k, qw(k//2, k % 2))
    post = qcvt(3, 2) + qcvt(3, 3) + [qw(3, 0), qw(3, 1)] + qcvt(3, 0) + qcvt(3, 1) + [kread(f) for f in range(12, 16)]
    sreg = lambda s, mb, nb: S[s] + (mb*2 + nb)*4
    def prepass_mfma(s, q):
        return [I(f"{MF} {vr(sreg(s,0,nb))}, {ar(KF_+4*js)}, {vr(Qreg[q](nb, js))}, {'0' if js == 0 else vr(sreg(s,0,nb))}") for nb in range(2) for js in range(4)]
    def xred(op, v, t):
        return L([f"v_mov_b32 v{t}, v{v}", f"v_permlane16_swap_b32 v{t}, v{v}", f"{op} v{v}, v{v}, v{t}",
                  f"v_mov_b32 v{t}, v{v}", f"v_permlane32_swap_b32 v{t}, v{v}", f"{op} v{v}, v{v}, v{t}"])
    def zipl(a, b):
        def grp(l):
            g = []
            for x in l:
                if x.kind == 'label' and g: g[-1].append(x)
                else: g.append([x])
            return g
        a, b = grp(a), grp(b)
        o = []
        for k in range(max(len(a), len(b))):
            for y in a[k:k+1] + b[k:k+1]: o += y
        return o
    def prepass_init(s, mask):
        o = []
        if mask:
            o += L([f"v_add_u32 v{tA}, s{sC[s]}, v{vLB}"])
            prs = [(nb, r) for nb in range(2) for r in range(4)]
            pr = lambda k: "vcc" if k % 2 == 0 else f"s[{sRet}:{sRet+1}]"
            for k in range(0, 8, 2):
                o += L([f"v_cmp_le_i32 {pr(j)}, {prs[j][1] - 16*prs[j][0]}, v{tA}" for j in (k, k+1)])
                o += L([f"v_cndmask_b32 v{sreg(s,0,prs[j][0])+prs[j][1]}, v{vNI}, v{sreg(s,0,prs[j][0])+prs[j][1]}, {pr(j)}" for j in (k, k+1)])
        ch = []
        for nb in range(2):
            b = sreg(s, 0, nb); m = MS[s] + nb
            ch.append(L([f"v_max3_f32 v{m}, v{b}, v{b+1}, v{b+2}", f"v_max_f32 v{m}, v{m}, v{b+3}"]) + xred("v_max_f32", m, (tA, tB)[nb]) +
                      L([f"v_max_f32 v{m}, {f2u(-1e30):#x}, v{m}"] + [f"v_sub_f32 v{NM[s]+4*nb+r}, 0, v{m}" for r in range(4)]))
        return o + zipl(ch[0], ch[1])
    misc = L([f"v_mov_b32 v{ZR+k}, 0" for k in range(4)] + [f"v_mov_b32 v{LS[s]+nb}, 0" for s in 'ab' for nb in range(2)] +
             [f"s_mov_b32 s{sGd}, {3*16384}", f"s_lshl_b32 s{sCnt}, s{sI}, 1", f"s_sub_u32 s{sCnt}, s{sCnt}, 1", f"v_xor_b32 v{vXB}, 0x2000, v{vXB}"])
    def under(mf, fl, per=2):
        o = []
        for k, x in enumerate(mf): o += [x] + fl[per*k:per*k+per]
        return o + fl[per*len(mf):]
    post += under(prepass_mfma('a', 'a'), misc)
    post += [Wait(lg='qw'), I("s_barrier")]
    qxr = [I(f"ds_read_b128 {vr(Qreg['x'](nb, js))}, v{vXB} offset:{(js*2+nb)*1024}") for js in range(4) for nb in range(2)]
    pb = prepass_mfma('b', 'b')
    post += under(pb[:4], qxr) + under(pb[4:], prepass_init('a', True))

    NG, HG = 136, 68
    def body(name, qa, ntile, vmw, hooks, kread_on=True):
        B = Gaps(NG); used = [0]*NG; cls = {}
        cost = lambda x: 0 if x.kind == 'label' else (2 if x.kind in ('trans', 'vmem') else 1)
        def put(g, x, c, where=None):
            x = I(x) if isinstance(x, str) else x
            g %= NG
            if where == 'pre': B.before(g, x); used[(g-1) % NG] += cost(x)
            elif where == 'nv': B.nv[g].append(x); used[g] += cost(x)
            else: B.put(g, x); used[g] += cost(x)
            cls[id(x)] = c; return x
        def free(g, x, c, lim=None):
            x = I(x) if isinstance(x, str) else x
            while used[g % NG] + cost(x) > 2: g += 1
            assert lim is None or g <= lim, (name, x, g, lim)
            put(g, x, c, 'nv'); return g
        for s, g0, q in (('a', 0, qa), ('b', HG, 'b')):
            o = 'b' if s == 'a' else 'a'
            seq = []
            for mb in range(4):
                for nb in range(2):
                    D = vr(sreg(s, mb, nb))
                    seq += [(f"{MF} {D}, {ar(KF_+4*(mb*4+js))}, {vr(Qreg[q](nb, js))}, {vr(NM[s]+4*nb) if js == 0 else D}", 'qk'+s) for js in range(4)]
            ones = [(f"{MF} {vr(T4+4*nb)}, {vr(ONE)}, {vr(P[o]+(nb*2+ks)*4)}, {'0' if ks == 0 else vr(T4+4*nb)}", 'sm'+o) for nb in range(2) for ks in range(2)]
            seq[24:24] = ones
            for db in range(8):
                for nb in range(2):
                    D = ar(O[o] + (db*2+nb)*4)
                    seq += [(f"{MF} {D}, {ar(VF_+4*(db*2+ks))}, {vr(P[o]+(nb*2+ks)*4)}, {D}", 'pv'+o) for ks in range(2)]
            for k, (t, c) in enumerate(seq):
                B.mf[g0+k] = I(t); cls[id(B.mf[g0+k])] = c
            E0 = g0 + 26
            for e in range(32):
                mb, nb, r = e//8, (e//4) % 2, e % 4
                t = ET + (e % 4)
                put(E0 + 2*e, f"v_exp_f32 v{t}, v{sreg(s, mb, nb) + r}", 'sm'+s)
                if r % 2 == 1:
                    put(E0 + 2*e + 1, f"v_cvt_pk_bf16_f32 v{P[s] + (nb*2 + mb//2)*4 + (mb % 2)*2 + r//2}, v{t-1}, v{t}", 'sm'+s)
            if s not in hooks and s == 'a' and ntile == 1:
                for gh in (E0 - 1, E0 + 31): used[gh % NG] += 2
            if s in hooks:
                for hk, gh, lim in ((0, E0 - 1, 0), (1, E0 + 31, 32)):
                    lab = f"{name}_mk{s}{hk}"
                    put(gh, f"s_cmp_le_i32 s{sC[s]}, {lim}", 'sm'+s, 'nv'); put(gh, f"s_cbranch_scc1 {lab}", 'sm'+s, 'nv'); put(gh, f"{lab}_r:", 'sm'+s, 'nv')
            gc = g0 + HG + 31
            lab = f"{name}_rd{s}"
            put(gc, f"v_max_f32 v1, v{T4}, v{T4+4}", 'sm'+s); put(gc, f"v_cmp_lt_f32 vcc, s{sThr}, v1", 'sm'+s)
            put(gc+2, f"s_cbranch_vccnz {lab}", 'sm'+s, 'nv'); put(gc+2, f"{lab}_r:", 'sm'+s, 'nv')
            put(gc+4, f"v_add_f32 v{LS[s]}, v{LS[s]}, v{T4}", 'sm'+s); put(gc+4, f"v_add_f32 v{LS[s]+1}, v{LS[s]+1}, v{T4+4}", 'sm'+s)
        put(0, "s_waitcnt lgkmcnt(0)", 'mem', 'pre')
        put(4, f"s_waitcnt vmcnt({vmw})", 'mem', 'pre'); put(4, "s_barrier", 'mem', 'pre')
        free(5, f"v_add_u32 v{vVr}, s{sVr}, v{vX}", 'mem', 8)
        if kread_on: free(5, f"v_add_u32 v{vKr}, s{sKr}, v{vL16}", 'mem', 8)
        st = []
        wpf = [f"buffer_load_dword v5, v{vL16}, s[8:11], s26 offen", "s_add_u32 s26, s26, 1024"]
        if ntile == 1:
            st += [f"s_mov_b32 m0, s{sKd}"] + [f"buffer_load_dwordx4 v{vDM}, {sr(S_K)}, s{sGd} offen offset:{j*1024}{LDF} lds" for j in range(4)]
            st += wpf + [f"s_add_u32 s{sKd}, s{sKd}, 16384", f"s_and_b32 s{sKd}, s{sKd}, 0xffff", f"s_add_u32 m0, s{sVd}, 0x10000"]
            st += [f"buffer_load_dwordx4 v{vDM}, {sr(S_V)}, s{sGd} offen offset:{j*1024}{LDF} lds" for j in range(4)]
        elif ntile == 2:
            st += [f"s_add_u32 s{sT3}, s{sGd}, 16384", f"s_mov_b32 m0, s{sKd}"] + [f"buffer_load_dwordx4 v{vDM}, {sr(S_K)}, s{sGd} offen offset:{j*1024}{LDF} lds" for j in range(4)]
            st += [f"s_add_u32 m0, s{sKd}, 16384"] + [f"buffer_load_dwordx4 v{vDM}, {sr(S_K)}, s{sT3} offen offset:{j*1024}{LDF} lds" for j in range(4)]
            st += wpf + [f"s_xor_b32 s{sKd}, s{sKd}, 0x8000", f"s_add_u32 m0, s{sVd}, 0x10000"] + [f"buffer_load_dwordx4 v{vDM}, {sr(S_V)}, s{sGd} offen offset:{j*1024}{LDF} lds" for j in range(4)]
            st += [f"s_add_u32 m0, s{sVd}, 0x14000"] + [f"buffer_load_dwordx4 v{vDM}, {sr(S_V)}, s{sT3} offen offset:{j*1024}{LDF} lds" for j in range(4)]
        if ntile:
            st += [f"s_add_u32 s{sVd}, s{sVd}, {ntile*16384}", f"s_sub_u32 s{sT}, s{sVd}, 98304", f"s_min_u32 s{sVd}, s{sVd}, s{sT}", f"s_add_u32 s{sGd}, s{sGd}, {ntile*16384}"]
            g = 8; nd = 0; sp = 116/(4*2*ntile)
            for t in st:
                x = I(t)
                if x.kind == 'vmem' and x.op == 'buffer_load_dword': g = free(g + 1, x, 'mem', NG-1)
                elif x.kind == 'vmem':
                    g = free(max(g + 1, int(9 + nd*sp)), x, 'mem', NG-1); nd += 1
                else: g = free(g, x, 'mem', NG-1)
            step = ntile*16384
            g = 9
            ku = [f"s_add_u32 s{sKr}, s{sKr}, 16384", f"s_and_b32 s{sKr}, s{sKr}, 0xffff"] if ntile == 1 else [f"s_xor_b32 s{sKr}, s{sKr}, 0x8000"]
            for t in ku + [f"s_add_u32 s{sVr}, s{sVr}, {step}", f"s_sub_u32 s{sT2}, s{sVr}, 98304", f"s_min_u32 s{sVr}, s{sVr}, s{sT2}"]:
                g = free(g, t, 'mem', NG-1)
        g = 43
        for f in range(16):
            g = free(max(g, 40 + 2*f), f"ds_read_b128 {ar(VF_+4*f)}, v{vVr} offset:{f*1024}", 'mem', 96)
        vlast = g
        nk_before = 0
        if kread_on:
            for f in range(16):
                lastuse = HG + 8*(f//4) + 4 + f % 4 + (4 if 8*(f//4) + 4 + f % 4 >= 24 else 0)
                g = free(max(g, lastuse + 1), f"ds_read_b128 {ar(KF_+4*f)}, v{vKr} offset:{f*1024}", 'mem', 131)
                if g < 104: nk_before += 1
        put(104, f"s_waitcnt lgkmcnt({nk_before})", 'mem', 'pre')
        if name == "Sf":
            for t in [f"v_lshlrev_b32 v{vKr}, 2, v{vDM}", f"v_mul_u32_u24 v6, 3, v{vL16}", f"v_sub_u32 v{vKr}, v{vKr}, v6"]: free(9, t, 'mem', 30)
            B.wr_left = []
            for f in range(16):
                x = I(f"ds_write_b128 v{vKr}, {ar(O['a']+4*f)} offset:{f*1024}")
                g = 104 + 2*f + 5
                while g < NG and used[g] + 1 > 2: g += 1
                if g < NG: put(g, x, 'mem', 'nv')
                else: B.wr_left.append(x)
            ea = K3['early']
            first = ea[:9] + ea[-6:]; rest_ = ea[9:-6]
            g = 5
            for x in first: g = free(g, x, 'mem', NG-1)
            g = max(g, 41); K3['spill'] = []
            for x in rest_:
                while g < NG and used[g] + cost(x) > 2: g += 1
                if g < NG: put(g, x, 'mem', 'nv')
                else: K3['spill'].append(x)
        over = [(g, u) for g, u in enumerate(used) if u > 2]
        print(f"  body {name}: slots used {sum(used)}/{2*NG}, overfull gaps {over}")
        return B, cls
    def mkstubs(name):
        o = []
        for s in 'ab':
            for hk in range(2):
                lab = f"{name}_mk{s}{hk}"; lo, hi = 2*hk, 2*hk+1
                o += L([f"{lab}:", f"s_cmp_lg_u32 s{sC[s]}, {32*hk}", f"s_cbranch_scc1 {lab}_all"])
                o += L([f"v_cndmask_b32 v{sreg(s,lo,0)+r}, v{vNI}, v{sreg(s,lo,0)+r}, s[{sMk+2*r}:{sMk+2*r+1}]" for r in range(4)])
                o += L([f"v_mov_b32 v{sreg(s,hi,0)+r}, v{vNI}" for r in range(4)])
                o += L([f"v_cndmask_b32 v{sreg(s,hi,1)+r}, v{vNI}, v{sreg(s,hi,1)+r}, s[{sMk+2*r}:{sMk+2*r+1}]" for r in range(4)])
                o += L([f"s_branch {lab}_r", f"{lab}_all:"] + [f"v_mov_b32 v{sreg(s,lo,0)+k}, v{vNI}" for k in range(16)] + [f"s_branch {lab}_r"])
            lab = f"{name}_rd{s}"
            o += L([f"{lab}:", f"s_call_b64 s[{sRet}:{sRet+1}], K2_REDO_{s}", f"s_branch {lab}_r"])
        return o
    def redo(s):
        o = L([f"K2_REDO_{s}:", "s_nop 7"])
        for nb in range(2):
            vals = [sreg(s, mb, nb) + r for mb in range(4) for r in range(4)]
            ts = T4 + 4*nb
            o += L([f"v_max3_f32 v{tA}, v{vals[0]}, v{vals[1]}, v{vals[2]}"] + [f"v_max3_f32 v{tA}, v{tA}, v{vals[k]}, v{vals[k+1]}" for k in range(3, 15, 2)]
                   + [f"v_max_f32 v{tA}, v{tA}, v{vals[15]}"]) + xred("v_max_f32", tA, tB)
            o += L([f"v_max_f32 v{tA}, 0, v{tA}", f"v_add_f32 v{MS[s]+nb}, v{MS[s]+nb}, v{tA}", f"v_sub_f32 v{tB}, 0, v{tA}", f"v_exp_f32 v{tB}, v{tB}"])
            o += L([f"v_sub_f32 v{NM[s]+4*nb+r}, 0, v{MS[s]+nb}" for r in range(4)])
            o += L([f"v_mul_f32 v{LS[s]+nb}, v{LS[s]+nb}, v{tB}"])
            o += L([f"v_sub_f32 v{v}, v{v}, v{tA}" for v in vals])
            for db in range(8):
                for r in range(4):
                    a = O[s] + (db*2+nb)*4 + r
                    o += L([f"v_accvgpr_read_b32 v0, a{a}", f"v_mul_f32 v0, v0, v{tB}", f"v_accvgpr_write_b32 a{a}, v0"])
            o += L([f"v_mov_b32 v{ts}, 0"])
            for mb in range(4):
                for r in (0, 2):
                    b = sreg(s, mb, nb) + r
                    pd = P[s] + (nb*2 + mb//2)*4 + (mb % 2)*2 + r//2
                    o += L([f"v_exp_f32 v{tA}, v{b}", f"v_exp_f32 v{tB}, v{b+1}", f"v_add_f32 v{ts}, v{ts}, v{tA}",
                            f"v_add_f32 v{ts}, v{ts}, v{tB}", f"v_cvt_pk_bf16_f32 v{pd}, v{tA}, v{tB}"])
            o += xred("v_add_f32", ts, tB)
        o += L(["s_nop 1", f"s_setpc_b64 s[{sRet}:{sRet+1}]"])
        return o
    def lin(Bc, lo, hi, keep=None, ren=None):
        B, cls = Bc
        out = []
        XF = os.environ.get("XF", "").split(",")
        for x in B.linear(lo, hi):
            if keep is None and B in XB_:
                if 'dma' in XF and x.kind == 'vmem': continue
                if 'bar' in XF and x.op == 's_barrier': continue
                if 'ds' in XF and x.kind == 'ds': continue
                if 'salu' in XF and x.kind == 'salu' and x.op not in ('s_waitcnt', 's_barrier'): continue
                if 'wait' in XF and x.op == 's_waitcnt': continue
                if 'chk' in XF and x.kind == 'branch': continue
                if 'cvt' in XF and x.op.startswith('v_cvt'): continue
            if keep is None or cls.get(id(x), 'mem') in keep:
                out.append(I(x.text.replace(*ren)) if ren else x)
        return out
    D = body("D", 'a', 1, 5, ''); Dm = body("Dm", 'a', 1, 5, 'a'); S1 = body("S1", 'a', 2, 5, 'a')
    SS = body("S", 'x', 2, 9, ''); Sf = body("Sf", 'x', 0, 0, 'ab', kread_on=False)
    XB_ = [D[0], SS[0]]
    pream = lin(Dm, 0, HG, ('qka', 'sma', 'mem'), ("Dm_", "PR_"))
    ib = prepass_init('b', False); zs = zero_o('a') + zero_o('b')
    p2 = []; nm = 0
    for x in pream:
        p2.append(x)
        if x.kind == 'mfma':
            nm += 1
            if nm >= 6 and ib: p2 += ib[:2]; ib = ib[2:]
        if nm == 32 and x.op == 'v_cvt_pk_bf16_f32' and zs: p2.append(zs.pop(0))
    assert not ib and not zs
    pream = p2
    for n, x in enumerate(pream):
        if x.text.startswith("s_waitcnt vmcnt"): pream[n] = Wait(vm=[('KV', 'K', 1), ('KV', 'V', 0)], lg=0)
    head = pre + stamp(4) + G.linear(0, 512) + stamp(5) + G.linear(512, 768) + stamp(6) + post + stamp(7) + pream
    head += L([f"buffer_load_dword v6, v{vL16}, s[12:15], s24 offen offset:{k*1024}" for k in range(3)])
    head += L([f"s_lshl_b32 s{sC['a']}, s{sW}, 5", f"s_cmp_eq_u32 s{sI}, 0", "s_cbranch_scc1 K2_DM_MID", "s_branch K2_D_MID"])
    head = resolve_waits(head)
    head, n1 = fix_hazards(head)
    dl = L(["K2_D:"]) + lin(D, 0, HG) + L(["K2_D_MID:"]) + lin(D, HG, NG) + L([f"s_sub_u32 s{sCnt}, s{sCnt}, 1", "s_cbranch_scc0 K2_D"])
    dl, n2 = fix_hazards(dl, pre=dl[-20:])
    assert os.environ.get('XF') or fix_hazards(lin(D, HG, HG+12), pre=head[-20:])[1] == 0 and fix_hazards(lin(Dm, HG, HG+12), pre=head[-20:])[1] == 0
    mid = lin(Dm, 0, HG) + L(["K2_DM_MID:"]) + lin(Dm, HG, NG)
    mid += L([f"s_lshl_b32 s{sT}, s{sPar}, 14", f"s_add_u32 s{sKr}, s{sKr}, s{sT}", f"s_and_b32 s{sKr}, s{sKr}, 0xffff", f"s_sub_u32 s{sC['a']}, s{sC['a']}, 64"])
    mid += (stamp(8) if not DIAG else []) + lin(S1, 0, NG) + (stamp(9) if not DIAG else [])
    def finalize(s, so, zero, wts=None):
        o = []
        for j in range(4):
            for nb in range(2):
                t = 132 if (j*2+nb) % 2 == 0 else 128
                t8 = 136 + ((j*2+nb) % 2)*8
                o += L([f"v_accvgpr_read_b32 v{t8+hh*4+r}, a{O[s] + ((2*j+hh)*2+nb)*4 + r}" for hh in range(2) for r in range(4)])
                sel = "op_sel_hi:[1,0]" if nb == 0 else "op_sel:[0,1] op_sel_hi:[1,1]"
                for k in range(0, 8, 2):
                    o += L([f"v_pk_mul_f32 {vr(t8+k,2)}, {vr(t8+k,2)}, {vr(TS[s],2)} {sel}"])
                    if wts is not None:
                        x = wts + ((2*j + k//4)*2+nb)*4 + k % 4
                        sel3 = "op_sel_hi:[1,0,1]" if nb == 0 else "op_sel:[0,1,0] op_sel_hi:[1,1,1]"
                        o += L([f"v_pk_fma_f32 {vr(t8+k,2)}, {vr(x,2)}, {vr(TS['a'],2)}, {vr(t8+k,2)} {sel3}"])
                o += L([f"v_cvt_pk_bf16_f32 v{t+k}, v{t8+2*k}, v{t8+2*k+1}" for k in range(4)])
                o += L([f"buffer_store_dwordx4 {vr(t)}, v{vL16}, {sr(S_WS)}, s{so+nb} offen offset:{j*1024}{STF2}"])
            if zero: o += [zero_o(s)[j]]
        return o
    tr = L([f"s_lshl_b32 s{sT}, s{sPar}, 14", f"s_add_u32 s{sVr}, s{sVr}, s{sT}", f"s_add_u32 s{sVr}, s{sVr}, {98304-16384}",
            f"s_sub_u32 s{sT2}, s{sVr}, 98304", f"s_min_u32 s{sVr}, s{sVr}, s{sT2}",
            f"s_lshl_b32 s{sT}, s{sI}, 7", f"s_sub_u32 s{sC['a']}, s{sC['b']}, s{sT}", f"s_lshl_b32 s{sT}, s{sPar}, 7", f"s_sub_u32 s{sC['a']}, s{sC['a']}, s{sT}",
            f"s_sub_u32 s{sC['a']}, s{sC['a']}, 96",
            f"s_lshl_b32 s{sCnt}, s{sI}, 1", f"s_sub_u32 s{sCnt}, 13, s{sCnt}", "s_waitcnt lgkmcnt(0)"])
    tr += L([f"v_rcp_f32 v{TS['a']+nb}, v{LS['a']+nb}" for nb in range(2)] + [f"v_mov_b32 v{LS['a']+nb}, 0" for nb in range(2)])
    tr += L([f"s_lshl_b32 s{sT}, s{sH}, 2", f"s_add_u32 s{sT}, s{sT}, {FL_AC}", f"s_lshl_b32 s{sT2}, s{sI}, 7", f"s_sub_u32 s{sT3}, {15*128}, s{sT2}",
             f"v_mov_b32 v{tA}, s{sT2}", f"v_writelane_b32 v{tA}, s{sT3}, 1", f"v_mov_b32 v{tB}, 1",
             f"s_cmp_lg_u32 s{sW}, 0", "s_cbranch_scc1 K2_SIGA", "s_mov_b64 exec, 3", f"buffer_store_dword v{tB}, v{tA}, {sr(S_WS)}, s{sT} offen sc1", "s_mov_b64 exec, -1", "K2_SIGA:"])
    fa = finalize('a', sXN, True)
    tr += fa + prepass_mfma('a', 'x') + prepass_init('a', True)
    tr += L([f"s_lshl_b32 s{sC['b']}, s{sW}, 5", f"s_lshl_b32 s{sT}, s{sPar}, 6", f"s_sub_u32 s{sC['b']}, s{sC['b']}, s{sT}",
             f"s_add_u32 s{sC['a']}, s{sC['b']}, 32", f"s_sub_u32 s{sC['a']}, s{sC['a']}, s{sT}"])
    mid += tr + (stamp(10) if not DIAG else []) + L([f"s_cmp_eq_u32 s{sI}, 7", "s_cbranch_scc1 K2_SF"])
    mid, n3 = fix_hazards(mid, pre=dl[-20:])
    sl = L(["K2_S:"]) + lin(SS, 0, NG) + L([f"s_sub_u32 s{sCnt}, s{sCnt}, 1", "s_cbranch_scc0 K2_S"])
    sl, n4 = fix_hazards(sl, pre=sl[-20:])
    assert os.environ.get('XF') or fix_hazards(sl[:24], pre=mid[-20:])[1] == 0
    tail = L(["K2_SF:"]) + code_prefetch("K3_BEGIN" if FUSED else "outproj_kernel", "K2_PC2", False, tA, tA, sRet, sT3, vtid=31) + lin(Sf, 0, NG)
    assert fix_hazards(tail[:24], pre=mid[-20:])[1] == 0
    tb = lin(SS, 0, HG, ('smb', 'pvb'), ("S_", "TL_"))
    kq = [n for n, x in enumerate(tb) if x.kind == 'mfma' and x.wr[0].startswith('a')][0]
    tail += L(["s_barrier",
               f"v_xor_b32 v{vVr}, 0x4000, v{vKr}", f"v_add_u32 v{vDM}, 0x10000, v{vDM}",
               f"v_mov_b32 v{NM['a']}, v{MS['a']}", f"v_mov_b32 v{NM['a']+1}, v{MS['a']+1}", f"v_mov_b32 v{NM['a']+2}, v{LS['a']}", f"v_mov_b32 v{NM['a']+3}, v{LS['a']+1}",
               f"ds_write_b128 v{vDM}, {vr(NM['a'])}"])
    wr = Sf[0].wr_left
    tail += zipl(zipl(tb[:kq], wr), K3['spill'] + K3['acheck'] + K3['loads'])
    XO = 64
    pv = tb[kq:]
    n0 = K3['need0']
    tail += zipl(pv[:8], zipl(n0[0:16:2], n0[1:16:2])[:0] + n0[:8]) + L(["s_waitcnt lgkmcnt(0)", "s_barrier", f"v_xor_b32 v{vDM}, 0x1000, v{vDM}", f"ds_read_b128 {vr(NM['a'])}, v{vDM}"])
    rd = L([f"ds_read_b128 {vr(XO+4*f)}, v{vVr} offset:{f*1024}" for f in range(16)])
    wt = L(["s_waitcnt lgkmcnt(15)"])
    ch = []
    for nb in range(2):
        mx, lx, mb_, lb, t = NM['a']+nb, NM['a']+2+nb, MS['b']+nb, LS['b']+nb, (tA, tB)[nb]
        ch.append(L([f"v_max_f32 v{t}, v{mx}, v{mb_}", f"v_sub_f32 v{mx}, v{mx}, v{t}", f"v_sub_f32 v{mb_}, v{mb_}, v{t}",
                     f"v_exp_f32 v{mx}, v{mx}", f"v_exp_f32 v{mb_}, v{mb_}", f"v_mul_f32 v{lb}, v{lb}, v{mb_}", f"v_fmac_f32 v{lb}, v{lx}, v{mx}",
                     f"v_rcp_f32 v{lb}, v{lb}", f"v_mul_f32 v{TS['b']+nb}, v{mb_}, v{lb}", f"v_mul_f32 v{TS['a']+nb}, v{mx}, v{lb}"]))
    fl = rd + wt + zipl(ch[0], ch[1]) + n0[8:]
    pvr = pv[8:]
    for k, x in enumerate(pvr): tail += [x] + fl[2*k:2*k+2]
    tail += fl[2*len(pvr):]
    fb = finalize('b', sXN+2, False, wts=XO)
    for x in fb:
        if x.kind == 'vmem': x.tag = 'cst'
    tail += L(["s_waitcnt lgkmcnt(0)"]) + fb
    tail += prof_end(1, S_WS, sW, 4, vtmp=32, drain=not FUSED)
    tail, n5 = fix_hazards(resolve_waits(tail + K3['main']), pre=sl[-20:])
    alltext = "\n".join(x.text for x in head + dl + mid + sl + tail)
    stubs = []
    for nm in ("PR", "D", "Dm", "S1", "S", "Sf", "TL"):
        cur = []
        for x in mkstubs(nm) + L(["SENTINEL:"]):
            if x.kind == 'label' and not x.text.endswith("_all:"):
                if cur and ("\n" + cur[0].text[:-1] + "_r:") in alltext: stubs += fix_hazards(cur)[0]
                cur = []
            cur.append(x)
    stubs += fix_hazards(redo('a'))[0] + fix_hazards(redo('b'))[0]
    stubs += kvstub + K3['stubs']
    seq = head + dl + mid + sl + tail + stubs
    print("total instrs", len(seq), "nops head/D/mid/S/tail", n1, n2, n3, n4, n5)
    return seq
```

```python
import math, sys, struct, os
from asmlib import *

WS_XN = 0x0
WS_KF = 0x200000
WS_VF = 0x1200000
WS_CA = 0x2200000
CA_RB = 172*1024
WS_EX = 0x4000000
WS_FL = 0x5000000
WS_SIZE = 0x10000000
SCALE = math.log2(math.e) / math.sqrt(128.0)
def f2u(f): return struct.unpack('<I', struct.pack('<f', f))[0]
MF = "v_mfma_f32_16x16x32_bf16"
def vr(b, n=4): return f"v[{b}:{b+n-1}]"
def ar(b, n=4): return f"a[{b}:{b+n-1}]"
def sr(b, n=4): return f"s[{b}:{b+n-1}]"
def L(lines): return [I(x) if isinstance(x, str) else x for x in lines]

def srd(d, lo, hi, size):
    return [f"s_mov_b32 s{d}, s{lo}", f"s_mov_b32 s{d+1}, s{hi}",
            f"s_mov_b32 s{d+2}, {size}" , f"s_mov_b32 s{d+3}, 0x00020000"]
def srd_off(d, lo, hi, soff, size):
    return [f"s_add_u32 s{d}, s{lo}, s{soff}\n    s_addc_u32 s{d+1}, s{hi}, 0", f"s_sub_u32 s{d+2}, {size}, s{soff}", f"s_mov_b32 s{d+3}, 0x00020000"]

PROF = bool(os.environ.get("PROF"))
STF = os.environ.get("STF", " sc1")
FUSED = os.environ.get("FUSED", "1") == "1"
LDF = " sc1" if FUSED else ""
FL_KV, FL_AC, FL_CX, FL_EX = WS_FL, WS_FL + 0x1000, WS_FL + 0x40000, WS_FL + 0x80000
STX = os.environ.get("STX", " sc1")
STF2 = os.environ.get("STF2", " sc1")
WS_PROF = 0xF000000
NSTAMP = 12
def stamp(k):
    return [I(f"s_memtime s[{72+2*k}:{73+2*k}]")] if PROF else []
def prof_begin():
    return ([I("s_memrealtime s[96:97]")] + [x for k in range(NSTAMP) for x in stamp(k)]) if PROF else []
def prof_end(kidx, S_WS, sW, nwaves, vtmp=0, drain=True):
    if not PROF: return []
    o = L((["s_waitcnt vmcnt(0)"] if drain else []) + ["s_memrealtime s[98:99]"]) + stamp(NSTAMP-1) + L(["s_waitcnt lgkmcnt(0)",
          f"s_mul_i32 s70, s2, {nwaves}", f"s_add_u32 s70, s70, s{sW}", "s_lshl_b32 s70, s70, 6",
          f"s_add_u32 s70, s70, {WS_PROF + kidx*0x40000}", f"v_mov_b32 v{vtmp+16}, 0"])
    regs = [96, 98] + [72+2*k for k in range(NSTAMP)] + [97, 99]
    for j, rg in enumerate(regs): o += L([f"v_mov_b32 v{vtmp+j}, s{rg}"])
    for j in range(4):
        o += L([f"buffer_store_dwordx4 {vr(vtmp+4*j)}, v{vtmp+16}, {sr(S_WS)}, s70 offen offset:{16*j}"])
    return o

def code_prefetch(label, here, wide, vdst, vaddr, sp, st, vtid=0):
    sh = 3 if wide else 2
    o = [f"s_getpc_b64 s[{sp}:{sp+1}]", f"{here}:"]
    if label is not None:
        o += [f"s_add_u32 s{sp}, s{sp}, {label}-{here}\n    s_addc_u32 s{sp+1}, s{sp+1}, 0"]
    o += [f"s_bfe_u32 s{st}, s2, 0x50003", f"s_lshl_b32 s{st}, s{st}, {8+sh}", f"v_lshlrev_b32 v{vaddr}, {sh}, v{vtid}", f"v_add_u32 v{vaddr}, s{st}, v{vaddr}",
          f"global_load_dwordx2 {vr(vdst, 2)}, v{vaddr}, s[{sp}:{sp+1}]" if wide else f"global_load_dword v{vdst}, v{vaddr}, s[{sp}:{sp+1}]"]
    return L(o)

def one_lane(ins, sW, lab, stmp):
    return L([f"s_cmp_lg_u32 s{sW}, 0\n    s_cbranch_scc1 {lab}\n    s_mov_b64 exec, 1"]) + ins + L(["s_mov_b64 exec, -1", f"{lab}:"])
def spin(lab, load, vdst, want, scnt):
    return L([f"s_mov_b32 s{scnt}, 0x40000", f"{lab}:", load, "s_waitcnt vmcnt(0)", f"v_cmp_ne_u32 vcc, {want}, v{vdst}", f"s_cbranch_vccz {lab}_ok",
              f"s_sleep {os.environ.get('SLP', '1')}", f"s_sub_u32 s{scnt}, s{scnt}, 1", f"s_cbranch_scc0 {lab}", f"{lab}_ok:"])

def red32(v, t):
    dpp = " row_mask:0xf bank_mask:0xf"
    return [f"v_add_f32_dpp v{v}, v{v}, v{v} quad_perm:[1,0,3,2]{dpp}",
            f"v_add_f32_dpp v{v}, v{v}, v{v} quad_perm:[2,3,0,1]{dpp}",
            f"v_add_f32_dpp v{v}, v{v}, v{v} row_half_mirror{dpp}",
            f"v_add_f32_dpp v{v}, v{v}, v{v} row_mirror{dpp}",
            f"v_mov_b32 v{t}, v{v}",
            f"v_permlane16_swap_b32 v{t}, v{v}",
            f"v_add_f32 v{v}, v{v}, v{t}"]

def w_dma_voff(vlane, vd0, vd1, pitch, t1, t2):
    return [f"v_bfe_u32 v{t1}, v{vlane}, 4, 1", f"v_lshlrev_b32 v{t1}, 1, v{t1}", f"v_and_b32 v{t2}, 7, v{vlane}",
            f"v_xor_b32 v{t1}, v{t1}, v{t2}", f"v_lshlrev_b32 v{t1}, 4, v{t1}",
            f"v_lshrrev_b32 v{t2}, 3, v{vlane}", f"v_mul_u32_u24 v{t2}, {pitch}, v{t2}",
            f"v_add_u32 v{vd0}, v{t1}, v{t2}", f"v_xor_b32 v{t1}, 64, v{t1}", f"v_add_u32 v{vd1}, v{t1}, v{t2}",
            f"v_add_u32 v{vd1}, {8*pitch-1024}, v{vd1}"]
def w_tr_addr(vlane, vT, t1, t2):
    o = [f"v_lshrrev_b32 v{t1}, 4, v{vlane}", f"v_lshlrev_b32 v{t1}, 10, v{t1}",
         f"v_bfe_u32 v{t2}, v{vlane}, 2, 2", f"v_lshl_add_u32 v{t1}, v{t2}, 7, v{t1}",
         f"v_and_b32 v{t2}, 3, v{vlane}", f"v_lshl_add_u32 v{t1}, v{t2}, 3, v{t1}",
         f"v_bfe_u32 v{t2}, v{vlane}, 3, 2",
         f"v_lshl_add_u32 v{vT}, v{t2}, 5, v{t1}"]
    for cb in range(1, 4): o += [f"v_xor_b32 v{vT+cb}, {cb*32}, v{vT}"]
    return o

def gemm_groups(G, g0, groups, WF, pre, nbuf=2):
    starts = []; g = g0
    for gr in groups:
        starts.append(g); g += len(gr['frags'])*len(gr['chains'])
    for n, gr in enumerate(groups):
        CH = len(gr['frags'])
        base = WF + (n % nbuf)*4*gr.get('bufsz', CH)
        tagid = gr.setdefault('id', (g0, n))
        reads = []
        for j, (va, off) in enumerate(gr['frags']):
            for t in range(2):
                reads.append(T(f"ds_read_b64_tr_b16 {vr(base+4*j+2*t,2)}, v{va} offset:{off+t*512}", ('wf', tagid, j)))
        if n == 0:
            pre.extend(gr.get('sync') or []); pre.extend(reads); gr['syncgap'] = None
        else:
            ps = starts[n-1]; plen = starts[n] - ps
            first = ps + 1
            for x in (gr.get('sync') or []): G.before(first, x)
            gr['syncgap'] = first
            span = max(len(reads), (plen*3)//4 - 1)
            for i, x in enumerate(reads): G.put(first + (i*span)//len(reads), x)
        gg = starts[n]
        for c, ch in enumerate(gr['chains']):
            for j in range(CH):
                G.mf[gg] = I(ch[j](base + 4*j))
                if c == 0 and (j % 2 == 0):
                    G.before(gg, Wait(lg=[('wf', tagid, min(j+1, CH-1))] + (gr.get('lgwait', []) if j == 0 else [])))
                gg += 1
    return starts, g

def place_stream(G, groups, spacing, start=2):
    cur = start; last = start - 2
    for (e, ins) in groups:
        cur = max(cur, e + 2); last = max(last, e)
        pend = []
        for x in ins:
            if x.kind != 'vmem': pend.append(x); continue
            for j, y in enumerate(pend): G.nv[max(last, cur - len(pend) + j)].append(y)
            pend = []
            G.put(cur, x); last = cur; cur += spacing
    return cur

def spread(G, ins, g0, g1):
    for j, x in enumerate(ins):
        g = g0 + (j*(g1-g0))//len(ins)
        if x.kind == 'vmem' and not x.wr: G.put(g+1, x)
        else: G.put(g, x)

def KACC(db, mb):
    return ((96, 64)[db % 2] + (db//4)*64 + ((db//2) % 2)*16) + mb*4
def k_epilogue(js, sSc):
    o = []
    for mb in range(4):
        D0, D1 = KACC(2*js, mb), KACC(2*js+1, mb)
        o += L([f"v_mul_f32 v{D+r}, s{sSc}, v{D+r}" for D in (D0, D1) for r in range(4)])
        o += L([f"v_cvt_pk_bf16_f32 v{D0}, v{D0}, v{D0+1}", f"v_cvt_pk_bf16_f32 v{D0+1}, v{D0+2}, v{D0+3}",
                f"v_cvt_pk_bf16_f32 v{D0+2}, v{D1}, v{D1+1}", f"v_cvt_pk_bf16_f32 v{D0+3}, v{D1+2}, v{D1+3}"])
    return o
def gen_k1():
    S_CKV, S_WK, S_WV, S_WS, S_X = 4, 8, 12, 16, 20
    sW, sH, sR = 24, 25, 26
    sK, sV = 28, 32
    sAk, sWk = 40, 48
    sAm, sWm, sT, sT2, sFl, sSc, sLN, sH8 = 56, 57, 58, 59, 60, 61, 62, 63
    vL, vL16 = 2, 3
    vAD = 4; vAR = 8; vWD = 10; vT = 12; vTh = 16
    WF = 32; ACCK = 64; EP = 192; AR = 128
    pre = prof_begin()
    pre += L(["s_load_dwordx4 s[28:31], s[0:1], 0", "s_load_dwordx4 s[32:35], s[0:1], 24", "s_load_dwordx2 s[36:37], s[0:1], 96",
              "s_load_dwordx2 s[64:65], s[0:1], 16", "s_load_dwordx2 s[66:67], s[0:1], 56", "s_load_dwordx2 s[68:69], s[0:1], 88",
              "s_cmp_ge_u32 s2, 256", "s_cbranch_scc1 K3_END" if FUSED else "s_cbranch_scc1 K1_END"])
    pre += code_prefetch(None, "K1_PC", False, 21, 24, 38, 27)
    pre += L(["v_lshrrev_b32 v1, 6, v0", f"v_and_b32 v{vL}, 63, v0", f"v_readfirstlane_b32 s{sW}, v1",
              f"v_lshlrev_b32 v{vL16}, 4, v{vL}",
              f"s_and_b32 s{sT}, s2, 7", f"s_lshl_b32 s{sT}, s{sT}, 2", f"s_bfe_u32 s{sT2}, s2, 0x20003",
              f"s_add_u32 s{sH}, s{sT}, s{sT2}", f"s_lshr_b32 s{sR}, s2, 5"])
    pre += L([f"v_lshrrev_b32 v24, 5, v{vL}", f"v_and_b32 v25, 31, v{vL}", "v_lshlrev_b32 v26, 10, v24",
              "v_lshl_add_u32 v26, v25, 5, v26",
              "v_lshlrev_b32 v27, 9, v25", "v_lshl_add_u32 v27, v24, 4, v27"])
    pre += L([f"v_lshrrev_b32 v24, 4, v{vL}", f"v_and_b32 v25, 7, v{vL}", "v_xor_b32 v24, v24, v25", "v_lshlrev_b32 v24, 4, v24",
              f"v_lshrrev_b32 v25, 3, v{vL}", f"v_lshl_add_u32 v{vAD}, v25, 10, v24",
              f"v_xor_b32 v{vAD+1}, 64, v{vAD}", f"v_add_u32 v{vAD+1}, {8192-1024}, v{vAD+1}",
              ])
    pre += L(w_dma_voff(vL, vWD, vWD+1, 8192, 24, 25))
    pre += L([f"s_lshl_b32 s{sT}, s{sR}, 18", f"s_lshl_b32 s{sT2}, s{sW}, 16", f"s_add_u32 s{sT}, s{sT}, s{sT2}",
              f"s_lshl_b32 s{sT2}, s{sW}, 14", f"s_add_u32 s{sT2}, s{sT2}, 98304"])
    for o in range(4):
        pre += L([f"s_add_u32 s27, s{sH}, {o}", "s_and_b32 s27, s27, 3", f"s_lshl_b32 s{sAk+o}, s27, 14", f"s_add_u32 s{sAk+o}, s{sAk+o}, s{sT}",
                  f"s_lshl_b32 s{sAk+4+o}, s27, 11", f"s_add_u32 s{sAk+4+o}, s{sAk+4+o}, s{sT2}"])
    pre += L([f"s_lshl_b32 s{sWk}, s{sW}, 17",
              f"s_lshl_b32 s{sWk+1}, s{sR}, 2", f"s_add_u32 s{sWk+1}, s{sWk+1}, s{sW}", f"s_lshl_b32 s{sWk+1}, s{sWk+1}, 15",
              f"v_lshrrev_b32 v24, 4, v{vL}", "v_lshlrev_b32 v24, 13, v24", f"v_and_b32 v25, 15, v{vL}", f"v_lshl_add_u32 v{vAD+2}, v25, 4, v24"])
    pre += L([f"s_lshl_b32 s{sAm}, s{sW}, 14", f"s_add_u32 s{sAm}, s{sAm}, 98304", f"s_lshl_b32 s{sWm}, s{sW}, 11",
              f"s_lshl_b32 s{sH8}, s{sH}, 8", f"s_and_b32 s{sFl}, s{sR}, 1", f"s_lshl_b32 s{sFl}, s{sFl}, 7",
              f"s_lshl_b32 s{sT}, s2, 3", f"s_lshl_b32 s{sT2}, s{sW}, 1", f"s_add_u32 s{sT}, s{sT}, s{sT2}", f"s_lshl_b32 s{sLN}, s{sT}, 10"])
    pre += L(["s_waitcnt lgkmcnt(0)"]) + stamp(1)
    pre += L(srd(S_CKV, 30, 31, 0x200000))
    def dmaA(s, os_):
        o = []
        for k in os_:
            o += [I(f"s_add_u32 m0, s{sAk+4+k}, {(s % 2)*8192}"), I(f"s_add_u32 s{sT}, s{sAk+k}, {s*128}"),
                  T(f"buffer_load_dwordx4 v{vAD}, {sr(S_CKV)}, s{sT} offen lds", ('A', s)),
                  T(f"buffer_load_dwordx4 v{vAD+1}, {sr(S_CKV)}, s{sT} offen offset:1024 lds", ('A', s))]
        return o
    own = lambda s: dmaA(s, [0]); rest = lambda s: dmaA(s, [1, 2, 3])
    def pfW(sd, st):
        return L([f"s_add_u32 s{sT2}, s{sWk+1}, {st*128*8192}", f"buffer_load_dwordx4 v[20:23], v{vAD+2}, {sr(sd)}, s{sT2} offen"])
    def dmaUT(sd, ksl, ch, ldsoff, tag):
        return [I(f"s_add_u32 m0, s{sWm}, {ldsoff}"), I(f"s_add_u32 s{sT2}, s{sWk}, {ksl*64*8192 + ch*128}"),
                T(f"buffer_load_dwordx4 v{vWD}, {sr(sd)}, s{sT2} offen lds", tag),
                T(f"buffer_load_dwordx4 v{vWD+1}, {sr(sd)}, s{sT2} offen offset:1024 lds", tag)]
    kslot = lambda p, u: ((p % 6)*2 + u)*8192
    def dmaWP(p): return [x for u in range(2) for x in dmaUT(S_WV if p % 4 < 2 else S_WK, (p//4)*2 + u, p % 2, kslot(p, u), ('W', p))]
    warm = L([f"buffer_load_dwordx4 v[20:23], v{vL16}, {sr(S_CKV)}, s{sLN} offen", f"buffer_load_dwordx4 v[20:23], v{vL16}, {sr(S_CKV)}, s{sLN} offen offset:1024"])
    lnld = [T(f"buffer_load_dwordx4 v[192:195], v26, {sr(S_X)}, s{sLN} offen", 'ln'),
            T(f"buffer_load_dwordx4 v[196:199], v26, {sr(S_X)}, s{sLN} offen offset:16", 'ln')]
    pre += warm + own(0) + own(1)
    pre += L(srd_off(S_WV, 34, 35, sH8, 0x400000))
    pre += pfW(S_WV, 0)
    pre += L(srd(S_X, 28, 29, 0x200000) + srd_off(S_WK, 32, 33, sH8, 0x400000))
    pre += rest(0) + dmaWP(0) + rest(1) + pfW(S_WK, 0)
    pre += dmaWP(1) + lnld + stamp(2)
    if os.environ.get("K1DIAG"):
        for k, n in enumerate((27, 24, 23, 17, 13, 7, 6, 2, 0)):
            pre += L([f"s_waitcnt vmcnt({n})"]) + stamp(3+k if k < 8 else 10)
    pre += L(srd(S_WS, 36, 37, WS_SIZE))
    pre += L(w_tr_addr(vL, vT, 24, 25)) + L([f"v_add_u32 v{vTh+c}, 0x10000, v{vT+c}" for c in range(4)])
    pre += L([f"v_and_b32 v24, 15, v{vL}", f"v_bfe_u32 v25, v{vL}, 1, 3", f"v_lshrrev_b32 v1, 4, v{vL}", "v_xor_b32 v25, v25, v1",
              "v_lshlrev_b32 v25, 4, v25", "v_lshl_add_u32 v24, v24, 7, v25", f"v_add_u32 v{vAR}, s{sAm}, v24",
              f"v_xor_b32 v{vAR+1}, 64, v{vAR}"])
    pre += L([f"s_lshl_b32 s{sT}, s{sH}, 19", f"s_lshl_b32 s{sT2}, s{sR}, 16", f"s_add_u32 s{sT}, s{sT}, s{sT2}",
              f"s_lshl_b32 s{sT2}, s{sW}, 14", f"s_add_u32 s{sT}, s{sT}, s{sT2}"])
    for j in range(4):
        pre += L([f"s_add_u32 s{sV+j}, s{sT}, {WS_VF + j*4096}"])
    pre += L([f"s_mov_b32 s{sSc}, {f2u(SCALE):#x}"])
    X = 208; R0 = 192; m, t, d, q = 200, 201, 202, 203
    ln = []
    for j in range(8):
        ln += L([f"v_lshlrev_b32 v{X+2*j}, 16, v{R0+j}", f"v_and_b32 v{X+2*j+1}, 0xffff0000, v{R0+j}"])
    ln += L([f"v_add_f32 v{m}, v{X}, v{X+1}"] + [f"v_add_f32 v{m}, v{m}, v{X+j}" for j in range(2, 16)])
    ln += L(red32(m, t))
    ln += L([f"v_mul_f32 v{m}, 0x3b000000, v{m}"])
    ln += L([f"v_sub_f32 v{d}, v{X}, v{m}", f"v_mul_f32 v{q}, v{d}, v{d}"])
    for j in range(1, 16):
        ln += L([f"v_sub_f32 v{d}, v{X+j}, v{m}", f"v_fmac_f32 v{q}, v{d}, v{d}"])
    ln += L(red32(q, t))
    ln += L([f"v_mul_f32 v{q}, 0x3b000000, v{q}", f"v_cvt_pk_bf16_f32 v{m}, v{m}, v{q}",
             f"v_and_b32 v{q}, 0xffff0000, v{m}", f"v_lshlrev_b32 v{m}, 16, v{m}",
             f"v_add_f32 v{q}, {f2u(1e-5):#x}, v{q}", f"v_cvt_pk_bf16_f32 v{q}, v{q}, v{q}", f"v_lshlrev_b32 v{q}, 16, v{q}",
             f"v_sqrt_f32 v{q}, v{q}", f"v_cvt_pk_bf16_f32 v{q}, v{q}, v{q}", f"v_lshlrev_b32 v{q}, 16, v{q}",
             f"v_rcp_f32 v{q}, v{q}"])
    for j in range(8):
        a, b = X+2*j, X+2*j+1
        ln += L([f"v_sub_f32 v{a}, v{a}, v{m}", f"v_sub_f32 v{b}, v{b}, v{m}", f"v_cvt_pk_bf16_f32 v{a}, v{a}, v{b}",
                 f"v_and_b32 v{b}, 0xffff0000, v{a}", f"v_lshlrev_b32 v{a}, 16, v{a}",
                 f"v_mul_f32 v{a}, v{a}, v{q}", f"v_mul_f32 v{b}, v{b}, v{q}", f"v_cvt_pk_bf16_f32 v{R0+j}, v{a}, v{b}"])
    ln2 = []
    LX = kslot(5, 0)
    lnw = L([f"s_lshl_b32 s50, s{sW}, 11", f"s_add_u32 s50, s50, {LX}", "v_add_u32 v26, s50, v26",
             f"ds_write_b128 v26, {vr(R0)}", f"ds_write_b128 v26, {vr(R0+4)} offset:16",
             f"v_and_b32 v24, 7, v{vL}", f"v_lshrrev_b32 v25, 3, v{vL}", "v_lshlrev_b32 v26, 10, v24", "v_lshl_add_u32 v26, v25, 4, v26",
             f"s_lshl_b32 s50, s{sW}, 8", f"s_add_u32 s50, s50, {LX}", "v_add_u32 v26, s50, v26",
             "v_lshlrev_b32 v27, 8, v25", "v_lshl_add_u32 v27, v24, 4, v27"])
    lnw[4].tag = 'lnw'
    ln2 += [T(f"ds_read_b128 {vr(R0)}, v26", 'lnr'), T(f"ds_read_b128 {vr(R0+4)}, v26 offset:128", 'lnr')]
    ln2 += L([f"s_lshr_b32 s{sT}, s2, 1", f"s_lshl_b32 s{sT}, s{sT}, 14", f"s_and_b32 s{sT2}, s2, 1", f"s_lshl_b32 s{sT2}, s{sT2}, 7",
             f"s_add_u32 s{sT}, s{sT}, s{sT2}", f"s_lshl_b32 s{sT2}, s{sW}, 12", f"s_add_u32 s{sT}, s{sT}, s{sT2}"])
    ln2 += [Wait(lg='lnr')]
    ln2 += L([f"buffer_store_dwordx4 {vr(R0)}, v27, {sr(S_WS)}, s{sT} offen offset:{WS_XN}{STX}",
              f"buffer_store_dwordx4 {vr(R0+4)}, v27, {sr(S_WS)}, s{sT} offen offset:{WS_XN+2048}{STX}"])
    ln2 += L([f"s_lshl_b32 s{sT}, s{sH}, 7", f"s_lshl_b32 s{sT2}, s{sR}, 2", f"s_add_u32 s{sT}, s{sT}, s{sT2}", f"s_add_u32 s{sT}, s{sT}, {FL_KV}", f"v_mov_b32 v24, s{sT}",
              f"s_lshl_b32 s{sT}, s{sR}, 7", f"s_lshl_b32 s{sT2}, s{sH}, 2", f"s_add_u32 s27, s{sT}, s{sT2}", f"s_add_u32 s27, s27, {FL_AC}", "v_writelane_b32 v24, s27, 1",
              f"s_sub_u32 s27, s{sT2}, s{sT}", f"s_add_u32 s27, s27, {FL_AC + 15*128}", "v_writelane_b32 v24, s27, 2",
              f"s_lshl_b32 s27, s{sW}, 7", f"s_add_u32 s{sT2}, s{sT2}, s27", f"s_lshl_b32 s{sT2}, s{sT2}, 5", f"s_lshl_b32 s{sT}, s{sT}, 7",
              f"s_add_u32 s27, s{sT}, s{sT2}", f"s_add_u32 s27, s27, {FL_CX}", "v_writelane_b32 v24, s27, 3",
              f"s_sub_u32 s27, s{sT2}, s{sT}", f"s_add_u32 s27, s27, {FL_CX + 15*16384}", "v_writelane_b32 v24, s27, 4",
              "v_mov_b32 v25, 0", T(f"buffer_store_dword v25, v24, {sr(S_WS)}, 0 offen sc1", 'lnst'),
              "s_mov_b32 s70, 256", "s_mov_b32 s71, 0x00020000", "v_mov_b32 v26, 1"])
    ln2 = [x if isinstance(x, Wait) else I(x.text.replace(f's{sT2}', 's51').replace(f's{sT}', 's50'), x.tag) for x in ln2]
    kacc = lambda db, mb: KACC(db, mb)
    afr = lambda st, mb, j: ar(AR + (st % 2)*64 + (mb*4 + j)*4)
    def readA(s):
        return [T(f"ds_read_b128 {afr(s//2, mb, (s % 2)*2 + k)}, v{vAR+k} offset:{(s % 2)*8192 + mb*2048}", ('Ar', s))
                for mb in range(4) for k in range(2)]
    pre += [Wait(vm=('A', 0))] + readA(0) + [Wait(vm=('A', 1))] + readA(1) + (stamp(5) if not os.environ.get('K1DIAG') else [])
    groups = []
    for p in range(16):
        st, cq = p//4, p % 4
        for cb in range(4):
            db = (cq % 2)*4 + cb
            fr = []
            for j in range(4):
                o = kslot(p, j//2) + (j % 2)*4096
                fr.append(((vT, vTh)[o >> 16] + cb, o & 0xffff))
            chains = []
            for mb in range(4):
                if cq >= 2:
                    D = vr(kacc(db, mb))
                    chains.append([(lambda f, D=D, a=afr(st, mb, j), z=(st == 0 and j == 0): f"{MF} {D}, {vr(f)}, {a}, {'0' if z else D}") for j in range(4)])
                else:
                    D = ar((db*4 + mb)*4)
                    chains.append([(lambda f, D=D, a=afr(st, mb, j), z=(st == 0 and j == 0): f"{MF} {D}, {a}, {vr(f)}, {'0' if z else D}") for j in range(4)])
            gr = dict(frags=fr, chains=chains)
            if cb == 0:
                gr['sync'] = [Wait(vm=('W', p)), I("s_barrier")]; gr['pair'] = p
                if cq == 0: gr['lgwait'] = [('Ar', 2*st+1)]
            groups.append(gr)
    G = Gaps(1024)
    starts, gend = gemm_groups(G, 0, groups, WF, pre)
    assert gend == 1024
    bar = {gr['pair']: gr['syncgap'] for gr in groups if 'pair' in gr}
    WL = int(os.environ.get('WL', '3'))
    ev = [(4*k, dmaWP(2+k)) for k in range(WL-1)]
    for st in range(3):
        g = 256*st
        ev += [(g, own(2*st+2) + own(2*st+3))]
        if st == 0: ev += [(g + 10, pfW(S_WV, 1) + pfW(S_WK, 1))]
        if st < 2: ev += [(g + int(os.environ.get('PW', '150')), pfW(S_WV, st+2) + pfW(S_WK, st+2))]
        ev += [(g + 70, rest(2*st+2)), (g + 125, rest(2*st+3))]
        for k in range(2):
            gr_ = g + 196 + 26*k
            G.before(gr_, Wait(vm=('A', 2*st+2+k)))
            for j, x in enumerate(readA(2*st+2+k)): G.put(gr_ + 2*j, x)
    for p in range(1, 16-WL): ev += [(bar[p] if p + WL != 5 else max(bar[p], bar[3]), dmaWP(p+WL))]
    ev.sort(key=lambda e: e[0])
    end = place_stream(G, ev, int(os.environ.get("SP", "4")), start=2)
    print("K1 dma stream ends at gap", end)
    G.before(3, Wait(vm='ln'))
    spread(G, ln, 3, 92)
    for j, x in enumerate(lnw): G.va[92 + j].append(x)
    G.pre[bar[2]].insert(0, Wait(lg='lnw'))
    for j, x in enumerate(ln2): G.nv[bar[2] + j].append(x)
    if FUSED:
        for x in one_lane([T("buffer_atomic_add v26, v25, s[68:71], 0 offen sc1", 'NOCOUNT')], sW, "K1_SIG", sT): G.nv[bar[4]].append(x)
        G.pre[bar[4]].insert(0, Wait(vm='lnst'))
        G.put(960, T("buffer_load_dword v27, v25, s[68:71], 0 offen sc1", 'lnc'))
        XG = int(os.environ.get("XG", "0"))
        if XG:
            G.put(XG - 40, T("buffer_load_dword v27, v25, s[68:71], 0 offen sc1", 'lnc0'))
            xp = [Wait(vm='lnc0')] + L(["v_readfirstlane_b32 s52, v27", "s_bfe_u32 s53, s2, 0x50003", "s_lshl_b32 s53, s53, 16", f"s_lshl_b32 s54, s{sW}, 14", "s_add_u32 s53, s53, s54",
                                        "s_cmp_eq_u32 s52, 0x100\n    s_cselect_b32 s53, s53, 0x10000000"])
            for k in range(16):
                if k and k % 4 == 0: xp += L(["s_add_u32 s53, s53, 4096"])
                xp += L([f"buffer_load_dwordx4 v[20:23], v{vL16}, {sr(S_WS)}, s53 offen offset:{(k % 4)*1024} sc1"])
            g = XG
            for x in xp:
                G.nv[g].append(x); g += 8 if x.kind == 'vmem' else 1
    pf = L(srd_off(S_X, 64, 65, sH8, 0x400000) + [f"s_lshr_b32 s{sT}, s{sH8}, 1"] + srd_off(28, 66, 67, sT, 512*2752))
    pf += L([f"v_lshrrev_b32 v24, 4, v{vL}", "v_lshlrev_b32 v24, 13, v24", f"v_and_b32 v1, 15, v{vL}", "v_lshl_add_u32 v24, v1, 4, v24",
             f"v_lshrrev_b32 v26, 3, v{vL}", "v_mul_u32_u24 v26, 2752, v26", f"v_and_b32 v1, 7, v{vL}", "v_lshl_add_u32 v26, v1, 4, v26",
             f"s_lshl_b32 s{sT}, s{sR}, 2", f"s_add_u32 s{sT}, s{sT}, s{sW}", f"s_mul_i32 s{sT2}, s{sT}, {16*2752}", f"s_lshl_b32 s{sT}, s{sT}, 17"])
    for k in range(4):
        pf += L([f"buffer_load_dwordx4 v[20:23], v24, {sr(S_X)}, s{sT} offen", f"s_add_u32 s{sT}, s{sT}, 32768"])
    for k in range(2):
        pf += L([f"buffer_load_dwordx4 v[20:23], v26, {sr(28)}, s{sT2} offen", f"s_add_u32 s{sT2}, s{sT2}, {8*2752}"])
    pf = [I(x.text.replace(f"s{sT2}", "s53").replace(f"s{sT}", "s52")) for x in pf]
    pf += code_prefetch("K2_BEGIN" if FUSED else "attn_kernel", "K1_PC2", True, 20, 24, 38, 27)
    g = int(os.environ.get('PFG', '420'))
    for x in pf:
        G.nv[g].append(x); g += 4 if x.kind == 'vmem' else (0 if x.kind == 'label' or x.op == 's_getpc_b64' else 1)
    assert g < 1000
    for db in range(8):
        ins = []
        for ks in range(2):
            t = EP + ((db*2 + ks) % 8)*8
            ins += L([f"v_accvgpr_read_b32 v{t+k}, a{(db*4 + 2*ks)*4 + k}" for k in range(8)])
            ins += L([f"v_cvt_pk_bf16_f32 v{t+k}, v{t+2*k}, v{t+2*k+1}" for k in range(4)])
            ins += L([f"buffer_store_dwordx4 {vr(t)}, v{vL16}, {sr(S_WS)}, s{sV+db//2} offen offset:{(db%2)*2048 + ks*1024}{STF}"])
        spread(G, ins, 790 + 28*db, 790 + 28*db + 27)
    spread(G, k_epilogue(0, sSc) + k_epilogue(1, sSc), 964, 1022)
    tail = []
    assert FUSED
    if os.environ.get("K1FINE"):
        seq = list(pre)
        for p in range(8): seq += stamp(2+p) + G.linear(128*p, 128*p+128)
        seq += stamp(10) + tail + prof_end(0, S_WS, sW, 4, vtmp=32, drain=not FUSED)
    else:
        if os.environ.get("K1DIAG"): stamp_ = lambda k: []
        else: stamp_ = stamp
        seq = pre + stamp_(6) + G.linear(0, 64) + stamp_(7) + G.linear(64, 512) + stamp_(8) + G.linear(512, 1024) + stamp_(9) + tail + stamp_(10) + prof_end(0, S_WS, sW, 4, vtmp=32, drain=not FUSED)
    if FUSED:
        seq += [Wait(vm='lnc')] + L(["s_mov_b32 s70, 256", "s_movk_i32 s27, 0x100", "v_cmp_gt_u32 vcc, s27, v27", "s_cbranch_vccz K1_LNOK"])
        sp = spin("K1_LNSPIN", "buffer_load_dword v27, v25, s[68:71], 0 offen sc1", 27, "s27", sT)
        sp = [I(x.text.replace("v_cmp_ne_u32", "v_cmp_gt_u32"), 'NOCOUNT') for x in sp]
        seq += sp + L(["K1_LNOK:", "s_barrier"])
        return seq
    seq = resolve_waits(seq)
    seq, n = fix_hazards(seq)
    print("K1: instrs", len(seq), "nops", n)
    return seq + L(["K1_END:", "s_endpgm"])

def emit(kernels, path):
    hdr = open('parallel_sum__compressed_kv_cla__dense_activation_mish__prompt.s.ref').read().split('\n')
    out = [l for l in hdr[:14]]
    for (name, grid, block, lds, seq, nv, acc) in kernels:
        if len(kernels) == 1 and os.environ.get("PLAIN"): out.append(f"; @launch grid=({grid},1,1) block=({block},1,1) lds={lds}")
        else: out.append(f"; @launch kernel={name} grid=({grid},1,1) block=({block},1,1) lds={lds}")
    out += ['.amdgcn_target "amdgcn-amd-amdhsa--gfx950"', ".text"]
    for (name, grid, block, lds, seq, nv, acc) in kernels:
        out += [f".globl {name}", ".p2align 8", f".type {name},@function", f"{name}:"]
        out += [("" if i.kind == 'label' else "    ") + i.text for i in seq]
    out.append(".fill 8192, 4, 0xbf800000")
    out.append('.section .rodata,"a"')
    for (name, grid, block, lds, seq, nv, acc) in kernels:
        out += [".p2align 6", f".amdhsa_kernel {name}", f"  .amdhsa_next_free_vgpr {nv}", "  .amdhsa_next_free_sgpr 102",
                f"  .amdhsa_accum_offset {acc}", "  .amdhsa_group_segment_fixed_size 0", "  .amdhsa_kernarg_size 104",
                "  .amdhsa_user_sgpr_count 2", "  .amdhsa_user_sgpr_kernarg_segment_ptr 1",
                "  .amdhsa_system_sgpr_workgroup_id_x 1", ".end_amdhsa_kernel"]
    open(path, "w").write("\n".join(out) + "\n")

if __name__ == "__main__":
    ks = [("kvproj_kernel", 256, 256, 163840, gen_k1(), 512, 256)]
    emit(ks, sys.argv[1] if len(sys.argv) > 1 else "k.s")
```

```python
from gen import *

NEGINF = "0xff800000"
THR = f2u(2.0**60)

def gen_k2(prefix, K3):
    S_WS, S_WQ, S_W1, S_K, S_V, S_B1 = 4, 8, 12, 16, 20, 24
    sW, sH, sI, sPar = 28, 29, 30, 31
    sXN = 32
    sAct = 36
    sWm, sT, sT2, sT3 = 44, 45, 46, 47
    sWoQ, sWo1 = 48, 50
    sKd, sVd, sGd, sKr, sVr, sVk = 50, 51, 52, 53, 54, 55
    sC = {'a': 56, 'b': 57}
    sCnt, sThr, sRet = 58, 59, 60
    sPC = 62
    sKA = 64
    vL, vL16 = 2, 3
    vX = 4
    vWDq, vWD1 = 8, 10
    vT = 12; vTh = 16; vTt = 20
    vDM, vKr, vVr, vLB = 24, 25, 26, 27
    vNI = 28
    tA, tB = 29, 30
    WF = 32
    QE = 64
    QO = 128
    HA = 192
    P = {'a': 32, 'b': 48}
    S = {'a': 128, 'b': 160}
    QX = 192
    NM = {'a': 224, 'b': 232}
    ET = 240
    TS = {'a': 244, 'b': 246}; LS = {'a': 248, 'b': 250}; MS = {'a': 252, 'b': 254}
    O = {'a': 0, 'b': 64}; KF_, VF_ = 128, 192
    qf = lambda mbx, js: QE + (js*4 + mbx)*4
    Qreg = {'a': lambda nb, js: qf(nb, js), 'b': lambda nb, js: qf(2+nb, js), 'x': lambda nb, js: QX + (js*2+nb)*4}

    pre = (prefix + L(["K2_BEGIN:"]) if prefix else []) + prof_begin()
    pre += L([f"s_load_dwordx2 s[64:65], s[0:1], 16", "s_load_dwordx2 s[68:69], s[0:1], 56",
              "s_load_dwordx2 s[66:67], s[0:1], 96", "s_load_dwordx2 s[26:27], s[0:1], 64",
              ] + ([] if FUSED else ["s_cmp_ge_u32 s2, 256", "s_cbranch_scc1 K2_END"]))
    pre += L(["v_mov_b32 v31, v0", "v_lshrrev_b32 v1, 6, v0", f"v_and_b32 v{vL}, 63, v0", f"v_readfirstlane_b32 s{sW}, v1",
              f"v_lshlrev_b32 v{vL16}, 4, v{vL}",
              f"s_and_b32 s{sT}, s2, 7", f"s_lshl_b32 s{sT}, s{sT}, 2", f"s_bfe_u32 s{sT2}, s2, 0x20003",
              f"s_add_u32 s{sH}, s{sT}, s{sT2}", f"s_lshr_b32 s{sI}, s2, 5", f"s_and_b32 s{sPar}, s{sW}, 1"])
    for j in range(4):
        pre += L([f"s_add_u32 s{sT}, s{sH}, {j}", f"s_and_b32 s{sT}, s{sT}, 3", f"s_lshl_b32 s{sT}, s{sT}, 10", f"v_add_u32 v{vX+j}, s{sT}, v{vL16}"])
    for u in range(2):
        pre += L([f"s_lshr_b32 s{sT}, s{sW}, 1", f"s_add_u32 s{sT}, s{sT}, s{sH}", f"s_add_u32 s{sT}, s{sT}, {2*u}", f"s_and_b32 s{sT}, s{sT}, 3",
                  f"s_lshl_b32 s{sT}, s{sT}, 1", f"s_add_u32 s{sT}, s{sT}, s{sPar}", f"s_lshl_b32 s{sWoQ+u}, s{sT}, 17", f"s_mul_i32 s{sWo1+u}, s{sT}, {16*2752}"])
    pre += L(w_dma_voff(vL, vWDq, vWDq+1, 8192, tA, tB) + w_dma_voff(vL, vWD1, vWD1+1, 2752, tA, tB))
    pre += L([f"s_lshl_b32 s{sT}, s{sI}, 3", f"s_lshl_b32 s{sT2}, s{sW}, 1", f"s_add_u32 s{sT3}, s{sT}, s{sT2}",
              f"s_sub_u32 s{sT}, 120, s{sT}", f"s_add_u32 s{sT}, s{sT}, s{sT2}",
              f"s_lshl_b32 s{sXN}, s{sT3}, 14", f"s_add_u32 s{sXN+1}, s{sXN}, 16384",
              f"s_lshl_b32 s{sXN+2}, s{sT}, 14", f"s_add_u32 s{sXN+3}, s{sXN+2}, 16384",
              f"s_mul_i32 s{sAct}, s{sT3}, {CA_RB}", f"s_mul_i32 s{sAct+4}, s{sT}, {CA_RB}",
              f"s_lshl_b32 s{sC['a']}, s{sT3}, 4", f"s_lshl_b32 s{sC['b']}, s{sT}, 4",
              f"s_lshl_b32 s{sWm}, s{sW}, 11",
              f"s_lshl_b32 s{sT}, s{sH}, 8", f"s_lshl_b32 s{sT2}, s{sH}, 7"])
    pre += L(["s_waitcnt lgkmcnt(0)"]) + stamp(1)
    pre += L(srd(S_WS, 66, 67, WS_SIZE))
    def ldX(st, js):
        return [T(f"buffer_load_dwordx4 {ar((mbx*16+4*st+j)*4)}, v{vX+j}, {sr(S_WS)}, s{sXN+mbx} offen{LDF}", ('X', st))
                for j in js for mbx in range(4)] + [I(f"v_add_u32 v{vX+j}, 4096, v{vX+j}") for j in js]
    own = lambda st: ldX(st, [0]); rest = lambda st: ldX(st, [1, 2, 3])
    ring = [0, 1, 2, 3, 4, 5, 8, 9, 10, 11, 12, 13]
    pslot = lambda p, u: ring[((p % 6)*2 + u)]*8192
    hslot = [6, 7, 14, 15, 16, 17, 18, 19]
    def dmaUT(which, ksl, colb, ldsoff, tag):
        sd, vd, so, pitch = (S_W1, vWD1, sWo1, 2752) if which == 1 else (S_WQ, vWDq, sWoQ, 8192)
        return [I(f"s_add_u32 m0, s{sWm}, {ldsoff}"), I(f"s_add_u32 s{sT3}, s{so + ksl % 2}, {(ksl//2)*128*pitch + colb}"),
                T(f"buffer_load_dwordx4 v{vd}, {sr(sd)}, s{sT3} offen lds", tag),
                T(f"buffer_load_dwordx4 v{vd+1}, {sr(sd)}, s{sT3} offen offset:1024 lds", tag)]
    def dmaP(p): return [x for u in range(2) for x in dmaUT(1 if p % 2 == 0 else 0, (p//2)*2 + u, 0, pslot(p, u), ('W', p))]
    def dmaH(ks): return [x for k in ks for x in dmaUT(0, k, 128, hslot[k]*8192, 'WH')]
    DIAG = os.environ.get('DIAG')
    dst = lambda k: (L(['s_waitcnt vmcnt(0)'] if DIAG == 'w' else []) + stamp(k)) if DIAG else []
    o01 = own(0)
    pre += (o01[:1] + dst(8) + o01[1:] + dst(9)) if DIAG == 'w' else o01
    pre += L(srd_off(S_W1, 68, 69, sT2, 512*2752) + srd_off(S_WQ, 64, 65, sT, 0x400000))
    pre += dmaP(0)
    pre += L([f"s_mov_b32 s{S_B1}, s26", f"s_mov_b32 s{S_B1+1}, s27", f"s_mov_b32 s{S_B1+2}, 2752", f"s_mov_b32 s{S_B1+3}, 0x00020000",
              f"v_lshrrev_b32 v{tA}, 4, v{vL}", f"v_lshlrev_b32 v{tA}, 3, v{tA}"])
    BI = 64
    pre += [T(f"buffer_load_dwordx2 {vr(BI+16+2*fb, 2)}, v{tA}, {sr(S_B1)}, s{sT2} offen offset:{fb*32}", 'bias') for fb in range(4)]
    pre += dst(10) + rest(0) + stamp(2)
    pre += L(w_tr_addr(vL, vT, tA, tB)) + L([f"v_add_u32 v{vTh+c}, 0x10000, v{vT+c}" for c in range(4)] + [f"v_add_u32 v{vTt+c}, 0x20000, v{vT+c}" for c in range(4)])
    pre += L([f"s_lshl_b32 s{sT}, s{sH}, 19", f"s_lshl_b32 s{sT2}, s{sI}, 15", f"s_sub_u32 s{sT2}, 0x80000, s{sT2}",
              f"s_add_u32 s{sT3}, s{sT}, {WS_KF}", f"s_add_u32 s{S_K}, s66, s{sT3}", f"s_addc_u32 s{S_K+1}, s67, 0", f"s_mov_b32 s{S_K+2}, s{sT2}", f"s_mov_b32 s{S_K+3}, 0x00020000",
              f"s_add_u32 s{sT3}, s{sT}, {WS_VF}", f"s_add_u32 s{S_V}, s66, s{sT3}", f"s_addc_u32 s{S_V+1}, s67, 0", f"s_mov_b32 s{S_V+2}, s{sT2}", f"s_mov_b32 s{S_V+3}, 0x00020000"])
    pre += L([f"s_add_u32 s{sAct+2}, s{sAct}, {CA_RB}", f"s_add_u32 s{sAct+6}, s{sAct+4}, {CA_RB}",
              f"s_lshl_b32 s{sT}, s{sH}, 11", f"s_add_u32 s{sT}, s{sT}, {WS_CA + 128*1024}",
              f"s_lshl_b32 s{sT2}, s{sH}, 12", f"s_add_u32 s{sT2}, s{sT2}, {WS_CA}"])
    ctxoff = []
    for mbx in range(4):
        ctxoff += L([f"s_add_u32 s{sXN+mbx}, s{sAct+2*mbx}, s{sT2}"])
    actoff = []
    for mbx in range(4):
        actoff += L([f"s_add_u32 s{sAct+2*mbx}, s{sAct+2*mbx}, s{sT}", f"s_add_u32 s{sAct+2*mbx+1}, s{sAct+2*mbx}, 1024",
                     f"s_cmp_gt_u32 s{sH}, 21", f"s_cselect_b32 s{sAct+2*mbx}, 0x10000000, s{sAct+2*mbx}",
                     f"s_cmp_gt_u32 s{sH}, 20", f"s_cselect_b32 s{sAct+2*mbx+1}, 0x10000000, s{sAct+2*mbx+1}"])
    pre += L([f"s_mov_b32 s{sKr}, s{sT}", f"s_mov_b32 s{sVr}, s{sT2}"])
    fix = lambda lst: [I(x.text.replace(f"s{sT2}", f"s{sVr}").replace(f"s{sT}", f"s{sKr}")) for x in lst]
    ctxoff, actoff = fix(ctxoff), fix(actoff)
    pre += L([f"v_lshl_add_u32 v{vDM}, s{sW}, 12, v{vL16}" if False else f"v_mov_b32 v{tA}, s{sW}", f"v_lshl_add_u32 v{vDM}, v{tA}, 12, v{vL16}",
              f"v_and_b32 v{tA}, 15, v{vL}", f"v_lshrrev_b32 v{tB}, 4, v{vL}", f"v_lshlrev_b32 v{tB}, 2, v{tB}", f"v_sub_u32 v{vLB}, v{tA}, v{tB}",
              f"v_mov_b32 v{vNI}, {NEGINF}", f"s_mov_b32 s{sThr}, {THR:#x}"])
    pre += own(1) + dmaP(1)
    pre += L([f"s_mov_b32 s{sRet}, {f2u(SCALE):#x}"]) + k_epilogue(2, sRet) + k_epilogue(3, sRet)
    pre += L([f"s_lshl_b32 s{sRet}, s{sH}, 19", f"s_lshl_b32 s{sRet+1}, s{sI}, 16", f"s_add_u32 s{sRet}, s{sRet}, s{sRet+1}",
              f"s_lshl_b32 s{sRet+1}, s{sW}, 14", f"s_add_u32 s{sRet}, s{sRet}, s{sRet+1}", f"s_add_u32 s{sRet}, s{sRet}, {WS_KF}"])
    kst = []
    for mb in range(4):
        for js in range(4):
            kst.append(([I(f"s_add_u32 s{sRet}, s{sRet}, 4096")] if (mb and js == 0) else []) +
                       [T(f"buffer_store_dwordx4 {vr(KACC(2*js, mb))}, v{vL16}, {sr(S_WS)}, s{sRet} offen offset:{js*1024}{STF}", 'kst')])
    pre += [Wait(vm='bias')]
    for fb in range(4):
        for hw in range(2):
            pre += L([f"v_lshlrev_b32 v{BI+4*fb+2*hw}, 16, v{BI+16+2*fb+hw}", f"v_and_b32 v{BI+4*fb+2*hw+1}, 0xffff0000, v{BI+16+2*fb+hw}"])
    pre += stamp(3)
    xfr = lambda mbx, ks: ar((mbx*16 + ks)*4)
    def tra(o, cb): return ((vT, vTh, vTt)[o >> 16] + cb, o & 0xffff)
    qacc = lambda db, mbx: (QE if db % 2 == 0 else QO) + ((db//2)*4 + mbx)*4
    groups = []
    for p in range(8):
        st = p//2
        for cb in range(4):
            fr = [tra(pslot(p, j//2) + (j % 2)*4096, cb) for j in range(4)]
            chains = []
            for mbx in range(4):
                if p % 2 == 0: D = HA + (cb*4 + mbx)*4; C0 = vr(BI + 4*cb)
                else: D = qacc(cb, mbx); C0 = '0'
                chains.append([(lambda f, D=D, mbx=mbx, ks=st*4+j, C0=C0: f"{MF} {vr(D)}, {vr(f)}, {xfr(mbx, ks)}, {C0 if ks == 0 else vr(D)}") for j in range(4)])
            gr = dict(frags=fr, chains=chains)
            if cb == 0:
                gr['sync'] = [Wait(vm=('W', p)), I("s_barrier")]; gr['pair'] = p
                if p % 2 == 0: gr['xwait'] = st
            groups.append(gr)
    for cb in range(4):
        for kq in range(4):
            fr = [tra(hslot[(kq*4+j)//2]*8192 + (j % 2)*4096, cb) for j in range(4)]
            chains = []
            for mbx in range(4):
                D = qacc(4+cb, mbx)
                chains.append([(lambda f, D=D, mbx=mbx, ks=kq*4+j: f"{MF} {vr(D)}, {vr(f)}, {xfr(mbx, ks)}, {'0' if ks == 0 else vr(D)}") for j in range(4)])
            gr = dict(frags=fr, chains=chains)
            if cb == 0 and kq == 0: gr['sync'] = [Wait(vm='WH'), I("s_barrier")]; gr['pair'] = 8
            groups.append(gr)
    G = Gaps(768)
    starts, gend = gemm_groups(G, 0, groups, WF, pre)
    assert gend == 768
    for n, gr in enumerate(groups):
        if 'xwait' in gr: G.before(starts[n], Wait(vm=('X', gr['xwait'])))
    bar = {gr['pair']: gr['syncgap'] for gr in groups if 'pair' in gr}
    for k, grp in enumerate(kst):
        for x in grp: G.nv[6 + 27*k].append(x)
    G.pre[bar[8]].insert(0, Wait(vm='kst'))
    sig = L([f"s_lshl_b32 s{sGd}, s{sH}, 7", f"s_add_u32 s{sGd}, s{sGd}, {FL_KV}", f"s_lshl_b32 s{sVk}, s{sI}, 2", f"s_add_u32 s{sVk}, s{sVk}, s{sGd}",
             f"v_mov_b32 v{vKr}, 1", f"v_mov_b32 v{vVr}, 0"])
    for j, x in enumerate(sig): G.nv[bar[8] - 12 + j].append(x)
    sig = one_lane([T(f"buffer_store_dword v{vKr}, v{vVr}, {sr(S_WS)}, s{sVk} offen sc1", 'NOCOUNT')], sW, "K2_SIG", sT)
    sig += L([f"v_and_b32 v{vVr}, 7, v{vL}", f"v_lshlrev_b32 v{vVr}, 2, v{vVr}"])
    for x in sig: G.nv[bar[8]].append(x)
    pl = f"buffer_load_dword v{vKr}, v{vVr}, {sr(S_WS)}, s{sGd} offen sc1"
    GP = int(os.environ.get("GP", "600"))
    G.put(GP, T(pl, 'kvf'))
    for x in [Wait(vm='kvf')] + L([f"v_cmp_ne_u32 vcc, 1, v{vKr}", "s_cbranch_vccnz K2_KVSPIN_E", "K2_KVOK:"]) + (stamp(3) if os.environ.get("KVST") else []): G.before(GP + 40, x)
    if os.environ.get("KVST"):
        for x in stamp(2): G.before(GP + 39, x)
        for x in stamp(1): G.before(bar[8] - 1, x)
        for x in stamp(4): G.nv[bar[8]].append(x)
    kvstub = L(["K2_KVSPIN_E:"]) + spin("K2_KVSPIN", pl, vKr, 1, sCnt) + L(["s_branch K2_KVOK"])
    def dmaKV(which, t):
        sd, base = (S_K, 0) if which == 'K' else (S_V, 65536)
        return [I(f"s_lshl_b32 s{sT3}, s{sW}, 12"), I(f"s_add_u32 m0, s{sT3}, {base + t*16384}"), I(f"s_mov_b32 s{sT3}, {t*16384}")] + \
               [T(f"buffer_load_dwordx4 v{vDM}, {sr(sd)}, s{sT3} offen offset:{j*1024}{LDF} lds", ('KV', which, t)) for j in range(4)]
    trail = lambda l: l + [I("s_nop 0")] if False else l
    stream = [(0, own(2) + rest(1) + dmaP(2) + dmaP(3) + own(3) + rest(2) + dmaP(4) + dmaP(5) + rest(3)[:-3]),
              (bar[2], dmaP(6)), (bar[3], dmaP(7) + dmaH(range(8))),
              ]
    end = place_stream(G, stream, 4, start=4)
    print("K2 prologue dma stream (part 1) ends at gap", end)
    gb = 512 + 40
    G.before(gb, I("s_barrier"))
    end = place_stream(G, [(GP + 40, dmaKV('K', 0) + dmaKV('V', 0) + dmaKV('K', 1) + dmaKV('K', 2) + dmaKV('V', 1) + dmaKV('V', 2))], int(os.environ.get('KVSP', '4')), start=GP + 40)
    print("K2 prologue dma stream ends at gap", end)
    for j, x in enumerate(ctxoff + actoff): G.put(300 + (j//2), x)
    ins = []
    for js in range(2):
        for mbx in range(4):
            E, Od = qf(mbx, js), QO + (js*4 + mbx)*4
            ins += L([f"v_cvt_pk_bf16_f32 v{E}, v{E}, v{E+1}", f"v_cvt_pk_bf16_f32 v{E+1}, v{E+2}, v{E+3}",
                      f"v_cvt_pk_bf16_f32 v{E+2}, v{Od}, v{Od+1}", f"v_cvt_pk_bf16_f32 v{E+3}, v{Od+2}, v{Od+3}"])
    LOG2E = f2u(math.log2(math.e))
    mish = []
    for fbp in range(2):
        for mbx in range(4):
            D0, D1 = HA + ((2*fbp)*4 + mbx)*4, HA + ((2*fbp+1)*4 + mbx)*4
            regs = [D0+r for r in range(4)] + [D1+r for r in range(4)]
            for a, b in zip(regs[0::2], regs[1::2]):
                mish += L([f"v_mul_f32 v{tA}, {LOG2E:#x}, v{a}", f"v_mul_f32 v{tB}, {LOG2E:#x}, v{b}",
                           f"v_exp_f32 v{tA}, v{tA}", f"v_exp_f32 v{tB}, v{tB}",
                           f"v_add_f32 v0, 2.0, v{tA}", f"v_add_f32 v1, 2.0, v{tB}",
                           f"v_fma_f32 v{tA}, v{tA}, v0, 2.0", f"v_fma_f32 v{tB}, v{tB}, v1, 2.0",
                           f"v_rcp_f32 v{tA}, v{tA}", f"v_rcp_f32 v{tB}, v{tB}",
                           f"v_mul_f32 v{tA}, v{tA}, v{a}", f"v_mul_f32 v{tB}, v{tB}, v{b}",
                           f"v_fma_f32 v{a}, v{tA}, -2.0, v{a}", f"v_fma_f32 v{b}, v{tB}, -2.0, v{b}"])
            mish += L([f"v_cvt_pk_bf16_f32 v{D0}, v{D0}, v{D0+1}", f"v_cvt_pk_bf16_f32 v{D0+1}, v{D0+2}, v{D0+3}",
                       f"v_cvt_pk_bf16_f32 v{D0+2}, v{D1}, v{D1+1}", f"v_cvt_pk_bf16_f32 v{D0+3}, v{D1+2}, v{D1+3}",
                       f"buffer_store_dwordx4 {vr(D0)}, v{vL16}, {sr(S_WS)}, s{sAct+2*mbx+fbp} offen{STF2}"])
    spread(G, mish, 456, 740)
    spread(G, ins, 520, 640)
    def qcvt(js, mbx):
        E, Od = qf(mbx, js), QO + (js*4 + mbx)*4
        return L([f"v_cvt_pk_bf16_f32 v{E}, v{E}, v{E+1}", f"v_cvt_pk_bf16_f32 v{E+1}, v{E+2}, v{E+3}",
                  f"v_cvt_pk_bf16_f32 v{E+2}, v{Od}, v{Od+1}", f"v_cvt_pk_bf16_f32 v{E+3}, v{Od+2}, v{Od+3}"])
    spread(G, [x for mbx in (2, 3, 0, 1) for x in qcvt(2, mbx)], 648, 716)
    ONE, ZR, T4 = 8, 20, 12
    sMk = 62
    vXB = 5
    zero_o = lambda s: [I(f"v_mfma_f32_32x32x16_bf16 {ar(O[s]+16*k, 16)}, {vr(ZR)}, {vr(ZR)}, 0") for k in range(4)]
    su = L(["s_load_dwordx2 s[8:9], s[0:1], 40", "s_load_dwordx2 s[12:13], s[0:1], 72",
            f"s_and_b32 s26, s2, 3", f"s_lshr_b32 s27, s2, 3", f"s_lshl_b32 s27, s27, 2", f"s_add_u32 s27, s27, s{sW}",
            f"s_mul_i32 s24, s26, 352", f"s_mul_i32 s25, s27, 3", "s_add_u32 s24, s24, s25", "s_lshl_b32 s24, s24, 10",
            f"s_lshl_b32 s26, s26, 20", f"s_lshl_b32 s27, s27, 13", f"s_add_u32 s26, s26, s27",
            "s_add_u32 s10, s26, 8192", "s_mov_b32 s11, 0x00020000", "s_add_u32 s14, s24, 3072", f"s_min_u32 s14, s14, {1376*1024}", "s_mov_b32 s15, 0x00020000"] +
           [f"v_mov_b32 v{ONE+k}, 0x3f803f80" for k in range(4)] +
           [f"v_cmp_le_i32 s[{sMk+2*r}:{sMk+2*r+1}], {r}, v{vLB}" for r in range(4)] +
           [f"s_lshl_b32 s{sKd}, s{sW}, 12", f"s_add_u32 s{sKd}, s{sKd}, {3*16384}", f"s_mov_b32 s{sVd}, s{sKd}", f"v_add_u32 v{vX}, 0x10000, v{vL16}",
            f"s_mov_b32 s{sKr}, 16384", f"s_mov_b32 s{sVr}, 0",
            f"s_lshl_b32 s27, s{sPar}, 13", f"s_lshr_b32 s25, s{sW}, 1", "s_lshl_b32 s25, s25, 16", "s_add_u32 s27, s27, s25", f"s_add_u32 s27, s27, {49152}",
            f"v_add_u32 v{vXB}, s27, v{vL16}"])
    for j, x in enumerate(su): G.nv[360 + 2*j].append(x)
    kread = lambda f: T(f"ds_read_b128 {ar(KF_+4*f)}, v{vL16} offset:{f*1024}", ('kf', f))
    qw = lambda js, nb: T(f"ds_write_b128 v{vXB}, {vr(Qreg['b'](nb, js))} offset:{(js*2+nb)*1024}", 'qw')
    for x in [Wait(vm=('KV', 'K', 0), lg=0), I("s_barrier")]: G.before(722, x)
    for f in range(12): G.put(724 + 16*(f//4) + 2*(f % 4), kread(f))
    for k in range(6): G.put(725 + 4*k, qw(k//2, k % 2))
    post = qcvt(3, 2) + qcvt(3, 3) + [qw(3, 0), qw(3, 1)] + qcvt(3, 0) + qcvt(3, 1) + [kread(f) for f in range(12, 16)]
    sreg = lambda s, mb, nb: S[s] + (mb*2 + nb)*4
    def prepass_mfma(s, q):
        return [I(f"{MF} {vr(sreg(s,0,nb))}, {ar(KF_+4*js)}, {vr(Qreg[q](nb, js))}, {'0' if js == 0 else vr(sreg(s,0,nb))}") for nb in range(2) for js in range(4)]
    def xred(op, v, t):
        return L([f"v_mov_b32 v{t}, v{v}", f"v_permlane16_swap_b32 v{t}, v{v}", f"{op} v{v}, v{v}, v{t}",
                  f"v_mov_b32 v{t}, v{v}", f"v_permlane32_swap_b32 v{t}, v{v}", f"{op} v{v}, v{v}, v{t}"])
    def zipl(a, b):
        def grp(l):
            g = []
            for x in l:
                if x.kind == 'label' and g: g[-1].append(x)
                else: g.append([x])
            return g
        a, b = grp(a), grp(b)
        o = []
        for k in range(max(len(a), len(b))):
            for y in a[k:k+1] + b[k:k+1]: o += y
        return o
    def prepass_init(s, mask):
        o = []
        if mask:
            o += L([f"v_add_u32 v{tA}, s{sC[s]}, v{vLB}"])
            prs = [(nb, r) for nb in range(2) for r in range(4)]
            pr = lambda k: "vcc" if k % 2 == 0 else f"s[{sRet}:{sRet+1}]"
            for k in range(0, 8, 2):
                o += L([f"v_cmp_le_i32 {pr(j)}, {prs[j][1] - 16*prs[j][0]}, v{tA}" for j in (k, k+1)])
                o += L([f"v_cndmask_b32 v{sreg(s,0,prs[j][0])+prs[j][1]}, v{vNI}, v{sreg(s,0,prs[j][0])+prs[j][1]}, {pr(j)}" for j in (k, k+1)])
        ch = []
        for nb in range(2):
            b = sreg(s, 0, nb); m = MS[s] + nb
            ch.append(L([f"v_max3_f32 v{m}, v{b}, v{b+1}, v{b+2}", f"v_max_f32 v{m}, v{m}, v{b+3}"]) + xred("v_max_f32", m, (tA, tB)[nb]) +
                      L([f"v_max_f32 v{m}, {f2u(-1e30):#x}, v{m}"] + [f"v_sub_f32 v{NM[s]+4*nb+r}, 0, v{m}" for r in range(4)]))
        return o + zipl(ch[0], ch[1])
    misc = L([f"v_mov_b32 v{ZR+k}, 0" for k in range(4)] + [f"v_mov_b32 v{LS[s]+nb}, 0" for s in 'ab' for nb in range(2)] +
             [f"s_mov_b32 s{sGd}, {3*16384}", f"s_lshl_b32 s{sCnt}, s{sI}, 1", f"s_sub_u32 s{sCnt}, s{sCnt}, 1", f"v_xor_b32 v{vXB}, 0x2000, v{vXB}"])
    def under(mf, fl, per=2):
        o = []
        for k, x in enumerate(mf): o += [x] + fl[per*k:per*k+per]
        return o + fl[per*len(mf):]
    post += under(prepass_mfma('a', 'a'), misc)
    post += [Wait(lg='qw'), I("s_barrier")]
    qxr = [I(f"ds_read_b128 {vr(Qreg['x'](nb, js))}, v{vXB} offset:{(js*2+nb)*1024}") for js in range(4) for nb in range(2)]
    pb = prepass_mfma('b', 'b')
    post += under(pb[:4], qxr) + under(pb[4:], prepass_init('a', True))

    NG, HG = 136, 68
    def body(name, qa, ntile, vmw, hooks, kread_on=True):
        B = Gaps(NG); used = [0]*NG; cls = {}
        cost = lambda x: 0 if x.kind == 'label' else (2 if x.kind in ('trans', 'vmem') else 1)
        def put(g, x, c, where=None):
            x = I(x) if isinstance(x, str) else x
            g %= NG
            if where == 'pre': B.before(g, x); used[(g-1) % NG] += cost(x)
            elif where == 'nv': B.nv[g].append(x); used[g] += cost(x)
            else: B.put(g, x); used[g] += cost(x)
            cls[id(x)] = c; return x
        def free(g, x, c, lim=None):
            x = I(x) if isinstance(x, str) else x
            while used[g % NG] + cost(x) > 2: g += 1
            assert lim is None or g <= lim, (name, x, g, lim)
            put(g, x, c, 'nv'); return g
        for s, g0, q in (('a', 0, qa), ('b', HG, 'b')):
            o = 'b' if s == 'a' else 'a'
            seq = []
            for mb in range(4):
                for nb in range(2):
                    D = vr(sreg(s, mb, nb))
                    seq += [(f"{MF} {D}, {ar(KF_+4*(mb*4+js))}, {vr(Qreg[q](nb, js))}, {vr(NM[s]+4*nb) if js == 0 else D}", 'qk'+s) for js in range(4)]
            ones = [(f"{MF} {vr(T4+4*nb)}, {vr(ONE)}, {vr(P[o]+(nb*2+ks)*4)}, {'0' if ks == 0 else vr(T4+4*nb)}", 'sm'+o) for nb in range(2) for ks in range(2)]
            seq[24:24] = ones
            for db in range(8):
                for nb in range(2):
                    D = ar(O[o] + (db*2+nb)*4)
                    seq += [(f"{MF} {D}, {ar(VF_+4*(db*2+ks))}, {vr(P[o]+(nb*2+ks)*4)}, {D}", 'pv'+o) for ks in range(2)]
            for k, (t, c) in enumerate(seq):
                B.mf[g0+k] = I(t); cls[id(B.mf[g0+k])] = c
            E0 = g0 + 26
            for e in range(32):
                mb, nb, r = e//8, (e//4) % 2, e % 4
                t = ET + (e % 4)
                put(E0 + 2*e, f"v_exp_f32 v{t}, v{sreg(s, mb, nb) + r}", 'sm'+s)
                if r % 2 == 1:
                    put(E0 + 2*e + 1, f"v_cvt_pk_bf16_f32 v{P[s] + (nb*2 + mb//2)*4 + (mb % 2)*2 + r//2}, v{t-1}, v{t}", 'sm'+s)
            if s not in hooks and s == 'a' and ntile == 1:
                for gh in (E0 - 1, E0 + 31): used[gh % NG] += 2
            if s in hooks:
                for hk, gh, lim in ((0, E0 - 1, 0), (1, E0 + 31, 32)):
                    lab = f"{name}_mk{s}{hk}"
                    put(gh, f"s_cmp_le_i32 s{sC[s]}, {lim}", 'sm'+s, 'nv'); put(gh, f"s_cbranch_scc1 {lab}", 'sm'+s, 'nv'); put(gh, f"{lab}_r:", 'sm'+s, 'nv')
            gc = g0 + HG + 31
            lab = f"{name}_rd{s}"
            put(gc, f"v_max_f32 v1, v{T4}, v{T4+4}", 'sm'+s); put(gc, f"v_cmp_lt_f32 vcc, s{sThr}, v1", 'sm'+s)
            put(gc+2, f"s_cbranch_vccnz {lab}", 'sm'+s, 'nv'); put(gc+2, f"{lab}_r:", 'sm'+s, 'nv')
            put(gc+4, f"v_add_f32 v{LS[s]}, v{LS[s]}, v{T4}", 'sm'+s); put(gc+4, f"v_add_f32 v{LS[s]+1}, v{LS[s]+1}, v{T4+4}", 'sm'+s)
        put(0, "s_waitcnt lgkmcnt(0)", 'mem', 'pre')
        put(4, f"s_waitcnt vmcnt({vmw})", 'mem', 'pre'); put(4, "s_barrier", 'mem', 'pre')
        free(5, f"v_add_u32 v{vVr}, s{sVr}, v{vX}", 'mem', 8)
        if kread_on: free(5, f"v_add_u32 v{vKr}, s{sKr}, v{vL16}", 'mem', 8)
        st = []
        wpf = [f"buffer_load_dword v5, v{vL16}, s[8:11], s26 offen", "s_add_u32 s26, s26, 1024"]
        if ntile == 1:
            st += [f"s_mov_b32 m0, s{sKd}"] + [f"buffer_load_dwordx4 v{vDM}, {sr(S_K)}, s{sGd} offen offset:{j*1024}{LDF} lds" for j in range(4)]
            st += wpf + [f"s_add_u32 s{sKd}, s{sKd}, 16384", f"s_and_b32 s{sKd}, s{sKd}, 0xffff", f"s_add_u32 m0, s{sVd}, 0x10000"]
            st += [f"buffer_load_dwordx4 v{vDM}, {sr(S_V)}, s{sGd} offen offset:{j*1024}{LDF} lds" for j in range(4)]
        elif ntile == 2:
            st += [f"s_add_u32 s{sT3}, s{sGd}, 16384", f"s_mov_b32 m0, s{sKd}"] + [f"buffer_load_dwordx4 v{vDM}, {sr(S_K)}, s{sGd} offen offset:{j*1024}{LDF} lds" for j in range(4)]
            st += [f"s_add_u32 m0, s{sKd}, 16384"] + [f"buffer_load_dwordx4 v{vDM}, {sr(S_K)}, s{sT3} offen offset:{j*1024}{LDF} lds" for j in range(4)]
            st += wpf + [f"s_xor_b32 s{sKd}, s{sKd}, 0x8000", f"s_add_u32 m0, s{sVd}, 0x10000"] + [f"buffer_load_dwordx4 v{vDM}, {sr(S_V)}, s{sGd} offen offset:{j*1024}{LDF} lds" for j in range(4)]
            st += [f"s_add_u32 m0, s{sVd}, 0x14000"] + [f"buffer_load_dwordx4 v{vDM}, {sr(S_V)}, s{sT3} offen offset:{j*1024}{LDF} lds" for j in range(4)]
        if ntile:
            st += [f"s_add_u32 s{sVd}, s{sVd}, {ntile*16384}", f"s_sub_u32 s{sT}, s{sVd}, 98304", f"s_min_u32 s{sVd}, s{sVd}, s{sT}", f"s_add_u32 s{sGd}, s{sGd}, {ntile*16384}"]
            g = 8; nd = 0; sp = 116/(4*2*ntile)
            for t in st:
                x = I(t)
                if x.kind == 'vmem' and x.op == 'buffer_load_dword': g = free(g + 1, x, 'mem', NG-1)
                elif x.kind == 'vmem':
                    g = free(max(g + 1, int(9 + nd*sp)), x, 'mem', NG-1); nd += 1
                else: g = free(g, x, 'mem', NG-1)
            step = ntile*16384
            g = 9
            ku = [f"s_add_u32 s{sKr}, s{sKr}, 16384", f"s_and_b32 s{sKr}, s{sKr}, 0xffff"] if ntile == 1 else [f"s_xor_b32 s{sKr}, s{sKr}, 0x8000"]
            for t in ku + [f"s_add_u32 s{sVr}, s{sVr}, {step}", f"s_sub_u32 s{sT2}, s{sVr}, 98304", f"s_min_u32 s{sVr}, s{sVr}, s{sT2}"]:
                g = free(g, t, 'mem', NG-1)
        g = 43
        for f in range(16):
            g = free(max(g, 40 + 2*f), f"ds_read_b128 {ar(VF_+4*f)}, v{vVr} offset:{f*1024}", 'mem', 96)
        vlast = g
        nk_before = 0
        if kread_on:
            for f in range(16):
                lastuse = HG + 8*(f//4) + 4 + f % 4 + (4 if 8*(f//4) + 4 + f % 4 >= 24 else 0)
                g = free(max(g, lastuse + 1), f"ds_read_b128 {ar(KF_+4*f)}, v{vKr} offset:{f*1024}", 'mem', 131)
                if g < 104: nk_before += 1
        put(104, f"s_waitcnt lgkmcnt({nk_before})", 'mem', 'pre')
        if name == "Sf":
            for t in [f"v_lshlrev_b32 v{vKr}, 2, v{vDM}", f"v_mul_u32_u24 v5, 3, v{vL16}", f"v_sub_u32 v{vKr}, v{vKr}, v5"]: free(9, t, 'mem', 30)
            B.wr_left = []
            for f in range(16):
                x = I(f"ds_write_b128 v{vKr}, {ar(O['a']+4*f)} offset:{f*1024}")
                g = 104 + 2*f + 5
                while g < NG and used[g] + 1 > 2: g += 1
                if g < NG: put(g, x, 'mem', 'nv')
                else: B.wr_left.append(x)
            ea = K3['early']
            first = ea[:9] + ea[-6:]; rest_ = ea[9:-6]
            g = 5
            for x in first: g = free(g, x, 'mem', NG-1)
            g = max(g, 41); K3['spill'] = []
            for x in rest_:
                while g < NG and used[g] + cost(x) > 2: g += 1
                if g < NG: put(g, x, 'mem', 'nv')
                else: K3['spill'].append(x)
        over = [(g, u) for g, u in enumerate(used) if u > 2]
        print(f"  body {name}: slots used {sum(used)}/{2*NG}, overfull gaps {over}")
        return B, cls
    def mkstubs(name):
        o = []
        for s in 'ab':
            for hk in range(2):
                lab = f"{name}_mk{s}{hk}"; lo, hi = 2*hk, 2*hk+1
                o += L([f"{lab}:", f"s_cmp_lg_u32 s{sC[s]}, {32*hk}", f"s_cbranch_scc1 {lab}_all"])
                o += L([f"v_cndmask_b32 v{sreg(s,lo,0)+r}, v{vNI}, v{sreg(s,lo,0)+r}, s[{sMk+2*r}:{sMk+2*r+1}]" for r in range(4)])
                o += L([f"v_mov_b32 v{sreg(s,hi,0)+r}, v{vNI}" for r in range(4)])
                o += L([f"v_cndmask_b32 v{sreg(s,hi,1)+r}, v{vNI}, v{sreg(s,hi,1)+r}, s[{sMk+2*r}:{sMk+2*r+1}]" for r in range(4)])
                o += L([f"s_branch {lab}_r", f"{lab}_all:"] + [f"v_mov_b32 v{sreg(s,lo,0)+k}, v{vNI}" for k in range(16)] + [f"s_branch {lab}_r"])
            lab = f"{name}_rd{s}"
            o += L([f"{lab}:", f"s_call_b64 s[{sRet}:{sRet+1}], K2_REDO_{s}", f"s_branch {lab}_r"])
        return o
    def redo(s):
        o = L([f"K2_REDO_{s}:", "s_nop 7"])
        for nb in range(2):
            vals = [sreg(s, mb, nb) + r for mb in range(4) for r in range(4)]
            ts = T4 + 4*nb
            o += L([f"v_max3_f32 v{tA}, v{vals[0]}, v{vals[1]}, v{vals[2]}"] + [f"v_max3_f32 v{tA}, v{tA}, v{vals[k]}, v{vals[k+1]}" for k in range(3, 15, 2)]
                   + [f"v_max_f32 v{tA}, v{tA}, v{vals[15]}"]) + xred("v_max_f32", tA, tB)
            o += L([f"v_max_f32 v{tA}, 0, v{tA}", f"v_add_f32 v{MS[s]+nb}, v{MS[s]+nb}, v{tA}", f"v_sub_f32 v{tB}, 0, v{tA}", f"v_exp_f32 v{tB}, v{tB}"])
            o += L([f"v_sub_f32 v{NM[s]+4*nb+r}, 0, v{MS[s]+nb}" for r in range(4)])
            o += L([f"v_mul_f32 v{LS[s]+nb}, v{LS[s]+nb}, v{tB}"])
            o += L([f"v_sub_f32 v{v}, v{v}, v{tA}" for v in vals])
            for db in range(8):
                for r in range(4):
                    a = O[s] + (db*2+nb)*4 + r
                    o += L([f"v_accvgpr_read_b32 v0, a{a}", f"v_mul_f32 v0, v0, v{tB}", f"v_accvgpr_write_b32 a{a}, v0"])
            o += L([f"v_mov_b32 v{ts}, 0"])
            for mb in range(4):
                for r in (0, 2):
                    b = sreg(s, mb, nb) + r
                    pd = P[s] + (nb*2 + mb//2)*4 + (mb % 2)*2 + r//2
                    o += L([f"v_exp_f32 v{tA}, v{b}", f"v_exp_f32 v{tB}, v{b+1}", f"v_add_f32 v{ts}, v{ts}, v{tA}",
                            f"v_add_f32 v{ts}, v{ts}, v{tB}", f"v_cvt_pk_bf16_f32 v{pd}, v{tA}, v{tB}"])
            o += xred("v_add_f32", ts, tB)
        o += L(["s_nop 1", f"s_setpc_b64 s[{sRet}:{sRet+1}]"])
        return o
    def lin(Bc, lo, hi, keep=None, ren=None):
        B, cls = Bc
        out = []
        XF = os.environ.get("XF", "").split(",")
        for x in B.linear(lo, hi):
            if keep is None and B in XB_:
                if 'dma' in XF and x.kind == 'vmem': continue
                if 'bar' in XF and x.op == 's_barrier': continue
                if 'ds' in XF and x.kind == 'ds': continue
                if 'salu' in XF and x.kind == 'salu' and x.op not in ('s_waitcnt', 's_barrier'): continue
                if 'wait' in XF and x.op == 's_waitcnt': continue
                if 'chk' in XF and x.kind == 'branch': continue
                if 'cvt' in XF and x.op.startswith('v_cvt'): continue
            if keep is None or cls.get(id(x), 'mem') in keep:
                out.append(I(x.text.replace(*ren)) if ren else x)
        return out
    D = body("D", 'a', 1, 5, ''); Dm = body("Dm", 'a', 1, 5, 'a'); S1 = body("S1", 'a', 2, 5, 'a')
    SS = body("S", 'x', 2, 9, ''); Sf = body("Sf", 'x', 0, 0, 'ab', kread_on=False)
    XB_ = [D[0], SS[0]]
    pream = lin(Dm, 0, HG, ('qka', 'sma', 'mem'), ("Dm_", "PR_"))
    ib = prepass_init('b', False); zs = zero_o('a') + zero_o('b')
    ib += L([f"buffer_load_dword v6, v{vL16}, s[12:15], s24 offen offset:{k*1024}" for k in range(3)])
    p2 = []; nm = 0
    for x in pream:
        p2.append(x)
        if x.kind == 'mfma':
            nm += 1
            if nm >= 5 and ib: p2 += ib[:2]; ib = ib[2:]
        if nm == 32 and x.op == 'v_cvt_pk_bf16_f32' and zs: p2.append(zs.pop(0))
    assert not ib and not zs
    pream = p2
    for n, x in enumerate(pream):
        if x.text.startswith("s_waitcnt vmcnt"): pream[n] = Wait(vm=[('KV', 'K', 1), ('KV', 'V', 0)], lg=0)
    head = pre + stamp(4) + G.linear(0, 512) + stamp(5) + G.linear(512, 768) + stamp(6) + post + stamp(7) + pream
    head += L([f"s_lshl_b32 s{sC['a']}, s{sW}, 5", f"s_cmp_eq_u32 s{sI}, 0", "s_cbranch_scc1 K2_DM_MID", "s_branch K2_D_MID"])
    head = resolve_waits(head)
    head, n1 = fix_hazards(head)
    dl = L(["K2_D:"]) + lin(D, 0, HG) + L(["K2_D_MID:"]) + lin(D, HG, NG) + L([f"s_sub_u32 s{sCnt}, s{sCnt}, 1", "s_cbranch_scc0 K2_D"])
    dl, n2 = fix_hazards(dl, pre=dl[-20:])
    assert os.environ.get('XF') or fix_hazards(lin(D, HG, HG+12), pre=head[-20:])[1] == 0 and fix_hazards(lin(Dm, HG, HG+12), pre=head[-20:])[1] == 0
    mid = lin(Dm, 0, HG) + L(["K2_DM_MID:"]) + lin(Dm, HG, NG)
    mid += L([f"s_lshl_b32 s{sT}, s{sPar}, 14", f"s_add_u32 s{sKr}, s{sKr}, s{sT}", f"s_and_b32 s{sKr}, s{sKr}, 0xffff", f"s_sub_u32 s{sC['a']}, s{sC['a']}, 64"])
    mid += (stamp(8) if not DIAG else []) + lin(S1, 0, NG) + (stamp(9) if not DIAG else [])
    def finalize(s, so, zero, wts=None):
        o = []
        for j in range(4):
            for nb in range(2):
                t = 132 if (j*2+nb) % 2 == 0 else 128
                t8 = 136 + ((j*2+nb) % 2)*8
                o += L([f"v_accvgpr_read_b32 v{t8+hh*4+r}, a{O[s] + ((2*j+hh)*2+nb)*4 + r}" for hh in range(2) for r in range(4)])
                sel = "op_sel_hi:[1,0]" if nb == 0 else "op_sel:[0,1] op_sel_hi:[1,1]"
                for k in range(0, 8, 2):
                    o += L([f"v_pk_mul_f32 {vr(t8+k,2)}, {vr(t8+k,2)}, {vr(TS[s],2)} {sel}"])
                    if wts is not None:
                        x = wts + ((2*j + k//4)*2+nb)*4 + k % 4
                        sel3 = "op_sel_hi:[1,0,1]" if nb == 0 else "op_sel:[0,1,0] op_sel_hi:[1,1,1]"
                        o += L([f"v_pk_fma_f32 {vr(t8+k,2)}, {vr(x,2)}, {vr(TS['a'],2)}, {vr(t8+k,2)} {sel3}"])
                o += L([f"v_cvt_pk_bf16_f32 v{t+k}, v{t8+2*k}, v{t8+2*k+1}" for k in range(4)])
                o += L([f"buffer_store_dwordx4 {vr(t)}, v{vL16}, {sr(S_WS)}, s{so+nb} offen offset:{j*1024}{STF2}"])
            if zero: o += [zero_o(s)[j]]
        return o
    tr = L([f"s_lshl_b32 s{sT}, s{sPar}, 14", f"s_add_u32 s{sVr}, s{sVr}, s{sT}", f"s_add_u32 s{sVr}, s{sVr}, {98304-16384}",
            f"s_sub_u32 s{sT2}, s{sVr}, 98304", f"s_min_u32 s{sVr}, s{sVr}, s{sT2}",
            f"s_lshl_b32 s{sT}, s{sI}, 7", f"s_sub_u32 s{sC['a']}, s{sC['b']}, s{sT}", f"s_lshl_b32 s{sT}, s{sPar}, 7", f"s_sub_u32 s{sC['a']}, s{sC['a']}, s{sT}",
            f"s_sub_u32 s{sC['a']}, s{sC['a']}, 96",
            f"s_lshl_b32 s{sCnt}, s{sI}, 1", f"s_sub_u32 s{sCnt}, 13, s{sCnt}", "s_waitcnt lgkmcnt(0)"])
    tr += L([f"v_rcp_f32 v{TS['a']+nb}, v{LS['a']+nb}" for nb in range(2)] + [f"v_mov_b32 v{LS['a']+nb}, 0" for nb in range(2)])
    tr = L([f"v_mov_b32 v{T4+k}, -1" for k in range(4)] + ["s_lshl_b32 s25, s2, 15", f"s_lshl_b32 s27, s{sW}, 13", "s_add_u32 s25, s25, s27",
            f"s_add_u32 s25, s25, {WS_EX + 2048}", "s_add_u32 s27, s25, 4096"] +
           [f"buffer_store_dwordx4 {vr(T4)}, v{vL16}, {sr(S_WS)}, s{25 if k < 4 else 27} offen offset:{(k % 4)*1024} sc1" for k in range(6)]) + tr
    tr = L([f"s_lshl_b32 s{sT}, s{sH}, 2", f"s_add_u32 s{sT}, s{sT}, {FL_AC}", f"s_lshl_b32 s{sT2}, s{sI}, 7", f"s_sub_u32 s{sT3}, {15*128}, s{sT2}",
            f"v_mov_b32 v{tA}, s{sT2}", f"v_writelane_b32 v{tA}, s{sT3}, 1", f"v_mov_b32 v{tB}, 1",
            f"s_cmp_lg_u32 s{sW}, 0", "s_cbranch_scc1 K2_SIGA", "s_mov_b64 exec, 3", f"buffer_store_dword v{tB}, v{tA}, {sr(S_WS)}, s{sT} offen sc1", "s_mov_b64 exec, -1", "K2_SIGA:"]) + tr
    fa = finalize('a', sXN, True)
    tr += fa + prepass_mfma('a', 'x') + prepass_init('a', True)
    tr += L([f"s_lshl_b32 s{sC['b']}, s{sW}, 5", f"s_lshl_b32 s{sT}, s{sPar}, 6", f"s_sub_u32 s{sC['b']}, s{sC['b']}, s{sT}",
             f"s_add_u32 s{sC['a']}, s{sC['b']}, 32", f"s_sub_u32 s{sC['a']}, s{sC['a']}, s{sT}"])
    mid += tr + (stamp(10) if not DIAG else []) + L([f"s_cmp_eq_u32 s{sI}, 7", "s_cbranch_scc1 K2_SF"])
    mid, n3 = fix_hazards(mid, pre=dl[-20:])
    sl = L(["K2_S:"]) + lin(SS, 0, NG) + L([f"s_sub_u32 s{sCnt}, s{sCnt}, 1", "s_cbranch_scc0 K2_S"])
    sl, n4 = fix_hazards(sl, pre=sl[-20:])
    assert os.environ.get('XF') or fix_hazards(sl[:24], pre=mid[-20:])[1] == 0
    tail = L(["K2_SF:"]) + code_prefetch("K3_BEGIN" if FUSED else "outproj_kernel", "K2_PC2", False, tA, tA, sRet, sT3, vtid=31) + lin(Sf, 0, NG)
    assert fix_hazards(tail[:24], pre=mid[-20:])[1] == 0
    tb = lin(SS, 0, HG, ('smb', 'pvb'), ("S_", "TL_"))
    kq = [n for n, x in enumerate(tb) if x.kind == 'mfma' and x.wr[0].startswith('a')][0]
    tail += L(["s_barrier",
               f"v_xor_b32 v{vVr}, 0x4000, v{vKr}", f"v_add_u32 v{vDM}, 0x10000, v{vDM}",
               f"v_mov_b32 v{NM['a']}, v{MS['a']}", f"v_mov_b32 v{NM['a']+1}, v{MS['a']+1}", f"v_mov_b32 v{NM['a']+2}, v{LS['a']}", f"v_mov_b32 v{NM['a']+3}, v{LS['a']+1}",
               f"ds_write_b128 v{vDM}, {vr(NM['a'])}"])
    wr = Sf[0].wr_left
    tail += zipl(zipl(tb[:kq], wr), K3['spill'] + K3['acheck'] + K3['loads'])
    XO = 64
    pv = tb[kq:]
    n0 = K3['need0']
    tail += zipl(pv[:8], zipl(n0[0:16:2], n0[1:16:2])[:0] + n0[:8]) + L(["s_waitcnt lgkmcnt(0)", "s_barrier", f"v_xor_b32 v{vDM}, 0x1000, v{vDM}", f"ds_read_b128 {vr(NM['a'])}, v{vDM}"])
    rd = L([f"ds_read_b128 {vr(XO+4*f)}, v{vVr} offset:{f*1024}" for f in range(16)])
    wt = L(["s_waitcnt lgkmcnt(15)"])
    ch = []
    for nb in range(2):
        mx, lx, mb_, lb, t = NM['a']+nb, NM['a']+2+nb, MS['b']+nb, LS['b']+nb, (tA, tB)[nb]
        ch.append(L([f"v_max_f32 v{t}, v{mx}, v{mb_}", f"v_sub_f32 v{mx}, v{mx}, v{t}", f"v_sub_f32 v{mb_}, v{mb_}, v{t}",
                     f"v_exp_f32 v{mx}, v{mx}", f"v_exp_f32 v{mb_}, v{mb_}", f"v_mul_f32 v{lb}, v{lb}, v{mb_}", f"v_fmac_f32 v{lb}, v{lx}, v{mx}",
                     f"v_rcp_f32 v{lb}, v{lb}", f"v_mul_f32 v{TS['b']+nb}, v{mb_}, v{lb}", f"v_mul_f32 v{TS['a']+nb}, v{mx}, v{lb}"]))
    fl = rd + wt + zipl(ch[0], ch[1]) + n0[8:]
    pvr = pv[8:]
    for k, x in enumerate(pvr): tail += [x] + fl[2*k:2*k+2]
    tail += fl[2*len(pvr):]
    fb = finalize('b', sXN+2, False, wts=XO)
    for x in fb:
        if x.kind == 'vmem': x.tag = 'cst'
    tail += L(["s_waitcnt lgkmcnt(0)"]) + fb
    tail += prof_end(1, S_WS, sW, 4, vtmp=32, drain=not FUSED)
    tail, n5 = fix_hazards(resolve_waits(tail + K3['main']), pre=sl[-20:])
    alltext = "\n".join(x.text for x in head + dl + mid + sl + tail)
    stubs = []
    for nm in ("PR", "D", "Dm", "S1", "S", "Sf", "TL"):
        cur = []
        for x in mkstubs(nm) + L(["SENTINEL:"]):
            if x.kind == 'label' and not x.text.endswith("_all:"):
                if cur and ("\n" + cur[0].text[:-1] + "_r:") in alltext: stubs += fix_hazards(cur)[0]
                cur = []
            cur.append(x)
    stubs += fix_hazards(redo('a'))[0] + fix_hazards(redo('b'))[0]
    stubs += kvstub + K3['stubs']
    seq = head + dl + mid + sl + tail + stubs
    print("total instrs", len(seq), "nops head/D/mid/S/tail", n1, n2, n3, n4, n5)
    return seq
```

```python
from gen import *

def k3_parts():
    S_WS, S_WO, S_W2, S_X, S_OUT = 4, 16, 20, 8, 12
    sW, sTm, sTn, sKq = 28, 36, 37, 38
    sT, sT2, sT3, sA, sB, sM = 39, 40, 41, 42, 43, 44
    sXo, sEx, sFl, sCx, sOw, sSr = 48, 49, 50, 51, 52, 52
    NS, NA = 43, 11
    SLOT = [80, 96, 112, 128, 144, 0, 16, 32, 48, 64]; NB = len(SLOT)
    slot = lambda s: SLOT[s % NB]*1024
    vL, vL16 = 2, 3
    vKA, vKW, vA1, vW0, vW1, vPo, vPd = 192, 193, 194, 195, 196, 197, 198
    a_, b_, c_, d_ = 199, 200, 201, 202
    vAr = [8, 208, 216]; vT = [12, 212, 220]
    tA, tB, vXo, vXv = 16, 17, 18, 20
    WF = 32; AF = 64; ACC = 96; RX = 160
    P = {}
    e = [f"s_and_b32 s{sKq}, s2, 3", f"s_bfe_u32 s{sT}, s2, 0x10002", f"s_lshl_b32 s{sT}, s{sT}, 3", f"s_bfe_u32 s{sT2}, s2, 0x30003",
         f"s_add_u32 s{sTm}, s{sT}, s{sT2}", f"s_lshr_b32 s{sTn}, s2, 6",
         f"s_lshl_b32 s{sT3}, s{sTn}, 1", f"s_add_u32 s{sT2}, s{sT2}, s{sT3}", f"s_and_b32 s{sT2}, s{sT2}, 7",
         f"v_and_b32 v{vPo}, 31, v{vL}", f"v_lshlrev_b32 v{vPo}, 2, v{vPo}", f"s_lshl_b32 s{sCx}, s{sTm}, 7", f"s_add_u32 s{sOw}, s{sCx}, {FL_AC}"]
    apoll = f"buffer_load_dword v{vPd}, v{vPo}, {sr(S_WS)}, s{sOw} offen sc1"
    e += [T(apoll, 'ap')]
    e += [f"v_add_u32 v{a_}, s{sT2}, v{vL}", f"v_subrev_u32 v{b_}, 11, v{a_}", f"v_min_u32 v{c_}, v{a_}, v{b_}",
          f"s_mul_i32 s{sT}, s{sKq}, 11", f"v_add_u32 v{c_}, s{sT}, v{c_}",
          f"v_and_b32 v{b_}, 7, v{b_}", f"v_subrev_u32 v{d_}, 11, v{vL}", f"v_and_b32 v{d_}, 24, v{d_}", f"v_add_u32 v{b_}, v{b_}, v{d_}",
          f"s_lshl_b32 s{sT}, s{sKq}, 5", f"v_add_u32 v{b_}, s{sT}, v{b_}",
          f"v_cmp_gt_u32 s[54:55], 11, v{vL}", f"v_min_u32 v{a_}, 42, v{c_}", f"v_add_u32 v{a_}, 0x80, v{a_}",
          f"v_cndmask_b32 v{vKW}, v{b_}, v{c_}, s[54:55]", f"v_cndmask_b32 v{vKA}, v{b_}, v{a_}, s[54:55]",
          f"v_lshlrev_b32 v{vKW}, 15, v{vKW}", f"v_lshlrev_b32 v{vKA}, 10, v{vKA}",
          f"s_lshl_b32 s{sT}, s{sTm}, 3", f"s_lshl_b32 s{sT3}, s{sW}, 1", f"s_add_u32 s{sT}, s{sT}, s{sT3}", f"s_mul_i32 s{sT}, s{sT}, {CA_RB}",
          f"s_add_u32 s{sT}, s{sT}, {WS_CA}", f"v_add_u32 v{vKA}, s{sT}, v{vKA}",
          f"v_add_u32 v{vA1}, {CA_RB-1024}, v{vL16}", f"s_lshl_b32 s{sM}, s{sW}, 12"]
    e += [f"v_bfe_u32 v{a_}, v{vL}, 4, 2", f"v_lshlrev_b32 v{a_}, 1, v{a_}", f"v_and_b32 v{b_}, 7, v{vL}", f"v_xor_b32 v{a_}, v{a_}, v{b_}",
          f"v_lshlrev_b32 v{a_}, 4, v{a_}", f"v_lshrrev_b32 v{b_}, 3, v{vL}", f"v_lshl_add_u32 v{vW1}, v{b_}, 10, v{a_}",
          f"s_lshl_b32 s{sT}, s{sTn}, 8", f"s_lshl_b32 s{sT3}, s{sW}, 13", f"s_add_u32 s{sT}, s{sT}, s{sT3}", f"v_add_u32 v{vW1}, s{sT}, v{vW1}",
          f"v_add_u32 v{vW0}, 1024, v{vW1}", f"v_add_u32 v{vW1}, 128, v{vW1}",
          f"s_sub_u32 s{S_WO}, s8, 3072\n    s_subb_u32 s{S_WO+1}, s9, 0", f"s_mov_b32 s{S_WO+2}, {0x400000+3072}", f"s_mov_b32 s{S_WO+3}, 0x00020000",
          f"s_sub_u32 s{S_W2}, s12, 3072\n    s_subb_u32 s{S_W2+1}, s13, 0", f"s_mov_b32 s{S_W2+2}, {1376*1024+3072}", f"s_mov_b32 s{S_W2+3}, 0x00020000"]
    P['early'] = L(e)
    P['acheck'] = [Wait(vm='ap')] + L([f"v_cmp_ne_u32 vcc, 1, v{vPd}", "s_cbranch_vccnz K3_ASPIN_E", "K3_AOK:"])
    stubs = L(["K3_ASPIN_E:"]) + spin("K3_ASPIN", apoll, vPd, 1, sA) + L(["s_branch K3_AOK"])
    def loads(s):
        sd = S_W2 if s < NA else S_WO
        return L([f"v_readlane_b32 s{sA}, v{vKA}, {s}", f"v_readlane_b32 s{sB}, v{vKW}, {s}", f"s_add_u32 m0, s{sM}, {slot(s)}"]) + \
          [T(f"buffer_load_dwordx4 v{vL16}, {sr(S_WS)}, s{sA} offen sc1 lds", ('L', s)),
           T(f"buffer_load_dwordx4 v{vA1}, {sr(S_WS)}, s{sA} offen offset:1024 sc1 lds", ('L', s)),
           T(f"buffer_load_dwordx4 v{vW0}, {sr(sd)}, s{sB} offen offset:2048 lds", ('L', s)),
           T(f"buffer_load_dwordx4 v{vW1}, {sr(sd)}, s{sB} offen offset:3072 lds", ('L', s))]
    NE = int(os.environ.get('NEARLY', '2'))
    P['loads'] = [x for s in range(NE) for x in loads(s)]
    l = ["s_load_dwordx2 s[56:57], s[0:1], 0", "s_load_dwordx2 s[62:63], s[0:1], 80",
         f"v_lshrrev_b32 v{tA}, 5, v{vL}", f"v_lshlrev_b32 v{tA}, 12, v{tA}", f"v_bfe_u32 v{tB}, v{vL}, 2, 3", f"v_lshl_add_u32 v{tA}, v{tB}, 7, v{tA}",
         f"v_and_b32 v{tB}, 3, v{vL}", f"v_lshl_add_u32 v{tA}, v{tB}, 3, v{tA}", f"v_bfe_u32 v{tB}, v{vL}, 3, 2", f"v_lshl_add_u32 v{tA}, v{tB}, 5, v{tA}",
         f"s_and_b32 s{sT}, s{sW}, 1", f"s_lshl_b32 s{sT}, s{sT}, 10", f"s_add_u32 s{sT}, s{sT}, 2048", f"v_add_u32 v{vT[0]}, s{sT}, v{tA}"] + \
        [f"v_xor_b32 v{vT[0]+c}, {c*32}, v{vT[0]}" for c in range(1, 4)]
    l += [f"s_lshl_b32 s{sT}, s{sKq}, 2", f"s_lshr_b32 s{sT}, 0x54105410, s{sT}", f"s_and_b32 s{sT3}, s{sW}, 2", f"s_lshl_b32 s{sT3}, s{sT3}, 12", f"v_add_u32 v{tA}, s{sT3}, v{vL16}"]
    for r in range(4):
        l += [f"s_bfe_u32 s{sT3}, s{sT}, {0x40000 + 4*r:#x}", f"v_lshl_add_u32 v{vAr[0]+r}, s{sT3}, 10, v{tA}"]
    for k in (1, 2):
        l += [f"v_add_u32 v{vAr[k]+r}, {k*0x10000}, v{vAr[0]+r}" for r in range(4)] + [f"v_add_u32 v{vT[k]+c}, {k*0x10000}, v{vT[0]+c}" for c in range(4)]
    P['need0'] = L(l)
    l = [f"v_and_b32 v{tA}, 15, v{vL}", f"v_lshrrev_b32 v{tB}, 4, v{vL}", f"v_lshlrev_b32 v{vXo}, 10, v{tA}", f"v_lshl_add_u32 v{vXo}, v{tB}, 3, v{vXo}",
          f"s_lshl_b32 s{sXo}, s{sTm}, 17", f"s_lshr_b32 s{sT}, s{sW}, 1", f"s_lshl_b32 s{sT}, s{sT}, 16", f"s_add_u32 s{sXo}, s{sXo}, s{sT}",
          f"s_lshl_b32 s{sT}, s{sKq}, 14", f"s_add_u32 s{sXo}, s{sXo}, s{sT}", f"s_lshl_b32 s{sT}, s{sTn}, 8", f"s_add_u32 s{sXo}, s{sXo}, s{sT}",
          f"s_and_b32 s{sT}, s{sW}, 1", f"s_lshl_b32 s{sT}, s{sT}, 7", f"s_add_u32 s{sXo}, s{sXo}, s{sT}",
          f"s_lshl_b32 s{sEx}, s2, 15", f"s_lshl_b32 s{sT}, s{sW}, 13", f"s_add_u32 s{sEx}, s{sEx}, s{sT}", f"s_add_u32 s{sEx}, s{sEx}, {WS_EX}",
          f"s_and_b32 s{sT}, s2, 7", f"s_lshl_b32 s{sT}, s{sT}, 2", f"s_bfe_u32 s{sT2}, s2, 0x20003", f"s_add_u32 s{sT}, s{sT}, s{sT2}", f"s_lshl_b32 s{sT}, s{sT}, 7",
          f"s_lshl_b32 s{sT3}, s{sW}, 12", f"s_add_u32 s{sT}, s{sT}, s{sT3}", f"s_add_u32 s{sOw}, s{sT}, {FL_CX}",
          f"s_lshr_b32 s{sT2}, s2, 5", f"s_lshl_b32 s{sT2}, s{sT2}, 14", f"s_sub_u32 s{sT}, {15*16384}, s{sT2}",
          f"v_mov_b32 v19, s{sT2}", f"v_writelane_b32 v19, s{sT}, 1", f"v_mov_b32 v29, 1",
          f"v_and_b32 v{vPo}, 7, v{vL}", f"v_lshlrev_b32 v{vPo}, 7, v{vPo}", f"s_lshl_b32 s{sCx}, s{sCx}, 7", f"s_add_u32 s{sCx}, s{sCx}, s{sT3}",
          f"s_lshl_b32 s{sT}, s{sKq}, 10", f"s_add_u32 s{sCx}, s{sCx}, s{sT}", f"s_add_u32 s{sCx}, s{sCx}, {FL_CX}"]
    k = [n for n, x in enumerate(l) if x.startswith(f"s_and_b32 s{sT}, s2, 7")][0]
    l = l[k:] + l[:k]
    late = L(l + srd(S_X, 56, 57, 0x200000) + srd(S_OUT, 62, 63, 0x200000))
    def reads(s):
        b = slot(s); va, vt = vAr[b >> 16], vT[b >> 16]; b &= 0xffff
        o = []
        for c in range(4):
            o += [T(f"ds_read_b128 {vr(AF+16*(s%2)+4*c)}, v{va+c} offset:{b}", ('R', s))]
            o += [T(f"ds_read_b64_tr_b16 {vr(WF+16*(s%2)+4*c+2*t, 2)}, v{vt+c} offset:{b + t*8192}", ('R', s)) for t in range(2)]
        return o
    pre = L(["K3_BEGIN:"]) + prof_begin()
    for s in range(NE, 5): pre += loads(s)
    pre += [Wait(vm=('L', 1)), I("s_barrier")] + reads(0) + stamp(2)
    G = Gaps(16*NS)
    stream = [(0, loads(5) + loads(6))]
    cpoll = f"buffer_load_dword v{vPd}, v{vPo}, {sr(S_WS)}, s{sCx} offen sc1"
    SP_, SC_ = int(os.environ.get("K3PUB", "14")), int(os.environ.get("K3CHK", "7"))
    nxt = 7
    for s in range(NS):
        g = 16*s
        for c in range(4):
            for r in range(4):
                D = vr(ACC + (r*4+c)*4)
                G.mf[g + c*4 + r] = I(f"{MF} {D}, {vr(WF+16*(s%2)+4*c)}, {vr(AF+16*(s%2)+4*r)}, {'0' if s == 0 else D}")
        G.before(g, Wait(lg=('R', s)))
        if s + 1 < NS:
            if s % 2 == 1:
                G.before(g + 1, Wait(vm=('L', min(s+2, NS-1)))); G.before(g + 1, I("s_barrier"))
                ld = []
                if s == SC_ - 2: ld += [T(cpoll, 'cp')]
                if s == SC_:
                    for x in [Wait(vm='cp')] + L([f"v_cmp_ne_u32 vcc, 1, v{vPd}", "s_cbranch_vccnz K3_CSPIN_E", "K3_COK:"]) + stamp(6): G.before(g + 1, x)
                    stubs += L(["K3_CSPIN_E:"]) + spin("K3_CSPIN", cpoll, vPd, 1, sA) + L(["s_branch K3_COK"])
                lim = min(s + 7, NS - 1) if s >= SC_ else min(s + 7, NA - 1)
                k = 0
                while nxt <= lim and k < 3: ld += loads(nxt); nxt += 1; k += 1
                if s == 29:
                    ld = L([f"s_lshr_b32 s{sT}, s2, 5", f"s_lshl_b32 s{sT}, s{sT}, 14", f"s_lshl_b32 s{sT3}, s{sW}, 12", f"s_add_u32 s{sT}, s{sT}, s{sT3}",
                            f"s_and_b32 s{sT3}, s2, 4", f"s_lshl_b32 s{sT3}, s{sT3}, 9", f"s_add_u32 s{sT}, s{sT}, s{sT3}", f"s_bfe_u32 s{sT3}, s2, 0x20003",
                            f"s_lshl_b32 s{sT3}, s{sT3}, 7", f"s_add_u32 s{sT}, s{sT}, s{sT3}", f"s_add_u32 s{sCx}, s{sT}, {FL_CX}",
                            f"v_and_b32 v{vPo}, 3, v{vL}", f"v_lshlrev_b32 v{vPo}, 9, v{vPo}"]) + [T(cpoll, 'pp')] + ld
                if s == 33:
                    for x in [Wait(vm='pp')] + L([f"v_cmp_ne_u32 vcc, 1, v{vPd}", "s_cbranch_vccnz K3_PSPIN_E", "K3_POK:"]): G.before(g + 1, x)
                    stubs += L(["K3_PSPIN_E:"]) + spin("K3_PSPIN", cpoll, vPd, 1, sT) + L(["s_branch K3_POK"])
                if s == 13: ld += [T(f"buffer_load_dwordx2 {vr(vXv+2*c, 2)}, v{vXo}, {sr(S_X)}, s{sXo} offen offset:{c*32}", 'x') for c in range(4)]
                if ld: stream.append((g + 1, ld))
            for j, x in enumerate(reads(s+1)): G.put(g + 1 + j, x)
    assert nxt == NS
    place_stream(G, stream, 3, start=2)
    for j, x in enumerate(late): G.nv[(j if j < 40 else 2*j)//2].append(x)
    for x in [Wait(vm='cst')] + L(["s_mov_b64 exec, 3", f"buffer_store_dword v29, v19, {sr(S_WS)}, s{sOw} offen sc1", "s_mov_b64 exec, -1"]): G.before(SP_, x)
    fin = stamp(3)
    fin += L([f"s_add_u32 s{sT}, s{sEx}, 4096"])
    for r in range(1, 4):
        for hh in range(2):
            b = ACC + r*16 + hh*8; o = r*2048 + hh*1024
            fin += L([f"v_cvt_pk_bf16_f32 v{b+k}, v{b+2*k}, v{b+2*k+1}" for k in range(4)])
            fin += L([f"buffer_store_dwordx4 {vr(b)}, v{vL16}, {sr(S_WS)}, s{sEx if o < 4096 else sT} offen offset:{o % 4096} sc1"])
    for r in range(1, 4):
        fin += L([f"s_add_u32 s{sT}, s{sKq}, {r}", f"s_and_b32 s{sT}, s{sT}, 3", f"s_sub_u32 s{sT}, s{sT}, s{sKq}", f"s_lshl_b32 s{sT}, s{sT}, 15",
                  f"s_add_u32 s{sSr+r}, s{sEx}, s{sT}", f"s_add_u32 s{sSr+r}, s{sSr+r}, {(4-r)*2048}"])
    for c in range(4):
        for hw in range(2):
            x = vXv + 2*c + hw
            fin += L([f"v_lshlrev_b32 v{WF}, 16, v{x}", f"v_and_b32 v{WF+1}, 0xffff0000, v{x}",
                      f"v_add_f32 v{ACC+4*c+2*hw}, v{ACC+4*c+2*hw}, v{WF}", f"v_add_f32 v{ACC+4*c+2*hw+1}, v{ACC+4*c+2*hw+1}, v{WF+1}"])
    fin += stamp(4) + L([f"s_mov_b32 s{sA}, 0x20000", "K3_XSPIN:"])
    for r in range(1, 4):
        fin += L([f"buffer_load_dwordx4 {vr(RX+((r-1)*2+hh)*4)}, v{vL16}, {sr(S_WS)}, s{sSr+r} offen offset:{hh*1024} sc1" for hh in range(2)])
    fin += L(["s_waitcnt vmcnt(0)", f"v_max3_u32 v{vPd}, v{RX}, v{RX+1}, v{RX+2}"] + [f"v_max3_u32 v{vPd}, v{vPd}, v{RX+k}, v{RX+k+1}" for k in range(3, 23, 2)] +
             [f"v_max_u32 v{vPd}, v{vPd}, v{RX+23}", f"v_cmp_eq_u32 vcc, -1, v{vPd}", "s_cbranch_vccz K3_XOK", "s_sleep 2",
              f"s_sub_u32 s{sA}, s{sA}, 1", "s_cbranch_scc0 K3_XSPIN", "K3_XOK:"]) + stamp(5)
    for k in range(24):
        x = RX + k; t = WF + 2*(k % 2)
        fin += L([f"v_lshlrev_b32 v{t}, 16, v{x}", f"v_and_b32 v{t+1}, 0xffff0000, v{x}",
                  f"v_add_f32 v{ACC+2*(k%8)}, v{ACC+2*(k%8)}, v{t}", f"v_add_f32 v{ACC+2*(k%8)+1}, v{ACC+2*(k%8)+1}, v{t+1}"])
    for c in range(4):
        fin += L([f"v_cvt_pk_bf16_f32 v{vXv+2*c}, v{ACC+4*c}, v{ACC+4*c+1}", f"v_cvt_pk_bf16_f32 v{vXv+2*c+1}, v{ACC+4*c+2}, v{ACC+4*c+3}",
                  f"buffer_store_dwordx2 {vr(vXv+2*c, 2)}, v{vXo}, {sr(S_OUT)}, s{sXo} offen offset:{c*32}"])
    P['main'] = pre + G.linear() + fin + prof_end(2, S_WS, sW, 4, vtmp=56) + L(["K3_END:", "s_endpgm"])
    P['stubs'] = stubs
    return P

NAME = "parallel_sum__compressed_kv_cla__dense_activation_mish__prompt_kernel"
if __name__ == "__main__":
    from gen_k2 import gen_k2
    seq = gen_k2(k3_parts())
    emit([(NAME, 256, 256, 163840, seq, 512, 256)], sys.argv[1] if len(sys.argv) > 1 else "k.s")
```

```python
import math, sys, struct, os
from asmlib import *

WS_XN = 0x0
WS_KF = 0x200000
WS_VF = 0x1200000
WS_CA = 0x2200000
CA_RB = 172*1024
WS_EX = 0x4000000
WS_FL = 0x5000000
WS_SIZE = 0x10000000
SCALE = math.log2(math.e) / math.sqrt(128.0)
def f2u(f): return struct.unpack('<I', struct.pack('<f', f))[0]
MF = "v_mfma_f32_16x16x32_bf16"
def vr(b, n=4): return f"v[{b}:{b+n-1}]"
def ar(b, n=4): return f"a[{b}:{b+n-1}]"
def sr(b, n=4): return f"s[{b}:{b+n-1}]"
def L(lines): return [I(x) if isinstance(x, str) else x for x in lines]

def srd(d, lo, hi, size):
    return [f"s_mov_b32 s{d}, s{lo}", f"s_mov_b32 s{d+1}, s{hi}",
            f"s_mov_b32 s{d+2}, {size}" , f"s_mov_b32 s{d+3}, 0x00020000"]
def srd_off(d, lo, hi, soff, size):
    return [f"s_add_u32 s{d}, s{lo}, s{soff}\n    s_addc_u32 s{d+1}, s{hi}, 0", f"s_sub_u32 s{d+2}, {size}, s{soff}", f"s_mov_b32 s{d+3}, 0x00020000"]

PROF = bool(os.environ.get("PROF"))
STF = os.environ.get("STF", " sc1")
FUSED = os.environ.get("FUSED", "1") == "1"
LDF = " sc1" if FUSED else ""
FL_KV, FL_AC, FL_CX, FL_EX = WS_FL, WS_FL + 0x1000, WS_FL + 0x40000, WS_FL + 0x80000
STX = os.environ.get("STX", " sc1")
STF2 = os.environ.get("STF2", " sc1")
WS_PROF = 0xF000000
NSTAMP = 12
def stamp(k):
    return [I(f"s_memtime s[{72+2*k}:{73+2*k}]")] if PROF else []
def prof_begin():
    return ([I("s_memrealtime s[96:97]")] + [x for k in range(NSTAMP) for x in stamp(k)]) if PROF else []
def prof_end(kidx, S_WS, sW, nwaves, vtmp=0, drain=True):
    if not PROF: return []
    o = L((["s_waitcnt vmcnt(0)"] if drain else []) + ["s_memrealtime s[98:99]"]) + stamp(NSTAMP-1) + L(["s_waitcnt lgkmcnt(0)",
          f"s_mul_i32 s70, s2, {nwaves}", f"s_add_u32 s70, s70, s{sW}", "s_lshl_b32 s70, s70, 6",
          f"s_add_u32 s70, s70, {WS_PROF + kidx*0x40000}", f"v_mov_b32 v{vtmp+16}, 0"])
    regs = [96, 98] + [72+2*k for k in range(NSTAMP)] + [97, 99]
    for j, rg in enumerate(regs): o += L([f"v_mov_b32 v{vtmp+j}, s{rg}"])
    for j in range(4):
        o += L([f"buffer_store_dwordx4 {vr(vtmp+4*j)}, v{vtmp+16}, {sr(S_WS)}, s70 offen offset:{16*j}"])
    return o

def code_prefetch(label, here, wide, vdst, vaddr, sp, st, vtid=0):
    sh = 3 if wide else 2
    o = [f"s_getpc_b64 s[{sp}:{sp+1}]", f"{here}:"]
    if label is not None:
        o += [f"s_add_u32 s{sp}, s{sp}, {label}-{here}\n    s_addc_u32 s{sp+1}, s{sp+1}, 0"]
    o += [f"s_bfe_u32 s{st}, s2, 0x50003", f"s_lshl_b32 s{st}, s{st}, {8+sh}", f"v_lshlrev_b32 v{vaddr}, {sh}, v{vtid}", f"v_add_u32 v{vaddr}, s{st}, v{vaddr}",
          f"global_load_dwordx2 {vr(vdst, 2)}, v{vaddr}, s[{sp}:{sp+1}]" if wide else f"global_load_dword v{vdst}, v{vaddr}, s[{sp}:{sp+1}]"]
    return L(o)

def one_lane(ins, sW, lab, stmp):
    return L([f"s_cmp_lg_u32 s{sW}, 0\n    s_cbranch_scc1 {lab}\n    s_mov_b64 exec, 1"]) + ins + L(["s_mov_b64 exec, -1", f"{lab}:"])
def spin(lab, load, vdst, want, scnt):
    return L([f"s_mov_b32 s{scnt}, 0x40000", f"{lab}:", load, "s_waitcnt vmcnt(0)", f"v_cmp_ne_u32 vcc, {want}, v{vdst}", f"s_cbranch_vccz {lab}_ok",
              f"s_sleep {os.environ.get('SLP', '1')}", f"s_sub_u32 s{scnt}, s{scnt}, 1", f"s_cbranch_scc0 {lab}", f"{lab}_ok:"])

def red32(v, t):
    dpp = " row_mask:0xf bank_mask:0xf"
    return [f"v_add_f32_dpp v{v}, v{v}, v{v} quad_perm:[1,0,3,2]{dpp}",
            f"v_add_f32_dpp v{v}, v{v}, v{v} quad_perm:[2,3,0,1]{dpp}",
            f"v_add_f32_dpp v{v}, v{v}, v{v} row_half_mirror{dpp}",
            f"v_add_f32_dpp v{v}, v{v}, v{v} row_mirror{dpp}",
            f"v_mov_b32 v{t}, v{v}",
            f"v_permlane16_swap_b32 v{t}, v{v}",
            f"v_add_f32 v{v}, v{v}, v{t}"]

def w_dma_voff(vlane, vd0, vd1, pitch, t1, t2):
    return [f"v_bfe_u32 v{t1}, v{vlane}, 4, 1", f"v_lshlrev_b32 v{t1}, 1, v{t1}", f"v_and_b32 v{t2}, 7, v{vlane}",
            f"v_xor_b32 v{t1}, v{t1}, v{t2}", f"v_lshlrev_b32 v{t1}, 4, v{t1}",
            f"v_lshrrev_b32 v{t2}, 3, v{vlane}", f"v_mul_u32_u24 v{t2}, {pitch}, v{t2}",
            f"v_add_u32 v{vd0}, v{t1}, v{t2}", f"v_xor_b32 v{t1}, 64, v{t1}", f"v_add_u32 v{vd1}, v{t1}, v{t2}",
            f"v_add_u32 v{vd1}, {8*pitch-1024}, v{vd1}"]
def w_tr_addr(vlane, vT, t1, t2):
    o = [f"v_lshrrev_b32 v{t1}, 4, v{vlane}", f"v_lshlrev_b32 v{t1}, 10, v{t1}",
         f"v_bfe_u32 v{t2}, v{vlane}, 2, 2", f"v_lshl_add_u32 v{t1}, v{t2}, 7, v{t1}",
         f"v_and_b32 v{t2}, 3, v{vlane}", f"v_lshl_add_u32 v{t1}, v{t2}, 3, v{t1}",
         f"v_bfe_u32 v{t2}, v{vlane}, 3, 2",
         f"v_lshl_add_u32 v{vT}, v{t2}, 5, v{t1}"]
    for cb in range(1, 4): o += [f"v_xor_b32 v{vT+cb}, {cb*32}, v{vT}"]
    return o

def gemm_groups(G, g0, groups, WF, pre, nbuf=2):
    starts = []; g = g0
    for gr in groups:
        starts.append(g); g += len(gr['frags'])*len(gr['chains'])
    for n, gr in enumerate(groups):
        CH = len(gr['frags'])
        base = WF + (n % nbuf)*4*gr.get('bufsz', CH)
        tagid = gr.setdefault('id', (g0, n))
        reads = []
        for j, (va, off) in enumerate(gr['frags']):
            for t in range(2):
                reads.append(T(f"ds_read_b64_tr_b16 {vr(base+4*j+2*t,2)}, v{va} offset:{off+t*512}", ('wf', tagid, j)))
        if n == 0:
            pre.extend(gr.get('sync') or []); pre.extend(reads); gr['syncgap'] = None
        else:
            ps = starts[n-1]; plen = starts[n] - ps
            first = ps + 1
            for x in (gr.get('sync') or []): G.before(first, x)
            gr['syncgap'] = first
            span = max(len(reads), (plen*3)//4 - 1)
            for i, x in enumerate(reads): G.put(first + (i*span)//len(reads), x)
        gg = starts[n]
        for c, ch in enumerate(gr['chains']):
            for j in range(CH):
                G.mf[gg] = I(ch[j](base + 4*j))
                if c == 0 and (j % 2 == 0):
                    G.before(gg, Wait(lg=[('wf', tagid, min(j+1, CH-1))] + (gr.get('lgwait', []) if j == 0 else [])))
                gg += 1
    return starts, g

def place_stream(G, groups, spacing, start=2):
    cur = start; last = start - 2
    for (e, ins) in groups:
        cur = max(cur, e + 2); last = max(last, e)
        pend = []
        for x in ins:
            if x.kind != 'vmem': pend.append(x); continue
            for j, y in enumerate(pend): G.nv[max(last, cur - len(pend) + j)].append(y)
            pend = []
            G.put(cur, x); last = cur; cur += spacing
    return cur

def spread(G, ins, g0, g1):
    for j, x in enumerate(ins):
        g = g0 + (j*(g1-g0))//len(ins)
        if x.kind == 'vmem' and not x.wr: G.put(g+1, x)
        else: G.put(g, x)

def KACC(db, mb):
    return ((96, 64)[db % 2] + (db//4)*64 + ((db//2) % 2)*16) + mb*4
def k_epilogue(js, sSc):
    o = []
    for mb in range(4):
        D0, D1 = KACC(2*js, mb), KACC(2*js+1, mb)
        o += L([f"v_mul_f32 v{D+r}, s{sSc}, v{D+r}" for D in (D0, D1) for r in range(4)])
        o += L([f"v_cvt_pk_bf16_f32 v{D0}, v{D0}, v{D0+1}", f"v_cvt_pk_bf16_f32 v{D0+1}, v{D0+2}, v{D0+3}",
                f"v_cvt_pk_bf16_f32 v{D0+2}, v{D1}, v{D1+1}", f"v_cvt_pk_bf16_f32 v{D0+3}, v{D1+2}, v{D1+3}"])
    return o
def gen_k1(early=None):
    S_CKV, S_WK, S_WV, S_WS, S_X = 4, 8, 12, 16, 20
    sW, sH, sR = 24, 25, 26
    sV = 52
    sAk, sWk = 40, 48
    sAm, sWm, sT, sT2, sFl, sSc, sLN, sH8 = 56, 57, 58, 59, 60, 61, 62, 63
    vL, vL16 = 2, 3
    vAD = 4; vAR = 8; vWD = 10; vT = 12; vTh = 16
    WF = 32; ACCK = 64; EP = 192; AR = 128
    pre = prof_begin()
    pre += L(["s_load_dwordx4 s[28:31], s[0:1], 0", "s_load_dwordx4 s[32:35], s[0:1], 24", "s_load_dwordx2 s[36:37], s[0:1], 96",
              "s_load_dwordx2 s[54:55], s[0:1], 16", "s_load_dwordx4 s[64:67], s[0:1], 56", "s_load_dwordx2 s[68:69], s[0:1], 88",
              "s_cmp_ge_u32 s2, 256", "s_cbranch_scc1 K3_END" if FUSED else "s_cbranch_scc1 K1_END"])
    pre += code_prefetch(None, "K1_PC", False, 21, 24, 38, 27)
    pre += L(["v_lshrrev_b32 v1, 6, v0", f"v_and_b32 v{vL}, 63, v0", f"v_readfirstlane_b32 s{sW}, v1",
              f"v_lshlrev_b32 v{vL16}, 4, v{vL}",
              f"s_and_b32 s{sT}, s2, 7", f"s_lshl_b32 s{sT}, s{sT}, 2", f"s_bfe_u32 s{sT2}, s2, 0x20003",
              f"s_add_u32 s{sH}, s{sT}, s{sT2}", f"s_lshr_b32 s{sR}, s2, 5"])
    pre += L([f"v_lshrrev_b32 v24, 5, v{vL}", f"v_and_b32 v25, 31, v{vL}", "v_lshlrev_b32 v26, 10, v24",
              "v_lshl_add_u32 v26, v25, 5, v26",
              "v_lshlrev_b32 v27, 9, v25", "v_lshl_add_u32 v27, v24, 4, v27"])
    pre += L([f"v_lshrrev_b32 v24, 4, v{vL}", f"v_and_b32 v25, 7, v{vL}", "v_xor_b32 v24, v24, v25", "v_lshlrev_b32 v24, 4, v24",
              f"v_lshrrev_b32 v25, 3, v{vL}", f"v_lshl_add_u32 v{vAD}, v25, 10, v24",
              f"v_xor_b32 v{vAD+1}, 64, v{vAD}", f"v_add_u32 v{vAD+1}, {8192-1024}, v{vAD+1}",
              ])
    pre += L(w_dma_voff(vL, vWD, vWD+1, 8192, 24, 25))
    pre += L([f"s_lshl_b32 s{sT}, s{sR}, 18", f"s_lshl_b32 s{sT2}, s{sW}, 16", f"s_add_u32 s{sT}, s{sT}, s{sT2}",
              f"s_lshl_b32 s{sT2}, s{sW}, 14", f"s_add_u32 s{sT2}, s{sT2}, 98304"])
    for o in range(4):
        pre += L([f"s_add_u32 s27, s{sH}, {o}", "s_and_b32 s27, s27, 3", f"s_lshl_b32 s{sAk+o}, s27, 14", f"s_add_u32 s{sAk+o}, s{sAk+o}, s{sT}",
                  f"s_lshl_b32 s{sAk+4+o}, s27, 11", f"s_add_u32 s{sAk+4+o}, s{sAk+4+o}, s{sT2}"])
    pre += L([f"s_lshl_b32 s{sWk}, s{sW}, 17",
              f"s_lshl_b32 s{sWk+1}, s{sR}, 2", f"s_add_u32 s{sWk+1}, s{sWk+1}, s{sW}", f"s_lshl_b32 s{sWk+1}, s{sWk+1}, 15",
              f"v_lshrrev_b32 v24, 4, v{vL}", "v_lshlrev_b32 v24, 13, v24", f"v_and_b32 v25, 15, v{vL}", f"v_lshl_add_u32 v{vAD+2}, v25, 4, v24"])
    pre += L([f"s_lshl_b32 s{sAm}, s{sW}, 14", f"s_add_u32 s{sAm}, s{sAm}, 98304", f"s_lshl_b32 s{sWm}, s{sW}, 11",
              f"s_lshl_b32 s{sH8}, s{sH}, 8", f"s_and_b32 s{sFl}, s{sR}, 1", f"s_lshl_b32 s{sFl}, s{sFl}, 7",
              f"s_lshl_b32 s{sT}, s2, 3", f"s_lshl_b32 s{sT2}, s{sW}, 1", f"s_add_u32 s{sT}, s{sT}, s{sT2}", f"s_lshl_b32 s{sLN}, s{sT}, 10"])
    pre += L(["s_waitcnt lgkmcnt(0)"]) + stamp(1)
    pre += L(srd(S_CKV, 30, 31, 0x200000))
    def dmaA(s, os_):
        o = []
        for k in os_:
            o += [I(f"s_add_u32 m0, s{sAk+4+k}, {(s % 2)*8192}"), I(f"s_add_u32 s{sT}, s{sAk+k}, {s*128}"),
                  T(f"buffer_load_dwordx4 v{vAD}, {sr(S_CKV)}, s{sT} offen lds", ('A', s)),
                  T(f"buffer_load_dwordx4 v{vAD+1}, {sr(S_CKV)}, s{sT} offen offset:1024 lds", ('A', s))]
        return o
    own = lambda s: dmaA(s, [0]); rest = lambda s: dmaA(s, [1, 2, 3])
    def pfW(sd, st):
        return L([f"s_add_u32 s{sT2}, s{sWk+1}, {st*128*8192}", f"buffer_load_dwordx4 v[20:23], v{vAD+2}, {sr(sd)}, s{sT2} offen"])
    def dmaUT(sd, ksl, ch, ldsoff, tag):
        return [I(f"s_add_u32 m0, s{sWm}, {ldsoff}"), I(f"s_add_u32 s{sT2}, s{sWk}, {ksl*64*8192 + ch*128}"),
                T(f"buffer_load_dwordx4 v{vWD}, {sr(sd)}, s{sT2} offen lds", tag),
                T(f"buffer_load_dwordx4 v{vWD+1}, {sr(sd)}, s{sT2} offen offset:1024 lds", tag)]
    kslot = lambda p, u: ((p % 6)*2 + u)*8192
    def dmaWP(p): return [x for u in range(2) for x in dmaUT(S_WV if p % 4 < 2 else S_WK, (p//4)*2 + u, p % 2, kslot(p, u), ('W', p))]
    warm = L([f"buffer_load_dwordx4 v[20:23], v{vL16}, {sr(S_CKV)}, s{sLN} offen", f"buffer_load_dwordx4 v[20:23], v{vL16}, {sr(S_CKV)}, s{sLN} offen offset:1024"])
    lnld = [T(f"buffer_load_dwordx4 v[192:195], v26, {sr(S_X)}, s{sLN} offen", 'ln'),
            T(f"buffer_load_dwordx4 v[196:199], v26, {sr(S_X)}, s{sLN} offen offset:16", 'ln')]
    pre += warm + own(0) + own(1)
    pre += L(srd_off(S_WV, 34, 35, sH8, 0x400000))
    pre += pfW(S_WV, 0)
    pre += L(srd(S_X, 28, 29, 0x200000) + srd_off(S_WK, 32, 33, sH8, 0x400000))
    pre += rest(0) + dmaWP(0) + rest(1) + pfW(S_WK, 0)
    pre += dmaWP(1) + lnld + stamp(2)
    if os.environ.get("K1DIAG"):
        for k, n in enumerate((27, 24, 23, 17, 13, 7, 6, 2, 0)):
            pre += L([f"s_waitcnt vmcnt({n})"]) + stamp(3+k if k < 8 else 10)
    pre += L(srd(S_WS, 36, 37, WS_SIZE))
    pre += L(w_tr_addr(vL, vT, 24, 25)) + L([f"v_add_u32 v{vTh+c}, 0x10000, v{vT+c}" for c in range(4)])
    pre += L([f"v_and_b32 v24, 15, v{vL}", f"v_bfe_u32 v25, v{vL}, 1, 3", f"v_lshrrev_b32 v1, 4, v{vL}", "v_xor_b32 v25, v25, v1",
              "v_lshlrev_b32 v25, 4, v25", "v_lshl_add_u32 v24, v24, 7, v25", f"v_add_u32 v{vAR}, s{sAm}, v24",
              f"v_xor_b32 v{vAR+1}, 64, v{vAR}"])
    svs = L([f"s_lshl_b32 s{sV}, s{sH}, 19", f"s_lshl_b32 s27, s{sR}, 16", f"s_add_u32 s{sV}, s{sV}, s27", f"s_lshl_b32 s27, s{sW}, 14", f"s_add_u32 s{sV}, s{sV}, s27",
             f"s_add_u32 s{sV}, s{sV}, {WS_VF}"] + [f"s_add_u32 s{sV+j}, s{sV}, {j*4096}" for j in range(1, 4)])
    pre += L([f"s_mov_b32 s{sSc}, {f2u(SCALE):#x}"])
    X = 208; R0 = 192; m, t, d, q = 200, 201, 202, 203
    ln = []
    for j in range(8):
        ln += L([f"v_lshlrev_b32 v{X+2*j}, 16, v{R0+j}", f"v_and_b32 v{X+2*j+1}, 0xffff0000, v{R0+j}"])
    ln += L([f"v_add_f32 v{m}, v{X}, v{X+1}"] + [f"v_add_f32 v{m}, v{m}, v{X+j}" for j in range(2, 16)])
    ln += L(red32(m, t))
    ln += L([f"v_mul_f32 v{m}, 0x3b000000, v{m}"])
    ln += L([f"v_sub_f32 v{d}, v{X}, v{m}", f"v_mul_f32 v{q}, v{d}, v{d}"])
    for j in range(1, 16):
        ln += L([f"v_sub_f32 v{d}, v{X+j}, v{m}", f"v_fmac_f32 v{q}, v{d}, v{d}"])
    ln += L(red32(q, t))
    ln += L([f"v_mul_f32 v{q}, 0x3b000000, v{q}", f"v_cvt_pk_bf16_f32 v{m}, v{m}, v{q}",
             f"v_and_b32 v{q}, 0xffff0000, v{m}", f"v_lshlrev_b32 v{m}, 16, v{m}",
             f"v_add_f32 v{q}, {f2u(1e-5):#x}, v{q}", f"v_cvt_pk_bf16_f32 v{q}, v{q}, v{q}", f"v_lshlrev_b32 v{q}, 16, v{q}",
             f"v_sqrt_f32 v{q}, v{q}", f"v_cvt_pk_bf16_f32 v{q}, v{q}, v{q}", f"v_lshlrev_b32 v{q}, 16, v{q}",
             f"v_rcp_f32 v{q}, v{q}"])
    for j in range(8):
        a, b = X+2*j, X+2*j+1
        ln += L([f"v_sub_f32 v{a}, v{a}, v{m}", f"v_sub_f32 v{b}, v{b}, v{m}", f"v_cvt_pk_bf16_f32 v{a}, v{a}, v{b}",
                 f"v_and_b32 v{b}, 0xffff0000, v{a}", f"v_lshlrev_b32 v{a}, 16, v{a}",
                 f"v_mul_f32 v{a}, v{a}, v{q}", f"v_mul_f32 v{b}, v{b}, v{q}", f"v_cvt_pk_bf16_f32 v{R0+j}, v{a}, v{b}"])
    ln2 = []
    LX = kslot(5, 0)
    lnw = L([f"s_lshl_b32 s50, s{sW}, 11", f"s_add_u32 s50, s50, {LX}", "v_add_u32 v26, s50, v26",
             f"ds_write_b128 v26, {vr(R0)}", f"ds_write_b128 v26, {vr(R0+4)} offset:16",
             f"v_and_b32 v24, 7, v{vL}", f"v_lshrrev_b32 v25, 3, v{vL}", "v_lshlrev_b32 v26, 10, v24", "v_lshl_add_u32 v26, v25, 4, v26",
             f"s_lshl_b32 s50, s{sW}, 8", f"s_add_u32 s50, s50, {LX}", "v_add_u32 v26, s50, v26",
             "v_lshlrev_b32 v27, 8, v25", "v_lshl_add_u32 v27, v24, 4, v27"])
    lnw[4].tag = 'lnw'
    ln2 += [T(f"ds_read_b128 {vr(R0)}, v26", 'lnr'), T(f"ds_read_b128 {vr(R0+4)}, v26 offset:128", 'lnr')]
    ln2 += L([f"s_lshr_b32 s{sT}, s2, 1", f"s_lshl_b32 s{sT}, s{sT}, 14", f"s_and_b32 s{sT2}, s2, 1", f"s_lshl_b32 s{sT2}, s{sT2}, 7",
             f"s_add_u32 s{sT}, s{sT}, s{sT2}", f"s_lshl_b32 s{sT2}, s{sW}, 12", f"s_add_u32 s{sT}, s{sT}, s{sT2}"])
    ln2 += [Wait(lg='lnr')]
    ln2 += L([f"buffer_store_dwordx4 {vr(R0)}, v27, {sr(S_WS)}, s{sT} offen offset:{WS_XN}{STX}",
              f"buffer_store_dwordx4 {vr(R0+4)}, v27, {sr(S_WS)}, s{sT} offen offset:{WS_XN+2048}{STX}"])
    ln2 += L([f"s_lshl_b32 s{sT}, s{sH}, 7", f"s_lshl_b32 s{sT2}, s{sR}, 2", f"s_add_u32 s{sT}, s{sT}, s{sT2}", f"s_add_u32 s{sT}, s{sT}, {FL_KV}", f"v_mov_b32 v24, s{sT}",
              f"s_lshl_b32 s{sT}, s{sR}, 7", f"s_lshl_b32 s{sT2}, s{sH}, 2", f"s_add_u32 s27, s{sT}, s{sT2}", f"s_add_u32 s27, s27, {FL_AC}", "v_writelane_b32 v24, s27, 1",
              f"s_sub_u32 s27, s{sT2}, s{sT}", f"s_add_u32 s27, s27, {FL_AC + 15*128}", "v_writelane_b32 v24, s27, 2",
              f"s_lshl_b32 s27, s{sW}, 7", f"s_add_u32 s{sT2}, s{sT2}, s27", f"s_lshl_b32 s{sT2}, s{sT2}, 5", f"s_lshl_b32 s{sT}, s{sT}, 7",
              f"s_add_u32 s27, s{sT}, s{sT2}", f"s_add_u32 s27, s27, {FL_CX}", "v_writelane_b32 v24, s27, 3",
              f"s_sub_u32 s27, s{sT2}, s{sT}", f"s_add_u32 s27, s27, {FL_CX + 15*16384}", "v_writelane_b32 v24, s27, 4",
              "v_mov_b32 v25, 0", T(f"buffer_store_dword v25, v24, {sr(S_WS)}, 0 offen sc1", 'lnst'),
              "s_mov_b32 s70, 256", "s_mov_b32 s71, 0x00020000", "v_mov_b32 v26, 1"])
    ln2 = [x if isinstance(x, Wait) else I(x.text.replace(f's{sT2}', 's51').replace(f's{sT}', 's50'), x.tag) for x in ln2]
    kacc = lambda db, mb: KACC(db, mb)
    afr = lambda st, mb, j: ar(AR + (st % 2)*64 + (mb*4 + j)*4)
    def readA(s):
        return [T(f"ds_read_b128 {afr(s//2, mb, (s % 2)*2 + k)}, v{vAR+k} offset:{(s % 2)*8192 + mb*2048}", ('Ar', s))
                for mb in range(4) for k in range(2)]
    pre += [Wait(vm=('A', 0))] + readA(0) + [Wait(vm=('A', 1))] + readA(1) + (stamp(5) if not os.environ.get('K1DIAG') else [])
    groups = []
    for p in range(16):
        st, cq = p//4, p % 4
        for cb in range(4):
            db = (cq % 2)*4 + cb
            fr = []
            for j in range(4):
                o = kslot(p, j//2) + (j % 2)*4096
                fr.append(((vT, vTh)[o >> 16] + cb, o & 0xffff))
            chains = []
            for mb in range(4):
                if cq >= 2:
                    D = vr(kacc(db, mb))
                    chains.append([(lambda f, D=D, a=afr(st, mb, j), z=(st == 0 and j == 0): f"{MF} {D}, {vr(f)}, {a}, {'0' if z else D}") for j in range(4)])
                else:
                    D = ar((db*4 + mb)*4)
                    chains.append([(lambda f, D=D, a=afr(st, mb, j), z=(st == 0 and j == 0): f"{MF} {D}, {a}, {vr(f)}, {'0' if z else D}") for j in range(4)])
            gr = dict(frags=fr, chains=chains)
            if cb == 0:
                gr['sync'] = [Wait(vm=('W', p)), I("s_barrier")]; gr['pair'] = p
                if cq == 0: gr['lgwait'] = [('Ar', 2*st+1)]
            groups.append(gr)
    G = Gaps(1024)
    starts, gend = gemm_groups(G, 0, groups, WF, pre)
    assert gend == 1024
    bar = {gr['pair']: gr['syncgap'] for gr in groups if 'pair' in gr}
    WL = int(os.environ.get('WL', '3'))
    ev = [(4*k, dmaWP(2+k)) for k in range(WL-1)]
    for st in range(3):
        g = 256*st
        ev += [(g, own(2*st+2) + own(2*st+3))]
        if st == 0: ev += [(g + 10, pfW(S_WV, 1) + pfW(S_WK, 1))]
        if st < 2: ev += [(g + int(os.environ.get('PW', '150')), pfW(S_WV, st+2) + pfW(S_WK, st+2))]
        ev += [(g + 70, rest(2*st+2)), (g + 125, rest(2*st+3))]
        for k in range(2):
            gr_ = g + 196 + 26*k
            G.before(gr_, Wait(vm=('A', 2*st+2+k)))
            for j, x in enumerate(readA(2*st+2+k)): G.put(gr_ + 2*j, x)
    for p in range(1, 16-WL): ev += [(bar[p] if p + WL != 5 else max(bar[p], bar[3]), dmaWP(p+WL))]
    ev.sort(key=lambda e: e[0])
    end = place_stream(G, ev, int(os.environ.get("SP", "4")), start=2)
    print("K1 dma stream ends at gap", end)
    G.before(3, Wait(vm='ln'))
    spread(G, ln, 3, 92)
    for j, x in enumerate(lnw): G.va[92 + j].append(x)
    G.pre[bar[2]].insert(0, Wait(lg='lnw'))
    for j, x in enumerate(ln2): G.nv[bar[2] + j].append(x)
    if FUSED:
        for x in one_lane([T("buffer_atomic_add v26, v25, s[68:71], 0 offen sc1", 'NOCOUNT')], sW, "K1_SIG", sT): G.nv[bar[4]].append(x)
        G.pre[bar[4]].insert(0, Wait(vm='lnst'))
        for j, x in enumerate(svs): G.nv[600 + j].append(x)
        EG = int(os.environ.get("EG", "860"))
        G.put(EG - 60, T("buffer_load_dword v27, v25, s[68:71], 0 offen sc1", 'lnc'))
        for x in [Wait(vm='lnc')] + L(["s_movk_i32 s60, 0x100", "v_cmp_gt_u32 vcc, s60, v27", "s_cbranch_vccnz K1_LNSPIN_E", "K1_LNOK:"]): G.before(EG, x)
        sp = spin("K1_LNSPIN", "buffer_load_dword v27, v25, s[68:71], 0 offen sc1", 27, "s60", 59)
        lnstub = L(["K1_LNSPIN_E:"]) + [I(x.text.replace("v_cmp_ne_u32", "v_cmp_gt_u32")) for x in sp] + L(["s_branch K1_LNOK"])
        for j, x in enumerate(early['setup']): G.nv[776 + (j*(EG-778))//len(early['setup'])].append(x)
        place_stream(G, [(EG, early['regloads']), (bar[15], early['dma'])], int(os.environ.get("ESP", "5")), start=EG)
        XG = int(os.environ.get("XG", "0"))
        if XG:
            G.put(XG - 40, T("buffer_load_dword v27, v25, s[68:71], 0 offen sc1", 'lnc0'))
            xp = [Wait(vm='lnc0')] + L(["v_readfirstlane_b32 s52, v27", "s_bfe_u32 s53, s2, 0x50003", "s_lshl_b32 s53, s53, 16", f"s_lshl_b32 s54, s{sW}, 14", "s_add_u32 s53, s53, s54",
                                        "s_cmp_eq_u32 s52, 0x100\n    s_cselect_b32 s53, s53, 0x10000000"])
            for k in range(16):
                if k and k % 4 == 0: xp += L(["s_add_u32 s53, s53, 4096"])
                xp += L([f"buffer_load_dwordx4 v[20:23], v{vL16}, {sr(S_WS)}, s53 offen offset:{(k % 4)*1024} sc1"])
            g = XG
            for x in xp:
                G.nv[g].append(x); g += 8 if x.kind == 'vmem' else 1
    pf = L(srd_off(S_X, 54, 55, sH8, 0x400000) + [f"s_lshr_b32 s{sT}, s{sH8}, 1"] + srd_off(28, 64, 65, sT, 512*2752))
    pf += L([f"v_lshrrev_b32 v24, 4, v{vL}", "v_lshlrev_b32 v24, 13, v24", f"v_and_b32 v1, 15, v{vL}", "v_lshl_add_u32 v24, v1, 4, v24",
             f"v_lshrrev_b32 v26, 3, v{vL}", "v_mul_u32_u24 v26, 2752, v26", f"v_and_b32 v1, 7, v{vL}", "v_lshl_add_u32 v26, v1, 4, v26",
             f"s_lshl_b32 s{sT}, s{sR}, 2", f"s_add_u32 s{sT}, s{sT}, s{sW}", f"s_mul_i32 s{sT2}, s{sT}, {16*2752}", f"s_lshl_b32 s{sT}, s{sT}, 17"])
    for k in range(4):
        pf += L([f"buffer_load_dwordx4 v[20:23], v24, {sr(S_X)}, s{sT} offen", f"s_add_u32 s{sT}, s{sT}, 32768"])
    for k in range(2):
        pf += L([f"buffer_load_dwordx4 v[20:23], v26, {sr(28)}, s{sT2} offen", f"s_add_u32 s{sT2}, s{sT2}, {8*2752}"])
    pf = [I(x.text.replace(f"s{sT2}", "s53").replace(f"s{sT}", "s52")) for x in pf]
    pf += code_prefetch("K2_BEGIN" if FUSED else "attn_kernel", "K1_PC2", True, 20, 24, 38, 27)
    g = int(os.environ.get('PFG', '420'))
    for x in pf:
        G.nv[g].append(x); g += 4 if x.kind == 'vmem' else (0 if x.kind == 'label' or x.op == 's_getpc_b64' else 1)
    assert g < 1000
    for db in range(8):
        ins = []
        for ks in range(2):
            t = EP + ((db*2 + ks) % 8)*8
            ins += L([f"v_accvgpr_read_b32 v{t+k}, a{(db*4 + 2*ks)*4 + k}" for k in range(8)])
            ins += L([f"v_cvt_pk_bf16_f32 v{t+k}, v{t+2*k}, v{t+2*k+1}" for k in range(4)])
            ins += L([f"buffer_store_dwordx4 {vr(t)}, v{vL16}, {sr(S_WS)}, s{sV+db//2} offen offset:{(db%2)*2048 + ks*1024}{STF}"])
        spread(G, ins, 790 + 28*db, 790 + 28*db + 27)
    spread(G, k_epilogue(0, sSc) + k_epilogue(1, sSc), 964, 1022)
    tail = []
    assert FUSED
    if os.environ.get("K1FINE"):
        seq = list(pre)
        for p in range(8): seq += stamp(2+p) + G.linear(128*p, 128*p+128)
        seq += stamp(10) + tail + prof_end(0, S_WS, 28, 4, vtmp=32, drain=False)
    else:
        if os.environ.get("K1DIAG"): stamp_ = lambda k: []
        else: stamp_ = stamp
        seq = pre + stamp_(6) + G.linear(0, 64) + stamp_(7) + G.linear(64, 512) + stamp_(8) + G.linear(512, 1024) + stamp_(9) + tail + stamp_(10) + prof_end(0, S_WS, 28, 4, vtmp=32, drain=False)
    if FUSED:
        seq += L(["s_barrier"])
        return seq, lnstub
    seq = resolve_waits(seq)
    seq, n = fix_hazards(seq)
    print("K1: instrs", len(seq), "nops", n)
    return seq + L(["K1_END:", "s_endpgm"])

def emit(kernels, path):
    hdr = open('parallel_sum__compressed_kv_cla__dense_activation_mish__prompt.s.ref').read().split('\n')
    out = [l for l in hdr[:14]]
    for (name, grid, block, lds, seq, nv, acc) in kernels:
        if len(kernels) == 1 and os.environ.get("PLAIN"): out.append(f"; @launch grid=({grid},1,1) block=({block},1,1) lds={lds}")
        else: out.append(f"; @launch kernel={name} grid=({grid},1,1) block=({block},1,1) lds={lds}")
    out += ['.amdgcn_target "amdgcn-amd-amdhsa--gfx950"', ".text"]
    for (name, grid, block, lds, seq, nv, acc) in kernels:
        out += [f".globl {name}", ".p2align 8", f".type {name},@function", f"{name}:"]
        out += [("" if i.kind == 'label' else "    ") + i.text for i in seq]
    out.append(".fill 8192, 4, 0xbf800000")
    out.append('.section .rodata,"a"')
    for (name, grid, block, lds, seq, nv, acc) in kernels:
        out += [".p2align 6", f".amdhsa_kernel {name}", f"  .amdhsa_next_free_vgpr {nv}", "  .amdhsa_next_free_sgpr 102",
                f"  .amdhsa_accum_offset {acc}", "  .amdhsa_group_segment_fixed_size 0", "  .amdhsa_kernarg_size 104",
                "  .amdhsa_user_sgpr_count 2", "  .amdhsa_user_sgpr_kernarg_segment_ptr 1",
                "  .amdhsa_system_sgpr_workgroup_id_x 1", ".end_amdhsa_kernel"]
    open(path, "w").write("\n".join(out) + "\n")

if __name__ == "__main__":
    ks = [("kvproj_kernel", 256, 256, 163840, gen_k1(), 512, 256)]
    emit(ks, sys.argv[1] if len(sys.argv) > 1 else "k.s")
```

```python
from gen import *

NEGINF = "0xff800000"
THR = f2u(2.0**60)

def gen_k2(K3):
    S_WS, S_WQ, S_W1, S_K, S_V, S_B1 = 4, 8, 12, 16, 20, 24
    sW, sH, sI, sPar = 28, 29, 30, 31
    sXN = 32
    sAct = 36
    sWm, sT, sT2, sT3 = 44, 45, 46, 47
    sWoQ, sWo1 = 48, 50
    sKd, sVd, sGd, sKr, sVr, sVk = 50, 51, 52, 53, 54, 55
    sC = {'a': 56, 'b': 57}
    sCnt, sThr, sRet = 58, 59, 60
    sPC = 62
    sKA = 64
    vL, vL16 = 2, 3
    vX = 4
    vWDq, vWD1 = 8, 10
    vT = 12; vTh = 16; vTt = 20
    vDM, vKr, vVr, vLB = 24, 25, 26, 27
    vNI = 28
    tA, tB = 29, 30
    WF = 32
    QE = 64
    QO = 128
    HA = 192
    P = {'a': 32, 'b': 48}
    S = {'a': 128, 'b': 160}
    QX = 192
    NM = {'a': 224, 'b': 232}
    ET = 240
    TS = {'a': 244, 'b': 246}; LS = {'a': 248, 'b': 250}; MS = {'a': 252, 'b': 254}
    O = {'a': 0, 'b': 64}; KF_, VF_ = 128, 192
    qf = lambda mbx, js: QE + (js*4 + mbx)*4
    Qreg = {'a': lambda nb, js: qf(nb, js), 'b': lambda nb, js: qf(2+nb, js), 'x': lambda nb, js: QX + (js*2+nb)*4}

    pre = L([f"s_mov_b32 s{S_WS+k}, s{16+k}" for k in range(3)] + [f"s_mov_b32 s{S_WS+3}, 0x00020000"] +
            [f"s_mov_b32 s{S_WQ+k}, s{20+k}" for k in range(3)] + [f"s_mov_b32 s{S_WQ+3}, 0x00020000"] +
            [f"s_mov_b32 s{S_W1+k}, s{28+k}" for k in range(3)] + [f"s_mov_b32 s{S_W1+3}, 0x00020000"] +
            [f"s_mov_b32 s{sW}, s24", f"s_mov_b32 s{sH}, s25", f"s_mov_b32 s{sI}, s26", f"s_and_b32 s{sPar}, s{sW}, 1", "v_mov_b32 v31, v0"])
    for j in range(4):
        pre += L([f"s_add_u32 s{sT}, s{sH}, {j}", f"s_and_b32 s{sT}, s{sT}, 3", f"s_lshl_b32 s{sT}, s{sT}, 10", f"v_add_u32 v{vX+j}, s{sT}, v{vL16}"])
    for u in range(2):
        pre += L([f"s_lshr_b32 s{sT}, s{sW}, 1", f"s_add_u32 s{sT}, s{sT}, s{sH}", f"s_add_u32 s{sT}, s{sT}, {2*u}", f"s_and_b32 s{sT}, s{sT}, 3",
                  f"s_lshl_b32 s{sT}, s{sT}, 1", f"s_add_u32 s{sT}, s{sT}, s{sPar}", f"s_lshl_b32 s{sWoQ+u}, s{sT}, 17", f"s_mul_i32 s{sWo1+u}, s{sT}, {16*2752}"])
    pre += L(w_dma_voff(vL, vWDq, vWDq+1, 8192, tA, tB) + w_dma_voff(vL, vWD1, vWD1+1, 2752, tA, tB))
    pre += L([f"s_lshl_b32 s{sT}, s{sI}, 3", f"s_lshl_b32 s{sT2}, s{sW}, 1", f"s_add_u32 s{sT3}, s{sT}, s{sT2}",
              f"s_sub_u32 s{sT}, 120, s{sT}", f"s_add_u32 s{sT}, s{sT}, s{sT2}",
              f"s_lshl_b32 s{sXN}, s{sT3}, 14", f"s_add_u32 s{sXN+1}, s{sXN}, 16384",
              f"s_lshl_b32 s{sXN+2}, s{sT}, 14", f"s_add_u32 s{sXN+3}, s{sXN+2}, 16384",
              f"s_mul_i32 s{sAct}, s{sT3}, {CA_RB}", f"s_mul_i32 s{sAct+4}, s{sT}, {CA_RB}",
              f"s_lshl_b32 s62, s{sT3}, 4", f"s_lshl_b32 s63, s{sT}, 4",
              f"s_lshl_b32 s{sWm}, s{sW}, 11", f"s_lshl_b32 s{sT2}, s{sH}, 7",
              f"v_lshrrev_b32 v{tA}, 4, v{vL}", f"v_lshlrev_b32 v{tA}, 3, v{tA}",
              f"s_mov_b32 s{S_B1}, s66", f"s_mov_b32 s{S_B1+1}, s67", f"s_mov_b32 s{S_B1+2}, 2752", f"s_mov_b32 s{S_B1+3}, 0x00020000"])
    su0 = pre
    xa = lambda mbx, ks: (((ks//4 + 2) % 4)*16 + mbx*4 + ks % 4)*4
    def ldX(st, js):
        return [T(f"buffer_load_dwordx4 {ar(xa(mbx, 4*st+j))}, v{vX+j}, {sr(S_WS)}, s{sXN+mbx} offen{LDF}", ('X', st))
                for j in js for mbx in range(4)] + [I(f"v_add_u32 v{vX+j}, 4096, v{vX+j}") for j in js]
    own = lambda st: ldX(st, [0]); rest = lambda st: ldX(st, [1, 2, 3])
    ring = [0, 1, 2, 3, 4, 5, 8, 9, 10, 11, 12, 13]
    pslot = lambda p, u: ring[((p % 6)*2 + u)]*8192
    hslot = [6, 7, 14, 15, 16, 17, 18, 19]
    def dmaUT(which, ksl, colb, ldsoff, tag):
        sd, vd, so, pitch = (S_W1, vWD1, sWo1, 2752) if which == 1 else (S_WQ, vWDq, sWoQ, 8192)
        return [I(f"s_add_u32 m0, s{sWm}, {ldsoff}"), I(f"s_add_u32 s{sT3}, s{so + ksl % 2}, {(ksl//2)*128*pitch + colb}"),
                T(f"buffer_load_dwordx4 v{vd}, {sr(sd)}, s{sT3} offen lds", tag),
                T(f"buffer_load_dwordx4 v{vd+1}, {sr(sd)}, s{sT3} offen offset:1024 lds", tag)]
    PM = [(1, 0), (0, 0), (1, 1), (0, 1), (1, 2), (1, 3), (0, 2), (0, 3)] if os.environ.get('PM', '1') == '1' else [(1 - p % 2, p//2) for p in range(8)]
    def dmaP(p): return [x for u in range(2) for x in dmaUT(PM[p][0], PM[p][1]*2 + u, 0, pslot(p, u), ('W', p))]
    def dmaH(ks): return [x for k in ks for x in dmaUT(0, k, 128, hslot[k]*8192, 'WH')]
    DIAG = os.environ.get('DIAG')
    dst = lambda k: (L(['s_waitcnt vmcnt(0)'] if DIAG == 'w' else []) + stamp(k)) if DIAG else []
    BI = 64; BR = 20
    bl = [T(f"buffer_load_dwordx2 {vr(BR+2*fb, 2)}, v{tA}, {sr(S_B1)}, s{sT2} offen offset:{fb*32}", 'bias') for fb in range(4)]
    prefix, lnstub = gen_k1(dict(setup=su0, regloads=own(0) + bl + rest(0)[:-3], dma=dmaP(0)))
    pre = prefix + L(["K2_BEGIN:"]) + prof_begin() + own(1) + dmaP(1) + rest(0)[-3:]
    pre += [Wait(vm='bias')]
    ub = []
    for fb in range(4):
        for hw in range(2):
            ub += L([f"v_lshlrev_b32 v{BI+4*fb+2*hw}, 16, v{BR+2*fb+hw}", f"v_and_b32 v{BI+4*fb+2*hw+1}, 0xffff0000, v{BR+2*fb+hw}"])
    pre += ub + L([f"s_mov_b32 s{sC['a']}, s62", f"s_mov_b32 s{sC['b']}, s63"])
    pre += L(w_tr_addr(vL, vT, tA, tB)) + L([f"v_add_u32 v{vTh+c}, 0x10000, v{vT+c}" for c in range(4)] + [f"v_add_u32 v{vTt+c}, 0x20000, v{vT+c}" for c in range(4)])
    pre += L([f"s_lshl_b32 s{sT}, s{sH}, 19", f"s_lshl_b32 s{sT2}, s{sI}, 15", f"s_sub_u32 s{sT2}, 0x80000, s{sT2}",
              f"s_add_u32 s{sT3}, s{sT}, {WS_KF}", f"s_add_u32 s{S_K}, s{S_WS}, s{sT3}", f"s_addc_u32 s{S_K+1}, s{S_WS+1}, 0", f"s_mov_b32 s{S_K+2}, s{sT2}", f"s_mov_b32 s{S_K+3}, 0x00020000",
              f"s_add_u32 s{sT3}, s{sT}, {WS_VF}", f"s_add_u32 s{S_V}, s{S_WS}, s{sT3}", f"s_addc_u32 s{S_V+1}, s{S_WS+1}, 0", f"s_mov_b32 s{S_V+2}, s{sT2}", f"s_mov_b32 s{S_V+3}, 0x00020000"])
    pre += L([f"s_add_u32 s{sAct+2}, s{sAct}, {CA_RB}", f"s_add_u32 s{sAct+6}, s{sAct+4}, {CA_RB}",
              f"s_lshl_b32 s{sT}, s{sH}, 11", f"s_add_u32 s{sT}, s{sT}, {WS_CA + 128*1024}",
              f"s_lshl_b32 s{sT2}, s{sH}, 12", f"s_add_u32 s{sT2}, s{sT2}, {WS_CA}"])
    ctxoff = []
    for mbx in range(4):
        ctxoff += L([f"s_add_u32 s{sXN+mbx}, s{sAct+2*mbx}, s{sT2}"])
    actoff = []
    for mbx in range(4):
        actoff += L([f"s_add_u32 s{sAct+2*mbx}, s{sAct+2*mbx}, s{sT}", f"s_add_u32 s{sAct+2*mbx+1}, s{sAct+2*mbx}, 1024",
                     f"s_cmp_gt_u32 s{sH}, 21", f"s_cselect_b32 s{sAct+2*mbx}, 0x10000000, s{sAct+2*mbx}",
                     f"s_cmp_gt_u32 s{sH}, 20", f"s_cselect_b32 s{sAct+2*mbx+1}, 0x10000000, s{sAct+2*mbx+1}"])
    pre += L([f"s_mov_b32 s{sKr}, s{sT}", f"s_mov_b32 s{sVr}, s{sT2}"])
    fix = lambda lst: [I(x.text.replace(f"s{sT2}", f"s{sVr}").replace(f"s{sT}", f"s{sKr}")) for x in lst]
    ctxoff, actoff = fix(ctxoff), fix(actoff)
    pre += L([f"v_lshl_add_u32 v{vDM}, s{sW}, 12, v{vL16}" if False else f"v_mov_b32 v{tA}, s{sW}", f"v_lshl_add_u32 v{vDM}, v{tA}, 12, v{vL16}",
              f"v_and_b32 v{tA}, 15, v{vL}", f"v_lshrrev_b32 v{tB}, 4, v{vL}", f"v_lshlrev_b32 v{tB}, 2, v{tB}", f"v_sub_u32 v{vLB}, v{tA}, v{tB}",
              f"v_mov_b32 v{vNI}, {NEGINF}", f"s_mov_b32 s{sThr}, {THR:#x}"])
    pre += L([f"s_mov_b32 s{sRet}, {f2u(SCALE):#x}"]) + k_epilogue(2, sRet) + k_epilogue(3, sRet)
    pre += L([f"s_lshl_b32 s{sRet}, s{sH}, 19", f"s_lshl_b32 s{sRet+1}, s{sI}, 16", f"s_add_u32 s{sRet}, s{sRet}, s{sRet+1}",
              f"s_lshl_b32 s{sRet+1}, s{sW}, 14", f"s_add_u32 s{sRet}, s{sRet}, s{sRet+1}", f"s_add_u32 s{sRet}, s{sRet}, {WS_KF}"])
    kst = []
    for mb in range(4):
        for js in range(4):
            kst.append(([I(f"s_add_u32 s{sRet}, s{sRet}, 4096")] if (mb and js == 0) else []) +
                       [T(f"buffer_store_dwordx4 {vr(KACC(2*js, mb))}, v{vL16}, {sr(S_WS)}, s{sRet} offen offset:{js*1024}{STF}", 'kst')])
    pre += stamp(3)
    xfr = lambda mbx, ks: ar(xa(mbx, ks))
    def tra(o, cb): return ((vT, vTh, vTt)[o >> 16] + cb, o & 0xffff)
    qacc = lambda db, mbx: (QE if db % 2 == 0 else QO) + ((db//2)*4 + mbx)*4
    groups = []
    for p in range(8):
        st = PM[p][1]
        for cb in range(4):
            fr = [tra(pslot(p, j//2) + (j % 2)*4096, cb) for j in range(4)]
            chains = []
            for mbx in range(4):
                if PM[p][0]: D = HA + (cb*4 + mbx)*4; C0 = vr(BI + 4*cb)
                else: D = qacc(cb, mbx); C0 = '0'
                chains.append([(lambda f, D=D, mbx=mbx, ks=st*4+j, C0=C0: f"{MF} {vr(D)}, {vr(f)}, {xfr(mbx, ks)}, {C0 if ks == 0 else vr(D)}") for j in range(4)])
            gr = dict(frags=fr, chains=chains)
            if cb == 0:
                gr['sync'] = [Wait(vm=('W', p)), I("s_barrier")]; gr['pair'] = p
                if PM[p][0]: gr['xwait'] = st
            groups.append(gr)
    for cb in range(4):
        for kq in range(4):
            fr = [tra(hslot[(kq*4+j)//2]*8192 + (j % 2)*4096, cb) for j in range(4)]
            chains = []
            for mbx in range(4):
                D = qacc(4+cb, mbx)
                chains.append([(lambda f, D=D, mbx=mbx, ks=kq*4+j: f"{MF} {vr(D)}, {vr(f)}, {xfr(mbx, ks)}, {'0' if ks == 0 else vr(D)}") for j in range(4)])
            gr = dict(frags=fr, chains=chains)
            if cb == 0 and kq == 0: gr['sync'] = [Wait(vm='WH'), I("s_barrier")]; gr['pair'] = 8
            groups.append(gr)
    G = Gaps(768)
    starts, gend = gemm_groups(G, 0, groups, WF, pre)
    assert gend == 768
    for n, gr in enumerate(groups):
        if 'xwait' in gr: G.before(starts[n], Wait(vm=('X', gr['xwait'])))
    bar = {gr['pair']: gr['syncgap'] for gr in groups if 'pair' in gr}
    for k, grp in enumerate(kst):
        for x in grp: G.nv[int(os.environ.get('KS0', '320')) + int(os.environ.get('KSP', '9'))*k].append(x)
    G.pre[bar[8]].insert(0, Wait(vm='kst'))
    sig = L([f"s_lshl_b32 s{sGd}, s{sH}, 7", f"s_add_u32 s{sGd}, s{sGd}, {FL_KV}", f"s_lshl_b32 s{sVk}, s{sI}, 2", f"s_add_u32 s{sVk}, s{sVk}, s{sGd}",
             f"v_mov_b32 v{vKr}, 1", f"v_mov_b32 v{vVr}, 0"])
    for j, x in enumerate(sig): G.nv[bar[8] - 12 + j].append(x)
    sig = one_lane([T(f"buffer_store_dword v{vKr}, v{vVr}, {sr(S_WS)}, s{sVk} offen sc1", 'NOCOUNT')], sW, "K2_SIG", sT)
    sig += L([f"v_and_b32 v{vVr}, 7, v{vL}", f"v_lshlrev_b32 v{vVr}, 2, v{vVr}"])
    for x in sig: G.nv[bar[8]].append(x)
    pl = f"buffer_load_dword v{vKr}, v{vVr}, {sr(S_WS)}, s{sGd} offen sc1"
    GP = int(os.environ.get("GP", "600"))
    G.put(GP, T(pl, 'kvf'))
    for x in [Wait(vm='kvf')] + L([f"v_cmp_ne_u32 vcc, 1, v{vKr}", "s_cbranch_vccnz K2_KVSPIN_E", "K2_KVOK:"]) + (stamp(3) if os.environ.get("KVST") else []): G.before(GP + 40, x)
    if os.environ.get("KVST"):
        for x in stamp(2): G.before(GP + 39, x)
        for x in stamp(1): G.before(bar[8] - 1, x)
        for x in stamp(4): G.nv[bar[8]].append(x)
    kvstub = L(["K2_KVSPIN_E:"]) + spin("K2_KVSPIN", pl, vKr, 1, sCnt) + L(["s_branch K2_KVOK"])
    def dmaKV(which, t):
        sd, base = (S_K, 0) if which == 'K' else (S_V, 65536)
        return [I(f"s_lshl_b32 s{sT3}, s{sW}, 12"), I(f"s_add_u32 m0, s{sT3}, {base + t*16384}"), I(f"s_mov_b32 s{sT3}, {t*16384}")] + \
               [T(f"buffer_load_dwordx4 v{vDM}, {sr(sd)}, s{sT3} offen offset:{j*1024}{LDF} lds", ('KV', which, t)) for j in range(4)]
    trail = lambda l: l + [I("s_nop 0")] if False else l
    stream = [(0, own(2) + rest(1) + dmaP(2) + dmaP(3) + own(3) + rest(2) + dmaP(4) + rest(3)[:-3] + dmaP(5)),
              (bar[2], dmaP(6)), (bar[3], dmaP(7) + dmaH(range(8))),
              ]
    end = place_stream(G, stream, 4, start=4)
    print("K2 prologue dma stream (part 1) ends at gap", end)
    gb = 512 + 40
    G.before(gb, I("s_barrier"))
    end = place_stream(G, [(GP + 40, dmaKV('K', 0) + dmaKV('V', 0) + dmaKV('K', 1) + dmaKV('K', 2) + dmaKV('V', 1) + dmaKV('V', 2))], int(os.environ.get('KVSP', '4')), start=GP + 40)
    print("K2 prologue dma stream ends at gap", end)
    for j, x in enumerate(ctxoff + actoff): G.put(300 + (j//2), x)
    ins = []
    for js in range(2):
        for mbx in range(4):
            E, Od = qf(mbx, js), QO + (js*4 + mbx)*4
            ins += L([f"v_cvt_pk_bf16_f32 v{E}, v{E}, v{E+1}", f"v_cvt_pk_bf16_f32 v{E+1}, v{E+2}, v{E+3}",
                      f"v_cvt_pk_bf16_f32 v{E+2}, v{Od}, v{Od+1}", f"v_cvt_pk_bf16_f32 v{E+3}, v{Od+2}, v{Od+3}"])
    LOG2E = f2u(math.log2(math.e))
    mish = []
    for fbp in range(2):
        for mbx in range(4):
            D0, D1 = HA + ((2*fbp)*4 + mbx)*4, HA + ((2*fbp+1)*4 + mbx)*4
            regs = [D0+r for r in range(4)] + [D1+r for r in range(4)]
            tm_ = (0, 1, tA, tB)
            for q in (regs[:4], regs[4:]):
                for f in ("v_mul_f32 v{t}, %#x, v{a}" % LOG2E, "v_exp_f32 v{t}, v{t}", "v_add_f32 v{t}, 1.0, v{t}", "v_fma_f32 v{t}, v{t}, v{t}, 1.0",
                          "v_rcp_f32 v{t}, v{t}", "v_mul_f32 v{t}, v{t}, v{a}", "v_fma_f32 v{a}, v{t}, -2.0, v{a}"):
                    mish += L([f.format(t=t, a=a) for t, a in zip(tm_, q)])
            mish += L([f"v_cvt_pk_bf16_f32 v{D0}, v{D0}, v{D0+1}", f"v_cvt_pk_bf16_f32 v{D0+1}, v{D0+2}, v{D0+3}",
                       f"v_cvt_pk_bf16_f32 v{D0+2}, v{D1}, v{D1+1}", f"v_cvt_pk_bf16_f32 v{D0+3}, v{D1+2}, v{D1+3}",
                       f"buffer_store_dwordx4 {vr(D0)}, v{vL16}, {sr(S_WS)}, s{sAct+2*mbx+fbp} offen{STF2}"])
    spread(G, mish, 392 if PM[5][0] else 456, 740)
    spread(G, ins, 520, 640)
    def qcvt(js, mbx):
        E, Od = qf(mbx, js), QO + (js*4 + mbx)*4
        return L([f"v_cvt_pk_bf16_f32 v{E}, v{E}, v{E+1}", f"v_cvt_pk_bf16_f32 v{E+1}, v{E+2}, v{E+3}",
                  f"v_cvt_pk_bf16_f32 v{E+2}, v{Od}, v{Od+1}", f"v_cvt_pk_bf16_f32 v{E+3}, v{Od+2}, v{Od+3}"])
    spread(G, [x for mbx in (2, 3, 0, 1) for x in qcvt(2, mbx)], 648, 716)
    ONE, ZR, T4 = 8, 20, 12
    sMk = 62
    vXB = 5
    zero_o = lambda s: [I(f"v_mfma_f32_32x32x16_bf16 {ar(O[s]+16*k, 16)}, {vr(ZR)}, {vr(ZR)}, 0") for k in range(4)]
    su = L(["s_load_dwordx2 s[8:9], s[0:1], 40", "s_load_dwordx2 s[12:13], s[0:1], 72",
            f"s_and_b32 s26, s2, 3", f"s_lshr_b32 s27, s2, 3", f"s_lshl_b32 s27, s27, 2", f"s_add_u32 s27, s27, s{sW}",
            f"s_mul_i32 s24, s26, 352", f"s_mul_i32 s25, s27, 3", "s_add_u32 s24, s24, s25", "s_lshl_b32 s24, s24, 10",
            f"s_lshl_b32 s26, s26, 20", f"s_lshl_b32 s27, s27, 13", f"s_add_u32 s26, s26, s27",
            "s_add_u32 s10, s26, 8192", "s_mov_b32 s11, 0x00020000", "s_add_u32 s14, s24, 3072", f"s_min_u32 s14, s14, {1376*1024}", "s_mov_b32 s15, 0x00020000"] +
           [f"v_mov_b32 v{ONE+k}, 0x3f803f80" for k in range(4)] +
           [f"v_cmp_le_i32 s[{sMk+2*r}:{sMk+2*r+1}], {r}, v{vLB}" for r in range(4)] +
           [f"s_lshl_b32 s{sKd}, s{sW}, 12", f"s_add_u32 s{sKd}, s{sKd}, {3*16384}", f"s_mov_b32 s{sVd}, s{sKd}", f"v_add_u32 v{vX}, 0x10000, v{vL16}",
            f"s_mov_b32 s{sKr}, 16384", f"s_mov_b32 s{sVr}, 0",
            f"s_lshl_b32 s27, s{sPar}, 13", f"s_lshr_b32 s25, s{sW}, 1", "s_lshl_b32 s25, s25, 16", "s_add_u32 s27, s27, s25", f"s_add_u32 s27, s27, {49152}",
            f"v_add_u32 v{vXB}, s27, v{vL16}"])
    for j, x in enumerate(su): G.nv[360 + 2*j].append(x)
    kread = lambda f: T(f"ds_read_b128 {ar(KF_+4*f)}, v{vL16} offset:{f*1024}", ('kf', f))
    qw = lambda js, nb: T(f"ds_write_b128 v{vXB}, {vr(Qreg['b'](nb, js))} offset:{(js*2+nb)*1024}", 'qw')
    for x in [Wait(vm=('KV', 'K', 0), lg=0), I("s_barrier")]: G.before(722, x)
    for f in range(16): G.put(724 + 2*f, kread(f))
    for k in range(6): G.put(725 + 4*k, qw(k//2, k % 2))
    post = qcvt(3, 2) + qcvt(3, 3) + [qw(3, 0), qw(3, 1)] + qcvt(3, 0) + qcvt(3, 1)
    sreg = lambda s, mb, nb: S[s] + (mb*2 + nb)*4
    def prepass_mfma(s, q):
        return [I(f"{MF} {vr(sreg(s,0,nb))}, {ar(KF_+4*js)}, {vr(Qreg[q](nb, js))}, {'0' if js == 0 else vr(sreg(s,0,nb))}") for nb in range(2) for js in range(4)]
    def xred(op, v, t):
        return L([f"v_mov_b32 v{t}, v{v}", f"v_permlane16_swap_b32 v{t}, v{v}", f"{op} v{v}, v{v}, v{t}",
                  f"v_mov_b32 v{t}, v{v}", f"v_permlane32_swap_b32 v{t}, v{v}", f"{op} v{v}, v{v}, v{t}"])
    def zipl(a, b):
        def grp(l):
            g = []
            for x in l:
                if x.kind == 'label' and g: g[-1].append(x)
                else: g.append([x])
            return g
        a, b = grp(a), grp(b)
        o = []
        for k in range(max(len(a), len(b))):
            for y in a[k:k+1] + b[k:k+1]: o += y
        return o
    def prepass_init(s, mask):
        o = []
        if mask:
            o += L([f"v_add_u32 v{tA}, s{sC[s]}, v{vLB}"])
            prs = [(nb, r) for nb in range(2) for r in range(4)]
            pr = lambda k: "vcc" if k % 2 == 0 else f"s[{sRet}:{sRet+1}]"
            for k in range(0, 8, 2):
                o += L([f"v_cmp_le_i32 {pr(j)}, {prs[j][1] - 16*prs[j][0]}, v{tA}" for j in (k, k+1)])
                o += L([f"v_cndmask_b32 v{sreg(s,0,prs[j][0])+prs[j][1]}, v{vNI}, v{sreg(s,0,prs[j][0])+prs[j][1]}, {pr(j)}" for j in (k, k+1)])
        ch = []
        for nb in range(2):
            b = sreg(s, 0, nb); m = MS[s] + nb
            ch.append(L([f"v_max3_f32 v{m}, v{b}, v{b+1}, v{b+2}", f"v_max_f32 v{m}, v{m}, v{b+3}"]) + xred("v_max_f32", m, (tA, tB)[nb]) +
                      L([f"v_max_f32 v{m}, {f2u(-1e30):#x}, v{m}"] + [f"v_sub_f32 v{NM[s]+4*nb+r}, 0, v{m}" for r in range(4)]))
        return o + zipl(ch[0], ch[1])
    misc = L([f"v_mov_b32 v{ZR+k}, 0" for k in range(4)] + [f"v_mov_b32 v{LS[s]+nb}, 0" for s in 'ab' for nb in range(2)] +
             [f"s_mov_b32 s{sGd}, {3*16384}", f"s_lshl_b32 s{sCnt}, s{sI}, 1", f"s_sub_u32 s{sCnt}, s{sCnt}, 1", f"v_xor_b32 v{vXB}, 0x2000, v{vXB}"])
    def under(mf, fl, per=2):
        o = []
        for k, x in enumerate(mf): o += [x] + fl[per*k:per*k+per]
        return o + fl[per*len(mf):]
    post += under(prepass_mfma('a', 'a'), misc)
    post += [Wait(lg='qw'), I("s_barrier")]
    qxr = [I(f"ds_read_b128 {vr(Qreg['x'](nb, js))}, v{vXB} offset:{(js*2+nb)*1024}") for js in range(4) for nb in range(2)]
    pb = prepass_mfma('b', 'b')
    post += under(pb[:4], qxr) + under(pb[4:], prepass_init('a', True))

    NG, HG = 136, 68
    def body(name, qa, ntile, vmw, hooks, kread_on=True):
        B = Gaps(NG); used = [0]*NG; cls = {}
        cost = lambda x: 0 if x.kind == 'label' else (2 if x.kind in ('trans', 'vmem') else 1)
        def put(g, x, c, where=None):
            x = I(x) if isinstance(x, str) else x
            g %= NG
            if where == 'pre': B.before(g, x); used[(g-1) % NG] += cost(x)
            elif where == 'nv': B.nv[g].append(x); used[g] += cost(x)
            else: B.put(g, x); used[g] += cost(x)
            cls[id(x)] = c; return x
        def free(g, x, c, lim=None):
            x = I(x) if isinstance(x, str) else x
            while used[g % NG] + cost(x) > 2: g += 1
            assert lim is None or g <= lim, (name, x, g, lim)
            put(g, x, c, 'nv'); return g
        for s, g0, q in (('a', 0, qa), ('b', HG, 'b')):
            o = 'b' if s == 'a' else 'a'
            seq = []
            for mb in range(4):
                for nb in range(2):
                    D = vr(sreg(s, mb, nb))
                    seq += [(f"{MF} {D}, {ar(KF_+4*(mb*4+js))}, {vr(Qreg[q](nb, js))}, {vr(NM[s]+4*nb) if js == 0 else D}", 'qk'+s) for js in range(4)]
            ones = [(f"{MF} {vr(T4+4*nb)}, {vr(ONE)}, {vr(P[o]+(nb*2+ks)*4)}, {'0' if ks == 0 else vr(T4+4*nb)}", 'sm'+o) for nb in range(2) for ks in range(2)]
            seq[24:24] = ones
            for db in range(8):
                for nb in range(2):
                    D = ar(O[o] + (db*2+nb)*4)
                    seq += [(f"{MF} {D}, {ar(VF_+4*(db*2+ks))}, {vr(P[o]+(nb*2+ks)*4)}, {D}", 'pv'+o) for ks in range(2)]
            for k, (t, c) in enumerate(seq):
                B.mf[g0+k] = I(t); cls[id(B.mf[g0+k])] = c
            E0 = g0 + 26
            for e in range(32):
                mb, nb, r = e//8, (e//4) % 2, e % 4
                t = ET + (e % 4)
                put(E0 + 2*e, f"v_exp_f32 v{t}, v{sreg(s, mb, nb) + r}", 'sm'+s)
                if r % 2 == 1:
                    put(E0 + 2*e + 1, f"v_cvt_pk_bf16_f32 v{P[s] + (nb*2 + mb//2)*4 + (mb % 2)*2 + r//2}, v{t-1}, v{t}", 'sm'+s)
            if s not in hooks and s == 'a' and ntile == 1:
                for gh in (E0 - 1, E0 + 31): used[gh % NG] += 2
            if s in hooks:
                for hk, gh, lim in ((0, E0 - 1, 0), (1, E0 + 31, 32)):
                    lab = f"{name}_mk{s}{hk}"
                    put(gh, f"s_cmp_le_i32 s{sC[s]}, {lim}", 'sm'+s, 'nv'); put(gh, f"s_cbranch_scc1 {lab}", 'sm'+s, 'nv'); put(gh, f"{lab}_r:", 'sm'+s, 'nv')
            gc = g0 + HG + 31
            lab = f"{name}_rd{s}"
            put(gc, f"v_max_f32 v1, v{T4}, v{T4+4}", 'sm'+s); put(gc, f"v_cmp_lt_f32 vcc, s{sThr}, v1", 'sm'+s)
            put(gc+2, f"s_cbranch_vccnz {lab}", 'sm'+s, 'nv'); put(gc+2, f"{lab}_r:", 'sm'+s, 'nv')
            put(gc+4, f"v_add_f32 v{LS[s]}, v{LS[s]}, v{T4}", 'sm'+s); put(gc+4, f"v_add_f32 v{LS[s]+1}, v{LS[s]+1}, v{T4+4}", 'sm'+s)
        put(0, "s_waitcnt lgkmcnt(0)", 'mem', 'pre')
        put(4, f"s_waitcnt vmcnt({vmw})", 'mem', 'pre'); put(4, "s_barrier", 'mem', 'pre')
        free(5, f"v_add_u32 v{vVr}, s{sVr}, v{vX}", 'mem', 8)
        if kread_on: free(5, f"v_add_u32 v{vKr}, s{sKr}, v{vL16}", 'mem', 8)
        st = []
        wpf = [f"buffer_load_dword v5, v{vL16}, s[8:11], s26 offen", "s_add_u32 s26, s26, 1024"]
        if ntile == 1:
            st += [f"s_mov_b32 m0, s{sKd}"] + [f"buffer_load_dwordx4 v{vDM}, {sr(S_K)}, s{sGd} offen offset:{j*1024}{LDF} lds" for j in range(4)]
            st += wpf + [f"s_add_u32 s{sKd}, s{sKd}, 16384", f"s_and_b32 s{sKd}, s{sKd}, 0xffff", f"s_add_u32 m0, s{sVd}, 0x10000"]
            st += [f"buffer_load_dwordx4 v{vDM}, {sr(S_V)}, s{sGd} offen offset:{j*1024}{LDF} lds" for j in range(4)]
        elif ntile == 2:
            st += [f"s_add_u32 s{sT3}, s{sGd}, 16384", f"s_mov_b32 m0, s{sKd}"] + [f"buffer_load_dwordx4 v{vDM}, {sr(S_K)}, s{sGd} offen offset:{j*1024}{LDF} lds" for j in range(4)]
            st += [f"s_add_u32 m0, s{sKd}, 16384"] + [f"buffer_load_dwordx4 v{vDM}, {sr(S_K)}, s{sT3} offen offset:{j*1024}{LDF} lds" for j in range(4)]
            st += wpf + [f"s_xor_b32 s{sKd}, s{sKd}, 0x8000", f"s_add_u32 m0, s{sVd}, 0x10000"] + [f"buffer_load_dwordx4 v{vDM}, {sr(S_V)}, s{sGd} offen offset:{j*1024}{LDF} lds" for j in range(4)]
            st += [f"s_add_u32 m0, s{sVd}, 0x14000"] + [f"buffer_load_dwordx4 v{vDM}, {sr(S_V)}, s{sT3} offen offset:{j*1024}{LDF} lds" for j in range(4)]
        if ntile:
            st += [f"s_add_u32 s{sVd}, s{sVd}, {ntile*16384}", f"s_sub_u32 s{sT}, s{sVd}, 98304", f"s_min_u32 s{sVd}, s{sVd}, s{sT}", f"s_add_u32 s{sGd}, s{sGd}, {ntile*16384}"]
            g = 8; nd = 0; sp = 116/(4*2*ntile)
            for t in st:
                x = I(t)
                if x.kind == 'vmem' and x.op == 'buffer_load_dword': g = free(g + 1, x, 'mem', NG-1)
                elif x.kind == 'vmem':
                    g = free(max(g + 1, int(9 + nd*sp)), x, 'mem', NG-1); nd += 1
                else: g = free(g, x, 'mem', NG-1)
            step = ntile*16384
            g = 9
            ku = [f"s_add_u32 s{sKr}, s{sKr}, 16384", f"s_and_b32 s{sKr}, s{sKr}, 0xffff"] if ntile == 1 else [f"s_xor_b32 s{sKr}, s{sKr}, 0x8000"]
            for t in ku + [f"s_add_u32 s{sVr}, s{sVr}, {step}", f"s_sub_u32 s{sT2}, s{sVr}, 98304", f"s_min_u32 s{sVr}, s{sVr}, s{sT2}"]:
                g = free(g, t, 'mem', NG-1)
        g = 43
        for f in range(16):
            g = free(max(g, 40 + 2*f), f"ds_read_b128 {ar(VF_+4*f)}, v{vVr} offset:{f*1024}", 'mem', 96)
        vlast = g
        nk_before = 0
        if kread_on:
            for f in range(16):
                lastuse = HG + 8*(f//4) + 4 + f % 4 + (4 if 8*(f//4) + 4 + f % 4 >= 24 else 0)
                g = free(max(g, lastuse + 1), f"ds_read_b128 {ar(KF_+4*f)}, v{vKr} offset:{f*1024}", 'mem', 131)
                if g < 104: nk_before += 1
        put(104, f"s_waitcnt lgkmcnt({nk_before})", 'mem', 'pre')
        if name == "Sf":
            for t in [f"v_lshlrev_b32 v{vKr}, 2, v{vDM}", f"v_mul_u32_u24 v5, 3, v{vL16}", f"v_sub_u32 v{vKr}, v{vKr}, v5"]: free(9, t, 'mem', 30)
            B.wr_left = []
            for f in range(16):
                x = I(f"ds_write_b128 v{vKr}, {ar(O['a']+4*f)} offset:{f*1024}")
                g = 104 + 2*f + 5
                while g < NG and used[g] + 1 > 2: g += 1
                if g < NG: put(g, x, 'mem', 'nv')
                else: B.wr_left.append(x)
            ea = K3['early']
            first = ea[:9] + ea[-6:]; rest_ = ea[9:-6]
            g = 5
            for x in first: g = free(g, x, 'mem', NG-1)
            g = max(g, 41); K3['spill'] = []
            for x in rest_:
                while g < NG and used[g] + cost(x) > 2: g += 1
                if g < NG: put(g, x, 'mem', 'nv')
                else: K3['spill'].append(x)
        over = [(g, u) for g, u in enumerate(used) if u > 2]
        print(f"  body {name}: slots used {sum(used)}/{2*NG}, overfull gaps {over}")
        return B, cls
    def mkstubs(name):
        o = []
        for s in 'ab':
            for hk in range(2):
                lab = f"{name}_mk{s}{hk}"; lo, hi = 2*hk, 2*hk+1
                o += L([f"{lab}:", f"s_cmp_lg_u32 s{sC[s]}, {32*hk}", f"s_cbranch_scc1 {lab}_all"])
                o += L([f"v_cndmask_b32 v{sreg(s,lo,0)+r}, v{vNI}, v{sreg(s,lo,0)+r}, s[{sMk+2*r}:{sMk+2*r+1}]" for r in range(4)])
                o += L([f"v_mov_b32 v{sreg(s,hi,0)+r}, v{vNI}" for r in range(4)])
                o += L([f"v_cndmask_b32 v{sreg(s,hi,1)+r}, v{vNI}, v{sreg(s,hi,1)+r}, s[{sMk+2*r}:{sMk+2*r+1}]" for r in range(4)])
                o += L([f"s_branch {lab}_r", f"{lab}_all:"] + [f"v_mov_b32 v{sreg(s,lo,0)+k}, v{vNI}" for k in range(16)] + [f"s_branch {lab}_r"])
            lab = f"{name}_rd{s}"
            o += L([f"{lab}:", f"s_call_b64 s[{sRet}:{sRet+1}], K2_REDO_{s}", f"s_branch {lab}_r"])
        return o
    def redo(s):
        o = L([f"K2_REDO_{s}:", "s_nop 7"])
        for nb in range(2):
            vals = [sreg(s, mb, nb) + r for mb in range(4) for r in range(4)]
            ts = T4 + 4*nb
            o += L([f"v_max3_f32 v{tA}, v{vals[0]}, v{vals[1]}, v{vals[2]}"] + [f"v_max3_f32 v{tA}, v{tA}, v{vals[k]}, v{vals[k+1]}" for k in range(3, 15, 2)]
                   + [f"v_max_f32 v{tA}, v{tA}, v{vals[15]}"]) + xred("v_max_f32", tA, tB)
            o += L([f"v_max_f32 v{tA}, 0, v{tA}", f"v_add_f32 v{MS[s]+nb}, v{MS[s]+nb}, v{tA}", f"v_sub_f32 v{tB}, 0, v{tA}", f"v_exp_f32 v{tB}, v{tB}"])
            o += L([f"v_sub_f32 v{NM[s]+4*nb+r}, 0, v{MS[s]+nb}" for r in range(4)])
            o += L([f"v_mul_f32 v{LS[s]+nb}, v{LS[s]+nb}, v{tB}"])
            o += L([f"v_sub_f32 v{v}, v{v}, v{tA}" for v in vals])
            for db in range(8):
                for r in range(4):
                    a = O[s] + (db*2+nb)*4 + r
                    o += L([f"v_accvgpr_read_b32 v0, a{a}", f"v_mul_f32 v0, v0, v{tB}", f"v_accvgpr_write_b32 a{a}, v0"])
            o += L([f"v_mov_b32 v{ts}, 0"])
            for mb in range(4):
                for r in (0, 2):
                    b = sreg(s, mb, nb) + r
                    pd = P[s] + (nb*2 + mb//2)*4 + (mb % 2)*2 + r//2
                    o += L([f"v_exp_f32 v{tA}, v{b}", f"v_exp_f32 v{tB}, v{b+1}", f"v_add_f32 v{ts}, v{ts}, v{tA}",
                            f"v_add_f32 v{ts}, v{ts}, v{tB}", f"v_cvt_pk_bf16_f32 v{pd}, v{tA}, v{tB}"])
            o += xred("v_add_f32", ts, tB)
        o += L(["s_nop 1", f"s_setpc_b64 s[{sRet}:{sRet+1}]"])
        return o
    def lin(Bc, lo, hi, keep=None, ren=None):
        B, cls = Bc
        out = []
        XF = os.environ.get("XF", "").split(",")
        for x in B.linear(lo, hi):
            if keep is None and B in XB_:
                if 'dma' in XF and x.kind == 'vmem': continue
                if 'bar' in XF and x.op == 's_barrier': continue
                if 'ds' in XF and x.kind == 'ds': continue
                if 'salu' in XF and x.kind == 'salu' and x.op not in ('s_waitcnt', 's_barrier'): continue
                if 'wait' in XF and x.op == 's_waitcnt': continue
                if 'chk' in XF and x.kind == 'branch': continue
                if 'cvt' in XF and x.op.startswith('v_cvt'): continue
            if keep is None or cls.get(id(x), 'mem') in keep:
                out.append(I(x.text.replace(*ren)) if ren else x)
        return out
    D = body("D", 'a', 1, 5, ''); Dm = body("Dm", 'a', 1, 5, 'a'); S1 = body("S1", 'a', 2, 5, 'a')
    SS = body("S", 'x', 2, 9, ''); Sf = body("Sf", 'x', 0, 0, 'ab', kread_on=False)
    XB_ = [D[0], SS[0]]
    pream = lin(Dm, 0, HG, ('qka', 'sma', 'mem'), ("Dm_", "PR_"))
    ib = prepass_init('b', False); zs = zero_o('a') + zero_o('b')
    ib += L([f"buffer_load_dword v6, v{vL16}, s[12:15], s24 offen offset:{k*1024}" for k in range(3)])
    p2 = []; nm = 0
    for x in pream:
        p2.append(x)
        if x.kind == 'mfma':
            nm += 1
            if nm >= 5 and ib: p2 += ib[:2]; ib = ib[2:]
        if nm == 32 and x.op == 'v_cvt_pk_bf16_f32' and zs: p2.append(zs.pop(0))
    assert not ib and not zs
    pream = p2
    for n, x in enumerate(pream):
        if x.text.startswith("s_waitcnt vmcnt"): pream[n] = Wait(vm=[('KV', 'K', 1), ('KV', 'V', 0)], lg=0)
    if os.environ.get("P2ST"):
        for k, g in enumerate(eval(os.environ["P2ST"])):
            for x in stamp(1+k if k < 3 else 5+k): G.before(g, x)
        DIAG = True
    head = pre + stamp(4) + G.linear(0, 512) + stamp(5) + G.linear(512, 768) + stamp(6) + post + stamp(7) + pream
    head += L([f"s_lshl_b32 s{sC['a']}, s{sW}, 5", f"s_cmp_eq_u32 s{sI}, 0", "s_cbranch_scc1 K2_DM_MID", "s_branch K2_D_MID"])
    head = resolve_waits(head)
    head, n1 = fix_hazards(head)
    dl = L(["K2_D:"]) + lin(D, 0, HG) + L(["K2_D_MID:"]) + lin(D, HG, NG) + L([f"s_sub_u32 s{sCnt}, s{sCnt}, 1", "s_cbranch_scc0 K2_D"])
    dl, n2 = fix_hazards(dl, pre=dl[-20:])
    assert os.environ.get('XF') or fix_hazards(lin(D, HG, HG+12), pre=head[-20:])[1] == 0 and fix_hazards(lin(Dm, HG, HG+12), pre=head[-20:])[1] == 0
    mid = lin(Dm, 0, HG) + L(["K2_DM_MID:"]) + lin(Dm, HG, NG)
    mid += L([f"s_lshl_b32 s{sT}, s{sPar}, 14", f"s_add_u32 s{sKr}, s{sKr}, s{sT}", f"s_and_b32 s{sKr}, s{sKr}, 0xffff", f"s_sub_u32 s{sC['a']}, s{sC['a']}, 64"])
    mid += (stamp(8) if not DIAG else []) + lin(S1, 0, NG) + (stamp(9) if not DIAG else [])
    def finalize(s, so, zero, wts=None):
        o = []
        for j in range(4):
            for nb in range(2):
                t = 152 if (j*2+nb) % 2 == 0 else 156
                t8 = 136 + ((j*2+nb) % 2)*8
                o += L([f"v_accvgpr_read_b32 v{t8+hh*4+r}, a{O[s] + ((2*j+hh)*2+nb)*4 + r}" for hh in range(2) for r in range(4)])
                sel = "op_sel_hi:[1,0]" if nb == 0 else "op_sel:[0,1] op_sel_hi:[1,1]"
                for k in range(0, 8, 2):
                    o += L([f"v_pk_mul_f32 {vr(t8+k,2)}, {vr(t8+k,2)}, {vr(TS[s],2)} {sel}"])
                    if wts is not None:
                        x = wts + ((2*j + k//4)*2+nb)*4 + k % 4
                        sel3 = "op_sel_hi:[1,0,1]" if nb == 0 else "op_sel:[0,1,0] op_sel_hi:[1,1,1]"
                        o += L([f"v_pk_fma_f32 {vr(t8+k,2)}, {vr(x,2)}, {vr(TS['a'],2)}, {vr(t8+k,2)} {sel3}"])
                o += L([f"v_cvt_pk_bf16_f32 v{t+k}, v{t8+2*k}, v{t8+2*k+1}" for k in range(4)])
                o += L([f"buffer_store_dwordx4 {vr(t)}, v{vL16}, {sr(S_WS)}, s{so+nb} offen offset:{j*1024}{STF2}"])
            if zero: o += [zero_o(s)[j]]
        return o
    t0 = L([f"s_lshl_b32 s{sT}, s{sI}, 7", f"s_sub_u32 s{sC['a']}, s{sC['b']}, s{sT}", f"s_lshl_b32 s{sT}, s{sPar}, 7", f"s_sub_u32 s{sC['a']}, s{sC['a']}, s{sT}",
            f"s_sub_u32 s{sC['a']}, s{sC['a']}, 96"] +
           [f"v_rcp_f32 v{TS['a']+nb}, v{LS['a']+nb}" for nb in range(2)] + [f"v_mov_b32 v{LS['a']+nb}, 0" for nb in range(2)] +
           [f"v_mov_b32 v{T4+k}, -1" for k in range(4)] + ["s_lshl_b32 s25, s2, 15", f"s_lshl_b32 s27, s{sW}, 13", "s_add_u32 s25, s25, s27"])
    tr = L(["s_waitcnt lgkmcnt(0)"]) + under(prepass_mfma('a', 'x'), t0)
    side = L([f"s_add_u32 s25, s25, {WS_EX + 2048}", "s_add_u32 s27, s25, 4096",
              f"s_lshl_b32 s{sT}, s{sPar}, 14", f"s_add_u32 s{sVr}, s{sVr}, s{sT}", f"s_add_u32 s{sVr}, s{sVr}, {98304-16384}",
              f"s_sub_u32 s{sT2}, s{sVr}, 98304", f"s_min_u32 s{sVr}, s{sVr}, s{sT2}", f"s_lshl_b32 s{sCnt}, s{sI}, 1", f"s_sub_u32 s{sCnt}, 13, s{sCnt}",
              f"s_lshl_b32 s{sT}, s{sH}, 2", f"s_add_u32 s{sT}, s{sT}, {FL_AC}", f"s_lshl_b32 s{sT2}, s{sI}, 7", f"s_sub_u32 s{sT3}, {15*128}, s{sT2}",
              f"v_mov_b32 v6, s{sT2}", f"v_writelane_b32 v6, s{sT3}, 1", "v_mov_b32 v7, 1",
              f"s_cmp_lg_u32 s{sW}, 0\n    s_cbranch_scc1 K2_SIGA\n    s_mov_b64 exec, 3\n    buffer_store_dword v7, v6, {sr(S_WS)}, s{sT} offen sc1\n    s_mov_b64 exec, -1\nK2_SIGA:"])
    ob = L([f"buffer_store_dwordx4 {vr(T4)}, v{vL16}, {sr(S_WS)}, s{25 if k < 4 else 27} offen offset:{(k % 4)*1024} sc1" for k in range(6)])
    fa = finalize('a', sXN, True)
    ini = prepass_init('a', True)
    k0 = len(ini)
    tr += zipl(ini, fa[:k0]) + side[:2]
    fa = fa[k0:]; side = side[2:]
    for k, x in enumerate(fa):
        tr.append(x)
        if k % 20 == 8 and ob: tr.append(ob.pop(0))
    tr += ob + side
    tr += L([f"s_lshl_b32 s{sC['b']}, s{sW}, 5", f"s_lshl_b32 s{sT}, s{sPar}, 6", f"s_sub_u32 s{sC['b']}, s{sC['b']}, s{sT}",
             f"s_add_u32 s{sC['a']}, s{sC['b']}, 32", f"s_sub_u32 s{sC['a']}, s{sC['a']}, s{sT}"])
    mid += tr + (stamp(10) if not DIAG else []) + L([f"s_cmp_eq_u32 s{sI}, 7", "s_cbranch_scc1 K2_SF"])
    mid, n3 = fix_hazards(mid, pre=dl[-20:])
    sl = L(["K2_S:"]) + lin(SS, 0, NG) + L([f"s_sub_u32 s{sCnt}, s{sCnt}, 1", "s_cbranch_scc0 K2_S"])
    sl, n4 = fix_hazards(sl, pre=sl[-20:])
    assert os.environ.get('XF') or fix_hazards(sl[:24], pre=mid[-20:])[1] == 0
    tail = L(["K2_SF:"]) + code_prefetch("K3_BEGIN" if FUSED else "outproj_kernel", "K2_PC2", False, tA, tA, sRet, sT3, vtid=31) + lin(Sf, 0, NG)
    assert fix_hazards(tail[:24], pre=mid[-20:])[1] == 0
    tb = lin(SS, 0, HG, ('smb', 'pvb'), ("S_", "TL_"))
    kq = [n for n, x in enumerate(tb) if x.kind == 'mfma' and x.wr[0].startswith('a')][0]
    tail += L(["s_barrier",
               f"v_xor_b32 v{vVr}, 0x4000, v{vKr}", f"v_add_u32 v{vDM}, 0x10000, v{vDM}",
               f"v_mov_b32 v{NM['a']}, v{MS['a']}", f"v_mov_b32 v{NM['a']+1}, v{MS['a']+1}", f"v_mov_b32 v{NM['a']+2}, v{LS['a']}", f"v_mov_b32 v{NM['a']+3}, v{LS['a']+1}",
               f"ds_write_b128 v{vDM}, {vr(NM['a'])}"])
    wr = Sf[0].wr_left
    tail += zipl(zipl(tb[:kq], wr), K3['spill'] + K3['acheck'] + K3['loads'])
    XO = 64
    pv = tb[kq:]
    n0 = K3['need0']
    tail += zipl(pv[:8], zipl(n0[0:16:2], n0[1:16:2])[:0] + n0[:8]) + L(["s_waitcnt lgkmcnt(0)", "s_barrier", f"v_xor_b32 v{vDM}, 0x1000, v{vDM}", f"ds_read_b128 {vr(NM['a'])}, v{vDM}"])
    rd = L([f"ds_read_b128 {vr(XO+4*f)}, v{vVr} offset:{f*1024}" for f in range(16)])
    wt = L(["s_waitcnt lgkmcnt(15)"])
    ch = []
    for nb in range(2):
        mx, lx, mb_, lb, t = NM['a']+nb, NM['a']+2+nb, MS['b']+nb, LS['b']+nb, (tA, tB)[nb]
        ch.append(L([f"v_max_f32 v{t}, v{mx}, v{mb_}", f"v_sub_f32 v{mx}, v{mx}, v{t}", f"v_sub_f32 v{mb_}, v{mb_}, v{t}",
                     f"v_exp_f32 v{mx}, v{mx}", f"v_exp_f32 v{mb_}, v{mb_}", f"v_mul_f32 v{lb}, v{lb}, v{mb_}", f"v_fmac_f32 v{lb}, v{lx}, v{mx}",
                     f"v_rcp_f32 v{lb}, v{lb}", f"v_mul_f32 v{TS['b']+nb}, v{mb_}, v{lb}", f"v_mul_f32 v{TS['a']+nb}, v{mx}, v{lb}"]))
    fl = rd + wt + zipl(ch[0], ch[1]) + n0[8:]
    pvr = pv[8:]
    for k, x in enumerate(pvr): tail += [x] + fl[2*k:2*k+2]
    tail += fl[2*len(pvr):]
    fb = finalize('b', sXN+2, False, wts=XO)
    for x in fb:
        if x.kind == 'vmem': x.tag = 'cst'
    tail += L(["s_waitcnt lgkmcnt(0)"]) + fb
    tail += prof_end(1, S_WS, sW, 4, vtmp=32, drain=not FUSED)
    tail, n5 = fix_hazards(resolve_waits(tail + K3['main']), pre=sl[-20:])
    alltext = "\n".join(x.text for x in head + dl + mid + sl + tail)
    stubs = []
    for nm in ("PR", "D", "Dm", "S1", "S", "Sf", "TL"):
        cur = []
        for x in mkstubs(nm) + L(["SENTINEL:"]):
            if x.kind == 'label' and not x.text.endswith("_all:"):
                if cur and ("\n" + cur[0].text[:-1] + "_r:") in alltext: stubs += fix_hazards(cur)[0]
                cur = []
            cur.append(x)
    stubs += fix_hazards(redo('a'))[0] + fix_hazards(redo('b'))[0]
    stubs += kvstub + lnstub + K3['stubs']
    seq = head + dl + mid + sl + tail + stubs
    print("total instrs", len(seq), "nops head/D/mid/S/tail", n1, n2, n3, n4, n5)
    return seq
```

```python
import math, sys, struct, os
from asmlib import *

WS_XN = 0x0
WS_KF = 0x200000
WS_VF = 0x1200000
WS_CA = 0x2200000
CA_RB = 172*1024
WS_EX = 0x4000000
WS_FL = 0x5000000
WS_SIZE = 0x10000000
SCALE = math.log2(math.e) / math.sqrt(128.0)
def f2u(f): return struct.unpack('<I', struct.pack('<f', f))[0]
MF = "v_mfma_f32_16x16x32_bf16"
def vr(b, n=4): return f"v[{b}:{b+n-1}]"
def ar(b, n=4): return f"a[{b}:{b+n-1}]"
def sr(b, n=4): return f"s[{b}:{b+n-1}]"
def L(lines): return [I(x) if isinstance(x, str) else x for x in lines]

def srd(d, lo, hi, size):
    return [f"s_mov_b32 s{d}, s{lo}", f"s_mov_b32 s{d+1}, s{hi}",
            f"s_mov_b32 s{d+2}, {size}" , f"s_mov_b32 s{d+3}, 0x00020000"]
def srd_off(d, lo, hi, soff, size):
    return [f"s_add_u32 s{d}, s{lo}, s{soff}\n    s_addc_u32 s{d+1}, s{hi}, 0", f"s_sub_u32 s{d+2}, {size}, s{soff}", f"s_mov_b32 s{d+3}, 0x00020000"]

PROF = bool(os.environ.get("PROF"))
STF = os.environ.get("STF", " sc1")
FUSED = os.environ.get("FUSED", "1") == "1"
LDF = " sc1" if FUSED else ""
FL_KV, FL_AC, FL_CX, FL_EX = WS_FL, WS_FL + 0x1000, WS_FL + 0x40000, WS_FL + 0x80000
STX = os.environ.get("STX", " sc1")
STF2 = os.environ.get("STF2", " sc1")
WS_PROF = 0xF000000
NSTAMP = 12
def stamp(k):
    return [I(f"s_memtime s[{72+2*k}:{73+2*k}]")] if PROF else []
def prof_begin():
    return ([I("s_memrealtime s[96:97]")] + [x for k in range(NSTAMP) for x in stamp(k)]) if PROF else []
def prof_end(kidx, S_WS, sW, nwaves, vtmp=0, drain=True):
    if not PROF: return []
    o = L((["s_waitcnt vmcnt(0)"] if drain else []) + ["s_memrealtime s[98:99]"]) + stamp(NSTAMP-1) + L(["s_waitcnt lgkmcnt(0)",
          f"s_mul_i32 s70, s2, {nwaves}", f"s_add_u32 s70, s70, s{sW}", "s_lshl_b32 s70, s70, 6",
          f"s_add_u32 s70, s70, {WS_PROF + kidx*0x40000}", f"v_mov_b32 v{vtmp+16}, 0"])
    regs = [96, 98] + [72+2*k for k in range(NSTAMP)] + [97, 99]
    for j, rg in enumerate(regs): o += L([f"v_mov_b32 v{vtmp+j}, s{rg}"])
    for j in range(4):
        o += L([f"buffer_store_dwordx4 {vr(vtmp+4*j)}, v{vtmp+16}, {sr(S_WS)}, s70 offen offset:{16*j}"])
    return o

def code_prefetch(label, here, wide, vdst, vaddr, sp, st, vtid=0):
    sh = 3 if wide else 2
    o = [f"s_getpc_b64 s[{sp}:{sp+1}]", f"{here}:"]
    if label is not None:
        o += [f"s_add_u32 s{sp}, s{sp}, {label}-{here}\n    s_addc_u32 s{sp+1}, s{sp+1}, 0"]
    o += [f"s_bfe_u32 s{st}, s2, 0x50003", f"s_lshl_b32 s{st}, s{st}, {8+sh}", f"v_lshlrev_b32 v{vaddr}, {sh}, v{vtid}", f"v_add_u32 v{vaddr}, s{st}, v{vaddr}",
          f"global_load_dwordx2 {vr(vdst, 2)}, v{vaddr}, s[{sp}:{sp+1}]" if wide else f"global_load_dword v{vdst}, v{vaddr}, s[{sp}:{sp+1}]"]
    return L(o)

def one_lane(ins, sW, lab, stmp):
    return L([f"s_cmp_lg_u32 s{sW}, 0\n    s_cbranch_scc1 {lab}\n    s_mov_b64 exec, 1"]) + ins + L(["s_mov_b64 exec, -1", f"{lab}:"])
def spin(lab, load, vdst, want, scnt):
    return L([f"s_mov_b32 s{scnt}, 0x40000", f"{lab}:", load, "s_waitcnt vmcnt(0)", f"v_cmp_ne_u32 vcc, {want}, v{vdst}", f"s_cbranch_vccz {lab}_ok",
              f"s_sleep {os.environ.get('SLP', '1')}", f"s_sub_u32 s{scnt}, s{scnt}, 1", f"s_cbranch_scc0 {lab}", f"{lab}_ok:"])

def red32(v, t):
    dpp = " row_mask:0xf bank_mask:0xf"
    return [f"v_add_f32_dpp v{v}, v{v}, v{v} quad_perm:[1,0,3,2]{dpp}",
            f"v_add_f32_dpp v{v}, v{v}, v{v} quad_perm:[2,3,0,1]{dpp}",
            f"v_add_f32_dpp v{v}, v{v}, v{v} row_half_mirror{dpp}",
            f"v_add_f32_dpp v{v}, v{v}, v{v} row_mirror{dpp}",
            f"v_mov_b32 v{t}, v{v}",
            f"v_permlane16_swap_b32 v{t}, v{v}",
            f"v_add_f32 v{v}, v{v}, v{t}"]

def w_dma_voff(vlane, vd0, vd1, pitch, t1, t2):
    return [f"v_bfe_u32 v{t1}, v{vlane}, 4, 1", f"v_lshlrev_b32 v{t1}, 1, v{t1}", f"v_and_b32 v{t2}, 7, v{vlane}",
            f"v_xor_b32 v{t1}, v{t1}, v{t2}", f"v_lshlrev_b32 v{t1}, 4, v{t1}",
            f"v_lshrrev_b32 v{t2}, 3, v{vlane}", f"v_mul_u32_u24 v{t2}, {pitch}, v{t2}",
            f"v_add_u32 v{vd0}, v{t1}, v{t2}", f"v_xor_b32 v{t1}, 64, v{t1}", f"v_add_u32 v{vd1}, v{t1}, v{t2}",
            f"v_add_u32 v{vd1}, {8*pitch-1024}, v{vd1}"]
def w_tr_addr(vlane, vT, t1, t2):
    o = [f"v_lshrrev_b32 v{t1}, 4, v{vlane}", f"v_lshlrev_b32 v{t1}, 10, v{t1}",
         f"v_bfe_u32 v{t2}, v{vlane}, 2, 2", f"v_lshl_add_u32 v{t1}, v{t2}, 7, v{t1}",
         f"v_and_b32 v{t2}, 3, v{vlane}", f"v_lshl_add_u32 v{t1}, v{t2}, 3, v{t1}",
         f"v_bfe_u32 v{t2}, v{vlane}, 3, 2",
         f"v_lshl_add_u32 v{vT}, v{t2}, 5, v{t1}"]
    for cb in range(1, 4): o += [f"v_xor_b32 v{vT+cb}, {cb*32}, v{vT}"]
    return o

def gemm_groups(G, g0, groups, WF, pre, nbuf=2):
    starts = []; g = g0
    for gr in groups:
        starts.append(g); g += len(gr['frags'])*len(gr['chains'])
    for n, gr in enumerate(groups):
        CH = len(gr['frags'])
        base = WF + (n % nbuf)*4*gr.get('bufsz', CH)
        tagid = gr.setdefault('id', (g0, n))
        reads = []
        for j, (va, off) in enumerate(gr['frags']):
            for t in range(2):
                reads.append(T(f"ds_read_b64_tr_b16 {vr(base+4*j+2*t,2)}, v{va} offset:{off+t*512}", ('wf', tagid, j)))
        if n == 0:
            pre.extend(gr.get('sync') or []); pre.extend(reads); gr['syncgap'] = None
        else:
            ps = starts[n-1]; plen = starts[n] - ps
            first = ps + 1
            for x in (gr.get('sync') or []): G.before(first, x)
            gr['syncgap'] = first
            span = max(len(reads), (plen*3)//4 - 1)
            for i, x in enumerate(reads): G.put(first + (i*span)//len(reads), x)
        gg = starts[n]
        gr['made'] = list(reads)
        for c, ch in enumerate(gr['chains']):
            for j in range(CH):
                G.mf[gg] = I(ch[j](base + 4*j)); gr['made'].append(G.mf[gg])
                if c == 0 and (j % 2 == 0):
                    gr['made'].append(G.before(gg, Wait(lg=[('wf', tagid, min(j+1, CH-1))] + (gr.get('lgwait', []) if j == 0 else []))))
                gg += 1
    return starts, g

def place_stream(G, groups, spacing, start=2):
    cur = start; last = start - 2
    for (e, ins) in groups:
        cur = max(cur, e + 2); last = max(last, e)
        pend = []
        for x in ins:
            if x.kind != 'vmem': pend.append(x); continue
            for j, y in enumerate(pend): G.nv[max(last, cur - len(pend) + j)].append(y)
            pend = []
            G.put(cur, x); last = cur; cur += spacing
    return cur

def spread(G, ins, g0, g1):
    for j, x in enumerate(ins):
        g = g0 + (j*(g1-g0))//len(ins)
        if x.kind == 'vmem' and not x.wr: G.put(g+1, x)
        else: G.put(g, x)

def mlp_slot(d, h, t):
    return [f"s_and_b32 s{t}, s{h}, 3", f"s_max_u32 s{t}, s{t}, 1", f"s_lshr_b32 s{d}, s{h}, 2", f"s_mul_i32 s{d}, s{d}, 3", f"s_add_u32 s{d}, s{d}, s{t}", f"s_sub_u32 s{d}, s{d}, 1"]
def KACC(db, mb):
    return ((96, 64)[db % 2] + (db//4)*64 + ((db//2) % 2)*16) + mb*4
def k_epilogue(js, sSc):
    o = []
    for mb in range(4):
        D0, D1 = KACC(2*js, mb), KACC(2*js+1, mb)
        o += L([f"v_mul_f32 v{D+r}, s{sSc}, v{D+r}" for D in (D0, D1) for r in range(4)])
        o += L([f"v_cvt_pk_bf16_f32 v{D0}, v{D0}, v{D0+1}", f"v_cvt_pk_bf16_f32 v{D0+1}, v{D0+2}, v{D0+3}",
                f"v_cvt_pk_bf16_f32 v{D0+2}, v{D1}, v{D1+1}", f"v_cvt_pk_bf16_f32 v{D0+3}, v{D1+2}, v{D1+3}"])
    return o
def gen_k1(early=None):
    S_CKV, S_WK, S_WV, S_WS, S_X = 4, 8, 12, 16, 20
    sW, sH, sR = 24, 25, 26
    sV = 52
    sAk, sWk = 40, 48
    sAm, sWm, sT, sT2, sFl, sSc, sLN, sH8 = 56, 57, 58, 59, 60, 61, 62, 63
    vL, vL16 = 2, 3
    vAD = 4; vAR = 8; vWD = 10; vT = 12; vTh = 16
    WF = 32; ACCK = 64; EP = 192; AR = 128
    DSL = (lambda l: l[1] - l[0])(eval(os.environ.get('SL', '[0,2,4,6,1,3,5,7]')))
    pre = prof_begin()
    pre += L(["s_load_dwordx4 s[28:31], s[0:1], 0", "s_load_dwordx4 s[32:35], s[0:1], 24", "s_load_dwordx2 s[36:37], s[0:1], 96",
              "s_load_dwordx2 s[54:55], s[0:1], 16", "s_load_dwordx4 s[64:67], s[0:1], 56", "s_load_dwordx2 s[68:69], s[0:1], 88",
              "s_cmp_ge_u32 s2, 256", "s_cbranch_scc1 K3_END" if FUSED else "s_cbranch_scc1 K1_END"])
    pre += code_prefetch(None, "K1_PC", False, 21, 24, 38, 27)
    pre += L(["v_lshrrev_b32 v1, 6, v0", f"v_and_b32 v{vL}, 63, v0", f"v_readfirstlane_b32 s{sW}, v1",
              f"v_lshlrev_b32 v{vL16}, 4, v{vL}",
              f"s_and_b32 s{sT}, s2, 7", f"s_lshl_b32 s{sT}, s{sT}, 2", f"s_bfe_u32 s{sT2}, s2, 0x20003",
              f"s_add_u32 s{sH}, s{sT}, s{sT2}", f"s_lshr_b32 s{sR}, s2, 5"])
    pre += L([f"v_lshrrev_b32 v24, 5, v{vL}", f"v_and_b32 v25, 31, v{vL}", "v_lshlrev_b32 v26, 10, v24",
              "v_lshl_add_u32 v26, v25, 5, v26",
              "v_lshlrev_b32 v27, 9, v25", "v_lshl_add_u32 v27, v24, 4, v27"])
    pre += L([f"v_lshrrev_b32 v24, 4, v{vL}", f"v_and_b32 v25, 7, v{vL}", "v_xor_b32 v24, v24, v25", "v_lshlrev_b32 v24, 4, v24",
              f"v_lshrrev_b32 v25, 3, v{vL}", f"v_lshl_add_u32 v{vAD}, v25, 10, v24",
              f"v_xor_b32 v{vAD+1}, 64, v{vAD}", f"v_add_u32 v{vAD+1}, {8192-1024}, v{vAD+1}",
              ])
    pre += L(w_dma_voff(vL, vWD, vWD+1, 8192, 24, 25))
    pre += L([f"s_lshl_b32 s{sT}, s{sR}, 18", f"s_lshl_b32 s{sT2}, s{sW}, 16", f"s_add_u32 s{sT}, s{sT}, s{sT2}",
              f"s_lshl_b32 s{sT2}, s{sW}, 14", f"s_add_u32 s{sT2}, s{sT2}, 98304"])
    for o in range(4):
        pre += L([f"s_add_u32 s27, s{sH}, {o}", "s_and_b32 s27, s27, 3", f"s_lshl_b32 s{sAk+o}, s27, 14", f"s_add_u32 s{sAk+o}, s{sAk+o}, s{sT}",
                  f"s_lshl_b32 s{sAk+4+o}, s27, 11", f"s_add_u32 s{sAk+4+o}, s{sAk+4+o}, s{sT2}"])
    pre += L([f"s_lshl_b32 s{sWk}, s{sW}, 17",
              f"s_lshr_b32 s27, s2, 3", "s_lshl_b32 s27, s27, 2", f"s_add_u32 s27, s27, s{sW}", f"s_and_b32 s{sWk+1}, s27, 63", f"s_lshl_b32 s{sWk+1}, s{sWk+1}, 13",
              "s_lshr_b32 s27, s27, 6", f"s_mul_i32 s27, s27, {DSL*64*8192}", f"s_add_u32 s{sWk+1}, s{sWk+1}, s27",
              f"s_and_b32 s27, s{sH}, 3", "s_lshl_b32 s27, s27, 8", f"s_sub_u32 s{sWk+1}, s{sWk+1}, s27"])
    pre += L([f"s_lshl_b32 s{sAm}, s{sW}, 14", f"s_add_u32 s{sAm}, s{sAm}, 98304", f"s_lshl_b32 s{sWm}, s{sW}, 11",
              f"s_lshl_b32 s{sH8}, s{sH}, 8", f"s_and_b32 s{sFl}, s{sR}, 1", f"s_lshl_b32 s{sFl}, s{sFl}, 7",
              f"s_lshl_b32 s{sT}, s2, 3", f"s_lshl_b32 s{sT2}, s{sW}, 1", f"s_add_u32 s{sT}, s{sT}, s{sT2}", f"s_lshl_b32 s{sLN}, s{sT}, 10"])
    pre += L(["s_waitcnt lgkmcnt(0)"]) + stamp(1)
    pre += L(srd(S_CKV, 30, 31, 0x200000))
    SL = eval(os.environ.get('SL', '[0,2,4,6,1,3,5,7]'))
    assert all(SL[2*k+1] - SL[2*k] == SL[1] - SL[0] for k in range(4))
    def dmaA(s, os_):
        o = []
        for k in os_:
            o += [I(f"s_add_u32 m0, s{sAk+4+k}, {(s % 2)*8192}"), I(f"s_add_u32 s{sT}, s{sAk+k}, {SL[s]*128}"),
                  T(f"buffer_load_dwordx4 v{vAD}, {sr(S_CKV)}, s{sT} offen lds", ('A', s)),
                  T(f"buffer_load_dwordx4 v{vAD+1}, {sr(S_CKV)}, s{sT} offen offset:1024 lds", ('A', s))]
        return o
    own = lambda s: dmaA(s, [0]); rest = lambda s: dmaA(s, [1, 2, 3])
    def pfW(sd, st):
        return L([f"s_add_u32 s{sT2}, s{sWk+1}, {SL[2*st]*64*8192}", f"buffer_load_dwordx4 v[20:23], v{vL16}, {sr(sd)}, s{sT2} offen"])
    def dmaUT(sd, ksl, ch, ldsoff, tag):
        return [I(f"s_add_u32 m0, s{sWm}, {ldsoff}"), I(f"s_add_u32 s{sT2}, s{sWk}, {SL[ksl]*64*8192 + ch*128}"),
                T(f"buffer_load_dwordx4 v{vWD}, {sr(sd)}, s{sT2} offen lds", tag),
                T(f"buffer_load_dwordx4 v{vWD+1}, {sr(sd)}, s{sT2} offen offset:1024 lds", tag)]
    kslot = lambda p, u: ((p % 6)*2 + u)*8192
    def dmaWP(p): return [x for u in range(2) for x in dmaUT(S_WV if p % 4 < 2 else S_WK, (p//4)*2 + u, p % 2, kslot(p, u), ('W', p))]
    warm = L([f"buffer_load_dwordx4 v[20:23], v{vL16}, {sr(S_CKV)}, s{sLN} offen", f"buffer_load_dwordx4 v[20:23], v{vL16}, {sr(S_CKV)}, s{sLN} offen offset:1024"])
    lnld = [T(f"buffer_load_dwordx4 v[192:195], v26, {sr(S_X)}, s{sLN} offen", 'ln'),
            T(f"buffer_load_dwordx4 v[196:199], v26, {sr(S_X)}, s{sLN} offen offset:16", 'ln')]
    pre += warm + own(0) + own(1)
    pre += L(srd_off(S_WV, 34, 35, sH8, 0x400000))
    pre += pfW(S_WV, 0)
    pre += L(srd(S_X, 28, 29, 0x200000) + srd_off(S_WK, 32, 33, sH8, 0x400000))
    pre += rest(0) + dmaWP(0) + rest(1) + pfW(S_WK, 0)
    pre += dmaWP(1) + lnld + stamp(2)
    if os.environ.get("K1DIAG"):
        for k, n in enumerate((27, 24, 23, 17, 13, 7, 6, 2, 0)):
            pre += L([f"s_waitcnt vmcnt({n})"]) + stamp(3+k if k < 8 else 10)
    pre += L(srd(S_WS, 36, 37, WS_SIZE))
    pre += L(w_tr_addr(vL, vT, 24, 25)) + L([f"v_add_u32 v{vTh+c}, 0x10000, v{vT+c}" for c in range(4)])
    pre += L([f"v_and_b32 v24, 15, v{vL}", f"v_bfe_u32 v25, v{vL}, 1, 3", f"v_lshrrev_b32 v1, 4, v{vL}", "v_xor_b32 v25, v25, v1",
              "v_lshlrev_b32 v25, 4, v25", "v_lshl_add_u32 v24, v24, 7, v25", f"v_add_u32 v{vAR}, s{sAm}, v24",
              f"v_xor_b32 v{vAR+1}, 64, v{vAR}"])
    svs = L([f"s_lshl_b32 s{sV}, s{sH}, 19", f"s_lshl_b32 s27, s{sR}, 16", f"s_add_u32 s{sV}, s{sV}, s27", f"s_lshl_b32 s27, s{sW}, 14", f"s_add_u32 s{sV}, s{sV}, s27",
             f"s_add_u32 s{sV}, s{sV}, {WS_VF}"] + [f"s_add_u32 s{sV+j}, s{sV}, {j*4096}" for j in range(1, 4)])
    pre += L([f"s_mov_b32 s{sSc}, {f2u(SCALE):#x}"])
    X = 208; R0 = 192; m, t, d, q = 200, 201, 202, 203
    ln = []
    for j in range(8):
        ln += L([f"v_lshlrev_b32 v{X+2*j}, 16, v{R0+j}", f"v_and_b32 v{X+2*j+1}, 0xffff0000, v{R0+j}"])
    ln += L([f"v_add_f32 v{m}, v{X}, v{X+1}"] + [f"v_add_f32 v{m}, v{m}, v{X+j}" for j in range(2, 16)])
    ln += L(red32(m, t))
    ln += L([f"v_mul_f32 v{m}, 0x3b000000, v{m}"])
    ln += L([f"v_sub_f32 v{d}, v{X}, v{m}", f"v_mul_f32 v{q}, v{d}, v{d}"])
    for j in range(1, 16):
        ln += L([f"v_sub_f32 v{d}, v{X+j}, v{m}", f"v_fmac_f32 v{q}, v{d}, v{d}"])
    ln += L(red32(q, t))
    ln += L([f"v_mul_f32 v{q}, 0x3b000000, v{q}", f"v_cvt_pk_bf16_f32 v{m}, v{m}, v{q}",
             f"v_and_b32 v{q}, 0xffff0000, v{m}", f"v_lshlrev_b32 v{m}, 16, v{m}",
             f"v_add_f32 v{q}, {f2u(1e-5):#x}, v{q}", f"v_cvt_pk_bf16_f32 v{q}, v{q}, v{q}", f"v_lshlrev_b32 v{q}, 16, v{q}",
             f"v_sqrt_f32 v{q}, v{q}", f"v_cvt_pk_bf16_f32 v{q}, v{q}, v{q}", f"v_lshlrev_b32 v{q}, 16, v{q}",
             f"v_rcp_f32 v{q}, v{q}"])
    for j in range(8):
        a, b = X+2*j, X+2*j+1
        ln += L([f"v_sub_f32 v{a}, v{a}, v{m}", f"v_sub_f32 v{b}, v{b}, v{m}", f"v_cvt_pk_bf16_f32 v{a}, v{a}, v{b}",
                 f"v_and_b32 v{b}, 0xffff0000, v{a}", f"v_lshlrev_b32 v{a}, 16, v{a}",
                 f"v_mul_f32 v{a}, v{a}, v{q}", f"v_mul_f32 v{b}, v{b}, v{q}", f"v_cvt_pk_bf16_f32 v{R0+j}, v{a}, v{b}"])
    ln2 = []
    LX = kslot(5, 0)
    lnw = L([f"s_lshl_b32 s50, s{sW}, 11", f"s_add_u32 s50, s50, {LX}", "v_add_u32 v26, s50, v26",
             f"ds_write_b128 v26, {vr(R0)}", f"ds_write_b128 v26, {vr(R0+4)} offset:16",
             f"v_and_b32 v24, 7, v{vL}", f"v_lshrrev_b32 v25, 3, v{vL}", "v_lshlrev_b32 v26, 10, v24", "v_lshl_add_u32 v26, v25, 4, v26",
             f"s_lshl_b32 s50, s{sW}, 8", f"s_add_u32 s50, s50, {LX}", "v_add_u32 v26, s50, v26",
             "v_lshlrev_b32 v27, 8, v25", "v_lshl_add_u32 v27, v24, 4, v27"])
    lnw[4].tag = 'lnw'
    ln2 += [T(f"ds_read_b128 {vr(R0)}, v26", 'lnr'), T(f"ds_read_b128 {vr(R0+4)}, v26 offset:128", 'lnr')]
    ln2 += L([f"s_lshr_b32 s{sT}, s2, 1", f"s_lshl_b32 s{sT}, s{sT}, 14", f"s_and_b32 s{sT2}, s2, 1", f"s_lshl_b32 s{sT2}, s{sT2}, 7",
             f"s_add_u32 s{sT}, s{sT}, s{sT2}", f"s_lshl_b32 s{sT2}, s{sW}, 12", f"s_add_u32 s{sT}, s{sT}, s{sT2}"])
    ln2 += [Wait(lg='lnr')]
    ln2 += L([f"buffer_store_dwordx4 {vr(R0)}, v27, {sr(S_WS)}, s{sT} offen offset:{WS_XN}{STX}",
              f"buffer_store_dwordx4 {vr(R0+4)}, v27, {sr(S_WS)}, s{sT} offen offset:{WS_XN+2048}{STX}"])
    ln2 += L([f"s_lshl_b32 s{sT}, s{sH}, 7", f"s_lshl_b32 s{sT2}, s{sR}, 2", f"s_add_u32 s{sT}, s{sT}, s{sT2}", f"s_add_u32 s{sT}, s{sT}, {FL_KV}", f"v_mov_b32 v24, s{sT}",
              f"s_lshl_b32 s{sT}, s{sR}, 7", f"s_lshl_b32 s{sT2}, s{sH}, 2", f"s_add_u32 s27, s{sT}, s{sT2}", f"s_add_u32 s27, s27, {FL_AC}", "v_writelane_b32 v24, s27, 1",
              f"s_sub_u32 s27, s{sT2}, s{sT}", f"s_add_u32 s27, s27, {FL_AC + 15*128}", "v_writelane_b32 v24, s27, 2",
              f"s_lshl_b32 s27, s{sW}, 7", f"s_add_u32 s{sT2}, s{sT2}, s27", f"s_lshl_b32 s{sT2}, s{sT2}, 5", f"s_lshl_b32 s{sT}, s{sT}, 7",
              f"s_add_u32 s27, s{sT}, s{sT2}", f"s_add_u32 s27, s27, {FL_CX}", "v_writelane_b32 v24, s27, 3",
              f"s_sub_u32 s27, s{sT2}, s{sT}", f"s_add_u32 s27, s27, {FL_CX + 15*16384}", "v_writelane_b32 v24, s27, 4",
              "v_mov_b32 v25, 0", T(f"buffer_store_dword v25, v24, {sr(S_WS)}, 0 offen sc1", 'lnst'),
              "s_mov_b32 s70, 256", "s_mov_b32 s71, 0x00020000", "v_mov_b32 v26, 1"])
    ln2 = [x if isinstance(x, Wait) else I(x.text.replace(f's{sT2}', 's51').replace(f's{sT}', 's50'), x.tag) for x in ln2]
    kacc = lambda db, mb: KACC(db, mb)
    afr = lambda st, mb, j: ar(AR + (st % 2)*64 + (mb*4 + j)*4)
    def readA(s):
        return [T(f"ds_read_b128 {afr(s//2, mb, (s % 2)*2 + k)}, v{vAR+k} offset:{(s % 2)*8192 + mb*2048}", ('Ar', s))
                for mb in range(4) for k in range(2)]
    pre += [Wait(vm=('A', 0))] + readA(0) + [Wait(vm=('A', 1))] + readA(1) + (stamp(5) if not os.environ.get('K1DIAG') else [])
    groups = []
    for p in range(16):
        st, cq = p//4, p % 4
        for cb in range(4):
            db = (cq % 2)*4 + cb
            fr = []
            for j in range(4):
                o = kslot(p, j//2) + (j % 2)*4096
                fr.append(((vT, vTh)[o >> 16] + cb, o & 0xffff))
            chains = []
            for mb in range(4):
                if cq >= 2:
                    D = vr(kacc(db, mb))
                    chains.append([(lambda f, D=D, a=afr(st, mb, j), z=(st == 0 and j == 0): f"{MF} {D}, {vr(f)}, {a}, {'0' if z else D}") for j in range(4)])
                else:
                    D = ar((db*4 + mb)*4)
                    chains.append([(lambda f, D=D, a=afr(st, mb, j), z=(st == 0 and j == 0): f"{MF} {D}, {a}, {vr(f)}, {'0' if z else D}") for j in range(4)])
            gr = dict(frags=fr, chains=chains)
            if cb == 0:
                gr['sync'] = [Wait(vm=('W', p)), I("s_barrier")]; gr['pair'] = p
                if cq == 0: gr['lgwait'] = [('Ar', 2*st+1)]
            groups.append(gr)
    G = Gaps(1024)
    starts, gend = gemm_groups(G, 0, groups, WF, pre)
    assert gend == 1024
    bar = {gr['pair']: gr['syncgap'] for gr in groups if 'pair' in gr}
    WL = int(os.environ.get('WL', '3'))
    ev = [(4*k, dmaWP(2+k)) for k in range(WL-1)]
    for st in range(3):
        g = 256*st
        ev += [(g, own(2*st+2) + own(2*st+3))]
        if st == 0: ev += [(g + 10, pfW(S_WV, 1) + pfW(S_WK, 1))]
        if st < 2: ev += [(g + int(os.environ.get('PW', '150')), pfW(S_WV, st+2) + pfW(S_WK, st+2))]
        ev += [(g + 70, rest(2*st+2)), (g + 125, rest(2*st+3))]
        for k in range(2):
            gr_ = g + 196 + 26*k
            G.before(gr_, Wait(vm=('A', 2*st+2+k)))
            for j, x in enumerate(readA(2*st+2+k)): G.put(gr_ + 2*j, x)
    for p in range(1, 16-WL): ev += [(bar[p] if p + WL != 5 else max(bar[p], bar[3]), dmaWP(p+WL))]
    ev.sort(key=lambda e: e[0])
    end = place_stream(G, ev, int(os.environ.get("SP", "4")), start=2)
    print("K1 dma stream ends at gap", end)
    G.before(3, Wait(vm='ln'))
    spread(G, ln, 3, 92)
    for j, x in enumerate(lnw): G.va[92 + j].append(x)
    G.pre[bar[2]].insert(0, Wait(lg='lnw'))
    for j, x in enumerate(ln2): G.nv[bar[2] + j].append(x)
    if FUSED:
        for x in one_lane([T("buffer_atomic_add v26, v25, s[68:71], 0 offen sc1", 'NOCOUNT')], sW, "K1_SIG", sT): G.nv[bar[4]].append(x)
        G.pre[bar[4]].insert(0, Wait(vm='lnst'))
        for j, x in enumerate(svs): G.nv[600 + j].append(x)
        EG = int(os.environ.get("EG", "860"))
        G.put(EG - 60, T("buffer_load_dword v27, v25, s[68:71], 0 offen sc1", 'lnc'))
        for x in [Wait(vm='lnc')] + L(["s_movk_i32 s60, 0x100", "v_cmp_gt_u32 vcc, s60, v27", "s_cbranch_vccnz K1_LNSPIN_E", "K1_LNOK:"]): G.before(EG, x)
        sp = spin("K1_LNSPIN", "buffer_load_dword v27, v25, s[68:71], 0 offen sc1", 27, "s60", 59)
        lnstub = L(["K1_LNSPIN_E:"]) + [I(x.text.replace("v_cmp_ne_u32", "v_cmp_gt_u32")) for x in sp] + L(["s_branch K1_LNOK"])
        for j, x in enumerate(early['setup']): G.nv[776 + (j*(EG-778))//len(early['setup'])].append(x)
        place_stream(G, [(EG, early['regloads']), (bar[15], early['dma'])], int(os.environ.get("ESP", "5")), start=EG)
        XG = int(os.environ.get("XG", "0"))
        if XG:
            G.put(XG - 40, T("buffer_load_dword v27, v25, s[68:71], 0 offen sc1", 'lnc0'))
            xp = [Wait(vm='lnc0')] + L(["v_readfirstlane_b32 s52, v27", "s_bfe_u32 s53, s2, 0x50003", "s_lshl_b32 s53, s53, 16", f"s_lshl_b32 s54, s{sW}, 14", "s_add_u32 s53, s53, s54",
                                        "s_cmp_eq_u32 s52, 0x100\n    s_cselect_b32 s53, s53, 0x10000000"])
            for k in range(16):
                if k and k % 4 == 0: xp += L(["s_add_u32 s53, s53, 4096"])
                xp += L([f"buffer_load_dwordx4 v[20:23], v{vL16}, {sr(S_WS)}, s53 offen offset:{(k % 4)*1024} sc1"])
            g = XG
            for x in xp:
                G.nv[g].append(x); g += 8 if x.kind == 'vmem' else 1
    pf = L(srd_off(S_X, 54, 55, sH8, 0x400000) + mlp_slot(sT, sH, 27) + [f"s_lshl_b32 s{sT}, s{sT}, 7"] + srd_off(28, 64, 65, sT, 512*2752))
    pf += L([
             f"v_lshrrev_b32 v26, 3, v{vL}", "v_mul_u32_u24 v26, 2752, v26", f"v_and_b32 v1, 7, v{vL}", "v_lshl_add_u32 v26, v1, 4, v26",
             f"s_lshl_b32 s{sT}, s{sR}, 2", f"s_add_u32 s{sT}, s{sT}, s{sW}", f"s_mul_i32 s{sT2}, s{sT}, {16*2752}",
             f"s_lshr_b32 s{sT}, s2, 3", f"s_lshl_b32 s{sT}, s{sT}, 2", f"s_add_u32 s{sT}, s{sT}, s{sW}", f"s_lshl_b32 s{sT}, s{sT}, 15",
             f"s_and_b32 s27, s{sH}, 3", "s_lshl_b32 s27, s27, 8", f"s_sub_u32 s{sT}, s{sT}, s27"])
    for k in range(4):
        pf += L([f"buffer_load_dwordx4 v[20:23], v{vL16}, {sr(S_X)}, s{sT} offen", f"s_add_u32 s{sT}, s{sT}, 8192"])
    for k in range(2):
        pf += L([f"buffer_load_dwordx4 v[20:23], v26, {sr(28)}, s{sT2} offen", f"s_add_u32 s{sT2}, s{sT2}, {8*2752}"])
    pf = [I(x.text.replace(f"s{sT2}", "s53").replace(f"s{sT}", "s52")) for x in pf]
    pf += code_prefetch("K2_BEGIN" if FUSED else "attn_kernel", "K1_PC2", True, 20, 24, 38, 27)
    g = int(os.environ.get('PFG', '420'))
    for x in pf:
        G.nv[g].append(x); g += 4 if x.kind == 'vmem' else (0 if x.kind == 'label' or x.op == 's_getpc_b64' else 1)
    assert g < 1000
    for db in range(8):
        ins = []
        for ks in range(2):
            t = EP + ((db*2 + ks) % 8)*8
            ins += L([f"v_accvgpr_read_b32 v{t+k}, a{(db*4 + 2*ks)*4 + k}" for k in range(8)])
            ins += L([f"v_cvt_pk_bf16_f32 v{t+k}, v{t+2*k}, v{t+2*k+1}" for k in range(4)])
            ins += L([f"buffer_store_dwordx4 {vr(t)}, v{vL16}, {sr(S_WS)}, s{sV+db//2} offen offset:{(db%2)*2048 + ks*1024}{STF}"])
        spread(G, ins, 790 + 28*db, 790 + 28*db + 27)
    spread(G, k_epilogue(0, sSc) + k_epilogue(1, sSc), 964, 1022)
    tail = []
    assert FUSED
    if os.environ.get("K1FINE"):
        seq = list(pre)
        for p in range(8): seq += stamp(2+p) + G.linear(128*p, 128*p+128)
        seq += stamp(10) + tail + prof_end(0, S_WS, 28, 4, vtmp=32, drain=False)
    else:
        if os.environ.get("K1DIAG"): stamp_ = lambda k: []
        else: stamp_ = stamp
        seq = pre + stamp_(6) + G.linear(0, 64) + stamp_(7) + G.linear(64, 512) + stamp_(8) + G.linear(512, 1024) + stamp_(9) + tail + stamp_(10) + prof_end(0, S_WS, 28, 4, vtmp=32, drain=False)
    if FUSED:
        seq += L(["s_barrier"])
        return seq, lnstub
    seq = resolve_waits(seq)
    seq, n = fix_hazards(seq)
    print("K1: instrs", len(seq), "nops", n)
    return seq + L(["K1_END:", "s_endpgm"])

DOC = """; One persistent launch, 256 workgroups x 4 waves (one wave per SIMD, 512 registers, 160 KB LDS); generated by the author's scheduler script.
; d_debug[0] counts the workgroups that have done so.  Every wait loop is bounded."""
def emit(kernels, path):
    hdr = open('parallel_sum__compressed_kv_cla__dense_activation_mish__prompt.s.ref').read().split('\n')
    out = [l for l in hdr[:14]]
    for (name, grid, block, lds, seq, nv, acc) in kernels:
        if len(kernels) == 1 and os.environ.get("PLAIN"): out.append(f"; @launch grid=({grid},1,1) block=({block},1,1) lds={lds}")
        else: out.append(f"; @launch kernel={name} grid=({grid},1,1) block=({block},1,1) lds={lds}")
    out += ['.amdgcn_target "amdgcn-amd-amdhsa--gfx950"', DOC, ".text"]
    for (name, grid, block, lds, seq, nv, acc) in kernels:
        out += [f".globl {name}", ".p2align 8", f".type {name},@function", f"{name}:"]
        out += [("" if i.kind == 'label' else "    ") + i.text for i in seq]
    out.append(".fill 8192, 4, 0xbf800000")
    out.append('.section .rodata,"a"')
    for (name, grid, block, lds, seq, nv, acc) in kernels:
        out += [".p2align 6", f".amdhsa_kernel {name}", f"  .amdhsa_next_free_vgpr {nv}", "  .amdhsa_next_free_sgpr 102",
                f"  .amdhsa_accum_offset {acc}", "  .amdhsa_group_segment_fixed_size 0", "  .amdhsa_kernarg_size 104",
                "  .amdhsa_user_sgpr_count 2", "  .amdhsa_user_sgpr_kernarg_segment_ptr 1",
                "  .amdhsa_system_sgpr_workgroup_id_x 1", ".end_amdhsa_kernel"]
    open(path, "w").write("\n".join(out) + "\n")

if __name__ == "__main__":
    ks = [("kvproj_kernel", 256, 256, 163840, gen_k1(), 512, 256)]
    emit(ks, sys.argv[1] if len(sys.argv) > 1 else "k.s")
```

```python
from gen import *

NEGINF = "0xff800000"
THR = f2u(2.0**60)

def gen_k2(K3):
    S_WS, S_WQ, S_W1, S_K, S_V, S_B1 = 4, 8, 12, 16, 20, 24
    sW, sH, sI, sPar = 28, 29, 30, 31
    sXN = 32
    sAct = 36
    sWm, sT, sT2, sT3 = 44, 45, 46, 47
    sWoQ, sWo1 = 48, 50
    sKd, sVd, sGd, sKr, sVr, sVk = 50, 51, 52, 53, 54, 55
    sC = {'a': 56, 'b': 57}
    sCnt, sThr, sRet = 58, 59, 60
    sPC = 62
    sKA = 64
    vL, vL16 = 2, 3
    vX = 4
    vWDq, vWD1 = 8, 10
    vT = 12; vTh = 16; vTt = 20
    vDM, vKr, vVr, vLB = 24, 25, 26, 27
    vNI = 28
    tA, tB = 29, 30
    WF = 32
    QE = 64
    QO = 128
    HA = 192
    P = {'a': 32, 'b': 48}
    S = {'a': 128, 'b': 160}
    QX = 192
    NM = {'a': 224, 'b': 232}
    ET = 240
    TS = {'a': 244, 'b': 246}; LS = {'a': 248, 'b': 250}; MS = {'a': 252, 'b': 254}
    O = {'a': 0, 'b': 64}; KF_, VF_ = 128, 192
    qf = lambda mbx, js: QE + (js*4 + mbx)*4
    Qreg = {'a': lambda nb, js: qf(nb, js), 'b': lambda nb, js: qf(2+nb, js), 'x': lambda nb, js: QX + (js*2+nb)*4}

    pre = L([f"s_mov_b32 s{S_WS+k}, s{16+k}" for k in range(3)] + [f"s_mov_b32 s{S_WS+3}, 0x00020000"] +
            [f"s_mov_b32 s{S_WQ+k}, s{20+k}" for k in range(3)] + [f"s_mov_b32 s{S_WQ+3}, 0x00020000"] +
            [f"s_mov_b32 s{S_W1+k}, s{28+k}" for k in range(3)] + [f"s_mov_b32 s{S_W1+3}, 0x00020000"] +
            [f"s_mov_b32 s{sW}, s24", f"s_mov_b32 s{sH}, s25", f"s_mov_b32 s{sI}, s26", f"s_and_b32 s{sPar}, s{sW}, 1", "v_mov_b32 v31, v0"])
    for j in range(4):
        pre += L([f"s_add_u32 s{sT}, s{sH}, {j}", f"s_and_b32 s{sT}, s{sT}, 3", f"s_lshl_b32 s{sT}, s{sT}, 10", f"v_add_u32 v{vX+j}, s{sT}, v{vL16}"])
    for u in range(2):
        pre += L([f"s_lshr_b32 s{sT}, s{sW}, 1", f"s_add_u32 s{sT}, s{sT}, s{sH}", f"s_add_u32 s{sT}, s{sT}, {2*u}", f"s_and_b32 s{sT}, s{sT}, 3",
                  f"s_lshl_b32 s{sT}, s{sT}, 1", f"s_add_u32 s{sT}, s{sT}, s{sPar}", f"s_lshl_b32 s{sWoQ+u}, s{sT}, 17", f"s_mul_i32 s{sWo1+u}, s{sT}, {16*2752}"])
    pre += L(w_dma_voff(vL, vWDq, vWDq+1, 8192, tA, tB) + w_dma_voff(vL, vWD1, vWD1+1, 2752, tA, tB))
    pre += L([f"s_lshl_b32 s{sT}, s{sI}, 3", f"s_lshl_b32 s{sT2}, s{sW}, 1", f"s_add_u32 s{sT3}, s{sT}, s{sT2}",
              f"s_sub_u32 s{sT}, 120, s{sT}", f"s_add_u32 s{sT}, s{sT}, s{sT2}",
              f"s_lshl_b32 s{sXN}, s{sT3}, 14", f"s_add_u32 s{sXN+1}, s{sXN}, 16384",
              f"s_lshl_b32 s{sXN+2}, s{sT}, 14", f"s_add_u32 s{sXN+3}, s{sXN+2}, 16384",
              f"s_mul_i32 s{sAct}, s{sT3}, {CA_RB}", f"s_mul_i32 s{sAct+4}, s{sT}, {CA_RB}",
              f"s_lshl_b32 s62, s{sT3}, 4", f"s_lshl_b32 s63, s{sT}, 4",
              f"s_lshl_b32 s{sWm}, s{sW}, 11"] + mlp_slot(sT2, sH, sT) + [f"s_lshl_b32 s{sT2}, s{sT2}, 7",
              f"v_lshrrev_b32 v{tA}, 4, v{vL}", f"v_lshlrev_b32 v{tA}, 3, v{tA}",
              f"s_mov_b32 s{S_B1}, s66", f"s_mov_b32 s{S_B1+1}, s67", f"s_mov_b32 s{S_B1+2}, 2752", f"s_mov_b32 s{S_B1+3}, 0x00020000"])
    su0 = pre
    xa = lambda mbx, ks: (((ks//4 + 2) % 4)*16 + mbx*4 + ks % 4)*4
    def ldX(st, js):
        return [T(f"buffer_load_dwordx4 {ar(xa(mbx, 4*st+j))}, v{vX+j}, {sr(S_WS)}, s{sXN+mbx} offen{LDF}", ('X', st))
                for j in js for mbx in range(4)] + [I(f"v_add_u32 v{vX+j}, 4096, v{vX+j}") for j in js]
    own = lambda st: ldX(st, [0]); rest = lambda st: ldX(st, [1, 2, 3])
    ring = [0, 1, 2, 3, 4, 5, 8, 9, 10, 11, 12, 13]
    pslot = lambda p, u: ring[((p % 6)*2 + u)]*8192
    hslot = [6, 7, 14, 15, 16, 17, 18, 19]
    def dmaUT(which, ksl, colb, ldsoff, tag):
        sd, vd, so, pitch = (S_W1, vWD1, sWo1, 2752) if which == 1 else (S_WQ, vWDq, sWoQ, 8192)
        return [I(f"s_add_u32 m0, s{sWm}, {ldsoff}"), I(f"s_add_u32 s{sT3}, s{so + ksl % 2}, {(ksl//2)*128*pitch + colb}"),
                T(f"buffer_load_dwordx4 v{vd}, {sr(sd)}, s{sT3} offen lds", tag),
                T(f"buffer_load_dwordx4 v{vd+1}, {sr(sd)}, s{sT3} offen offset:1024 lds", tag)]
    PM = [(1, 0), (0, 0), (1, 1), (0, 1), (1, 2), (1, 3), (0, 2), (0, 3)] if os.environ.get('PM', '1') == '1' else [(1 - p % 2, p//2) for p in range(8)]
    def dmaP(p): return [x for u in range(2) for x in dmaUT(PM[p][0], PM[p][1]*2 + u, 0, pslot(p, u), ('W', p))]
    def dmaH(ks): return [x for k in ks for x in dmaUT(0, k, 128, hslot[k]*8192, 'WH')]
    DIAG = os.environ.get('DIAG')
    dst = lambda k: (L(['s_waitcnt vmcnt(0)'] if DIAG == 'w' else []) + stamp(k)) if DIAG else []
    BI = 64; BR = 20
    bl = [T(f"buffer_load_dwordx2 {vr(BR+2*fb, 2)}, v{tA}, {sr(S_B1)}, s{sT2} offen offset:{fb*32}", 'bias') for fb in range(4)]
    prefix, lnstub = gen_k1(dict(setup=su0, regloads=own(0) + bl + rest(0)[:-3], dma=dmaP(0)))
    pre = prefix + L(["K2_BEGIN:"]) + prof_begin() + own(1) + dmaP(1) + rest(0)[-3:]
    pre += [Wait(vm='bias')]
    ub = []
    for fb in range(4):
        for hw in range(2):
            ub += L([f"v_lshlrev_b32 v{BI+4*fb+2*hw}, 16, v{BR+2*fb+hw}", f"v_and_b32 v{BI+4*fb+2*hw+1}, 0xffff0000, v{BR+2*fb+hw}"])
    pre += ub + L([f"s_mov_b32 s{sC['a']}, s62", f"s_mov_b32 s{sC['b']}, s63"])
    pre += L(w_tr_addr(vL, vT, tA, tB)) + L([f"v_add_u32 v{vTh+c}, 0x10000, v{vT+c}" for c in range(4)] + [f"v_add_u32 v{vTt+c}, 0x20000, v{vT+c}" for c in range(4)])
    pre += L([f"s_lshl_b32 s{sT}, s{sH}, 19", f"s_lshl_b32 s{sT2}, s{sI}, 15", f"s_sub_u32 s{sT2}, 0x80000, s{sT2}",
              f"s_add_u32 s{sT3}, s{sT}, {WS_KF}", f"s_add_u32 s{S_K}, s{S_WS}, s{sT3}", f"s_addc_u32 s{S_K+1}, s{S_WS+1}, 0", f"s_mov_b32 s{S_K+2}, s{sT2}", f"s_mov_b32 s{S_K+3}, 0x00020000",
              f"s_add_u32 s{sT3}, s{sT}, {WS_VF}", f"s_add_u32 s{S_V}, s{S_WS}, s{sT3}", f"s_addc_u32 s{S_V+1}, s{S_WS+1}, 0", f"s_mov_b32 s{S_V+2}, s{sT2}", f"s_mov_b32 s{S_V+3}, 0x00020000"])
    pre += L([f"s_add_u32 s{sAct+2}, s{sAct}, {CA_RB}", f"s_add_u32 s{sAct+6}, s{sAct+4}, {CA_RB}",
              ] + mlp_slot(sCnt, sH, sT) + [f"s_lshl_b32 s{sT}, s{sCnt}, 11", f"s_add_u32 s{sT}, s{sT}, {WS_CA + 128*1024}",
              f"s_lshl_b32 s{sT2}, s{sH}, 12", f"s_add_u32 s{sT2}, s{sT2}, {WS_CA}"])
    ctxoff = []
    for mbx in range(4):
        ctxoff += L([f"s_add_u32 s{sXN+mbx}, s{sAct+2*mbx}, s{sT2}"])
    actoff = []
    for mbx in range(4):
        actoff += L([f"s_add_u32 s{sAct+2*mbx}, s{sAct+2*mbx}, s{sT}", f"s_add_u32 s{sAct+2*mbx+1}, s{sAct+2*mbx}, 1024",
                     f"s_cmp_gt_u32 s{sCnt}, 21", f"s_cselect_b32 s{sAct+2*mbx}, 0x10000000, s{sAct+2*mbx}",
                     f"s_cmp_gt_u32 s{sCnt}, 20", f"s_cselect_b32 s{sAct+2*mbx+1}, 0x10000000, s{sAct+2*mbx+1}"])
    pre += L([f"s_mov_b32 s{sKr}, s{sT}", f"s_mov_b32 s{sVr}, s{sT2}"])
    fix = lambda lst: [I(x.text.replace(f"s{sT2}", f"s{sVr}").replace(f"s{sT}", f"s{sKr}")) for x in lst]
    ctxoff, actoff = fix(ctxoff), fix(actoff)
    pre += L([f"v_lshl_add_u32 v{vDM}, s{sW}, 12, v{vL16}" if False else f"v_mov_b32 v{tA}, s{sW}", f"v_lshl_add_u32 v{vDM}, v{tA}, 12, v{vL16}",
              f"v_and_b32 v{tA}, 15, v{vL}", f"v_lshrrev_b32 v{tB}, 4, v{vL}", f"v_lshlrev_b32 v{tB}, 2, v{tB}", f"v_sub_u32 v{vLB}, v{tA}, v{tB}",
              f"v_mov_b32 v{vNI}, {NEGINF}", f"s_mov_b32 s{sThr}, {THR:#x}"])
    pre += L([f"s_mov_b32 s{sRet}, {f2u(SCALE):#x}"]) + k_epilogue(2, sRet) + k_epilogue(3, sRet)
    pre += L([f"s_lshl_b32 s{sRet}, s{sH}, 19", f"s_lshl_b32 s{sRet+1}, s{sI}, 16", f"s_add_u32 s{sRet}, s{sRet}, s{sRet+1}",
              f"s_lshl_b32 s{sRet+1}, s{sW}, 14", f"s_add_u32 s{sRet}, s{sRet}, s{sRet+1}", f"s_add_u32 s{sRet}, s{sRet}, {WS_KF}"])
    kst = []
    for mb in range(4):
        for js in range(4):
            kst.append(([I(f"s_add_u32 s{sRet}, s{sRet}, 4096")] if (mb and js == 0) else []) +
                       [T(f"buffer_store_dwordx4 {vr(KACC(2*js, mb))}, v{vL16}, {sr(S_WS)}, s{sRet} offen offset:{js*1024}{STF}", 'kst')])
    pre += stamp(3)
    xfr = lambda mbx, ks: ar(xa(mbx, ks))
    def tra(o, cb): return ((vT, vTh, vTt)[o >> 16] + cb, o & 0xffff)
    qacc = lambda db, mbx: (QE if db % 2 == 0 else QO) + ((db//2)*4 + mbx)*4
    groups = []
    for p in range(8):
        st = PM[p][1]
        for cb in range(4):
            fr = [tra(pslot(p, j//2) + (j % 2)*4096, cb) for j in range(4)]
            chains = []
            for mbx in range(4):
                if PM[p][0]: D = HA + (cb*4 + mbx)*4; C0 = vr(BI + 4*cb)
                else: D = qacc(cb, mbx); C0 = '0'
                chains.append([(lambda f, D=D, mbx=mbx, ks=st*4+j, C0=C0: f"{MF} {vr(D)}, {vr(f)}, {xfr(mbx, ks)}, {C0 if ks == 0 else vr(D)}") for j in range(4)])
            gr = dict(frags=fr, chains=chains, isH=PM[p][0])
            if cb == 0:
                gr['sync'] = [Wait(vm=('W', p)), I("s_barrier")]; gr['pair'] = p
                if PM[p][0]: gr['xwait'] = st
            groups.append(gr)
    for cb in range(4):
        for kq in range(4):
            fr = [tra(hslot[(kq*4+j)//2]*8192 + (j % 2)*4096, cb) for j in range(4)]
            chains = []
            for mbx in range(4):
                D = qacc(4+cb, mbx)
                chains.append([(lambda f, D=D, mbx=mbx, ks=kq*4+j: f"{MF} {vr(D)}, {vr(f)}, {xfr(mbx, ks)}, {'0' if ks == 0 else vr(D)}") for j in range(4)])
            gr = dict(frags=fr, chains=chains)
            if cb == 0 and kq == 0: gr['sync'] = [Wait(vm='WH'), I("s_barrier")]; gr['pair'] = 8
            groups.append(gr)
    G = Gaps(768)
    starts, gend = gemm_groups(G, 0, groups, WF, pre)
    assert gend == 768
    for n, gr in enumerate(groups):
        if 'xwait' in gr: G.before(starts[n], Wait(vm=('X', gr['xwait'])))
    bar = {gr['pair']: gr['syncgap'] for gr in groups if 'pair' in gr}
    for k, grp in enumerate(kst):
        for x in grp: G.nv[int(os.environ.get('KS0', '320')) + int(os.environ.get('KSP', '7'))*k].append(x)
    G.pre[bar[8]].insert(0, Wait(vm='kst'))
    sig = L([f"s_lshl_b32 s{sGd}, s{sH}, 7", f"s_add_u32 s{sGd}, s{sGd}, {FL_KV}", f"s_lshl_b32 s{sVk}, s{sI}, 2", f"s_add_u32 s{sVk}, s{sVk}, s{sGd}",
             f"v_mov_b32 v{vKr}, 1", f"v_mov_b32 v{vVr}, 0"])
    for j, x in enumerate(sig): G.nv[bar[8] - 12 + j].append(x)
    sig = one_lane([T(f"buffer_store_dword v{vKr}, v{vVr}, {sr(S_WS)}, s{sVk} offen sc1", 'NOCOUNT')], sW, "K2_SIG", sT)
    sig += L([f"v_and_b32 v{vVr}, 7, v{vL}", f"v_lshlrev_b32 v{vVr}, 2, v{vVr}"])
    for x in sig: G.nv[bar[8]].append(x)
    pl = f"buffer_load_dword v{vKr}, v{vVr}, {sr(S_WS)}, s{sGd} offen sc1"
    GP = int(os.environ.get("GP", "600"))
    G.put(GP, T(pl, 'kvf'))
    for x in [Wait(vm='kvf')] + L([f"v_cmp_ne_u32 vcc, 1, v{vKr}", "s_cbranch_vccnz K2_KVSPIN_E", "K2_KVOK:"]) + (stamp(3) if os.environ.get("KVST") else []): G.before(GP + 40, x)
    if os.environ.get("KVST"):
        for x in stamp(2): G.before(GP + 39, x)
        for x in stamp(1): G.before(bar[8] - 1, x)
        for x in stamp(4): G.nv[bar[8]].append(x)
    kvstub = L(["K2_KVSPIN_E:"]) + spin("K2_KVSPIN", pl, vKr, 1, sCnt) + L(["s_branch K2_KVOK"])
    def dmaKV(which, t):
        sd, base = (S_K, 0) if which == 'K' else (S_V, 65536)
        return [I(f"s_lshl_b32 s{sT3}, s{sW}, 12"), I(f"s_add_u32 m0, s{sT3}, {base + t*16384}"), I(f"s_mov_b32 s{sT3}, {t*16384}")] + \
               [T(f"buffer_load_dwordx4 v{vDM}, {sr(sd)}, s{sT3} offen offset:{j*1024}{LDF} lds", ('KV', which, t)) for j in range(4)]
    trail = lambda l: l + [I("s_nop 0")] if False else l
    hP = {p: dmaP(p) for p in (2, 4, 5)}
    stream = [(0, own(2) + rest(1) + hP[2] + dmaP(3) + own(3) + rest(2) + hP[4] + rest(3)[:-3] + hP[5]),
              (bar[2], dmaP(6)), (bar[3], dmaP(7) + dmaH(range(8))),
              ]
    end = place_stream(G, stream, 4, start=4)
    print("K2 prologue dma stream (part 1) ends at gap", end)
    gb = 512 + 40
    G.before(gb, I("s_barrier"))
    end = place_stream(G, [(GP + 40, dmaKV('K', 0) + dmaKV('V', 0) + dmaKV('K', 1) + dmaKV('K', 2) + dmaKV('V', 1) + dmaKV('V', 2))], int(os.environ.get('KVSP', '4')), start=GP + 40)
    print("K2 prologue dma stream ends at gap", end)
    for j, x in enumerate(ctxoff + actoff): G.put(300 + (j//2), x)
    ins = []
    for js in range(2):
        for mbx in range(4):
            E, Od = qf(mbx, js), QO + (js*4 + mbx)*4
            ins += L([f"v_cvt_pk_bf16_f32 v{E}, v{E}, v{E+1}", f"v_cvt_pk_bf16_f32 v{E+1}, v{E+2}, v{E+3}",
                      f"v_cvt_pk_bf16_f32 v{E+2}, v{Od}, v{Od+1}", f"v_cvt_pk_bf16_f32 v{E+3}, v{Od+2}, v{Od+3}"])
    LOG2E = f2u(math.log2(math.e))
    mish = []
    for fbp in range(2):
        for mbx in range(4):
            D0, D1 = HA + ((2*fbp)*4 + mbx)*4, HA + ((2*fbp+1)*4 + mbx)*4
            regs = [D0+r for r in range(4)] + [D1+r for r in range(4)]
            tm_ = (0, 1, tA, tB)
            for q in (regs[:4], regs[4:]):
                for f in ("v_mul_f32 v{t}, %#x, v{a}" % LOG2E, "v_exp_f32 v{t}, v{t}", "v_add_f32 v{t}, 1.0, v{t}", "v_fma_f32 v{t}, v{t}, v{t}, 1.0",
                          "v_rcp_f32 v{t}, v{t}", "v_mul_f32 v{t}, v{t}, v{a}", "v_fma_f32 v{a}, v{t}, -2.0, v{a}"):
                    mish += L([f.format(t=t, a=a) for t, a in zip(tm_, q)])
            mish += L([f"v_cvt_pk_bf16_f32 v{D0}, v{D0}, v{D0+1}", f"v_cvt_pk_bf16_f32 v{D0+1}, v{D0+2}, v{D0+3}",
                       f"v_cvt_pk_bf16_f32 v{D0+2}, v{D1}, v{D1+1}", f"v_cvt_pk_bf16_f32 v{D0+3}, v{D1+2}, v{D1+3}",
                       f"buffer_store_dwordx4 {vr(D0)}, v{vL16}, {sr(S_WS)}, s{sAct+2*mbx+fbp} offen{STF2}"])
    spread(G, mish, 392 if PM[5][0] else 456, 740)
    spread(G, ins, 520, 640)
    Hset = {id(x) for x in mish + actoff + hP[2] + hP[4] + hP[5]}
    for gr in groups[:32]:
        if gr['isH']:
            Hset |= {id(x) for x in gr['made']}
            if gr.get('sync') and gr['pair'] != 0: Hset.add(id(gr['sync'][0]))
    def qcvt(js, mbx):
        E, Od = qf(mbx, js), QO + (js*4 + mbx)*4
        return L([f"v_cvt_pk_bf16_f32 v{E}, v{E}, v{E+1}", f"v_cvt_pk_bf16_f32 v{E+1}, v{E+2}, v{E+3}",
                  f"v_cvt_pk_bf16_f32 v{E+2}, v{Od}, v{Od+1}", f"v_cvt_pk_bf16_f32 v{E+3}, v{Od+2}, v{Od+3}"])
    spread(G, [x for mbx in (2, 3, 0, 1) for x in qcvt(2, mbx)], 648, 716)
    ONE, ZR, T4 = 8, 20, 12
    sMk = 62
    vXB = 5
    zero_o = lambda s: [I(f"v_mfma_f32_32x32x16_bf16 {ar(O[s]+16*k, 16)}, {vr(ZR)}, {vr(ZR)}, 0") for k in range(4)]
    su = L(["s_load_dwordx2 s[8:9], s[0:1], 40", "s_load_dwordx2 s[12:13], s[0:1], 72",
            f"s_bfe_u32 s26, s2, 0x20001", f"s_lshr_b32 s27, s2, 3", f"s_lshl_b32 s27, s27, 2", f"s_add_u32 s27, s27, s{sW}",
            f"s_mul_i32 s24, s26, 352", f"s_mul_i32 s25, s27, 3", "s_add_u32 s24, s24, s25", "s_lshl_b32 s24, s24, 10",
            f"s_lshl_b32 s26, s26, 20", f"s_lshl_b32 s27, s27, 13", f"s_add_u32 s26, s26, s27",
            "s_add_u32 s10, s26, 8192", "s_mov_b32 s11, 0x00020000", "s_add_u32 s14, s24, 3072", f"s_min_u32 s14, s14, {1376*1024}", "s_mov_b32 s15, 0x00020000"] +
           [f"v_mov_b32 v{ONE+k}, 0x3f803f80" for k in range(4)] +
           [f"v_cmp_le_i32 s[{sMk+2*r}:{sMk+2*r+1}], {r}, v{vLB}" for r in range(4)] +
           [f"s_lshl_b32 s{sKd}, s{sW}, 12", f"s_add_u32 s{sKd}, s{sKd}, {3*16384}", f"s_mov_b32 s{sVd}, s{sKd}", f"v_add_u32 v{vX}, 0x10000, v{vL16}",
            f"s_mov_b32 s{sKr}, 16384", f"s_mov_b32 s{sVr}, 0",
            f"s_lshl_b32 s27, s{sPar}, 13", f"s_lshr_b32 s25, s{sW}, 1", "s_lshl_b32 s25, s25, 16", "s_add_u32 s27, s27, s25", f"s_add_u32 s27, s27, {49152}",
            f"v_add_u32 v{vXB}, s27, v{vL16}"])
    for j, x in enumerate(su): G.nv[360 + 2*j].append(x)
    kread = lambda f: T(f"ds_read_b128 {ar(KF_+4*f)}, v{vL16} offset:{f*1024}", ('kf', f))
    qw = lambda js, nb: T(f"ds_write_b128 v{vXB}, {vr(Qreg['b'](nb, js))} offset:{(js*2+nb)*1024}", 'qw')
    for x in [Wait(vm=('KV', 'K', 0), lg=0), I("s_barrier")]: G.before(722, x)
    for f in range(16): G.put(724 + 2*f, kread(f))
    for k in range(6): G.put(725 + 4*k, qw(k//2, k % 2))
    post = qcvt(3, 2) + qcvt(3, 3) + [qw(3, 0), qw(3, 1)] + qcvt(3, 0) + qcvt(3, 1)
    sreg = lambda s, mb, nb: S[s] + (mb*2 + nb)*4
    def prepass_mfma(s, q):
        return [I(f"{MF} {vr(sreg(s,0,nb))}, {ar(KF_+4*js)}, {vr(Qreg[q](nb, js))}, {'0' if js == 0 else vr(sreg(s,0,nb))}") for nb in range(2) for js in range(4)]
    def xred(op, v, t):
        return L([f"v_mov_b32 v{t}, v{v}", f"v_permlane16_swap_b32 v{t}, v{v}", f"{op} v{v}, v{v}, v{t}",
                  f"v_mov_b32 v{t}, v{v}", f"v_permlane32_swap_b32 v{t}, v{v}", f"{op} v{v}, v{v}, v{t}"])
    def zipl(a, b):
        def grp(l):
            g = []
            for x in l:
                if x.kind == 'label' and g: g[-1].append(x)
                else: g.append([x])
            return g
        a, b = grp(a), grp(b)
        o = []
        for k in range(max(len(a), len(b))):
            for y in a[k:k+1] + b[k:k+1]: o += y
        return o
    def prepass_init(s, mask):
        o = []
        if mask:
            o += L([f"v_add_u32 v{tA}, s{sC[s]}, v{vLB}"])
            prs = [(nb, r) for nb in range(2) for r in range(4)]
            pr = lambda k: "vcc" if k % 2 == 0 else f"s[{sRet}:{sRet+1}]"
            for k in range(0, 8, 2):
                o += L([f"v_cmp_le_i32 {pr(j)}, {prs[j][1] - 16*prs[j][0]}, v{tA}" for j in (k, k+1)])
                o += L([f"v_cndmask_b32 v{sreg(s,0,prs[j][0])+prs[j][1]}, v{vNI}, v{sreg(s,0,prs[j][0])+prs[j][1]}, {pr(j)}" for j in (k, k+1)])
        ch = []
        for nb in range(2):
            b = sreg(s, 0, nb); m = MS[s] + nb
            ch.append(L([f"v_max3_f32 v{m}, v{b}, v{b+1}, v{b+2}", f"v_max_f32 v{m}, v{m}, v{b+3}"]) + xred("v_max_f32", m, (tA, tB)[nb]) +
                      L([f"v_max_f32 v{m}, {f2u(-1e30):#x}, v{m}"] + [f"v_sub_f32 v{NM[s]+4*nb+r}, 0, v{m}" for r in range(4)]))
        return o + zipl(ch[0], ch[1])
    misc = L([f"v_mov_b32 v{ZR+k}, 0" for k in range(4)] + [f"v_mov_b32 v{LS[s]+nb}, 0" for s in 'ab' for nb in range(2)] +
             [f"s_mov_b32 s{sGd}, {3*16384}", f"s_lshl_b32 s{sCnt}, s{sI}, 1", f"s_sub_u32 s{sCnt}, s{sCnt}, 1", f"v_xor_b32 v{vXB}, 0x2000, v{vXB}"])
    def under(mf, fl, per=2):
        o = []
        for k, x in enumerate(mf): o += [x] + fl[per*k:per*k+per]
        return o + fl[per*len(mf):]
    post += under(prepass_mfma('a', 'a'), misc)
    post += [Wait(lg='qw'), I("s_barrier")]
    qxr = [I(f"ds_read_b128 {vr(Qreg['x'](nb, js))}, v{vXB} offset:{(js*2+nb)*1024}") for js in range(4) for nb in range(2)]
    pb = prepass_mfma('b', 'b')
    post += under(pb[:4], qxr) + under(pb[4:], prepass_init('a', True))

    NG, HG = 136, 68
    def body(name, qa, ntile, vmw, hooks, kread_on=True):
        B = Gaps(NG); used = [0]*NG; cls = {}
        cost = lambda x: 0 if x.kind == 'label' else (2 if x.kind in ('trans', 'vmem') else 1)
        def put(g, x, c, where=None):
            x = I(x) if isinstance(x, str) else x
            g %= NG
            if where == 'pre': B.before(g, x); used[(g-1) % NG] += cost(x)
            elif where == 'nv': B.nv[g].append(x); used[g] += cost(x)
            else: B.put(g, x); used[g] += cost(x)
            cls[id(x)] = c; return x
        def free(g, x, c, lim=None):
            x = I(x) if isinstance(x, str) else x
            while used[g % NG] + cost(x) > 2: g += 1
            assert lim is None or g <= lim, (name, x, g, lim)
            put(g, x, c, 'nv'); return g
        for s, g0, q in (('a', 0, qa), ('b', HG, 'b')):
            o = 'b' if s == 'a' else 'a'
            seq = []
            for mb in range(4):
                for nb in range(2):
                    D = vr(sreg(s, mb, nb))
                    seq += [(f"{MF} {D}, {ar(KF_+4*(mb*4+js))}, {vr(Qreg[q](nb, js))}, {vr(NM[s]+4*nb) if js == 0 else D}", 'qk'+s) for js in range(4)]
            ones = [(f"{MF} {vr(T4+4*nb)}, {vr(ONE)}, {vr(P[o]+(nb*2+ks)*4)}, {'0' if ks == 0 else vr(T4+4*nb)}", 'sm'+o) for nb in range(2) for ks in range(2)]
            seq[24:24] = ones
            for db in range(8):
                for nb in range(2):
                    D = ar(O[o] + (db*2+nb)*4)
                    seq += [(f"{MF} {D}, {ar(VF_+4*(db*2+ks))}, {vr(P[o]+(nb*2+ks)*4)}, {D}", 'pv'+o) for ks in range(2)]
            for k, (t, c) in enumerate(seq):
                B.mf[g0+k] = I(t); cls[id(B.mf[g0+k])] = c
            E0 = g0 + 26
            for e in range(32):
                mb, nb, r = e//8, (e//4) % 2, e % 4
                t = ET + (e % 4)
                put(E0 + 2*e, f"v_exp_f32 v{t}, v{sreg(s, mb, nb) + r}", 'sm'+s)
                if r % 2 == 1:
                    put(E0 + 2*e + 1, f"v_cvt_pk_bf16_f32 v{P[s] + (nb*2 + mb//2)*4 + (mb % 2)*2 + r//2}, v{t-1}, v{t}", 'sm'+s)
            if s not in hooks and s == 'a' and ntile == 1:
                for gh in (E0 - 1, E0 + 31): used[gh % NG] += 2
            if s in hooks:
                for hk, gh, lim in ((0, E0 - 1, 0), (1, E0 + 31, 32)):
                    lab = f"{name}_mk{s}{hk}"
                    put(gh, f"s_cmp_le_i32 s{sC[s]}, {lim}", 'sm'+s, 'nv'); put(gh, f"s_cbranch_scc1 {lab}", 'sm'+s, 'nv'); put(gh, f"{lab}_r:", 'sm'+s, 'nv')
            gc = g0 + HG + 31
            lab = f"{name}_rd{s}"
            put(gc, f"v_max_f32 v1, v{T4}, v{T4+4}", 'sm'+s); put(gc, f"v_cmp_lt_f32 vcc, s{sThr}, v1", 'sm'+s)
            put(gc+2, f"s_cbranch_vccnz {lab}", 'sm'+s, 'nv'); put(gc+2, f"{lab}_r:", 'sm'+s, 'nv')
            put(gc+4, f"v_add_f32 v{LS[s]}, v{LS[s]}, v{T4}", 'sm'+s); put(gc+4, f"v_add_f32 v{LS[s]+1}, v{LS[s]+1}, v{T4+4}", 'sm'+s)
        put(0, "s_waitcnt lgkmcnt(0)", 'mem', 'pre')
        put(4, f"s_waitcnt vmcnt({vmw})", 'mem', 'pre'); put(4, "s_barrier", 'mem', 'pre')
        free(5, f"v_add_u32 v{vVr}, s{sVr}, v{vX}", 'mem', 8)
        if kread_on: free(5, f"v_add_u32 v{vKr}, s{sKr}, v{vL16}", 'mem', 8)
        st = []
        wpf = [f"buffer_load_dword v5, v{vL16}, s[8:11], s26 offen", "s_add_u32 s26, s26, 1024"]
        if ntile == 1:
            st += [f"s_mov_b32 m0, s{sKd}"] + [f"buffer_load_dwordx4 v{vDM}, {sr(S_K)}, s{sGd} offen offset:{j*1024}{LDF} lds" for j in range(4)]
            st += wpf + [f"s_add_u32 s{sKd}, s{sKd}, 16384", f"s_and_b32 s{sKd}, s{sKd}, 0xffff", f"s_add_u32 m0, s{sVd}, 0x10000"]
            st += [f"buffer_load_dwordx4 v{vDM}, {sr(S_V)}, s{sGd} offen offset:{j*1024}{LDF} lds" for j in range(4)]
        elif ntile == 2:
            st += [f"s_add_u32 s{sT3}, s{sGd}, 16384", f"s_mov_b32 m0, s{sKd}"] + [f"buffer_load_dwordx4 v{vDM}, {sr(S_K)}, s{sGd} offen offset:{j*1024}{LDF} lds" for j in range(4)]
            st += [f"s_add_u32 m0, s{sKd}, 16384"] + [f"buffer_load_dwordx4 v{vDM}, {sr(S_K)}, s{sT3} offen offset:{j*1024}{LDF} lds" for j in range(4)]
            st += wpf + [f"s_xor_b32 s{sKd}, s{sKd}, 0x8000", f"s_add_u32 m0, s{sVd}, 0x10000"] + [f"buffer_load_dwordx4 v{vDM}, {sr(S_V)}, s{sGd} offen offset:{j*1024}{LDF} lds" for j in range(4)]
            st += [f"s_add_u32 m0, s{sVd}, 0x14000"] + [f"buffer_load_dwordx4 v{vDM}, {sr(S_V)}, s{sT3} offen offset:{j*1024}{LDF} lds" for j in range(4)]
        if ntile:
            st += [f"s_add_u32 s{sVd}, s{sVd}, {ntile*16384}", f"s_sub_u32 s{sT}, s{sVd}, 98304", f"s_min_u32 s{sVd}, s{sVd}, s{sT}", f"s_add_u32 s{sGd}, s{sGd}, {ntile*16384}"]
            g = 8; nd = 0; sp = 116/(4*2*ntile)
            for t in st:
                x = I(t)
                if x.kind == 'vmem' and x.op == 'buffer_load_dword': g = free(g + 1, x, 'mem', NG-1)
                elif x.kind == 'vmem':
                    g = free(max(g + 1, int(9 + nd*sp)), x, 'mem', NG-1); nd += 1
                else: g = free(g, x, 'mem', NG-1)
            step = ntile*16384
            g = 9
            ku = [f"s_add_u32 s{sKr}, s{sKr}, 16384", f"s_and_b32 s{sKr}, s{sKr}, 0xffff"] if ntile == 1 else [f"s_xor_b32 s{sKr}, s{sKr}, 0x8000"]
            for t in ku + [f"s_add_u32 s{sVr}, s{sVr}, {step}", f"s_sub_u32 s{sT2}, s{sVr}, 98304", f"s_min_u32 s{sVr}, s{sVr}, s{sT2}"]:
                g = free(g, t, 'mem', NG-1)
        g = 43
        for f in range(16):
            g = free(max(g, 40 + 2*f), f"ds_read_b128 {ar(VF_+4*f)}, v{vVr} offset:{f*1024}", 'mem', 96)
        vlast = g
        nk_before = 0
        if kread_on:
            for f in range(16):
                lastuse = HG + 8*(f//4) + 4 + f % 4 + (4 if 8*(f//4) + 4 + f % 4 >= 24 else 0)
                g = free(max(g, lastuse + 1), f"ds_read_b128 {ar(KF_+4*f)}, v{vKr} offset:{f*1024}", 'mem', 131)
                if g < 104: nk_before += 1
        put(104, f"s_waitcnt lgkmcnt({nk_before})", 'mem', 'pre')
        if name == "Sf":
            for t in [f"v_lshlrev_b32 v{vKr}, 2, v{vDM}", f"v_mul_u32_u24 v5, 3, v{vL16}", f"v_sub_u32 v{vKr}, v{vKr}, v5"]: free(9, t, 'mem', 30)
            B.wr_left = []
            for f in range(16):
                x = I(f"ds_write_b128 v{vKr}, {ar(O['a']+4*f)} offset:{f*1024}")
                g = 104 + 2*f + 5
                while g < NG and used[g] + 1 > 2: g += 1
                if g < NG: put(g, x, 'mem', 'nv')
                else: B.wr_left.append(x)
            ea = K3['early']
            first = ea[:9] + ea[-6:]; rest_ = ea[9:-6]
            g = 5
            for x in first: g = free(g, x, 'mem', NG-1)
            g = max(g, 41); K3['spill'] = []
            for x in rest_:
                while g < NG and used[g] + cost(x) > 2: g += 1
                if g < NG: put(g, x, 'mem', 'nv')
                else: K3['spill'].append(x)
        over = [(g, u) for g, u in enumerate(used) if u > 2]
        print(f"  body {name}: slots used {sum(used)}/{2*NG}, overfull gaps {over}")
        return B, cls
    def mkstubs(name):
        o = []
        for s in 'ab':
            for hk in range(2):
                lab = f"{name}_mk{s}{hk}"; lo, hi = 2*hk, 2*hk+1
                o += L([f"{lab}:", f"s_cmp_lg_u32 s{sC[s]}, {32*hk}", f"s_cbranch_scc1 {lab}_all"])
                o += L([f"v_cndmask_b32 v{sreg(s,lo,0)+r}, v{vNI}, v{sreg(s,lo,0)+r}, s[{sMk+2*r}:{sMk+2*r+1}]" for r in range(4)])
                o += L([f"v_mov_b32 v{sreg(s,hi,0)+r}, v{vNI}" for r in range(4)])
                o += L([f"v_cndmask_b32 v{sreg(s,hi,1)+r}, v{vNI}, v{sreg(s,hi,1)+r}, s[{sMk+2*r}:{sMk+2*r+1}]" for r in range(4)])
                o += L([f"s_branch {lab}_r", f"{lab}_all:"] + [f"v_mov_b32 v{sreg(s,lo,0)+k}, v{vNI}" for k in range(16)] + [f"s_branch {lab}_r"])
            lab = f"{name}_rd{s}"
            o += L([f"{lab}:", f"s_call_b64 s[{sRet}:{sRet+1}], K2_REDO_{s}", f"s_branch {lab}_r"])
        return o
    def redo(s):
        o = L([f"K2_REDO_{s}:", "s_nop 7"])
        for nb in range(2):
            vals = [sreg(s, mb, nb) + r for mb in range(4) for r in range(4)]
            ts = T4 + 4*nb
            o += L([f"v_max3_f32 v{tA}, v{vals[0]}, v{vals[1]}, v{vals[2]}"] + [f"v_max3_f32 v{tA}, v{tA}, v{vals[k]}, v{vals[k+1]}" for k in range(3, 15, 2)]
                   + [f"v_max_f32 v{tA}, v{tA}, v{vals[15]}"]) + xred("v_max_f32", tA, tB)
            o += L([f"v_max_f32 v{tA}, 0, v{tA}", f"v_add_f32 v{MS[s]+nb}, v{MS[s]+nb}, v{tA}", f"v_sub_f32 v{tB}, 0, v{tA}", f"v_exp_f32 v{tB}, v{tB}"])
            o += L([f"v_sub_f32 v{NM[s]+4*nb+r}, 0, v{MS[s]+nb}" for r in range(4)])
            o += L([f"v_mul_f32 v{LS[s]+nb}, v{LS[s]+nb}, v{tB}"])
            o += L([f"v_sub_f32 v{v}, v{v}, v{tA}" for v in vals])
            for db in range(8):
                for r in range(4):
                    a = O[s] + (db*2+nb)*4 + r
                    o += L([f"v_accvgpr_read_b32 v0, a{a}", f"v_mul_f32 v0, v0, v{tB}", f"v_accvgpr_write_b32 a{a}, v0"])
            o += L([f"v_mov_b32 v{ts}, 0"])
            for mb in range(4):
                for r in (0, 2):
                    b = sreg(s, mb, nb) + r
                    pd = P[s] + (nb*2 + mb//2)*4 + (mb % 2)*2 + r//2
                    o += L([f"v_exp_f32 v{tA}, v{b}", f"v_exp_f32 v{tB}, v{b+1}", f"v_add_f32 v{ts}, v{ts}, v{tA}",
                            f"v_add_f32 v{ts}, v{ts}, v{tB}", f"v_cvt_pk_bf16_f32 v{pd}, v{tA}, v{tB}"])
            o += xred("v_add_f32", ts, tB)
        o += L(["s_nop 1", f"s_setpc_b64 s[{sRet}:{sRet+1}]"])
        return o
    def lin(Bc, lo, hi, keep=None, ren=None):
        B, cls = Bc
        out = []
        XF = os.environ.get("XF", "").split(",")
        for x in B.linear(lo, hi):
            if keep is None and B in XB_:
                if 'dma' in XF and x.kind == 'vmem': continue
                if 'bar' in XF and x.op == 's_barrier': continue
                if 'ds' in XF and x.kind == 'ds': continue
                if 'salu' in XF and x.kind == 'salu' and x.op not in ('s_waitcnt', 's_barrier'): continue
                if 'wait' in XF and x.op == 's_waitcnt': continue
                if 'chk' in XF and x.kind == 'branch': continue
                if 'cvt' in XF and x.op.startswith('v_cvt'): continue
            if keep is None or cls.get(id(x), 'mem') in keep:
                out.append(I(x.text.replace(*ren)) if ren else x)
        return out
    D = body("D", 'a', 1, 5, ''); Dm = body("Dm", 'a', 1, 5, 'a'); S1 = body("S1", 'a', 2, 5, 'a')
    SS = body("S", 'x', 2, 9, ''); Sf = body("Sf", 'x', 0, 0, 'ab', kread_on=False)
    XB_ = [D[0], SS[0]]
    pream = lin(Dm, 0, HG, ('qka', 'sma', 'mem'), ("Dm_", "PR_"))
    ib = prepass_init('b', False); zs = zero_o('a') + zero_o('b')
    ib += L([f"buffer_load_dword v6, v{vL16}, s[12:15], s24 offen offset:{k*1024}" for k in range(3)])
    p2 = []; nm = 0
    for x in pream:
        p2.append(x)
        if x.kind == 'mfma':
            nm += 1
            if nm >= 5 and ib: p2 += ib[:2]; ib = ib[2:]
        if nm == 32 and x.op == 'v_cvt_pk_bf16_f32' and zs: p2.append(zs.pop(0))
    assert not ib and not zs
    pream = p2
    for n, x in enumerate(pream):
        if x.text.startswith("s_waitcnt vmcnt"): pream[n] = Wait(vm=[('KV', 'K', 1), ('KV', 'V', 0)], lg=0)
    if os.environ.get("P2ST"):
        for k, g in enumerate(eval(os.environ["P2ST"])):
            for x in stamp(1+k if k < 3 else 5+k): G.before(g, x)
        DIAG = True
    jump = L([f"s_lshl_b32 s{sC['a']}, s{sW}, 5", f"s_cmp_eq_u32 s{sI}, 0", "s_cbranch_scc1 K2_DM_MID", "s_branch K2_D_MID"])
    import copy
    vm, lg = Tracker(63), Tracker(15)
    h0 = resolve_waits(pre + stamp(4) + L([f"s_and_b32 s{sT}, s{sH}, 3", f"s_cmp_eq_u32 s{sT}, 1", "s_cbranch_scc1 K2_NOMLP"]), vm, lg)
    vmB, lgB = copy.deepcopy(vm), copy.deepcopy(lg)
    rest_ = G.linear(0, 512) + stamp(5) + G.linear(512, 768) + stamp(6) + post + stamp(7) + pream + jump
    head, n1 = fix_hazards(h0 + resolve_waits(rest_, vm, lg))
    ren = lambda x: x if isinstance(x, Wait) else I(x.text.replace("PR_", "PB_").replace("K2_SIG", "K2_SIGB").replace("K2_KV", "K2_KVB"), x.tag)
    hB, nB = fix_hazards(L(["K2_NOMLP:"]) + resolve_waits([ren(x) for x in rest_ if id(x) not in Hset], vmB, lgB), pre=h0[-20:])
    kvstub += [ren(x) for x in kvstub]
    dl = L(["K2_D:"]) + lin(D, 0, HG) + L(["K2_D_MID:"]) + lin(D, HG, NG) + L([f"s_sub_u32 s{sCnt}, s{sCnt}, 1", "s_cbranch_scc0 K2_D"])
    dl, n2 = fix_hazards(dl, pre=dl[-20:])
    assert os.environ.get('XF') or fix_hazards(lin(D, HG, HG+12), pre=head[-20:])[1] == 0 and fix_hazards(lin(Dm, HG, HG+12), pre=head[-20:])[1] == 0
    mid = lin(Dm, 0, HG) + L(["K2_DM_MID:"]) + lin(Dm, HG, NG)
    mid += L([f"s_lshl_b32 s{sT}, s{sPar}, 14", f"s_add_u32 s{sKr}, s{sKr}, s{sT}", f"s_and_b32 s{sKr}, s{sKr}, 0xffff", f"s_sub_u32 s{sC['a']}, s{sC['a']}, 64"])
    mid += (stamp(8) if not DIAG else []) + lin(S1, 0, NG) + (stamp(9) if not DIAG else [])
    def finalize(s, so, zero, wts=None):
        o = []
        for j in range(4):
            for nb in range(2):
                t = 152 if (j*2+nb) % 2 == 0 else 156
                t8 = 136 + ((j*2+nb) % 2)*8
                o += L([f"v_accvgpr_read_b32 v{t8+hh*4+r}, a{O[s] + ((2*j+hh)*2+nb)*4 + r}" for hh in range(2) for r in range(4)])
                sel = "op_sel_hi:[1,0]" if nb == 0 else "op_sel:[0,1] op_sel_hi:[1,1]"
                for k in range(0, 8, 2):
                    o += L([f"v_pk_mul_f32 {vr(t8+k,2)}, {vr(t8+k,2)}, {vr(TS[s],2)} {sel}"])
                    if wts is not None:
                        x = wts + ((2*j + k//4)*2+nb)*4 + k % 4
                        sel3 = "op_sel_hi:[1,0,1]" if nb == 0 else "op_sel:[0,1,0] op_sel_hi:[1,1,1]"
                        o += L([f"v_pk_fma_f32 {vr(t8+k,2)}, {vr(x,2)}, {vr(TS['a'],2)}, {vr(t8+k,2)} {sel3}"])
                o += L([f"v_cvt_pk_bf16_f32 v{t+k}, v{t8+2*k}, v{t8+2*k+1}" for k in range(4)])
                o += L([f"buffer_store_dwordx4 {vr(t)}, v{vL16}, {sr(S_WS)}, s{so+nb} offen offset:{j*1024}{STF2}"])
            if zero: o += [zero_o(s)[j]]
        return o
    t0 = L([f"s_lshl_b32 s{sT}, s{sI}, 7", f"s_sub_u32 s{sC['a']}, s{sC['b']}, s{sT}", f"s_lshl_b32 s{sT}, s{sPar}, 7", f"s_sub_u32 s{sC['a']}, s{sC['a']}, s{sT}",
            f"s_sub_u32 s{sC['a']}, s{sC['a']}, 96"] +
           [f"v_rcp_f32 v{TS['a']+nb}, v{LS['a']+nb}" for nb in range(2)] + [f"v_mov_b32 v{LS['a']+nb}, 0" for nb in range(2)] +
           [f"v_mov_b32 v{T4+k}, -1" for k in range(4)] + ["s_lshl_b32 s25, s2, 15", f"s_lshl_b32 s27, s{sW}, 13", "s_add_u32 s25, s25, s27"])
    tr = L(["s_waitcnt lgkmcnt(0)"]) + under(prepass_mfma('a', 'x'), t0)
    side = L([f"s_add_u32 s25, s25, {WS_EX + 2048}", "s_add_u32 s27, s25, 4096",
              f"s_lshl_b32 s{sT}, s{sPar}, 14", f"s_add_u32 s{sVr}, s{sVr}, s{sT}", f"s_add_u32 s{sVr}, s{sVr}, {98304-16384}",
              f"s_sub_u32 s{sT2}, s{sVr}, 98304", f"s_min_u32 s{sVr}, s{sVr}, s{sT2}", f"s_lshl_b32 s{sCnt}, s{sI}, 1", f"s_sub_u32 s{sCnt}, 13, s{sCnt}",
              f"s_lshl_b32 s{sT}, s{sH}, 2", f"s_add_u32 s{sT}, s{sT}, {FL_AC}", f"s_lshl_b32 s{sT2}, s{sI}, 7", f"s_sub_u32 s{sT3}, {15*128}, s{sT2}",
              f"v_mov_b32 v6, s{sT2}", f"v_writelane_b32 v6, s{sT3}, 1", "v_mov_b32 v7, 1",
              f"s_cmp_lg_u32 s{sW}, 0\n    s_cbranch_scc1 K2_SIGA\n    s_mov_b64 exec, 3\n    buffer_store_dword v7, v6, {sr(S_WS)}, s{sT} offen sc1\n    s_mov_b64 exec, -1\nK2_SIGA:"])
    ob = L([f"buffer_store_dwordx4 {vr(T4)}, v{vL16}, {sr(S_WS)}, s{25 if k < 4 else 27} offen offset:{(k % 4)*1024} sc1" for k in range(6)])
    fa = finalize('a', sXN, True)
    ini = prepass_init('a', True)
    k0 = len(ini)
    tr += zipl(ini, fa[:k0]) + side[:2]
    fa = fa[k0:]; side = side[2:]
    for k, x in enumerate(fa):
        tr.append(x)
        if k % 20 == 8 and ob: tr.append(ob.pop(0))
    tr += ob + side
    tr += L([f"s_lshl_b32 s{sC['b']}, s{sW}, 5", f"s_lshl_b32 s{sT}, s{sPar}, 6", f"s_sub_u32 s{sC['b']}, s{sC['b']}, s{sT}",
             f"s_add_u32 s{sC['a']}, s{sC['b']}, 32", f"s_sub_u32 s{sC['a']}, s{sC['a']}, s{sT}"])
    mid += tr + (stamp(10) if not DIAG else []) + L([f"s_cmp_eq_u32 s{sI}, 7", "s_cbranch_scc1 K2_SF"])
    mid, n3 = fix_hazards(mid, pre=dl[-20:])
    sl = L(["K2_S:"]) + lin(SS, 0, NG) + L([f"s_sub_u32 s{sCnt}, s{sCnt}, 1", "s_cbranch_scc0 K2_S"])
    sl, n4 = fix_hazards(sl, pre=sl[-20:])
    assert os.environ.get('XF') or fix_hazards(sl[:24], pre=mid[-20:])[1] == 0
    tail = L(["K2_SF:"]) + code_prefetch("K3_BEGIN" if FUSED else "outproj_kernel", "K2_PC2", False, tA, tA, sRet, sT3, vtid=31) + lin(Sf, 0, NG)
    assert fix_hazards(tail[:24], pre=mid[-20:])[1] == 0
    tb = lin(SS, 0, HG, ('smb', 'pvb'), ("S_", "TL_"))
    kq = [n for n, x in enumerate(tb) if x.kind == 'mfma' and x.wr[0].startswith('a')][0]
    tail += L(["s_barrier",
               f"v_xor_b32 v{vVr}, 0x4000, v{vKr}", f"v_add_u32 v{vDM}, 0x10000, v{vDM}",
               f"v_mov_b32 v{NM['a']}, v{MS['a']}", f"v_mov_b32 v{NM['a']+1}, v{MS['a']+1}", f"v_mov_b32 v{NM['a']+2}, v{LS['a']}", f"v_mov_b32 v{NM['a']+3}, v{LS['a']+1}",
               f"ds_write_b128 v{vDM}, {vr(NM['a'])}"])
    wr = Sf[0].wr_left
    tail += zipl(zipl(tb[:kq], wr), K3['spill'] + K3['acheck'] + K3['loads'])
    XO = 64
    pv = tb[kq:]
    n0 = K3['need0']
    tail += zipl(pv[:8], zipl(n0[0:16:2], n0[1:16:2])[:0] + n0[:8]) + L(["s_waitcnt lgkmcnt(0)", "s_barrier", f"v_xor_b32 v{vDM}, 0x1000, v{vDM}", f"ds_read_b128 {vr(NM['a'])}, v{vDM}"])
    rd = L([f"ds_read_b128 {vr(XO+4*f)}, v{vVr} offset:{f*1024}" for f in range(16)])
    wt = L(["s_waitcnt lgkmcnt(15)"])
    ch = []
    for nb in range(2):
        mx, lx, mb_, lb, t = NM['a']+nb, NM['a']+2+nb, MS['b']+nb, LS['b']+nb, (tA, tB)[nb]
        ch.append(L([f"v_max_f32 v{t}, v{mx}, v{mb_}", f"v_sub_f32 v{mx}, v{mx}, v{t}", f"v_sub_f32 v{mb_}, v{mb_}, v{t}",
                     f"v_exp_f32 v{mx}, v{mx}", f"v_exp_f32 v{mb_}, v{mb_}", f"v_mul_f32 v{lb}, v{lb}, v{mb_}", f"v_fmac_f32 v{lb}, v{lx}, v{mx}",
                     f"v_rcp_f32 v{lb}, v{lb}", f"v_mul_f32 v{TS['b']+nb}, v{mb_}, v{lb}", f"v_mul_f32 v{TS['a']+nb}, v{mx}, v{lb}"]))
    fl = rd + wt + zipl(ch[0], ch[1]) + n0[8:]
    pvr = pv[8:]
    for k, x in enumerate(pvr): tail += [x] + fl[2*k:2*k+2]
    tail += fl[2*len(pvr):]
    fb = finalize('b', sXN+2, False, wts=XO)
    for x in fb:
        if x.kind == 'vmem': x.tag = 'cst'
    tail += L(["s_waitcnt lgkmcnt(0)"]) + fb
    tail += prof_end(1, S_WS, sW, 4, vtmp=32, drain=not FUSED)
    tail, n5 = fix_hazards(resolve_waits(tail + K3['main']), pre=sl[-20:])
    alltext = "\n".join(x.text for x in head + hB + dl + mid + sl + tail)
    stubs = []
    for nm in ("PR", "PB", "D", "Dm", "S1", "S", "Sf", "TL"):
        cur = []
        for x in mkstubs(nm) + L(["SENTINEL:"]):
            if x.kind == 'label' and not x.text.endswith("_all:"):
                if cur and ("\n" + cur[0].text[:-1] + "_r:") in alltext: stubs += fix_hazards(cur)[0]
                cur = []
            cur.append(x)
    stubs += fix_hazards(redo('a'))[0] + fix_hazards(redo('b'))[0]
    stubs += kvstub + lnstub + K3['stubs']
    seq = head + dl + mid + sl + tail + hB + stubs
    print("total instrs", len(seq), "nops head/D/mid/S/tail", n1, n2, n3, n4, n5)
    return seq
```

```python
from gen import *

def k3_parts():
    S_WS, S_WO, S_W2, S_X, S_OUT = 4, 16, 20, 8, 12
    sW, sTm, sTn, sKq = 28, 36, 37, 38
    sT, sT2, sT3, sA, sB, sM = 39, 40, 41, 42, 43, 44
    sXo, sEx, sFl, sCx, sOw, sSr = 48, 49, 50, 51, 52, 52
    NS, NA = 43, 11
    SLOT = [80, 96, 112, 128, 144, 0, 16, 32, 48, 64]; NB = len(SLOT)
    slot = lambda s: SLOT[s % NB]*1024
    vL, vL16 = 2, 3
    vKA, vKW, vA1, vW0, vW1, vPo, vPd = 192, 193, 194, 195, 196, 197, 198
    a_, b_, c_, d_ = 199, 200, 201, 202
    vAr = [8, 208, 216]; vT = [12, 212, 220]
    tA, tB, vXo, vXv = 16, 17, 18, 20
    WF = 32; AF = 64; ACC = 96; RX = 160
    P = {}
    e = [f"s_bfe_u32 s{sKq}, s2, 0x20001", f"s_and_b32 s{sT}, s2, 1", f"s_lshl_b32 s{sT}, s{sT}, 3", f"s_bfe_u32 s{sT2}, s2, 0x30003",
         f"s_add_u32 s{sTm}, s{sT}, s{sT2}", f"s_lshr_b32 s{sTn}, s2, 6",
         f"s_lshl_b32 s{sT3}, s{sTn}, 1", f"s_add_u32 s{sT2}, s{sT2}, s{sT3}", f"s_and_b32 s{sT2}, s{sT2}, 7",
         f"v_and_b32 v{vPo}, 31, v{vL}", f"v_lshlrev_b32 v{vPo}, 2, v{vPo}", f"s_lshl_b32 s{sCx}, s{sTm}, 7", f"s_add_u32 s{sOw}, s{sCx}, {FL_AC}"]
    apoll = f"buffer_load_dword v{vPd}, v{vPo}, {sr(S_WS)}, s{sOw} offen sc1"
    e += [T(apoll, 'ap')]
    e += [f"v_add_u32 v{a_}, s{sT2}, v{vL}", f"v_subrev_u32 v{b_}, 11, v{a_}", f"v_min_u32 v{c_}, v{a_}, v{b_}",
          f"s_mul_i32 s{sT}, s{sKq}, 11", f"v_add_u32 v{c_}, s{sT}, v{c_}",
          f"v_and_b32 v{b_}, 7, v{b_}", f"v_subrev_u32 v{d_}, 11, v{vL}", f"v_and_b32 v{d_}, 24, v{d_}", f"s_and_b32 s{sT}, s2, 1", f"s_lshl_b32 s{sT}, s{sT}, 4", f"v_xor_b32 v{d_}, s{sT}, v{d_}", f"v_add_u32 v{b_}, v{b_}, v{d_}",
          f"s_lshl_b32 s{sT}, s{sKq}, 5", f"v_add_u32 v{b_}, s{sT}, v{b_}",
          f"v_cmp_gt_u32 s[54:55], 11, v{vL}", f"v_min_u32 v{a_}, 42, v{c_}", f"v_add_u32 v{a_}, 0x80, v{a_}",
          f"v_cndmask_b32 v{vKW}, v{b_}, v{c_}, s[54:55]", f"v_cndmask_b32 v{vKA}, v{b_}, v{a_}, s[54:55]",
          f"v_lshlrev_b32 v{vKW}, 15, v{vKW}", f"v_lshlrev_b32 v{vKA}, 10, v{vKA}",
          f"s_lshl_b32 s{sT}, s{sTm}, 3", f"s_lshl_b32 s{sT3}, s{sW}, 1", f"s_add_u32 s{sT}, s{sT}, s{sT3}", f"s_mul_i32 s{sT}, s{sT}, {CA_RB}",
          f"s_add_u32 s{sT}, s{sT}, {WS_CA}", f"v_add_u32 v{vKA}, s{sT}, v{vKA}",
          f"v_add_u32 v{vA1}, {CA_RB-1024}, v{vL16}", f"s_lshl_b32 s{sM}, s{sW}, 12"]
    e += [f"v_bfe_u32 v{a_}, v{vL}, 4, 2", f"v_lshlrev_b32 v{a_}, 1, v{a_}", f"v_and_b32 v{b_}, 7, v{vL}", f"v_xor_b32 v{a_}, v{a_}, v{b_}",
          f"v_lshlrev_b32 v{a_}, 4, v{a_}", f"v_lshrrev_b32 v{b_}, 3, v{vL}", f"v_lshl_add_u32 v{vW1}, v{b_}, 10, v{a_}",
          f"s_lshl_b32 s{sT}, s{sTn}, 8", f"s_lshl_b32 s{sT3}, s{sW}, 13", f"s_add_u32 s{sT}, s{sT}, s{sT3}", f"v_add_u32 v{vW1}, s{sT}, v{vW1}",
          f"v_add_u32 v{vW0}, 1024, v{vW1}", f"v_add_u32 v{vW1}, 128, v{vW1}",
          f"s_sub_u32 s{S_WO}, s8, 3072\n    s_subb_u32 s{S_WO+1}, s9, 0", f"s_mov_b32 s{S_WO+2}, {0x400000+3072}", f"s_mov_b32 s{S_WO+3}, 0x00020000",
          f"s_sub_u32 s{S_W2}, s12, 3072\n    s_subb_u32 s{S_W2+1}, s13, 0", f"s_mov_b32 s{S_W2+2}, {1376*1024+3072}", f"s_mov_b32 s{S_W2+3}, 0x00020000"]
    P['early'] = L(e)
    P['acheck'] = [Wait(vm='ap')] + L([f"v_cmp_ne_u32 vcc, 1, v{vPd}", "s_cbranch_vccnz K3_ASPIN_E", "K3_AOK:"])
    stubs = L(["K3_ASPIN_E:"]) + spin("K3_ASPIN", apoll, vPd, 1, sA) + L(["s_branch K3_AOK"])
    def loads(s):
        sd = S_W2 if s < NA else S_WO
        return L([f"v_readlane_b32 s{sA}, v{vKA}, {s}", f"v_readlane_b32 s{sB}, v{vKW}, {s}", f"s_add_u32 m0, s{sM}, {slot(s)}"]) + \
          [T(f"buffer_load_dwordx4 v{vL16}, {sr(S_WS)}, s{sA} offen sc1 lds", ('L', s)),
           T(f"buffer_load_dwordx4 v{vA1}, {sr(S_WS)}, s{sA} offen offset:1024 sc1 lds", ('L', s)),
           T(f"buffer_load_dwordx4 v{vW0}, {sr(sd)}, s{sB} offen offset:2048 lds", ('L', s)),
           T(f"buffer_load_dwordx4 v{vW1}, {sr(sd)}, s{sB} offen offset:3072 lds", ('L', s))]
    NE = int(os.environ.get('NEARLY', '3'))
    P['loads'] = [x for s in range(NE) for x in loads(s)]
    l = ["s_load_dwordx2 s[56:57], s[0:1], 0", "s_load_dwordx2 s[62:63], s[0:1], 80",
         f"v_lshrrev_b32 v{tA}, 5, v{vL}", f"v_lshlrev_b32 v{tA}, 12, v{tA}", f"v_bfe_u32 v{tB}, v{vL}, 2, 3", f"v_lshl_add_u32 v{tA}, v{tB}, 7, v{tA}",
         f"v_and_b32 v{tB}, 3, v{vL}", f"v_lshl_add_u32 v{tA}, v{tB}, 3, v{tA}", f"v_bfe_u32 v{tB}, v{vL}, 3, 2", f"v_lshl_add_u32 v{tA}, v{tB}, 5, v{tA}",
         f"s_and_b32 s{sT}, s{sW}, 1", f"s_lshl_b32 s{sT}, s{sT}, 10", f"s_add_u32 s{sT}, s{sT}, 2048", f"v_add_u32 v{vT[0]}, s{sT}, v{tA}"] + \
        [f"v_xor_b32 v{vT[0]+c}, {c*32}, v{vT[0]}" for c in range(1, 4)]
    l += [f"s_lshl_b32 s{sT}, s{sKq}, 2", f"s_lshr_b32 s{sT}, 0x54105410, s{sT}", f"s_and_b32 s{sT3}, s{sW}, 2", f"s_lshl_b32 s{sT3}, s{sT3}, 12", f"v_add_u32 v{tA}, s{sT3}, v{vL16}"]
    for r in range(4):
        l += [f"s_bfe_u32 s{sT3}, s{sT}, {0x40000 + 4*r:#x}", f"v_lshl_add_u32 v{vAr[0]+r}, s{sT3}, 10, v{tA}"]
    for k in (1, 2):
        l += [f"v_add_u32 v{vAr[k]+r}, {k*0x10000}, v{vAr[0]+r}" for r in range(4)] + [f"v_add_u32 v{vT[k]+c}, {k*0x10000}, v{vT[0]+c}" for c in range(4)]
    P['need0'] = L(l)
    l = [f"v_and_b32 v{tA}, 15, v{vL}", f"v_lshrrev_b32 v{tB}, 4, v{vL}", f"v_lshlrev_b32 v{vXo}, 10, v{tA}", f"v_lshl_add_u32 v{vXo}, v{tB}, 3, v{vXo}",
          f"s_lshl_b32 s{sXo}, s{sTm}, 17", f"s_lshr_b32 s{sT}, s{sW}, 1", f"s_lshl_b32 s{sT}, s{sT}, 16", f"s_add_u32 s{sXo}, s{sXo}, s{sT}",
          f"s_lshl_b32 s{sT}, s{sKq}, 14", f"s_add_u32 s{sXo}, s{sXo}, s{sT}", f"s_lshl_b32 s{sT}, s{sTn}, 8", f"s_add_u32 s{sXo}, s{sXo}, s{sT}",
          f"s_and_b32 s{sT}, s{sW}, 1", f"s_lshl_b32 s{sT}, s{sT}, 7", f"s_add_u32 s{sXo}, s{sXo}, s{sT}",
          f"s_lshl_b32 s{sEx}, s2, 15", f"s_lshl_b32 s{sT}, s{sW}, 13", f"s_add_u32 s{sEx}, s{sEx}, s{sT}", f"s_add_u32 s{sEx}, s{sEx}, {WS_EX}",
          f"s_and_b32 s{sT}, s2, 7", f"s_lshl_b32 s{sT}, s{sT}, 2", f"s_bfe_u32 s{sT2}, s2, 0x20003", f"s_add_u32 s{sT}, s{sT}, s{sT2}", f"s_lshl_b32 s{sT}, s{sT}, 7",
          f"s_lshl_b32 s{sT3}, s{sW}, 12", f"s_add_u32 s{sT}, s{sT}, s{sT3}", f"s_add_u32 s{sOw}, s{sT}, {FL_CX}",
          f"s_lshr_b32 s{sT2}, s2, 5", f"s_lshl_b32 s{sT2}, s{sT2}, 14", f"s_sub_u32 s{sT}, {15*16384}, s{sT2}",
          f"v_mov_b32 v19, s{sT2}", f"v_writelane_b32 v19, s{sT}, 1", f"v_mov_b32 v29, 1",
          f"v_and_b32 v{vPo}, 3, v{vL}", f"v_lshlrev_b32 v{vPo}, 7, v{vPo}", f"s_lshl_b32 s{sCx}, s{sCx}, 7", f"s_add_u32 s{sCx}, s{sCx}, s{sT3}",
          f"s_and_b32 s{sT}, s2, 7", f"s_lshl_b32 s{sT}, s{sT}, 9", f"s_add_u32 s{sCx}, s{sCx}, s{sT}", f"s_add_u32 s{sCx}, s{sCx}, {FL_CX}"]
    k = [n for n, x in enumerate(l) if x.startswith(f"s_and_b32 s{sT}, s2, 7")][0]
    l = l[k:] + l[:k]
    late = L(l + srd(S_X, 56, 57, 0x200000) + srd(S_OUT, 62, 63, 0x200000))
    def reads(s):
        b = slot(s); va, vt = vAr[b >> 16], vT[b >> 16]; b &= 0xffff
        o = []
        for c in range(4):
            o += [T(f"ds_read_b128 {ar(128+32*(s%3)+4*c)}, v{va+c} offset:{b}", ('R', s))]
            o += [T(f"ds_read_b64_tr_b16 {ar(128+32*(s%3)+16+4*c+2*t, 2)}, v{vt+c} offset:{b + t*8192}", ('R', s)) for t in range(2)]
        return o
    pre = L(["K3_BEGIN:"]) + prof_begin()
    for s in range(NE, 5): pre += loads(s)
    pre += [Wait(vm=('L', 2)), I("s_barrier")] + reads(0) + reads(1) + stamp(2)
    G = Gaps(16*NS)
    stream = [(0, loads(5) + loads(6))]
    cpoll = f"buffer_load_dword v{vPd}, v{vPo}, {sr(S_WS)}, s{sCx} offen sc1"
    SP_, SC_ = int(os.environ.get("K3PUB", "14")), int(os.environ.get("K3CHK", "7"))
    nxt = 7; S2_ = int(os.environ.get('K3CH2', '21'))
    for s in range(NS):
        g = 16*s
        for c in range(4):
            for r in range(4):
                D = vr(ACC + (r*4+c)*4)
                G.mf[g + c*4 + r] = I(f"{MF} {D}, {ar(128+32*(s%3)+16+4*c)}, {ar(128+32*(s%3)+4*r)}, {'0' if s == 0 else D}")
        G.before(g, Wait(lg=('R', s)))
        if s + 2 < NS:
            if s % 2 == 1:
                G.before(g + 1, Wait(vm=('L', min(s+3, NS-1)))); G.before(g + 1, I("s_barrier"))
                ld = []
                if s == SC_ - 2: ld += [T(cpoll, 'cp')]
                if s == SC_:
                    for x in [Wait(vm='cp')] + L([f"v_cmp_ne_u32 vcc, 1, v{vPd}", "s_cbranch_vccnz K3_CSPIN_E", "K3_COK:"]) + stamp(6): G.before(g + 1, x)
                    stubs += L(["K3_CSPIN_E:"]) + spin("K3_CSPIN", cpoll, vPd, 1, sA) + L(["s_branch K3_COK"])
                if s == S2_ - 4: ld += L([f"s_xor_b32 s{sCx}, s{sCx}, 512"]) + [T(cpoll, 'c2')]
                if s == S2_:
                    for x in [Wait(vm='c2')] + L([f"v_cmp_ne_u32 vcc, 1, v{vPd}", "s_cbranch_vccnz K3_DSPIN_E", "K3_DOK:"]) + stamp(7): G.before(g + 1, x)
                    stubs += L(["K3_DSPIN_E:"]) + spin("K3_DSPIN", cpoll, vPd, 1, sT) + L(["s_branch K3_DOK"])
                lim = min(s + 7, NS - 1 if s >= S2_ else NA + 15) if s >= SC_ else min(s + 7, NA - 1)
                k = 0
                while nxt <= lim and k < 3: ld += loads(nxt); nxt += 1; k += 1
                if s == 29:
                    ld = L([f"s_lshr_b32 s{sT}, s2, 5", f"s_lshl_b32 s{sT}, s{sT}, 14", f"s_lshl_b32 s{sT3}, s{sW}, 12", f"s_add_u32 s{sT}, s{sT}, s{sT3}",
                            f"s_and_b32 s{sT3}, s2, 1", f"s_lshl_b32 s{sT3}, s{sT3}, 9", f"s_add_u32 s{sT}, s{sT}, s{sT3}", f"s_bfe_u32 s{sT3}, s2, 0x20003",
                            f"s_lshl_b32 s{sT3}, s{sT3}, 7", f"s_add_u32 s{sT}, s{sT}, s{sT3}", f"s_add_u32 s{sCx}, s{sT}, {FL_CX}",
                            f"v_and_b32 v{vPo}, 3, v{vL}", f"v_lshlrev_b32 v{vPo}, 10, v{vPo}"]) + [T(cpoll, 'pp')] + ld
                if s == 33:
                    for x in [Wait(vm='pp')] + L([f"v_cmp_ne_u32 vcc, 1, v{vPd}", "s_cbranch_vccnz K3_PSPIN_E", "K3_POK:"]): G.before(g + 1, x)
                    stubs += L(["K3_PSPIN_E:"]) + spin("K3_PSPIN", cpoll, vPd, 1, sT) + L(["s_branch K3_POK"])
                if s == 13: ld += [T(f"buffer_load_dwordx2 {vr(vXv+2*c, 2)}, v{vXo}, {sr(S_X)}, s{sXo} offen offset:{c*32}", 'x') for c in range(4)]
                if ld: stream.append((g + 1, ld))
            for j, x in enumerate(reads(s+2)): G.put(g + 1 + j, x)
    assert nxt == NS
    place_stream(G, stream, int(os.environ.get("K3SP", "3")), start=2)
    for j, x in enumerate(late): G.nv[(j if j < 40 else 2*j)//2].append(x)
    for x in [Wait(vm='cst')] + L(["s_mov_b64 exec, 3", f"buffer_store_dword v29, v19, {sr(S_WS)}, s{sOw} offen sc1", "s_mov_b64 exec, -1"]): G.before(SP_, x)
    fin = stamp(3)
    fin += L([f"s_add_u32 s{sT}, s{sEx}, 4096"])
    for r in range(1, 4):
        for hh in range(2):
            b = ACC + r*16 + hh*8; o = r*2048 + hh*1024
            fin += L([f"v_cvt_pk_bf16_f32 v{b+k}, v{b+2*k}, v{b+2*k+1}" for k in range(4)])
            fin += L([f"buffer_store_dwordx4 {vr(b)}, v{vL16}, {sr(S_WS)}, s{sEx if o < 4096 else sT} offen offset:{o % 4096} sc1"])
    for r in range(1, 4):
        fin += L([f"s_add_u32 s{sT}, s{sKq}, {r}", f"s_and_b32 s{sT}, s{sT}, 3", f"s_sub_u32 s{sT}, s{sT}, s{sKq}", f"s_lshl_b32 s{sT}, s{sT}, 16",
                  f"s_add_u32 s{sSr+r}, s{sEx}, s{sT}", f"s_add_u32 s{sSr+r}, s{sSr+r}, {(4-r)*2048}"])
    for c in range(4):
        for hw in range(2):
            x = vXv + 2*c + hw
            fin += L([f"v_lshlrev_b32 v{WF}, 16, v{x}", f"v_and_b32 v{WF+1}, 0xffff0000, v{x}",
                      f"v_add_f32 v{ACC+4*c+2*hw}, v{ACC+4*c+2*hw}, v{WF}", f"v_add_f32 v{ACC+4*c+2*hw+1}, v{ACC+4*c+2*hw+1}, v{WF+1}"])
    fin += stamp(4) + L([f"s_mov_b32 s{sA}, 0x20000", "K3_XSPIN:"])
    for r in range(1, 4):
        fin += L([f"buffer_load_dwordx4 {vr(RX+((r-1)*2+hh)*4)}, v{vL16}, {sr(S_WS)}, s{sSr+r} offen offset:{hh*1024} sc1" for hh in range(2)])
    fin += L(["s_waitcnt vmcnt(0)", f"v_max3_u32 v{vPd}, v{RX}, v{RX+1}, v{RX+2}"] + [f"v_max3_u32 v{vPd}, v{vPd}, v{RX+k}, v{RX+k+1}" for k in range(3, 23, 2)] +
             [f"v_max_u32 v{vPd}, v{vPd}, v{RX+23}", f"v_cmp_eq_u32 vcc, -1, v{vPd}", "s_cbranch_vccz K3_XOK", "s_sleep 2",
              f"s_sub_u32 s{sA}, s{sA}, 1", "s_cbranch_scc0 K3_XSPIN", "K3_XOK:"]) + stamp(5)
    for k in range(24):
        x = RX + k; t = WF + 2*(k % 2)
        fin += L([f"v_lshlrev_b32 v{t}, 16, v{x}", f"v_and_b32 v{t+1}, 0xffff0000, v{x}",
                  f"v_add_f32 v{ACC+2*(k%8)}, v{ACC+2*(k%8)}, v{t}", f"v_add_f32 v{ACC+2*(k%8)+1}, v{ACC+2*(k%8)+1}, v{t+1}"])
    for c in range(4):
        fin += L([f"v_cvt_pk_bf16_f32 v{vXv+2*c}, v{ACC+4*c}, v{ACC+4*c+1}", f"v_cvt_pk_bf16_f32 v{vXv+2*c+1}, v{ACC+4*c+2}, v{ACC+4*c+3}",
                  f"buffer_store_dwordx2 {vr(vXv+2*c, 2)}, v{vXo}, {sr(S_OUT)}, s{sXo} offen offset:{c*32}"])
    P['main'] = pre + G.linear() + fin + prof_end(2, S_WS, sW, 4, vtmp=56) + L(["K3_END:", "s_endpgm"])
    P['stubs'] = stubs
    return P

NAME = "parallel_sum__compressed_kv_cla__dense_activation_mish__prompt_kernel"
if __name__ == "__main__":
    from gen_k2 import gen_k2
    seq = gen_k2(k3_parts())
    emit([(NAME, 256, 256, 163840, seq, 512, 256)], sys.argv[1] if len(sys.argv) > 1 else "k.s")
```

```python
from gen import *

NEGINF = "0xff800000"
THR = f2u(2.0**60)

def gen_k2(K3):
    S_WS, S_WQ, S_W1, S_K, S_V, S_B1 = 4, 8, 12, 16, 20, 24
    sW, sH, sI, sPar = 28, 29, 30, 31
    sXN = 32
    sAct = 36
    sWm, sT, sT2, sT3 = 44, 45, 46, 47
    sWoQ, sWo1 = 48, 50
    sKd, sVd, sGd, sKr, sVr, sVk = 50, 51, 52, 53, 54, 55
    sC = {'a': 56, 'b': 57}
    sCnt, sThr, sRet = 58, 59, 60
    sPC = 62
    sKA = 64
    vL, vL16 = 2, 3
    vX = 4
    vWDq, vWD1 = 8, 10
    vT = 12; vTh = 16; vTt = 20
    vDM, vKr, vVr, vLB = 24, 25, 26, 27
    vNI = 28
    tA, tB = 29, 30
    WF = 32
    QE = 64
    QO = 128
    HA = 192
    P = {'a': 32, 'b': 48}
    S = {'a': 128, 'b': 160}
    QX = 192
    NM = {'a': 224, 'b': 232}
    ET = 240
    TS = {'a': 244, 'b': 246}; LS = {'a': 248, 'b': 250}; MS = {'a': 252, 'b': 254}
    O = {'a': 0, 'b': 64}; KF_, VF_ = 128, 192
    qf = lambda mbx, js: QE + (js*4 + mbx)*4
    Qreg = {'a': lambda nb, js: qf(nb, js), 'b': lambda nb, js: qf(2+nb, js), 'x': lambda nb, js: QX + (js*2+nb)*4}

    pre = L([f"s_mov_b32 s{S_WS+k}, s{16+k}" for k in range(3)] + [f"s_mov_b32 s{S_WS+3}, 0x00020000"] +
            [f"s_mov_b32 s{S_WQ+k}, s{20+k}" for k in range(3)] + [f"s_mov_b32 s{S_WQ+3}, 0x00020000"] +
            [f"s_mov_b32 s{S_W1+k}, s{28+k}" for k in range(3)] + [f"s_mov_b32 s{S_W1+3}, 0x00020000"] +
            [f"s_mov_b32 s{sW}, s24", f"s_mov_b32 s{sH}, s25", f"s_mov_b32 s{sI}, s26", f"s_and_b32 s{sPar}, s{sW}, 1", "v_mov_b32 v31, v0"])
    for j in range(4):
        pre += L([f"s_add_u32 s{sT}, s{sH}, {j}", f"s_and_b32 s{sT}, s{sT}, 3", f"s_lshl_b32 s{sT}, s{sT}, 10", f"v_add_u32 v{vX+j}, s{sT}, v{vL16}"])
    for u in range(2):
        pre += L([f"s_lshr_b32 s{sT}, s{sW}, 1", f"s_add_u32 s{sT}, s{sT}, s{sH}", f"s_add_u32 s{sT}, s{sT}, {2*u}", f"s_and_b32 s{sT}, s{sT}, 3",
                  f"s_lshl_b32 s{sT}, s{sT}, 1", f"s_add_u32 s{sT}, s{sT}, s{sPar}", f"s_lshl_b32 s{sWoQ+u}, s{sT}, 17", f"s_mul_i32 s{sWo1+u}, s{sT}, {16*2752}"])
    pre += L(w_dma_voff(vL, vWDq, vWDq+1, 8192, tA, tB) + w_dma_voff(vL, vWD1, vWD1+1, 2752, tA, tB))
    pre += L([f"s_lshl_b32 s{sT}, s{sI}, 3", f"s_lshl_b32 s{sT2}, s{sW}, 1", f"s_add_u32 s{sT3}, s{sT}, s{sT2}",
              f"s_sub_u32 s{sT}, 120, s{sT}", f"s_add_u32 s{sT}, s{sT}, s{sT2}",
              f"s_lshl_b32 s{sXN}, s{sT3}, 14", f"s_add_u32 s{sXN+1}, s{sXN}, 16384",
              f"s_lshl_b32 s{sXN+2}, s{sT}, 14", f"s_add_u32 s{sXN+3}, s{sXN+2}, 16384",
              f"s_mul_i32 s{sAct}, s{sT3}, {CA_RB}", f"s_mul_i32 s{sAct+4}, s{sT}, {CA_RB}",
              f"s_lshl_b32 s62, s{sT3}, 4", f"s_lshl_b32 s63, s{sT}, 4",
              f"s_lshl_b32 s{sWm}, s{sW}, 11"] + mlp_slot(sT2, sH, sT) + [f"s_lshl_b32 s{sT2}, s{sT2}, 7",
              f"v_lshrrev_b32 v{tA}, 4, v{vL}", f"v_lshlrev_b32 v{tA}, 3, v{tA}",
              f"s_mov_b32 s{S_B1}, s66", f"s_mov_b32 s{S_B1+1}, s67", f"s_mov_b32 s{S_B1+2}, 2752", f"s_mov_b32 s{S_B1+3}, 0x00020000"])
    su0 = pre
    xa = lambda mbx, ks: (((ks//4 + 2) % 4)*16 + mbx*4 + ks % 4)*4
    def ldX(st, js):
        return [T(f"buffer_load_dwordx4 {ar(xa(mbx, 4*st+j))}, v{vX+j}, {sr(S_WS)}, s{sXN+mbx} offen{LDF}", ('X', st))
                for j in js for mbx in range(4)] + [I(f"v_add_u32 v{vX+j}, 4096, v{vX+j}") for j in js]
    own = lambda st: ldX(st, [0]); rest = lambda st: ldX(st, [1, 2, 3])
    ring = [0, 1, 2, 3, 4, 5, 8, 9, 10, 11, 12, 13]
    pslot = lambda p, u: ring[((p % 6)*2 + u)]*8192
    hslot = [6, 7, 14, 15, 16, 17, 18, 19]
    def dmaUT(which, ksl, colb, ldsoff, tag):
        sd, vd, so, pitch = (S_W1, vWD1, sWo1, 2752) if which == 1 else (S_WQ, vWDq, sWoQ, 8192)
        return [I(f"s_add_u32 m0, s{sWm}, {ldsoff}"), I(f"s_add_u32 s{sT3}, s{so + ksl % 2}, {(ksl//2)*128*pitch + colb}"),
                T(f"buffer_load_dwordx4 v{vd}, {sr(sd)}, s{sT3} offen lds", tag),
                T(f"buffer_load_dwordx4 v{vd+1}, {sr(sd)}, s{sT3} offen offset:1024 lds", tag)]
    PM = [(1, 0), (0, 0), (1, 1), (0, 1), (1, 2), (1, 3), (0, 2), (0, 3)] if os.environ.get('PM', '1') == '1' else [(1 - p % 2, p//2) for p in range(8)]
    def dmaP(p): return [x for u in range(2) for x in dmaUT(PM[p][0], PM[p][1]*2 + u, 0, pslot(p, u), ('W', p))]
    def dmaH(ks): return [x for k in ks for x in dmaUT(0, k, 128, hslot[k]*8192, 'WH')]
    DIAG = os.environ.get('DIAG')
    dst = lambda k: (L(['s_waitcnt vmcnt(0)'] if DIAG == 'w' else []) + stamp(k)) if DIAG else []
    BI = 64; BR = 20
    bl = [T(f"buffer_load_dwordx2 {vr(BR+2*fb, 2)}, v{tA}, {sr(S_B1)}, s{sT2} offen offset:{fb*32}", 'bias') for fb in range(4)]
    prefix, lnstub = gen_k1(dict(setup=su0, regloads=own(0) + bl + rest(0)[:-3], dma=dmaP(0)))
    pre = prefix + L(["K2_BEGIN:"]) + prof_begin() + own(1) + dmaP(1) + rest(0)[-3:]
    pre += [Wait(vm='bias')]
    ub = []
    for fb in range(4):
        for hw in range(2):
            ub += L([f"v_lshlrev_b32 v{BI+4*fb+2*hw}, 16, v{BR+2*fb+hw}", f"v_and_b32 v{BI+4*fb+2*hw+1}, 0xffff0000, v{BR+2*fb+hw}"])
    pre += ub + L([f"s_mov_b32 s{sC['a']}, s62", f"s_mov_b32 s{sC['b']}, s63"])
    pre += L(w_tr_addr(vL, vT, tA, tB)) + L([f"v_add_u32 v{vTh+c}, 0x10000, v{vT+c}" for c in range(4)] + [f"v_add_u32 v{vTt+c}, 0x20000, v{vT+c}" for c in range(4)])
    pre += L([f"s_lshl_b32 s{sT}, s{sH}, 19", f"s_lshl_b32 s{sT2}, s{sI}, 15", f"s_sub_u32 s{sT2}, 0x80000, s{sT2}",
              f"s_add_u32 s{sT3}, s{sT}, {WS_KF}", f"s_add_u32 s{S_K}, s{S_WS}, s{sT3}", f"s_addc_u32 s{S_K+1}, s{S_WS+1}, 0", f"s_mov_b32 s{S_K+2}, s{sT2}", f"s_mov_b32 s{S_K+3}, 0x00020000",
              f"s_add_u32 s{sT3}, s{sT}, {WS_VF}", f"s_add_u32 s{S_V}, s{S_WS}, s{sT3}", f"s_addc_u32 s{S_V+1}, s{S_WS+1}, 0", f"s_mov_b32 s{S_V+2}, s{sT2}", f"s_mov_b32 s{S_V+3}, 0x00020000"])
    pre += L([f"s_add_u32 s{sAct+2}, s{sAct}, {CA_RB}", f"s_add_u32 s{sAct+6}, s{sAct+4}, {CA_RB}",
              ] + mlp_slot(sCnt, sH, sT) + [f"s_lshl_b32 s{sT}, s{sCnt}, 11", f"s_add_u32 s{sT}, s{sT}, {WS_CA + 128*1024}",
              f"s_lshl_b32 s{sT2}, s{sH}, 12", f"s_add_u32 s{sT2}, s{sT2}, {WS_CA}"])
    ctxoff = []
    for mbx in range(4):
        ctxoff += L([f"s_add_u32 s{sXN+mbx}, s{sAct+2*mbx}, s{sT2}"])
    actoff = []
    for mbx in range(4):
        actoff += L([f"s_add_u32 s{sAct+2*mbx}, s{sAct+2*mbx}, s{sT}", f"s_add_u32 s{sAct+2*mbx+1}, s{sAct+2*mbx}, 1024",
                     f"s_cmp_gt_u32 s{sCnt}, 21", f"s_cselect_b32 s{sAct+2*mbx}, 0x10000000, s{sAct+2*mbx}",
                     f"s_cmp_gt_u32 s{sCnt}, 20", f"s_cselect_b32 s{sAct+2*mbx+1}, 0x10000000, s{sAct+2*mbx+1}"])
    pre += L([f"s_mov_b32 s{sKr}, s{sT}", f"s_mov_b32 s{sVr}, s{sT2}"])
    fix = lambda lst: [I(x.text.replace(f"s{sT2}", f"s{sVr}").replace(f"s{sT}", f"s{sKr}")) for x in lst]
    ctxoff, actoff = fix(ctxoff), fix(actoff)
    pre += L([f"v_lshl_add_u32 v{vDM}, s{sW}, 12, v{vL16}" if False else f"v_mov_b32 v{tA}, s{sW}", f"v_lshl_add_u32 v{vDM}, v{tA}, 12, v{vL16}",
              f"v_and_b32 v{tA}, 15, v{vL}", f"v_lshrrev_b32 v{tB}, 4, v{vL}", f"v_lshlrev_b32 v{tB}, 2, v{tB}", f"v_sub_u32 v{vLB}, v{tA}, v{tB}",
              f"v_mov_b32 v{vNI}, {NEGINF}", f"s_mov_b32 s{sThr}, {THR:#x}"])
    pre += L([f"s_mov_b32 s{sRet}, {f2u(SCALE):#x}"]) + k_epilogue(2, sRet) + k_epilogue(3, sRet)
    pre += L([f"s_lshl_b32 s{sRet}, s{sH}, 19", f"s_lshl_b32 s{sRet+1}, s{sI}, 16", f"s_add_u32 s{sRet}, s{sRet}, s{sRet+1}",
              f"s_lshl_b32 s{sRet+1}, s{sW}, 14", f"s_add_u32 s{sRet}, s{sRet}, s{sRet+1}", f"s_add_u32 s{sRet}, s{sRet}, {WS_KF}"])
    kst = []
    for mb in range(4):
        for js in range(4):
            kst.append(([I(f"s_add_u32 s{sRet}, s{sRet}, 4096")] if (mb and js == 0) else []) +
                       [T(f"buffer_store_dwordx4 {vr(KACC(2*js, mb))}, v{vL16}, {sr(S_WS)}, s{sRet} offen offset:{js*1024}{STF}", 'kst')])
    pre += stamp(3)
    xfr = lambda mbx, ks: ar(xa(mbx, ks))
    def tra(o, cb): return ((vT, vTh, vTt)[o >> 16] + cb, o & 0xffff)
    qacc = lambda db, mbx: (QE if db % 2 == 0 else QO) + ((db//2)*4 + mbx)*4
    groups = []
    for p in range(8):
        st = PM[p][1]
        for cb in range(4):
            fr = [tra(pslot(p, j//2) + (j % 2)*4096, cb) for j in range(4)]
            chains = []
            for mbx in range(4):
                if PM[p][0]: D = HA + (cb*4 + mbx)*4; C0 = vr(BI + 4*cb)
                else: D = qacc(cb, mbx); C0 = '0'
                chains.append([(lambda f, D=D, mbx=mbx, ks=st*4+j, C0=C0: f"{MF} {vr(D)}, {vr(f)}, {xfr(mbx, ks)}, {C0 if ks == 0 else vr(D)}") for j in range(4)])
            gr = dict(frags=fr, chains=chains, isH=PM[p][0])
            if cb == 0:
                gr['sync'] = [Wait(vm=('W', p)), I("s_barrier")]; gr['pair'] = p
                if PM[p][0]: gr['xwait'] = st
            groups.append(gr)
    for cb in range(4):
        for kq in range(4):
            fr = [tra(hslot[(kq*4+j)//2]*8192 + (j % 2)*4096, cb) for j in range(4)]
            chains = []
            for mbx in range(4):
                D = qacc(4+cb, mbx)
                chains.append([(lambda f, D=D, mbx=mbx, ks=kq*4+j: f"{MF} {vr(D)}, {vr(f)}, {xfr(mbx, ks)}, {'0' if ks == 0 else vr(D)}") for j in range(4)])
            gr = dict(frags=fr, chains=chains)
            if cb == 0 and kq == 0: gr['sync'] = [Wait(vm='WH'), I("s_barrier")]; gr['pair'] = 8
            groups.append(gr)
    G = Gaps(768)
    starts, gend = gemm_groups(G, 0, groups, WF, pre)
    assert gend == 768
    for n, gr in enumerate(groups):
        if 'xwait' in gr: G.before(starts[n], Wait(vm=('X', gr['xwait'])))
    bar = {gr['pair']: gr['syncgap'] for gr in groups if 'pair' in gr}
    for k, grp in enumerate(kst):
        for x in grp: G.nv[int(os.environ.get('KS0', '320')) + int(os.environ.get('KSP', '7'))*k].append(x)
    G.pre[bar[8]].insert(0, Wait(vm='kst'))
    sig = L([f"s_lshl_b32 s{sGd}, s{sH}, 7", f"s_add_u32 s{sGd}, s{sGd}, {FL_KV}", f"s_lshl_b32 s{sVk}, s{sI}, 2", f"s_add_u32 s{sVk}, s{sVk}, s{sGd}",
             f"v_mov_b32 v{vKr}, 1", f"v_mov_b32 v{vVr}, 0"])
    for j, x in enumerate(sig): G.nv[bar[8] - 12 + j].append(x)
    sig = one_lane([T(f"buffer_store_dword v{vKr}, v{vVr}, {sr(S_WS)}, s{sVk} offen sc1", 'NOCOUNT')], sW, "K2_SIG", sT)
    sig += L([f"v_and_b32 v{vVr}, 7, v{vL}", f"v_lshlrev_b32 v{vVr}, 2, v{vVr}"])
    for x in sig: G.nv[bar[8]].append(x)
    pl = f"buffer_load_dword v{vKr}, v{vVr}, {sr(S_WS)}, s{sGd} offen sc1"
    GP = int(os.environ.get("GP", "600"))
    G.put(GP, T(pl, 'kvf'))
    for x in [Wait(vm='kvf')] + L([f"v_cmp_ne_u32 vcc, 1, v{vKr}", "s_cbranch_vccnz K2_KVSPIN_E", "K2_KVOK:"]) + (stamp(3) if os.environ.get("KVST") else []): G.before(GP + 40, x)
    if os.environ.get("KVST"):
        for x in stamp(2): G.before(GP + 39, x)
        for x in stamp(1): G.before(bar[8] - 1, x)
        for x in stamp(4): G.nv[bar[8]].append(x)
    kvstub = L(["K2_KVSPIN_E:"]) + spin("K2_KVSPIN", pl, vKr, 1, sCnt) + L(["s_branch K2_KVOK"])
    def dmaKV(which, t):
        sd, base = (S_K, 0) if which == 'K' else (S_V, 65536)
        return [I(f"s_lshl_b32 s{sT3}, s{sW}, 12"), I(f"s_add_u32 m0, s{sT3}, {base + t*16384}"), I(f"s_mov_b32 s{sT3}, {t*16384}")] + \
               [T(f"buffer_load_dwordx4 v{vDM}, {sr(sd)}, s{sT3} offen offset:{j*1024}{LDF} lds", ('KV', which, t)) for j in range(4)]
    trail = lambda l: l + [I("s_nop 0")] if False else l
    hP = {p: dmaP(p) for p in (2, 4, 5)}
    stream = [(0, own(2) + rest(1) + hP[2] + dmaP(3) + own(3) + rest(2) + hP[4] + rest(3)[:-3] + hP[5]),
              (bar[2], dmaP(6)), (bar[3], dmaP(7) + dmaH(range(8))),
              ]
    end = place_stream(G, stream, 4, start=4)
    print("K2 prologue dma stream (part 1) ends at gap", end)
    gb = 512 + 40
    G.before(gb, I("s_barrier"))
    end = place_stream(G, [(GP + 40, dmaKV('K', 0) + dmaKV('V', 0) + dmaKV('K', 1) + dmaKV('K', 2) + dmaKV('V', 1) + dmaKV('V', 2))], int(os.environ.get('KVSP', '4')), start=GP + 40)
    print("K2 prologue dma stream ends at gap", end)
    for j, x in enumerate(ctxoff + actoff): G.put(300 + (j//2), x)
    ins = []
    for js in range(2):
        for mbx in range(4):
            E, Od = qf(mbx, js), QO + (js*4 + mbx)*4
            ins += L([f"v_cvt_pk_bf16_f32 v{E}, v{E}, v{E+1}", f"v_cvt_pk_bf16_f32 v{E+1}, v{E+2}, v{E+3}",
                      f"v_cvt_pk_bf16_f32 v{E+2}, v{Od}, v{Od+1}", f"v_cvt_pk_bf16_f32 v{E+3}, v{Od+2}, v{Od+3}"])
    LOG2E = f2u(math.log2(math.e))
    mish = []
    for fbp in range(2):
        for mbx in range(4):
            D0, D1 = HA + ((2*fbp)*4 + mbx)*4, HA + ((2*fbp+1)*4 + mbx)*4
            regs = [D0+r for r in range(4)] + [D1+r for r in range(4)]
            tm_ = (0, 1, tA, tB)
            for q in (regs[:4], regs[4:]):
                for f in ("v_mul_f32 v{t}, %#x, v{a}" % LOG2E, "v_exp_f32 v{t}, v{t}", "v_add_f32 v{t}, 1.0, v{t}", "v_fma_f32 v{t}, v{t}, v{t}, 1.0",
                          "v_rcp_f32 v{t}, v{t}", "v_mul_f32 v{t}, v{t}, v{a}", "v_fma_f32 v{a}, v{t}, -2.0, v{a}"):
                    mish += L([f.format(t=t, a=a) for t, a in zip(tm_, q)])
            mish += L([f"v_cvt_pk_bf16_f32 v{D0}, v{D0}, v{D0+1}", f"v_cvt_pk_bf16_f32 v{D0+1}, v{D0+2}, v{D0+3}",
                       f"v_cvt_pk_bf16_f32 v{D0+2}, v{D1}, v{D1+1}", f"v_cvt_pk_bf16_f32 v{D0+3}, v{D1+2}, v{D1+3}",
                       f"buffer_store_dwordx4 {vr(D0)}, v{vL16}, {sr(S_WS)}, s{sAct+2*mbx+fbp} offen{STF2}"])
    spread(G, mish, 392 if PM[5][0] else 456, 740)
    spread(G, ins, 520, 640)
    Hset = {id(x) for x in mish + actoff + hP[2] + hP[4] + hP[5]}
    for gr in groups[:32]:
        if gr['isH']:
            Hset |= {id(x) for x in gr['made']}
            if gr.get('sync') and gr['pair'] != 0: Hset.add(id(gr['sync'][0]))
    def qcvt(js, mbx):
        E, Od = qf(mbx, js), QO + (js*4 + mbx)*4
        return L([f"v_cvt_pk_bf16_f32 v{E}, v{E}, v{E+1}", f"v_cvt_pk_bf16_f32 v{E+1}, v{E+2}, v{E+3}",
                  f"v_cvt_pk_bf16_f32 v{E+2}, v{Od}, v{Od+1}", f"v_cvt_pk_bf16_f32 v{E+3}, v{Od+2}, v{Od+3}"])
    spread(G, [x for mbx in (2, 3, 0, 1) for x in qcvt(2, mbx)], 648, 716)
    ONE, ZR, T4 = 8, 20, 12
    sMk = 62
    vXB = 5
    zero_o = lambda s: [I(f"v_mfma_f32_32x32x16_bf16 {ar(O[s]+16*k, 16)}, {vr(ZR)}, {vr(ZR)}, 0") for k in range(4)]
    su = L(["s_load_dwordx2 s[8:9], s[0:1], 40", "s_load_dwordx2 s[12:13], s[0:1], 72",
            f"s_bfe_u32 s26, s2, 0x20001", f"s_lshr_b32 s27, s2, 3", f"s_lshl_b32 s27, s27, 2", f"s_add_u32 s27, s27, s{sW}",
            f"s_mul_i32 s24, s26, 352", f"s_mul_i32 s25, s27, 3", "s_add_u32 s24, s24, s25", "s_lshl_b32 s24, s24, 10",
            f"s_lshl_b32 s26, s26, 20", f"s_lshl_b32 s27, s27, 13", f"s_add_u32 s26, s26, s27",
            "s_add_u32 s10, s26, 8192", "s_mov_b32 s11, 0x00020000", "s_add_u32 s14, s24, 3072", f"s_min_u32 s14, s14, {1376*1024}", "s_mov_b32 s15, 0x00020000"] +
           [f"v_mov_b32 v{ONE+k}, 0x3f803f80" for k in range(4)] +
           [f"v_cmp_le_i32 s[{sMk+2*r}:{sMk+2*r+1}], {r}, v{vLB}" for r in range(4)] +
           [f"s_lshl_b32 s{sKd}, s{sW}, 12", f"s_add_u32 s{sKd}, s{sKd}, {3*16384}", f"s_mov_b32 s{sVd}, s{sKd}", f"v_add_u32 v{vX}, 0x10000, v{vL16}",
            f"s_mov_b32 s{sKr}, 16384", f"s_mov_b32 s{sVr}, 0",
            f"s_lshl_b32 s27, s{sPar}, 13", f"s_lshr_b32 s25, s{sW}, 1", "s_lshl_b32 s25, s25, 16", "s_add_u32 s27, s27, s25", f"s_add_u32 s27, s27, {49152}",
            f"v_add_u32 v{vXB}, s27, v{vL16}"])
    for j, x in enumerate(su): G.nv[360 + 2*j].append(x)
    kread = lambda f: T(f"ds_read_b128 {ar(KF_+4*f)}, v{vL16} offset:{f*1024}", ('kf', f))
    qw = lambda js, nb: T(f"ds_write_b128 v{vXB}, {vr(Qreg['b'](nb, js))} offset:{(js*2+nb)*1024}", 'qw')
    for x in [Wait(vm=('KV', 'K', 0), lg=0), I("s_barrier")]: G.before(722, x)
    for f in range(16): G.put(724 + 2*f, kread(f))
    for k in range(6): G.put(725 + 4*k, qw(k//2, k % 2))
    post = qcvt(3, 2) + qcvt(3, 3) + [qw(3, 0), qw(3, 1)] + qcvt(3, 0) + qcvt(3, 1)
    sreg = lambda s, mb, nb: S[s] + (mb*2 + nb)*4
    def prepass_mfma(s, q):
        return [I(f"{MF} {vr(sreg(s,0,nb))}, {ar(KF_+4*js)}, {vr(Qreg[q](nb, js))}, {'0' if js == 0 else vr(sreg(s,0,nb))}") for nb in range(2) for js in range(4)]
    def xred(op, v, t):
        return L([f"v_mov_b32 v{t}, v{v}", f"v_permlane16_swap_b32 v{t}, v{v}", f"{op} v{v}, v{v}, v{t}",
                  f"v_mov_b32 v{t}, v{v}", f"v_permlane32_swap_b32 v{t}, v{v}", f"{op} v{v}, v{v}, v{t}"])
    def zipl(a, b):
        def grp(l):
            g = []
            for x in l:
                if x.kind == 'label' and g: g[-1].append(x)
                else: g.append([x])
            return g
        a, b = grp(a), grp(b)
        o = []
        for k in range(max(len(a), len(b))):
            for y in a[k:k+1] + b[k:k+1]: o += y
        return o
    def prepass_init(s, mask):
        o = []
        if mask:
            o += L([f"v_add_u32 v{tA}, s{sC[s]}, v{vLB}"])
            prs = [(nb, r) for nb in range(2) for r in range(4)]
            pr = lambda k: "vcc" if k % 2 == 0 else f"s[{sRet}:{sRet+1}]"
            for k in range(0, 8, 2):
                o += L([f"v_cmp_le_i32 {pr(j)}, {prs[j][1] - 16*prs[j][0]}, v{tA}" for j in (k, k+1)])
                o += L([f"v_cndmask_b32 v{sreg(s,0,prs[j][0])+prs[j][1]}, v{vNI}, v{sreg(s,0,prs[j][0])+prs[j][1]}, {pr(j)}" for j in (k, k+1)])
        ch = []
        for nb in range(2):
            b = sreg(s, 0, nb); m = MS[s] + nb
            ch.append(L([f"v_max3_f32 v{m}, v{b}, v{b+1}, v{b+2}", f"v_max_f32 v{m}, v{m}, v{b+3}"]) + xred("v_max_f32", m, (tA, tB)[nb]) +
                      L([f"v_max_f32 v{m}, {f2u(-1e30):#x}, v{m}"] + [f"v_sub_f32 v{NM[s]+4*nb+r}, 0, v{m}" for r in range(4)]))
        return o + zipl(ch[0], ch[1])
    misc = L([f"v_mov_b32 v{ZR+k}, 0" for k in range(4)] + [f"v_mov_b32 v{LS[s]+nb}, 0" for s in 'ab' for nb in range(2)] +
             [f"s_mov_b32 s{sGd}, {3*16384}", f"s_lshl_b32 s{sCnt}, s{sI}, 1", f"s_sub_u32 s{sCnt}, s{sCnt}, 1", f"v_xor_b32 v{vXB}, 0x2000, v{vXB}"])
    def under(mf, fl, per=2):
        o = []
        for k, x in enumerate(mf): o += [x] + fl[per*k:per*k+per]
        return o + fl[per*len(mf):]
    post += under(prepass_mfma('a', 'a'), misc)
    post += [Wait(lg='qw'), I("s_barrier")]
    qxr = [I(f"ds_read_b128 {vr(Qreg['x'](nb, js))}, v{vXB} offset:{(js*2+nb)*1024}") for js in range(4) for nb in range(2)]
    pb = prepass_mfma('b', 'b')
    post += under(pb[:4], qxr) + under(pb[4:], prepass_init('a', True))

    NG, HG = 136, 68
    def body(name, qa, ntile, vmw, hooks, kread_on=True):
        B = Gaps(NG); used = [0]*NG; cls = {}
        cost = lambda x: 0 if x.kind == 'label' else (2 if x.kind in ('trans', 'vmem') else 1)
        def put(g, x, c, where=None):
            x = I(x) if isinstance(x, str) else x
            g %= NG
            if where == 'pre': B.before(g, x); used[(g-1) % NG] += cost(x)
            elif where == 'nv': B.nv[g].append(x); used[g] += cost(x)
            else: B.put(g, x); used[g] += cost(x)
            cls[id(x)] = c; return x
        def free(g, x, c, lim=None):
            x = I(x) if isinstance(x, str) else x
            while used[g % NG] + cost(x) > 2: g += 1
            assert lim is None or g <= lim, (name, x, g, lim)
            put(g, x, c, 'nv'); return g
        for s, g0, q in (('a', 0, qa), ('b', HG, 'b')):
            o = 'b' if s == 'a' else 'a'
            seq = []
            for mb in range(4):
                for nb in range(2):
                    D = vr(sreg(s, mb, nb))
                    seq += [(f"{MF} {D}, {ar(KF_+4*(mb*4+js))}, {vr(Qreg[q](nb, js))}, {vr(NM[s]+4*nb) if js == 0 else D}", 'qk'+s) for js in range(4)]
            ones = [(f"{MF} {vr(T4+4*nb)}, {vr(ONE)}, {vr(P[o]+(nb*2+ks)*4)}, {'0' if ks == 0 else vr(T4+4*nb)}", 'sm'+o) for nb in range(2) for ks in range(2)]
            seq[24:24] = ones
            for db in range(8):
                for nb in range(2):
                    D = ar(O[o] + (db*2+nb)*4)
                    seq += [(f"{MF} {D}, {ar(VF_+4*(db*2+ks))}, {vr(P[o]+(nb*2+ks)*4)}, {D}", 'pv'+o) for ks in range(2)]
            for k, (t, c) in enumerate(seq):
                B.mf[g0+k] = I(t); cls[id(B.mf[g0+k])] = c
            E0 = g0 + 26
            for e in range(32):
                mb, nb, r = e//8, (e//4) % 2, e % 4
                t = ET + (e % 4)
                put(E0 + 2*e, f"v_exp_f32 v{t}, v{sreg(s, mb, nb) + r}", 'sm'+s)
                if r % 2 == 1:
                    put(E0 + 2*e + 1, f"v_cvt_pk_bf16_f32 v{P[s] + (nb*2 + mb//2)*4 + (mb % 2)*2 + r//2}, v{t-1}, v{t}", 'sm'+s)
            if s not in hooks and s == 'a' and ntile == 1:
                for gh in (E0 - 1, E0 + 31): used[gh % NG] += 2
            if s in hooks:
                for hk, gh, lim in ((0, E0 - 1, 0), (1, E0 + 31, 32)):
                    lab = f"{name}_mk{s}{hk}"
                    put(gh, f"s_cmp_le_i32 s{sC[s]}, {lim}", 'sm'+s, 'nv'); put(gh, f"s_cbranch_scc1 {lab}", 'sm'+s, 'nv'); put(gh, f"{lab}_r:", 'sm'+s, 'nv')
            gc = g0 + HG + 31
            lab = f"{name}_rd{s}"
            put(gc, f"v_max_f32 v1, v{T4}, v{T4+4}", 'sm'+s); put(gc, f"v_cmp_lt_f32 vcc, s{sThr}, v1", 'sm'+s)
            put(gc+2, f"s_cbranch_vccnz {lab}", 'sm'+s, 'nv'); put(gc+2, f"{lab}_r:", 'sm'+s, 'nv')
            put(gc+4, f"v_add_f32 v{LS[s]}, v{LS[s]}, v{T4}", 'sm'+s); put(gc+4, f"v_add_f32 v{LS[s]+1}, v{LS[s]+1}, v{T4+4}", 'sm'+s)
        put(0, "s_waitcnt lgkmcnt(0)", 'mem', 'pre')
        put(4, f"s_waitcnt vmcnt({vmw})", 'mem', 'pre'); put(4, "s_barrier", 'mem', 'pre')
        free(5, f"v_add_u32 v{vVr}, s{sVr}, v{vX}", 'mem', 8)
        if kread_on: free(5, f"v_add_u32 v{vKr}, s{sKr}, v{vL16}", 'mem', 8)
        st = []
        wpf = [f"buffer_load_dword v5, v{vL16}, s[8:11], s26 offen", "s_add_u32 s26, s26, 1024"]
        if ntile == 1:
            st += [f"s_mov_b32 m0, s{sKd}"] + [f"buffer_load_dwordx4 v{vDM}, {sr(S_K)}, s{sGd} offen offset:{j*1024}{LDF} lds" for j in range(4)]
            st += wpf + [f"s_add_u32 s{sKd}, s{sKd}, 16384", f"s_and_b32 s{sKd}, s{sKd}, 0xffff", f"s_add_u32 m0, s{sVd}, 0x10000"]
            st += [f"buffer_load_dwordx4 v{vDM}, {sr(S_V)}, s{sGd} offen offset:{j*1024}{LDF} lds" for j in range(4)]
        elif ntile == 2:
            st += [f"s_add_u32 s{sT3}, s{sGd}, 16384", f"s_mov_b32 m0, s{sKd}"] + [f"buffer_load_dwordx4 v{vDM}, {sr(S_K)}, s{sGd} offen offset:{j*1024}{LDF} lds" for j in range(4)]
            st += [f"s_add_u32 m0, s{sKd}, 16384"] + [f"buffer_load_dwordx4 v{vDM}, {sr(S_K)}, s{sT3} offen offset:{j*1024}{LDF} lds" for j in range(4)]
            st += wpf + [f"s_xor_b32 s{sKd}, s{sKd}, 0x8000", f"s_add_u32 m0, s{sVd}, 0x10000"] + [f"buffer_load_dwordx4 v{vDM}, {sr(S_V)}, s{sGd} offen offset:{j*1024}{LDF} lds" for j in range(4)]
            st += [f"s_add_u32 m0, s{sVd}, 0x14000"] + [f"buffer_load_dwordx4 v{vDM}, {sr(S_V)}, s{sT3} offen offset:{j*1024}{LDF} lds" for j in range(4)]
        if ntile:
            st += [f"s_add_u32 s{sVd}, s{sVd}, {ntile*16384}", f"s_sub_u32 s{sT}, s{sVd}, 98304", f"s_min_u32 s{sVd}, s{sVd}, s{sT}", f"s_add_u32 s{sGd}, s{sGd}, {ntile*16384}"]
            g = 8; nd = 0; sp = 116/(4*2*ntile)
            for t in st:
                x = I(t)
                if x.kind == 'vmem' and x.op == 'buffer_load_dword': g = free(g + 1, x, 'mem', NG-1)
                elif x.kind == 'vmem':
                    g = free(max(g + 1, int(9 + nd*sp)), x, 'mem', NG-1); nd += 1
                else: g = free(g, x, 'mem', NG-1)
            step = ntile*16384
            g = 9
            ku = [f"s_add_u32 s{sKr}, s{sKr}, 16384", f"s_and_b32 s{sKr}, s{sKr}, 0xffff"] if ntile == 1 else [f"s_xor_b32 s{sKr}, s{sKr}, 0x8000"]
            for t in ku + [f"s_add_u32 s{sVr}, s{sVr}, {step}", f"s_sub_u32 s{sT2}, s{sVr}, 98304", f"s_min_u32 s{sVr}, s{sVr}, s{sT2}"]:
                g = free(g, t, 'mem', NG-1)
        g = 43
        for f in range(16):
            g = free(max(g, 40 + 2*f), f"ds_read_b128 {ar(VF_+4*f)}, v{vVr} offset:{f*1024}", 'mem', 96)
        vlast = g
        nk_before = 0
        if kread_on:
            for f in range(16):
                lastuse = HG + 8*(f//4) + 4 + f % 4 + (4 if 8*(f//4) + 4 + f % 4 >= 24 else 0)
                g = free(max(g, lastuse + 1), f"ds_read_b128 {ar(KF_+4*f)}, v{vKr} offset:{f*1024}", 'mem', 131)
                if g < 104: nk_before += 1
        put(104, f"s_waitcnt lgkmcnt({nk_before})", 'mem', 'pre')
        if name == "Sf":
            for t in [f"v_lshlrev_b32 v{vKr}, 2, v{vDM}", f"v_mul_u32_u24 v5, 3, v{vL16}", f"v_sub_u32 v{vKr}, v{vKr}, v5"]: free(9, t, 'mem', 30)
            B.wr_left = []
            for f in range(16):
                x = I(f"ds_write_b128 v{vKr}, {ar(O['a']+4*f)} offset:{f*1024}")
                g = 104 + 2*f + 5
                while g < NG and used[g] + 1 > 2: g += 1
                if g < NG: put(g, x, 'mem', 'nv')
                else: B.wr_left.append(x)
            ea = K3['early']
            first = ea[:9] + ea[-6:]; rest_ = ea[9:-6]
            g = 5
            for x in first: g = free(g, x, 'mem', NG-1)
            g = max(g, 41); K3['spill'] = []
            for x in rest_:
                while g < NG and used[g] + cost(x) > 2: g += 1
                if g < NG: put(g, x, 'mem', 'nv')
                else: K3['spill'].append(x)
        over = [(g, u) for g, u in enumerate(used) if u > 2]
        print(f"  body {name}: slots used {sum(used)}/{2*NG}, overfull gaps {over}")
        return B, cls
    def mkstubs(name):
        o = []
        for s in 'ab':
            for hk in range(2):
                lab = f"{name}_mk{s}{hk}"; lo, hi = 2*hk, 2*hk+1
                o += L([f"{lab}:", f"s_cmp_lg_u32 s{sC[s]}, {32*hk}", f"s_cbranch_scc1 {lab}_all"])
                o += L([f"v_cndmask_b32 v{sreg(s,lo,0)+r}, v{vNI}, v{sreg(s,lo,0)+r}, s[{sMk+2*r}:{sMk+2*r+1}]" for r in range(4)])
                o += L([f"v_mov_b32 v{sreg(s,hi,0)+r}, v{vNI}" for r in range(4)])
                o += L([f"v_cndmask_b32 v{sreg(s,hi,1)+r}, v{vNI}, v{sreg(s,hi,1)+r}, s[{sMk+2*r}:{sMk+2*r+1}]" for r in range(4)])
                o += L([f"s_branch {lab}_r", f"{lab}_all:"] + [f"v_mov_b32 v{sreg(s,lo,0)+k}, v{vNI}" for k in range(16)] + [f"s_branch {lab}_r"])
            lab = f"{name}_rd{s}"
            o += L([f"{lab}:", f"s_call_b64 s[{sRet}:{sRet+1}], K2_REDO_{s}", f"s_branch {lab}_r"])
        return o
    def redo(s):
        o = L([f"K2_REDO_{s}:", "s_nop 7"])
        for nb in range(2):
            vals = [sreg(s, mb, nb) + r for mb in range(4) for r in range(4)]
            ts = T4 + 4*nb
            o += L([f"v_max3_f32 v{tA}, v{vals[0]}, v{vals[1]}, v{vals[2]}"] + [f"v_max3_f32 v{tA}, v{tA}, v{vals[k]}, v{vals[k+1]}" for k in range(3, 15, 2)]
                   + [f"v_max_f32 v{tA}, v{tA}, v{vals[15]}"]) + xred("v_max_f32", tA, tB)
            o += L([f"v_max_f32 v{tA}, 0, v{tA}", f"v_add_f32 v{MS[s]+nb}, v{MS[s]+nb}, v{tA}", f"v_sub_f32 v{tB}, 0, v{tA}", f"v_exp_f32 v{tB}, v{tB}"])
            o += L([f"v_sub_f32 v{NM[s]+4*nb+r}, 0, v{MS[s]+nb}" for r in range(4)])
            o += L([f"v_mul_f32 v{LS[s]+nb}, v{LS[s]+nb}, v{tB}"])
            o += L([f"v_sub_f32 v{v}, v{v}, v{tA}" for v in vals])
            for db in range(8):
                for r in range(4):
                    a = O[s] + (db*2+nb)*4 + r
                    o += L([f"v_accvgpr_read_b32 v0, a{a}", f"v_mul_f32 v0, v0, v{tB}", f"v_accvgpr_write_b32 a{a}, v0"])
            o += L([f"v_mov_b32 v{ts}, 0"])
            for mb in range(4):
                for r in (0, 2):
                    b = sreg(s, mb, nb) + r
                    pd = P[s] + (nb*2 + mb//2)*4 + (mb % 2)*2 + r//2
                    o += L([f"v_exp_f32 v{tA}, v{b}", f"v_exp_f32 v{tB}, v{b+1}", f"v_add_f32 v{ts}, v{ts}, v{tA}",
                            f"v_add_f32 v{ts}, v{ts}, v{tB}", f"v_cvt_pk_bf16_f32 v{pd}, v{tA}, v{tB}"])
            o += xred("v_add_f32", ts, tB)
        o += L(["s_nop 1", f"s_setpc_b64 s[{sRet}:{sRet+1}]"])
        return o
    def lin(Bc, lo, hi, keep=None, ren=None):
        B, cls = Bc
        out = []
        XF = os.environ.get("XF", "").split(",")
        for x in B.linear(lo, hi):
            if keep is None and B in XB_:
                if 'dma' in XF and x.kind == 'vmem': continue
                if 'bar' in XF and x.op == 's_barrier': continue
                if 'ds' in XF and x.kind == 'ds': continue
                if 'salu' in XF and x.kind == 'salu' and x.op not in ('s_waitcnt', 's_barrier'): continue
                if 'wait' in XF and x.op == 's_waitcnt': continue
                if 'chk' in XF and x.kind == 'branch': continue
                if 'cvt' in XF and x.op.startswith('v_cvt'): continue
            if keep is None or cls.get(id(x), 'mem') in keep:
                out.append(I(x.text.replace(*ren)) if ren else x)
        return out
    D = body("D", 'a', 1, 5, ''); Dm = body("Dm", 'a', 1, 5, 'a'); S1 = body("S1", 'a', 2, 5, 'a')
    SS = body("S", 'x', 2, 9, ''); Sf = body("Sf", 'x', 0, int(os.environ.get("SFW", "9")), 'ab', kread_on=False)
    XB_ = [D[0], SS[0]]
    pream = lin(Dm, 0, HG, ('qka', 'sma', 'mem'), ("Dm_", "PR_"))
    ib = prepass_init('b', False); zs = zero_o('a') + zero_o('b')
    ib += L([f"buffer_load_dword v6, v{vL16}, s[12:15], s24 offen offset:{k*1024}" for k in range(3)])
    p2 = []; nm = 0
    for x in pream:
        p2.append(x)
        if x.kind == 'mfma':
            nm += 1
            if nm >= 5 and ib: p2 += ib[:2]; ib = ib[2:]
        if nm == 32 and x.op == 'v_cvt_pk_bf16_f32' and zs: p2.append(zs.pop(0))
    assert not ib and not zs
    pream = p2
    for n, x in enumerate(pream):
        if x.text.startswith("s_waitcnt vmcnt"): pream[n] = Wait(vm=[('KV', 'K', 1), ('KV', 'V', 0)], lg=0)
    if os.environ.get("P2ST"):
        for k, g in enumerate(eval(os.environ["P2ST"])):
            for x in stamp(1+k if k < 3 else 5+k): G.before(g, x)
        DIAG = True
    jump = L([f"s_lshl_b32 s{sC['a']}, s{sW}, 5", f"s_cmp_eq_u32 s{sI}, 0", "s_cbranch_scc1 K2_DM_MID", "s_branch K2_D_MID"])
    import copy
    vm, lg = Tracker(63), Tracker(15)
    h0 = resolve_waits(pre + stamp(4) + L([f"s_and_b32 s{sT}, s{sH}, 3", f"s_cmp_eq_u32 s{sT}, 1", "s_cbranch_scc1 K2_NOMLP"]), vm, lg)
    vmB, lgB = copy.deepcopy(vm), copy.deepcopy(lg)
    rest_ = G.linear(0, 512) + stamp(5) + G.linear(512, 768) + stamp(6) + post + stamp(7) + pream + jump
    head, n1 = fix_hazards(h0 + resolve_waits(rest_, vm, lg))
    ren = lambda x: x if isinstance(x, Wait) else I(x.text.replace("PR_", "PB_").replace("K2_SIG", "K2_SIGB").replace("K2_KV", "K2_KVB"), x.tag)
    hB, nB = fix_hazards(L(["K2_NOMLP:"]) + resolve_waits([ren(x) for x in rest_ if id(x) not in Hset], vmB, lgB), pre=h0[-20:])
    kvstub += [ren(x) for x in kvstub]
    dl = L(["K2_D:"]) + lin(D, 0, HG) + L(["K2_D_MID:"]) + lin(D, HG, NG) + L([f"s_sub_u32 s{sCnt}, s{sCnt}, 1", "s_cbranch_scc0 K2_D"])
    dl, n2 = fix_hazards(dl, pre=dl[-20:])
    assert os.environ.get('XF') or fix_hazards(lin(D, HG, HG+12), pre=head[-20:])[1] == 0 and fix_hazards(lin(Dm, HG, HG+12), pre=head[-20:])[1] == 0
    mid = lin(Dm, 0, HG) + L(["K2_DM_MID:"]) + lin(Dm, HG, NG)
    mid += L([f"s_lshl_b32 s{sT}, s{sPar}, 14", f"s_add_u32 s{sKr}, s{sKr}, s{sT}", f"s_and_b32 s{sKr}, s{sKr}, 0xffff", f"s_sub_u32 s{sC['a']}, s{sC['a']}, 64"])
    mid += (stamp(8) if not DIAG else []) + lin(S1, 0, NG) + (stamp(9) if not DIAG else [])
    def finalize(s, so, zero, wts=None):
        o = []
        for j in range(4):
            for nb in range(2):
                t = 152 if (j*2+nb) % 2 == 0 else 156
                t8 = 136 + ((j*2+nb) % 2)*8
                o += L([f"v_accvgpr_read_b32 v{t8+hh*4+r}, a{O[s] + ((2*j+hh)*2+nb)*4 + r}" for hh in range(2) for r in range(4)])
                sel = "op_sel_hi:[1,0]" if nb == 0 else "op_sel:[0,1] op_sel_hi:[1,1]"
                for k in range(0, 8, 2):
                    o += L([f"v_pk_mul_f32 {vr(t8+k,2)}, {vr(t8+k,2)}, {vr(TS[s],2)} {sel}"])
                    if wts is not None:
                        x = wts + ((2*j + k//4)*2+nb)*4 + k % 4
                        sel3 = "op_sel_hi:[1,0,1]" if nb == 0 else "op_sel:[0,1,0] op_sel_hi:[1,1,1]"
                        o += L([f"v_pk_fma_f32 {vr(t8+k,2)}, {vr(x,2)}, {vr(TS['a'],2)}, {vr(t8+k,2)} {sel3}"])
                o += L([f"v_cvt_pk_bf16_f32 v{t+k}, v{t8+2*k}, v{t8+2*k+1}" for k in range(4)])
                o += L([f"buffer_store_dwordx4 {vr(t)}, v{vL16}, {sr(S_WS)}, s{so+nb} offen offset:{j*1024}{STF2}"])
            if zero: o += [zero_o(s)[j]]
        return o
    t0 = L([f"s_lshl_b32 s{sT}, s{sI}, 7", f"s_sub_u32 s{sC['a']}, s{sC['b']}, s{sT}", f"s_lshl_b32 s{sT}, s{sPar}, 7", f"s_sub_u32 s{sC['a']}, s{sC['a']}, s{sT}",
            f"s_sub_u32 s{sC['a']}, s{sC['a']}, 96"] +
           [f"v_rcp_f32 v{TS['a']+nb}, v{LS['a']+nb}" for nb in range(2)] + [f"v_mov_b32 v{LS['a']+nb}, 0" for nb in range(2)] +
           [f"v_mov_b32 v{T4+k}, -1" for k in range(4)] + ["s_lshl_b32 s25, s2, 15", f"s_lshl_b32 s27, s{sW}, 13", "s_add_u32 s25, s25, s27"])
    tr = L(["s_waitcnt lgkmcnt(0)"]) + under(prepass_mfma('a', 'x'), t0)
    side = L([f"s_add_u32 s25, s25, {WS_EX + 2048}", "s_add_u32 s27, s25, 4096",
              f"s_lshl_b32 s{sT}, s{sPar}, 14", f"s_add_u32 s{sVr}, s{sVr}, s{sT}", f"s_add_u32 s{sVr}, s{sVr}, {98304-16384}",
              f"s_sub_u32 s{sT2}, s{sVr}, 98304", f"s_min_u32 s{sVr}, s{sVr}, s{sT2}", f"s_lshl_b32 s{sCnt}, s{sI}, 1", f"s_sub_u32 s{sCnt}, 13, s{sCnt}",
              f"s_lshl_b32 s{sT}, s{sH}, 2", f"s_add_u32 s{sT}, s{sT}, {FL_AC}", f"s_lshl_b32 s{sT2}, s{sI}, 7", f"s_sub_u32 s{sT3}, {15*128}, s{sT2}",
              f"v_mov_b32 v6, s{sT2}", f"v_writelane_b32 v6, s{sT3}, 1", "v_mov_b32 v7, 1",
              f"s_cmp_lg_u32 s{sW}, 0\n    s_cbranch_scc1 K2_SIGA\n    s_mov_b64 exec, 3\n    buffer_store_dword v7, v6, {sr(S_WS)}, s{sT} offen sc1\n    s_mov_b64 exec, -1\nK2_SIGA:"])
    ob = L([f"buffer_store_dwordx4 {vr(T4)}, v{vL16}, {sr(S_WS)}, s{25 if k < 4 else 27} offen offset:{(k % 4)*1024} sc1" for k in range(6)])
    fa = finalize('a', sXN, True)
    ini = prepass_init('a', True)
    k0 = len(ini)
    tr += zipl(ini, fa[:k0]) + side[:2]
    fa = fa[k0:]; side = side[2:]
    for k, x in enumerate(fa):
        tr.append(x)
        if k % 20 == 8 and ob: tr.append(ob.pop(0))
    tr += ob + side
    tr += code_prefetch("K3_BEGIN", "K2_PC2", False, 31, 31, sRet, sT3, vtid=31)
    tr += L([f"s_lshl_b32 s{sC['b']}, s{sW}, 5", f"s_lshl_b32 s{sT}, s{sPar}, 6", f"s_sub_u32 s{sC['b']}, s{sC['b']}, s{sT}",
             f"s_add_u32 s{sC['a']}, s{sC['b']}, 32", f"s_sub_u32 s{sC['a']}, s{sC['a']}, s{sT}"])
    mid += tr + (stamp(10) if not DIAG else []) + L([f"s_cmp_eq_u32 s{sI}, 7", "s_cbranch_scc1 K2_SF"])
    mid, n3 = fix_hazards(mid, pre=dl[-20:])
    sl = L(["K2_S:"]) + lin(SS, 0, NG) + L([f"s_sub_u32 s{sCnt}, s{sCnt}, 1", "s_cbranch_scc0 K2_S"])
    sl, n4 = fix_hazards(sl, pre=sl[-20:])
    assert os.environ.get('XF') or fix_hazards(sl[:24], pre=mid[-20:])[1] == 0
    tail = L(["K2_SF:"]) + lin(Sf, 0, NG)
    assert fix_hazards(tail[:24], pre=mid[-20:])[1] == 0
    tb = lin(SS, 0, HG, ('smb', 'pvb'), ("S_", "TL_"))
    kq = [n for n, x in enumerate(tb) if x.kind == 'mfma' and x.wr[0].startswith('a')][0]
    tail += L(["s_waitcnt vmcnt(1)", "s_barrier",
               f"v_xor_b32 v{vVr}, 0x4000, v{vKr}", f"v_add_u32 v{vDM}, 0x10000, v{vDM}",
               f"v_mov_b32 v{NM['a']}, v{MS['a']}", f"v_mov_b32 v{NM['a']+1}, v{MS['a']+1}", f"v_mov_b32 v{NM['a']+2}, v{LS['a']}", f"v_mov_b32 v{NM['a']+3}, v{LS['a']+1}",
               f"ds_write_b128 v{vDM}, {vr(NM['a'])}"])
    wr = Sf[0].wr_left
    tail += zipl(zipl(tb[:kq], wr), K3['spill'] + K3['acheck'] + K3['loads'])
    XO = 64
    pv = tb[kq:]
    n0 = K3['need0']
    tail += zipl(pv[:8], zipl(n0[0:16:2], n0[1:16:2])[:0] + n0[:8]) + L(["s_waitcnt lgkmcnt(0)", "s_barrier", f"v_xor_b32 v{vDM}, 0x1000, v{vDM}", f"ds_read_b128 {vr(NM['a'])}, v{vDM}"])
    rd = L([f"ds_read_b128 {vr(XO+4*f)}, v{vVr} offset:{f*1024}" for f in range(16)])
    wt = L(["s_waitcnt lgkmcnt(15)"])
    ch = []
    for nb in range(2):
        mx, lx, mb_, lb, t = NM['a']+nb, NM['a']+2+nb, MS['b']+nb, LS['b']+nb, (tA, tB)[nb]
        ch.append(L([f"v_max_f32 v{t}, v{mx}, v{mb_}", f"v_sub_f32 v{mx}, v{mx}, v{t}", f"v_sub_f32 v{mb_}, v{mb_}, v{t}",
                     f"v_exp_f32 v{mx}, v{mx}", f"v_exp_f32 v{mb_}, v{mb_}", f"v_mul_f32 v{lb}, v{lb}, v{mb_}", f"v_fmac_f32 v{lb}, v{lx}, v{mx}",
                     f"v_rcp_f32 v{lb}, v{lb}", f"v_mul_f32 v{TS['b']+nb}, v{mb_}, v{lb}", f"v_mul_f32 v{TS['a']+nb}, v{mx}, v{lb}"]))
    fl = rd + wt + zipl(ch[0], ch[1]) + n0[8:]
    pvr = pv[8:]
    for k, x in enumerate(pvr): tail += [x] + fl[2*k:2*k+2]
    tail += fl[2*len(pvr):]
    fb = finalize('b', sXN+2, False, wts=XO)
    for x in fb:
        if x.kind == 'vmem': x.tag = 'cst'
    tail += L(["s_waitcnt lgkmcnt(0)"]) + fb
    tail += prof_end(1, S_WS, sW, 4, vtmp=32, drain=not FUSED)
    tail, n5 = fix_hazards(resolve_waits(tail + K3['main']), pre=sl[-20:])
    alltext = "\n".join(x.text for x in head + hB + dl + mid + sl + tail)
    stubs = []
    for nm in ("PR", "PB", "D", "Dm", "S1", "S", "Sf", "TL"):
        cur = []
        for x in mkstubs(nm) + L(["SENTINEL:"]):
            if x.kind == 'label' and not x.text.endswith("_all:"):
                if cur and ("\n" + cur[0].text[:-1] + "_r:") in alltext: stubs += fix_hazards(cur)[0]
                cur = []
            cur.append(x)
    stubs += fix_hazards(redo('a'))[0] + fix_hazards(redo('b'))[0]
    stubs += kvstub + lnstub + K3['stubs']
    seq = head + dl + mid + sl + tail + hB + stubs
    print("total instrs", len(seq), "nops head/D/mid/S/tail", n1, n2, n3, n4, n5)
    return seq
```

```python
from gen import *

def k3_parts():
    S_WS, S_WO, S_W2, S_X, S_OUT = 4, 16, 20, 8, 12
    sW, sTm, sTn, sKq = 28, 36, 37, 38
    sT, sT2, sT3, sA, sB, sM = 39, 40, 41, 42, 43, 44
    sAb, sAm = 32, 33
    sXo, sEx, sFl, sCx, sOw, sSr = 48, 49, 50, 51, 52, 52
    NS, NA = 43, 11
    SLOT = [80, 96, 112, 128, 144, 0, 16, 32, 48, 64]; NB = len(SLOT)
    slot = lambda s: SLOT[s % NB]*1024
    vL, vL16 = 2, 3
    vKA, vKW, vA1, vW0, vW1, vPo, vPd = 192, 193, 194, 195, 196, 197, 198
    a_, b_, c_, d_ = 199, 200, 201, 202
    vAr = [8, 208, 216]; vT = [12, 212, 220]
    tA, tB, vXo, vXv = 16, 17, 18, 20
    WF = 32; AF = 64; ACC = 96; RX = 160
    P = {}
    e = [f"s_bfe_u32 s{sKq}, s2, 0x20001", f"s_and_b32 s{sT}, s2, 1", f"s_lshl_b32 s{sT}, s{sT}, 3", f"s_bfe_u32 s{sT2}, s2, 0x30003",
         f"s_add_u32 s{sTm}, s{sT}, s{sT2}", f"s_lshr_b32 s{sTn}, s2, 6",
         f"s_lshl_b32 s{sT3}, s{sTn}, 1", f"s_add_u32 s{sT2}, s{sT2}, s{sT3}", f"s_and_b32 s{sT2}, s{sT2}, 7",
         f"v_and_b32 v{vPo}, 31, v{vL}", f"v_lshlrev_b32 v{vPo}, 2, v{vPo}", f"s_lshl_b32 s{sCx}, s{sTm}, 7", f"s_add_u32 s{sOw}, s{sCx}, {FL_AC}"]
    apoll = f"buffer_load_dword v{vPd}, v{vPo}, {sr(S_WS)}, s{sOw} offen sc1"
    e += [T(apoll, 'ap')]
    e += [f"s_lshl_b32 s{sT}, s{sTm}, 3", f"s_lshl_b32 s{sT3}, s{sW}, 1", f"s_add_u32 s{sT}, s{sT}, s{sT3}", f"s_mul_i32 s{sT}, s{sT}, {CA_RB}",
          f"s_add_u32 s{sAb}, s{sT}, {WS_CA}", f"s_mul_i32 s{sT}, s{sKq}, 11", f"s_lshl_b32 s{sB}, s{sT}, 15", f"s_lshl_b32 s{sT}, s{sT}, 10",
          f"s_add_u32 s{sA}, s{sAb}, s{sT}", f"s_add_u32 s{sA}, s{sA}, {128*1024}", f"s_add_u32 s{sAm}, s{sAb}, {170*1024}",
          f"v_add_u32 v{vA1}, {CA_RB-1024}, v{vL16}", f"s_lshl_b32 s{sM}, s{sW}, 12"]
    e += [f"v_bfe_u32 v{a_}, v{vL}, 4, 2", f"v_lshlrev_b32 v{a_}, 1, v{a_}", f"v_and_b32 v{b_}, 7, v{vL}", f"v_xor_b32 v{a_}, v{a_}, v{b_}",
          f"v_lshlrev_b32 v{a_}, 4, v{a_}", f"v_lshrrev_b32 v{b_}, 3, v{vL}", f"v_lshl_add_u32 v{vW1}, v{b_}, 10, v{a_}",
          f"s_lshl_b32 s{sT}, s{sTn}, 8", f"s_lshl_b32 s{sT3}, s{sW}, 13", f"s_add_u32 s{sT}, s{sT}, s{sT3}", f"v_add_u32 v{vW1}, s{sT}, v{vW1}",
          f"v_add_u32 v{vW0}, 1024, v{vW1}", f"v_add_u32 v{vW1}, 128, v{vW1}",
          f"s_sub_u32 s{S_WO}, s8, 3072\n    s_subb_u32 s{S_WO+1}, s9, 0", f"s_mov_b32 s{S_WO+2}, {0x400000+3072}", f"s_mov_b32 s{S_WO+3}, 0x00020000",
          f"s_sub_u32 s{S_W2}, s12, 3072\n    s_subb_u32 s{S_W2+1}, s13, 0", f"s_mov_b32 s{S_W2+2}, {1376*1024+3072}", f"s_mov_b32 s{S_W2+3}, 0x00020000"]
    P['early'] = L(e)
    P['acheck'] = [Wait(vm='ap')] + L([f"v_cmp_ne_u32 vcc, 1, v{vPd}", "s_cbranch_vccnz K3_ASPIN_E", "K3_AOK:"])
    stubs = L(["K3_ASPIN_E:"]) + spin("K3_ASPIN", apoll, vPd, 1, sT) + L(["s_branch K3_AOK"])
    def loads(s):
        sd = S_W2 if s < NA else S_WO
        if s == 0: adv = []
        elif s in (NA, NA + 16):
            adv = [f"s_and_b32 s{sB}, s2, 7"] + ([f"s_xor_b32 s{sB}, s{sB}, 1"] if s > NA else []) + \
                  [f"s_lshl_b32 s{sA}, s{sB}, 14", f"s_add_u32 s{sA}, s{sA}, s{sAb}", f"s_lshl_b32 s{sB}, s{sB}, 19"]
        else: adv = [f"s_add_u32 s{sA}, s{sA}, 1024", f"s_add_u32 s{sB}, s{sB}, 32768"] + ([f"s_min_u32 s{sA}, s{sA}, s{sAm}"] if s == NA - 1 else [])
        return L(adv + [f"s_add_u32 m0, s{sM}, {slot(s)}"] + (["s_nop 0"] if not adv else [])) + \
          [T(f"buffer_load_dwordx4 v{vL16}, {sr(S_WS)}, s{sA} offen sc1 lds", ('L', s)),
           T(f"buffer_load_dwordx4 v{vA1}, {sr(S_WS)}, s{sA} offen offset:1024 sc1 lds", ('L', s)),
           T(f"buffer_load_dwordx4 v{vW0}, {sr(sd)}, s{sB} offen offset:2048 lds", ('L', s)),
           T(f"buffer_load_dwordx4 v{vW1}, {sr(sd)}, s{sB} offen offset:3072 lds", ('L', s))]
    NE = int(os.environ.get('NEARLY', '3'))
    P['loads'] = [x for s in range(NE) for x in loads(s)]
    l = ["s_load_dwordx2 s[56:57], s[0:1], 0", "s_load_dwordx2 s[62:63], s[0:1], 80",
         f"v_lshrrev_b32 v{tA}, 5, v{vL}", f"v_lshlrev_b32 v{tA}, 12, v{tA}", f"v_bfe_u32 v{tB}, v{vL}, 2, 3", f"v_lshl_add_u32 v{tA}, v{tB}, 7, v{tA}",
         f"v_and_b32 v{tB}, 3, v{vL}", f"v_lshl_add_u32 v{tA}, v{tB}, 3, v{tA}", f"v_bfe_u32 v{tB}, v{vL}, 3, 2", f"v_lshl_add_u32 v{tA}, v{tB}, 5, v{tA}",
         f"s_and_b32 s{sT}, s{sW}, 1", f"s_lshl_b32 s{sT}, s{sT}, 10", f"s_add_u32 s{sT}, s{sT}, 2048", f"v_add_u32 v{vT[0]}, s{sT}, v{tA}"] + \
        [f"v_xor_b32 v{vT[0]+c}, {c*32}, v{vT[0]}" for c in range(1, 4)]
    l += [f"s_lshl_b32 s{sT}, s{sKq}, 2", f"s_lshr_b32 s{sT}, 0x54105410, s{sT}", f"s_and_b32 s{sT3}, s{sW}, 2", f"s_lshl_b32 s{sT3}, s{sT3}, 12", f"v_add_u32 v{tA}, s{sT3}, v{vL16}"]
    for r in range(4):
        l += [f"s_bfe_u32 s{sT3}, s{sT}, {0x40000 + 4*r:#x}", f"v_lshl_add_u32 v{vAr[0]+r}, s{sT3}, 10, v{tA}"]
    for k in (1, 2):
        l += [f"v_add_u32 v{vAr[k]+r}, {k*0x10000}, v{vAr[0]+r}" for r in range(4)] + [f"v_add_u32 v{vT[k]+c}, {k*0x10000}, v{vT[0]+c}" for c in range(4)]
    P['need0'] = L(l)
    l = [f"v_and_b32 v{tA}, 15, v{vL}", f"v_lshrrev_b32 v{tB}, 4, v{vL}", f"v_lshlrev_b32 v{vXo}, 10, v{tA}", f"v_lshl_add_u32 v{vXo}, v{tB}, 3, v{vXo}",
          f"s_lshl_b32 s{sXo}, s{sTm}, 17", f"s_lshr_b32 s{sT}, s{sW}, 1", f"s_lshl_b32 s{sT}, s{sT}, 16", f"s_add_u32 s{sXo}, s{sXo}, s{sT}",
          f"s_lshl_b32 s{sT}, s{sKq}, 14", f"s_add_u32 s{sXo}, s{sXo}, s{sT}", f"s_lshl_b32 s{sT}, s{sTn}, 8", f"s_add_u32 s{sXo}, s{sXo}, s{sT}",
          f"s_and_b32 s{sT}, s{sW}, 1", f"s_lshl_b32 s{sT}, s{sT}, 7", f"s_add_u32 s{sXo}, s{sXo}, s{sT}",
          f"s_lshl_b32 s{sEx}, s2, 15", f"s_lshl_b32 s{sT}, s{sW}, 13", f"s_add_u32 s{sEx}, s{sEx}, s{sT}", f"s_add_u32 s{sEx}, s{sEx}, {WS_EX}",
          f"s_and_b32 s{sT}, s2, 7", f"s_lshl_b32 s{sT}, s{sT}, 2", f"s_bfe_u32 s{sT2}, s2, 0x20003", f"s_add_u32 s{sT}, s{sT}, s{sT2}", f"s_lshl_b32 s{sT}, s{sT}, 7",
          f"s_lshl_b32 s{sT3}, s{sW}, 12", f"s_add_u32 s{sT}, s{sT}, s{sT3}", f"s_add_u32 s{sOw}, s{sT}, {FL_CX}",
          f"s_lshr_b32 s{sT2}, s2, 5", f"s_lshl_b32 s{sT2}, s{sT2}, 14", f"s_sub_u32 s{sT}, {15*16384}, s{sT2}",
          f"v_mov_b32 v19, s{sT2}", f"v_writelane_b32 v19, s{sT}, 1", f"v_mov_b32 v29, 1",
          f"v_and_b32 v{vPo}, 3, v{vL}", f"v_lshlrev_b32 v{vPo}, 7, v{vPo}", f"s_lshl_b32 s{sCx}, s{sCx}, 7", f"s_add_u32 s{sCx}, s{sCx}, s{sT3}",
          f"s_and_b32 s{sT}, s2, 7", f"s_lshl_b32 s{sT}, s{sT}, 9", f"s_add_u32 s{sCx}, s{sCx}, s{sT}", f"s_add_u32 s{sCx}, s{sCx}, {FL_CX}"]
    k = [n for n, x in enumerate(l) if x.startswith(f"s_and_b32 s{sT}, s2, 7")][0]
    l = l[k:] + l[:k]
    late = L(l + srd(S_X, 56, 57, 0x200000) + srd(S_OUT, 62, 63, 0x200000))
    def reads(s):
        b = slot(s); va, vt = vAr[b >> 16], vT[b >> 16]; b &= 0xffff
        o = []
        for c in range(4):
            o += [T(f"ds_read_b128 {ar(128+32*(s%3)+4*c)}, v{va+c} offset:{b}", ('R', s))]
            o += [T(f"ds_read_b64_tr_b16 {ar(128+32*(s%3)+16+4*c+2*t, 2)}, v{vt+c} offset:{b + t*8192}", ('R', s)) for t in range(2)]
        return o
    pre = L(["K3_BEGIN:"]) + prof_begin()
    for s in range(NE, 5): pre += loads(s)
    pre += [Wait(vm=('L', 2)), I("s_barrier")] + reads(0) + reads(1) + stamp(2)
    G = Gaps(16*NS)
    stream = [(0, loads(5) + loads(6))]
    cpoll = f"buffer_load_dword v{vPd}, v{vPo}, {sr(S_WS)}, s{sCx} offen sc1"
    SP_, SC_ = int(os.environ.get("K3PUB", "14")), int(os.environ.get("K3CHK", "7"))
    nxt = 7; S2_ = int(os.environ.get('K3CH2', '21'))
    for s in range(NS):
        g = 16*s
        for c in range(4):
            for r in range(4):
                D = vr(ACC + (r*4+c)*4)
                G.mf[g + c*4 + r] = I(f"{MF} {D}, {ar(128+32*(s%3)+16+4*c)}, {ar(128+32*(s%3)+4*r)}, {'0' if s == 0 else D}")
        G.before(g, Wait(lg=('R', s)))
        if s + 2 < NS:
            if s % 2 == 1:
                G.before(g + 1, Wait(vm=('L', min(s+3, NS-1)))); G.before(g + 1, I("s_barrier"))
                ld = []
                if s == SC_ - 2: ld += [T(cpoll, 'cp')]
                if s == SC_:
                    for x in [Wait(vm='cp')] + L([f"v_cmp_ne_u32 vcc, 1, v{vPd}", "s_cbranch_vccnz K3_CSPIN_E", "K3_COK:"]) + stamp(6): G.before(g + 1, x)
                    stubs += L(["K3_CSPIN_E:"]) + spin("K3_CSPIN", cpoll, vPd, 1, sT) + L(["s_branch K3_COK"])
                if s == S2_ - 4: ld += L([f"s_xor_b32 s{sCx}, s{sCx}, 512"]) + [T(cpoll, 'c2')]
                if s == S2_:
                    for x in [Wait(vm='c2')] + L([f"v_cmp_ne_u32 vcc, 1, v{vPd}", "s_cbranch_vccnz K3_DSPIN_E", "K3_DOK:"]) + stamp(7): G.before(g + 1, x)
                    stubs += L(["K3_DSPIN_E:"]) + spin("K3_DSPIN", cpoll, vPd, 1, sT) + L(["s_branch K3_DOK"])
                lim = min(s + 7, NS - 1 if s >= S2_ else NA + 15) if s >= SC_ else min(s + 7, NA - 1)
                k = 0
                while nxt <= lim and k < 3: ld += loads(nxt); nxt += 1; k += 1
                if s == 29:
                    ld = L([f"s_lshr_b32 s{sT}, s2, 5", f"s_lshl_b32 s{sT}, s{sT}, 14", f"s_lshl_b32 s{sT3}, s{sW}, 12", f"s_add_u32 s{sT}, s{sT}, s{sT3}",
                            f"s_and_b32 s{sT3}, s2, 1", f"s_lshl_b32 s{sT3}, s{sT3}, 9", f"s_add_u32 s{sT}, s{sT}, s{sT3}", f"s_bfe_u32 s{sT3}, s2, 0x20003",
                            f"s_lshl_b32 s{sT3}, s{sT3}, 7", f"s_add_u32 s{sT}, s{sT}, s{sT3}", f"s_add_u32 s{sCx}, s{sT}, {FL_CX}",
                            f"v_and_b32 v{vPo}, 3, v{vL}", f"v_lshlrev_b32 v{vPo}, 10, v{vPo}"]) + [T(cpoll, 'pp')] + ld
                if s == 33:
                    for x in [Wait(vm='pp')] + L([f"v_cmp_ne_u32 vcc, 1, v{vPd}", "s_cbranch_vccnz K3_PSPIN_E", "K3_POK:"]): G.before(g + 1, x)
                    stubs += L(["K3_PSPIN_E:"]) + spin("K3_PSPIN", cpoll, vPd, 1, sT) + L(["s_branch K3_POK"])
                if s == 13: ld += [T(f"buffer_load_dwordx2 {vr(vXv+2*c, 2)}, v{vXo}, {sr(S_X)}, s{sXo} offen offset:{c*32}", 'x') for c in range(4)]
                if ld: stream.append((g + 1, ld))
            for j, x in enumerate(reads(s+2)): G.put(g + 1 + j, x)
    assert nxt == NS
    place_stream(G, stream, int(os.environ.get("K3SP", "3")), start=2)
    for j, x in enumerate(late): G.nv[(j if j < 40 else 2*j)//2].append(x)
    for x in [Wait(vm='cst')] + L(["s_mov_b64 exec, 3", f"buffer_store_dword v29, v19, {sr(S_WS)}, s{sOw} offen sc1", "s_mov_b64 exec, -1"]): G.before(SP_, x)
    fin = stamp(3)
    fin += L([f"s_add_u32 s{sT}, s{sEx}, 4096"])
    for r in range(1, 4):
        for hh in range(2):
            b = ACC + r*16 + hh*8; o = r*2048 + hh*1024
            fin += L([f"v_cvt_pk_bf16_f32 v{b+k}, v{b+2*k}, v{b+2*k+1}" for k in range(4)])
            fin += L([f"buffer_store_dwordx4 {vr(b)}, v{vL16}, {sr(S_WS)}, s{sEx if o < 4096 else sT} offen offset:{o % 4096} sc1"])
    for r in range(1, 4):
        fin += L([f"s_add_u32 s{sT}, s{sKq}, {r}", f"s_and_b32 s{sT}, s{sT}, 3", f"s_sub_u32 s{sT}, s{sT}, s{sKq}", f"s_lshl_b32 s{sT}, s{sT}, 16",
                  f"s_add_u32 s{sSr+r}, s{sEx}, s{sT}", f"s_add_u32 s{sSr+r}, s{sSr+r}, {(4-r)*2048}"])
    for c in range(4):
        for hw in range(2):
            x = vXv + 2*c + hw
            fin += L([f"v_lshlrev_b32 v{WF}, 16, v{x}", f"v_and_b32 v{WF+1}, 0xffff0000, v{x}",
                      f"v_add_f32 v{ACC+4*c+2*hw}, v{ACC+4*c+2*hw}, v{WF}", f"v_add_f32 v{ACC+4*c+2*hw+1}, v{ACC+4*c+2*hw+1}, v{WF+1}"])
    fin += stamp(4) + L([f"s_mov_b32 s{sA}, 0x20000", "K3_XSPIN:"])
    for r in range(1, 4):
        fin += L([f"buffer_load_dwordx4 {vr(RX+((r-1)*2+hh)*4)}, v{vL16}, {sr(S_WS)}, s{sSr+r} offen offset:{hh*1024} sc1" for hh in range(2)])
    fin += L(["s_waitcnt vmcnt(0)", f"v_max3_u32 v{vPd}, v{RX}, v{RX+1}, v{RX+2}"] + [f"v_max3_u32 v{vPd}, v{vPd}, v{RX+k}, v{RX+k+1}" for k in range(3, 23, 2)] +
             [f"v_max_u32 v{vPd}, v{vPd}, v{RX+23}", f"v_cmp_eq_u32 vcc, -1, v{vPd}", "s_cbranch_vccz K3_XOK", "s_sleep 2",
              f"s_sub_u32 s{sA}, s{sA}, 1", "s_cbranch_scc0 K3_XSPIN", "K3_XOK:"]) + stamp(5)
    for k in range(24):
        x = RX + k; t = WF + 2*(k % 2)
        fin += L([f"v_lshlrev_b32 v{t}, 16, v{x}", f"v_and_b32 v{t+1}, 0xffff0000, v{x}",
                  f"v_add_f32 v{ACC+2*(k%8)}, v{ACC+2*(k%8)}, v{t}", f"v_add_f32 v{ACC+2*(k%8)+1}, v{ACC+2*(k%8)+1}, v{t+1}"])
    for c in range(4):
        fin += L([f"v_cvt_pk_bf16_f32 v{vXv+2*c}, v{ACC+4*c}, v{ACC+4*c+1}", f"v_cvt_pk_bf16_f32 v{vXv+2*c+1}, v{ACC+4*c+2}, v{ACC+4*c+3}",
                  f"buffer_store_dwordx2 {vr(vXv+2*c, 2)}, v{vXo}, {sr(S_OUT)}, s{sXo} offen offset:{c*32}"])
    P['main'] = pre + G.linear() + fin + prof_end(2, S_WS, sW, 4, vtmp=56) + L(["K3_END:", "s_endpgm"])
    P['stubs'] = stubs
    return P

NAME = "parallel_sum__compressed_kv_cla__dense_activation_mish__prompt_kernel"
if __name__ == "__main__":
    from gen_k2 import gen_k2
    seq = gen_k2(k3_parts())
    emit([(NAME, 256, 256, 163840, seq, 512, 256)], sys.argv[1] if len(sys.argv) > 1 else "k.s")
```

```python
import math, sys, struct, os
from asmlib import *

WS_XN = 0x0
WS_KF = 0x200000
WS_VF = 0x1200000
WS_CA = 0x2200000
CA_RB = 172*1024
WS_EX = 0x4000000
WS_FL = 0x5000000
WS_SIZE = 0x10000000
SCALE = math.log2(math.e) / math.sqrt(128.0)
def f2u(f): return struct.unpack('<I', struct.pack('<f', f))[0]
MF = "v_mfma_f32_16x16x32_bf16"
def vr(b, n=4): return f"v[{b}:{b+n-1}]"
def ar(b, n=4): return f"a[{b}:{b+n-1}]"
def sr(b, n=4): return f"s[{b}:{b+n-1}]"
def L(lines): return [I(x) if isinstance(x, str) else x for x in lines]

def srd(d, lo, hi, size):
    return [f"s_mov_b32 s{d}, s{lo}", f"s_mov_b32 s{d+1}, s{hi}",
            f"s_mov_b32 s{d+2}, {size}" , f"s_mov_b32 s{d+3}, 0x00020000"]
def srd_off(d, lo, hi, soff, size):
    return [f"s_add_u32 s{d}, s{lo}, s{soff}\n    s_addc_u32 s{d+1}, s{hi}, 0", f"s_sub_u32 s{d+2}, {size}, s{soff}", f"s_mov_b32 s{d+3}, 0x00020000"]

PROF = bool(os.environ.get("PROF"))
STF = os.environ.get("STF", " sc1")
FUSED = os.environ.get("FUSED", "1") == "1"
LDF = " sc1" if FUSED else ""
FL_KV, FL_AC, FL_CX, FL_EX = WS_FL, WS_FL + 0x1000, WS_FL + 0x40000, WS_FL + 0x80000
STX = os.environ.get("STX", " sc1")
STF2 = os.environ.get("STF2", " sc1")
WS_PROF = 0xF000000
NSTAMP = 12
def stamp(k):
    return [I(f"s_memtime s[{72+2*k}:{73+2*k}]")] if PROF else []
def prof_begin():
    return ([I("s_memrealtime s[96:97]")] + [x for k in range(NSTAMP) for x in stamp(k)]) if PROF else []
def prof_end(kidx, S_WS, sW, nwaves, vtmp=0, drain=True):
    if not PROF: return []
    o = L((["s_waitcnt vmcnt(0)"] if drain else []) + ["s_memrealtime s[98:99]"]) + stamp(NSTAMP-1) + L(["s_waitcnt lgkmcnt(0)",
          f"s_mul_i32 s70, s2, {nwaves}", f"s_add_u32 s70, s70, s{sW}", "s_lshl_b32 s70, s70, 6",
          f"s_add_u32 s70, s70, {WS_PROF + kidx*0x40000}", f"v_mov_b32 v{vtmp+16}, 0"])
    regs = [96, 98] + [72+2*k for k in range(NSTAMP)] + [97, 99]
    for j, rg in enumerate(regs): o += L([f"v_mov_b32 v{vtmp+j}, s{rg}"])
    for j in range(4):
        o += L([f"buffer_store_dwordx4 {vr(vtmp+4*j)}, v{vtmp+16}, {sr(S_WS)}, s70 offen offset:{16*j}"])
    return o

def code_prefetch(label, here, wide, vdst, vaddr, sp, st, vtid=0):
    sh = 3 if wide else 2
    o = [f"s_getpc_b64 s[{sp}:{sp+1}]", f"{here}:"]
    if label is not None:
        o += [f"s_add_u32 s{sp}, s{sp}, {label}-{here}\n    s_addc_u32 s{sp+1}, s{sp+1}, 0"]
    o += [f"s_bfe_u32 s{st}, s2, 0x50003", f"s_lshl_b32 s{st}, s{st}, {8+sh}", f"v_lshlrev_b32 v{vaddr}, {sh}, v{vtid}", f"v_add_u32 v{vaddr}, s{st}, v{vaddr}",
          f"global_load_dwordx2 {vr(vdst, 2)}, v{vaddr}, s[{sp}:{sp+1}]" if wide else f"global_load_dword v{vdst}, v{vaddr}, s[{sp}:{sp+1}]"]
    return L(o)

def one_lane(ins, sW, lab, stmp):
    return L([f"s_cmp_lg_u32 s{sW}, 0\n    s_cbranch_scc1 {lab}\n    s_mov_b64 exec, 1"]) + ins + L(["s_mov_b64 exec, -1", f"{lab}:"])
def spin(lab, load, vdst, want, scnt):
    return L([f"s_mov_b32 s{scnt}, 0x40000", f"{lab}:", load, "s_waitcnt vmcnt(0)", f"v_cmp_ne_u32 vcc, {want}, v{vdst}", f"s_cbranch_vccz {lab}_ok",
              f"s_sleep {os.environ.get('SLP', '1')}", f"s_sub_u32 s{scnt}, s{scnt}, 1", f"s_cbranch_scc0 {lab}", f"{lab}_ok:"])

def red32(v, t):
    dpp = " row_mask:0xf bank_mask:0xf"
    return [f"v_add_f32_dpp v{v}, v{v}, v{v} quad_perm:[1,0,3,2]{dpp}",
            f"v_add_f32_dpp v{v}, v{v}, v{v} quad_perm:[2,3,0,1]{dpp}",
            f"v_add_f32_dpp v{v}, v{v}, v{v} row_half_mirror{dpp}",
            f"v_add_f32_dpp v{v}, v{v}, v{v} row_mirror{dpp}",
            f"v_mov_b32 v{t}, v{v}",
            f"v_permlane16_swap_b32 v{t}, v{v}",
            f"v_add_f32 v{v}, v{v}, v{t}"]

def w_dma_voff(vlane, vd0, vd1, pitch, t1, t2):
    return [f"v_bfe_u32 v{t1}, v{vlane}, 4, 1", f"v_lshlrev_b32 v{t1}, 1, v{t1}", f"v_and_b32 v{t2}, 7, v{vlane}",
            f"v_xor_b32 v{t1}, v{t1}, v{t2}", f"v_lshlrev_b32 v{t1}, 4, v{t1}",
            f"v_lshrrev_b32 v{t2}, 3, v{vlane}", f"v_mul_u32_u24 v{t2}, {pitch}, v{t2}",
            f"v_add_u32 v{vd0}, v{t1}, v{t2}", f"v_xor_b32 v{t1}, 64, v{t1}", f"v_add_u32 v{vd1}, v{t1}, v{t2}",
            f"v_add_u32 v{vd1}, {8*pitch-1024}, v{vd1}"]
def w_tr_addr(vlane, vT, t1, t2):
    o = [f"v_lshrrev_b32 v{t1}, 4, v{vlane}", f"v_lshlrev_b32 v{t1}, 10, v{t1}",
         f"v_bfe_u32 v{t2}, v{vlane}, 2, 2", f"v_lshl_add_u32 v{t1}, v{t2}, 7, v{t1}",
         f"v_and_b32 v{t2}, 3, v{vlane}", f"v_lshl_add_u32 v{t1}, v{t2}, 3, v{t1}",
         f"v_bfe_u32 v{t2}, v{vlane}, 3, 2",
         f"v_lshl_add_u32 v{vT}, v{t2}, 5, v{t1}"]
    for cb in range(1, 4): o += [f"v_xor_b32 v{vT+cb}, {cb*32}, v{vT}"]
    return o

def gemm_groups(G, g0, groups, WF, pre, nbuf=2):
    starts = []; g = g0
    for gr in groups:
        starts.append(g); g += len(gr['frags'])*len(gr['chains'])
    for n, gr in enumerate(groups):
        CH = len(gr['frags'])
        base = WF + (n % nbuf)*4*gr.get('bufsz', CH)
        tagid = gr.setdefault('id', (g0, n))
        reads = []
        for j, (va, off) in enumerate(gr['frags']):
            for t in range(2):
                reads.append(T(f"ds_read_b64_tr_b16 {vr(base+4*j+2*t,2)}, v{va} offset:{off+t*512}", ('wf', tagid, j)))
        if n == 0:
            pre.extend(gr.get('sync') or []); pre.extend(reads); gr['syncgap'] = None
        else:
            ps = starts[n-1]; plen = starts[n] - ps
            first = ps + 1
            for x in (gr.get('sync') or []): G.before(first, x)
            gr['syncgap'] = first
            span = max(len(reads), (plen*3)//4 - 1)
            for i, x in enumerate(reads): G.put(first + (i*span)//len(reads), x)
        gg = starts[n]
        gr['made'] = list(reads)
        for c, ch in enumerate(gr['chains']):
            for j in range(CH):
                G.mf[gg] = I(ch[j](base + 4*j)); gr['made'].append(G.mf[gg])
                if c == 0 and (j % 2 == 0):
                    gr['made'].append(G.before(gg, Wait(lg=[('wf', tagid, min(j+1, CH-1))] + (gr.get('lgwait', []) if j == 0 else []))))
                gg += 1
    return starts, g

def place_stream(G, groups, spacing, start=2):
    cur = start; last = start - 2
    for (e, ins) in groups:
        cur = max(cur, e + 2); last = max(last, e)
        pend = []
        for x in ins:
            if x.kind != 'vmem': pend.append(x); continue
            for j, y in enumerate(pend): G.nv[max(last, cur - len(pend) + j)].append(y)
            pend = []
            G.put(cur, x); last = cur; cur += spacing
    return cur

def spread(G, ins, g0, g1):
    for j, x in enumerate(ins):
        g = g0 + (j*(g1-g0))//len(ins)
        if x.kind == 'vmem' and not x.wr: G.put(g+1, x)
        else: G.put(g, x)

def mlp_slot(d, h, t):
    return [f"s_and_b32 s{t}, s{h}, 3", f"s_max_u32 s{t}, s{t}, 1", f"s_lshr_b32 s{d}, s{h}, 2", f"s_mul_i32 s{d}, s{d}, 3", f"s_add_u32 s{d}, s{d}, s{t}", f"s_sub_u32 s{d}, s{d}, 1"]
def KACC(db, mb):
    return ((96, 64)[db % 2] + (db//4)*64 + ((db//2) % 2)*16) + mb*4
def k_epilogue(js, sSc):
    o = []
    for mb in range(4):
        D0, D1 = KACC(2*js, mb), KACC(2*js+1, mb)
        o += L([f"v_mul_f32 v{D+r}, s{sSc}, v{D+r}" for D in (D0, D1) for r in range(4)])
        o += L([f"v_cvt_pk_bf16_f32 v{D0}, v{D0}, v{D0+1}", f"v_cvt_pk_bf16_f32 v{D0+1}, v{D0+2}, v{D0+3}",
                f"v_cvt_pk_bf16_f32 v{D0+2}, v{D1}, v{D1+1}", f"v_cvt_pk_bf16_f32 v{D0+3}, v{D1+2}, v{D1+3}"])
    return o
def gen_k1(early=None):
    S_CKV, S_WK, S_WV, S_WS, S_X = 4, 8, 12, 16, 20
    sW, sH, sR = 24, 25, 26
    sV = 52
    sAk, sWk = 40, 48
    sAm, sWm, sT, sT2, sFl, sSc, sLN, sH8 = 56, 57, 58, 59, 60, 61, 62, 63
    vL, vL16 = 2, 3
    vAD = 4; vAR = 8; vWD = 10; vT = 12; vTh = 16
    WF = 32; ACCK = 64; EP = 192; AR = 128
    DSL = (lambda l: l[1] - l[0])(eval(os.environ.get('SL', '[0,2,4,6,1,3,5,7]')))
    pre = prof_begin()
    pre += L(["s_load_dwordx4 s[28:31], s[0:1], 0", "s_load_dwordx4 s[32:35], s[0:1], 24", "s_load_dwordx2 s[36:37], s[0:1], 96",
              "s_load_dwordx2 s[54:55], s[0:1], 16", "s_load_dwordx4 s[64:67], s[0:1], 56", "s_load_dwordx2 s[68:69], s[0:1], 88",
              "s_cmp_ge_u32 s2, 256", "s_cbranch_scc1 K3_END" if FUSED else "s_cbranch_scc1 K1_END"])
    pre += code_prefetch(None, "K1_PC", False, 21, 24, 38, 27)
    pre += L(["v_lshrrev_b32 v1, 6, v0", f"v_and_b32 v{vL}, 63, v0", f"v_readfirstlane_b32 s{sW}, v1",
              f"v_lshlrev_b32 v{vL16}, 4, v{vL}",
              f"s_and_b32 s{sT}, s2, 7", f"s_lshl_b32 s{sT}, s{sT}, 2", f"s_bfe_u32 s{sT2}, s2, 0x20003",
              f"s_add_u32 s{sH}, s{sT}, s{sT2}", f"s_lshr_b32 s{sR}, s2, 5"])
    pre += L([f"v_lshrrev_b32 v24, 5, v{vL}", f"v_and_b32 v25, 31, v{vL}", "v_lshlrev_b32 v26, 10, v24",
              "v_lshl_add_u32 v26, v25, 5, v26",
              "v_lshlrev_b32 v27, 9, v25", "v_lshl_add_u32 v27, v24, 4, v27"])
    pre += L([f"v_lshrrev_b32 v24, 4, v{vL}", f"v_and_b32 v25, 7, v{vL}", "v_xor_b32 v24, v24, v25", "v_lshlrev_b32 v24, 4, v24",
              f"v_lshrrev_b32 v25, 3, v{vL}", f"v_lshl_add_u32 v{vAD}, v25, 10, v24",
              f"v_xor_b32 v{vAD+1}, 64, v{vAD}", f"v_add_u32 v{vAD+1}, {8192-1024}, v{vAD+1}",
              ])
    pre += L(w_dma_voff(vL, vWD, vWD+1, 8192, 24, 25))
    pre += L([f"s_lshl_b32 s{sT}, s{sR}, 18", f"s_lshl_b32 s{sT2}, s{sW}, 16", f"s_add_u32 s{sT}, s{sT}, s{sT2}",
              f"s_lshl_b32 s{sT2}, s{sW}, 14", f"s_add_u32 s{sT2}, s{sT2}, 98304"])
    for o in range(4):
        pre += L([f"s_add_u32 s27, s{sH}, {o}", "s_and_b32 s27, s27, 3", f"s_lshl_b32 s{sAk+o}, s27, 14", f"s_add_u32 s{sAk+o}, s{sAk+o}, s{sT}",
                  f"s_lshl_b32 s{sAk+4+o}, s27, 11", f"s_add_u32 s{sAk+4+o}, s{sAk+4+o}, s{sT2}"])
    pre += L([f"s_lshl_b32 s{sWk}, s{sW}, 17",
              f"s_lshr_b32 s27, s2, 3", "s_lshl_b32 s27, s27, 2", f"s_add_u32 s27, s27, s{sW}", f"s_and_b32 s{sWk+1}, s27, 63", f"s_lshl_b32 s{sWk+1}, s{sWk+1}, 13",
              "s_lshr_b32 s27, s27, 6", f"s_mul_i32 s27, s27, {DSL*64*8192}", f"s_add_u32 s{sWk+1}, s{sWk+1}, s27",
              f"s_and_b32 s27, s{sH}, 3", "s_lshl_b32 s27, s27, 8", f"s_sub_u32 s{sWk+1}, s{sWk+1}, s27"])
    pre += L([f"s_lshl_b32 s{sAm}, s{sW}, 14", f"s_add_u32 s{sAm}, s{sAm}, 98304", f"s_lshl_b32 s{sWm}, s{sW}, 11",
              f"s_lshl_b32 s{sH8}, s{sH}, 8", f"s_and_b32 s{sFl}, s{sR}, 1", f"s_lshl_b32 s{sFl}, s{sFl}, 7",
              f"s_lshl_b32 s{sT}, s2, 3", f"s_lshl_b32 s{sT2}, s{sW}, 1", f"s_add_u32 s{sT}, s{sT}, s{sT2}", f"s_lshl_b32 s{sLN}, s{sT}, 10"])
    pre += L(["s_waitcnt lgkmcnt(0)"]) + stamp(1)
    pre += L(srd(S_CKV, 30, 31, 0x200000))
    SL = eval(os.environ.get('SL', '[0,2,4,6,1,3,5,7]'))
    assert all(SL[2*k+1] - SL[2*k] == SL[1] - SL[0] for k in range(4))
    def dmaA(s, os_):
        o = []
        for k in os_:
            o += [I(f"s_add_u32 m0, s{sAk+4+k}, {(s % 2)*8192}"), I(f"s_add_u32 s{sT}, s{sAk+k}, {SL[s]*128}"),
                  T(f"buffer_load_dwordx4 v{vAD}, {sr(S_CKV)}, s{sT} offen lds", ('A', s)),
                  T(f"buffer_load_dwordx4 v{vAD+1}, {sr(S_CKV)}, s{sT} offen offset:1024 lds", ('A', s))]
        return o
    own = lambda s: dmaA(s, [0]); rest = lambda s: dmaA(s, [1, 2, 3])
    def pfW(sd, st):
        return L([f"s_add_u32 s{sT2}, s{sWk+1}, {SL[2*st]*64*8192}", f"buffer_load_dwordx4 v[20:23], v{vL16}, {sr(sd)}, s{sT2} offen" + (" nt" if st < int(os.environ.get("NTS", "2")) else "")])
    def dmaUT(sd, ksl, ch, ldsoff, tag):
        return [I(f"s_add_u32 m0, s{sWm}, {ldsoff}"), I(f"s_add_u32 s{sT2}, s{sWk}, {SL[ksl]*64*8192 + ch*128}"),
                T(f"buffer_load_dwordx4 v{vWD}, {sr(sd)}, s{sT2} offen lds", tag),
                T(f"buffer_load_dwordx4 v{vWD+1}, {sr(sd)}, s{sT2} offen offset:1024 lds", tag)]
    kslot = lambda p, u: ((p % 6)*2 + u)*8192
    def dmaWP(p): return [x for u in range(2) for x in dmaUT(S_WV if p % 4 < 2 else S_WK, (p//4)*2 + u, p % 2, kslot(p, u), ('W', p))]
    warm = L([f"buffer_load_dwordx4 v[20:23], v{vL16}, {sr(S_CKV)}, s{sLN} offen", f"buffer_load_dwordx4 v[20:23], v{vL16}, {sr(S_CKV)}, s{sLN} offen offset:1024"])
    lnld = [T(f"buffer_load_dwordx4 v[192:195], v26, {sr(S_X)}, s{sLN} offen", 'ln'),
            T(f"buffer_load_dwordx4 v[196:199], v26, {sr(S_X)}, s{sLN} offen offset:16", 'ln')]
    ORD = os.environ.get("ORD", "a")
    pfA1 = L([f"v_lshrrev_b32 v24, 3, v{vL}", "v_lshlrev_b32 v24, 10, v24", f"v_and_b32 v25, 7, v{vL}", "v_lshl_add_u32 v24, v25, 4, v24"])
    for sl in (2, 3):
        for k in range(2): pfA1 += L([f"s_add_u32 s{sT}, s{sAk}, {SL[sl]*128 + k*8192}", f"buffer_load_dwordx4 v[20:23], v24, {sr(S_CKV)}, s{sT} offen"])
    pre += (warm if ORD == "a" else []) + own(0) + own(1)
    pre += L(srd_off(S_WV, 34, 35, sH8, 0x400000))
    pre += pfW(S_WV, 0)
    pre += L(srd(S_X, 28, 29, 0x200000) + srd_off(S_WK, 32, 33, sH8, 0x400000))
    if ORD == "e": pre += pfW(S_WK, 0) + pfA1 + pfW(S_WV, 1) + pfW(S_WK, 1) + rest(0) + dmaWP(0) + rest(1)
    else: pre += rest(0) + dmaWP(0) + rest(1) + pfW(S_WK, 0)
    pre += dmaWP(1) + lnld + stamp(2)
    if os.environ.get("K1DIAG"):
        for k, n in enumerate((27, 24, 23, 17, 13, 7, 6, 2, 0)):
            pre += L([f"s_waitcnt vmcnt({n})"]) + stamp(3+k if k < 8 else 10)
    pre += L(srd(S_WS, 36, 37, WS_SIZE))
    pre += L(w_tr_addr(vL, vT, 24, 25)) + L([f"v_add_u32 v{vTh+c}, 0x10000, v{vT+c}" for c in range(4)])
    pre += L([f"v_and_b32 v24, 15, v{vL}", f"v_bfe_u32 v25, v{vL}, 1, 3", f"v_lshrrev_b32 v1, 4, v{vL}", "v_xor_b32 v25, v25, v1",
              "v_lshlrev_b32 v25, 4, v25", "v_lshl_add_u32 v24, v24, 7, v25", f"v_add_u32 v{vAR}, s{sAm}, v24",
              f"v_xor_b32 v{vAR+1}, 64, v{vAR}"])
    svs = L([f"s_lshl_b32 s{sV}, s{sH}, 19", f"s_lshl_b32 s27, s{sR}, 16", f"s_add_u32 s{sV}, s{sV}, s27", f"s_lshl_b32 s27, s{sW}, 14", f"s_add_u32 s{sV}, s{sV}, s27",
             f"s_add_u32 s{sV}, s{sV}, {WS_VF}"] + [f"s_add_u32 s{sV+j}, s{sV}, {j*4096}" for j in range(1, 4)])
    pre += L([f"s_mov_b32 s{sSc}, {f2u(SCALE):#x}"])
    X = 208; R0 = 192; m, t, d, q = 200, 201, 202, 203
    ln = []
    for j in range(8):
        ln += L([f"v_lshlrev_b32 v{X+2*j}, 16, v{R0+j}", f"v_and_b32 v{X+2*j+1}, 0xffff0000, v{R0+j}"])
    ln += L([f"v_add_f32 v{m}, v{X}, v{X+1}"] + [f"v_add_f32 v{m}, v{m}, v{X+j}" for j in range(2, 16)])
    ln += L(red32(m, t))
    ln += L([f"v_mul_f32 v{m}, 0x3b000000, v{m}"])
    ln += L([f"v_sub_f32 v{d}, v{X}, v{m}", f"v_mul_f32 v{q}, v{d}, v{d}"])
    for j in range(1, 16):
        ln += L([f"v_sub_f32 v{d}, v{X+j}, v{m}", f"v_fmac_f32 v{q}, v{d}, v{d}"])
    ln += L(red32(q, t))
    ln += L([f"v_mul_f32 v{q}, 0x3b000000, v{q}", f"v_cvt_pk_bf16_f32 v{m}, v{m}, v{q}",
             f"v_and_b32 v{q}, 0xffff0000, v{m}", f"v_lshlrev_b32 v{m}, 16, v{m}",
             f"v_add_f32 v{q}, {f2u(1e-5):#x}, v{q}", f"v_cvt_pk_bf16_f32 v{q}, v{q}, v{q}", f"v_lshlrev_b32 v{q}, 16, v{q}",
             f"v_sqrt_f32 v{q}, v{q}", f"v_cvt_pk_bf16_f32 v{q}, v{q}, v{q}", f"v_lshlrev_b32 v{q}, 16, v{q}",
             f"v_rcp_f32 v{q}, v{q}"])
    for j in range(8):
        a, b = X+2*j, X+2*j+1
        ln += L([f"v_sub_f32 v{a}, v{a}, v{m}", f"v_sub_f32 v{b}, v{b}, v{m}", f"v_cvt_pk_bf16_f32 v{a}, v{a}, v{b}",
                 f"v_and_b32 v{b}, 0xffff0000, v{a}", f"v_lshlrev_b32 v{a}, 16, v{a}",
                 f"v_mul_f32 v{a}, v{a}, v{q}", f"v_mul_f32 v{b}, v{b}, v{q}", f"v_cvt_pk_bf16_f32 v{R0+j}, v{a}, v{b}"])
    ln2 = []
    LX = kslot(5, 0)
    lnw = L([f"s_lshl_b32 s50, s{sW}, 11", f"s_add_u32 s50, s50, {LX}", "v_add_u32 v26, s50, v26",
             f"ds_write_b128 v26, {vr(R0)}", f"ds_write_b128 v26, {vr(R0+4)} offset:16",
             f"v_and_b32 v24, 7, v{vL}", f"v_lshrrev_b32 v25, 3, v{vL}", "v_lshlrev_b32 v26, 10, v24", "v_lshl_add_u32 v26, v25, 4, v26",
             f"s_lshl_b32 s50, s{sW}, 8", f"s_add_u32 s50, s50, {LX}", "v_add_u32 v26, s50, v26",
             "v_lshlrev_b32 v27, 8, v25", "v_lshl_add_u32 v27, v24, 4, v27"])
    lnw[4].tag = 'lnw'
    ln2 += [T(f"ds_read_b128 {vr(R0)}, v26", 'lnr'), T(f"ds_read_b128 {vr(R0+4)}, v26 offset:128", 'lnr')]
    ln2 += L([f"s_lshr_b32 s{sT}, s2, 1", f"s_lshl_b32 s{sT}, s{sT}, 14", f"s_and_b32 s{sT2}, s2, 1", f"s_lshl_b32 s{sT2}, s{sT2}, 7",
             f"s_add_u32 s{sT}, s{sT}, s{sT2}", f"s_lshl_b32 s{sT2}, s{sW}, 12", f"s_add_u32 s{sT}, s{sT}, s{sT2}"])
    ln2 += [Wait(lg='lnr')]
    ln2 += L([f"buffer_store_dwordx4 {vr(R0)}, v27, {sr(S_WS)}, s{sT} offen offset:{WS_XN}{STX}",
              f"buffer_store_dwordx4 {vr(R0+4)}, v27, {sr(S_WS)}, s{sT} offen offset:{WS_XN+2048}{STX}"])
    ln2 += L([f"s_lshl_b32 s{sT}, s{sH}, 7", f"s_lshl_b32 s{sT2}, s{sR}, 2", f"s_add_u32 s{sT}, s{sT}, s{sT2}", f"s_add_u32 s{sT}, s{sT}, {FL_KV}", f"v_mov_b32 v24, s{sT}",
              f"s_lshl_b32 s{sT}, s{sR}, 7", f"s_lshl_b32 s{sT2}, s{sH}, 2", f"s_add_u32 s27, s{sT}, s{sT2}", f"s_add_u32 s27, s27, {FL_AC}", "v_writelane_b32 v24, s27, 1",
              f"s_sub_u32 s27, s{sT2}, s{sT}", f"s_add_u32 s27, s27, {FL_AC + 15*128}", "v_writelane_b32 v24, s27, 2",
              f"s_lshl_b32 s27, s{sW}, 7", f"s_add_u32 s{sT2}, s{sT2}, s27", f"s_lshl_b32 s{sT2}, s{sT2}, 5", f"s_lshl_b32 s{sT}, s{sT}, 7",
              f"s_add_u32 s27, s{sT}, s{sT2}", f"s_add_u32 s27, s27, {FL_CX}", "v_writelane_b32 v24, s27, 3",
              f"s_sub_u32 s27, s{sT2}, s{sT}", f"s_add_u32 s27, s27, {FL_CX + 15*16384}", "v_writelane_b32 v24, s27, 4",
              "v_mov_b32 v25, 0", T(f"buffer_store_dword v25, v24, {sr(S_WS)}, 0 offen sc1", 'lnst'),
              "s_mov_b32 s70, 256", "s_mov_b32 s71, 0x00020000", "v_mov_b32 v26, 1"])
    ln2 = [x if isinstance(x, Wait) else I(x.text.replace(f's{sT2}', 's51').replace(f's{sT}', 's50'), x.tag) for x in ln2]
    kacc = lambda db, mb: KACC(db, mb)
    afr = lambda st, mb, j: ar(AR + (st % 2)*64 + (mb*4 + j)*4)
    def readA(s):
        return [T(f"ds_read_b128 {afr(s//2, mb, (s % 2)*2 + k)}, v{vAR+k} offset:{(s % 2)*8192 + mb*2048}", ('Ar', s))
                for mb in range(4) for k in range(2)]
    pre += [Wait(vm=('A', 0))] + readA(0) + [Wait(vm=('A', 1))] + readA(1) + (stamp(5) if not os.environ.get('K1DIAG') else [])
    groups = []
    for p in range(16):
        st, cq = p//4, p % 4
        for cb in range(4):
            db = (cq % 2)*4 + cb
            fr = []
            for j in range(4):
                o = kslot(p, j//2) + (j % 2)*4096
                fr.append(((vT, vTh)[o >> 16] + cb, o & 0xffff))
            chains = []
            for mb in range(4):
                if cq >= 2:
                    D = vr(kacc(db, mb))
                    chains.append([(lambda f, D=D, a=afr(st, mb, j), z=(st == 0 and j == 0): f"{MF} {D}, {vr(f)}, {a}, {'0' if z else D}") for j in range(4)])
                else:
                    D = ar((db*4 + mb)*4)
                    chains.append([(lambda f, D=D, a=afr(st, mb, j), z=(st == 0 and j == 0): f"{MF} {D}, {a}, {vr(f)}, {'0' if z else D}") for j in range(4)])
            gr = dict(frags=fr, chains=chains)
            if cb == 0:
                gr['sync'] = [Wait(vm=('W', p)), I("s_barrier")]; gr['pair'] = p
                if cq == 0: gr['lgwait'] = [('Ar', 2*st+1)]
            groups.append(gr)
    G = Gaps(1024)
    starts, gend = gemm_groups(G, 0, groups, WF, pre)
    assert gend == 1024
    bar = {gr['pair']: gr['syncgap'] for gr in groups if 'pair' in gr}
    WL = int(os.environ.get('WL', '3'))
    ev = [(4*k, dmaWP(2+k)) for k in range(WL-1)]
    for st in range(3):
        g = 256*st
        ev += [(g, own(2*st+2) + own(2*st+3))]
        if st == 0 and ORD != 'e': ev += [(g + 10, pfW(S_WV, 1) + pfW(S_WK, 1))]
        if st < 2: ev += [(g + int(os.environ.get('PW', '150')), pfW(S_WV, st+2) + pfW(S_WK, st+2))]
        ev += [(g + 70, rest(2*st+2)), (g + 125, rest(2*st+3))]
        for k in range(2):
            gr_ = g + 196 + 26*k
            G.before(gr_, Wait(vm=('A', 2*st+2+k)))
            for j, x in enumerate(readA(2*st+2+k)): G.put(gr_ + 2*j, x)
    for p in range(1, 16-WL): ev += [(bar[p] if p + WL != 5 else max(bar[p], bar[3]), dmaWP(p+WL))]
    ev.sort(key=lambda e: e[0])
    end = place_stream(G, ev, int(os.environ.get("SP", "4")), start=2)
    print("K1 dma stream ends at gap", end)
    G.before(3, Wait(vm='ln'))
    spread(G, ln, 3, 92)
    for j, x in enumerate(lnw): G.va[92 + j].append(x)
    G.pre[bar[2]].insert(0, Wait(lg='lnw'))
    for j, x in enumerate(ln2): G.nv[bar[2] + j].append(x)
    if FUSED:
        for x in one_lane([T("buffer_atomic_add v26, v25, s[68:71], 0 offen sc1", 'NOCOUNT')], sW, "K1_SIG", sT): G.nv[bar[4]].append(x)
        G.pre[bar[4]].insert(0, Wait(vm='lnst'))
        for j, x in enumerate(svs): G.nv[600 + j].append(x)
        EG = int(os.environ.get("EG", "860"))
        G.put(EG - 60, T("buffer_load_dword v27, v25, s[68:71], 0 offen sc1", 'lnc'))
        for x in [Wait(vm='lnc')] + L(["s_movk_i32 s60, 0x100", "v_cmp_gt_u32 vcc, s60, v27", "s_cbranch_vccnz K1_LNSPIN_E", "K1_LNOK:"]): G.before(EG, x)
        sp = spin("K1_LNSPIN", "buffer_load_dword v27, v25, s[68:71], 0 offen sc1", 27, "s60", 59)
        lnstub = L(["K1_LNSPIN_E:"]) + [I(x.text.replace("v_cmp_ne_u32", "v_cmp_gt_u32")) for x in sp] + L(["s_branch K1_LNOK"])
        for j, x in enumerate(early['setup']): G.nv[776 + (j*(EG-778))//len(early['setup'])].append(x)
        place_stream(G, [(EG, early['regloads']), (bar[15], early['dma'])], int(os.environ.get("ESP", "5")), start=EG)
        XG = int(os.environ.get("XG", "0"))
        if XG:
            G.put(XG - 40, T("buffer_load_dword v27, v25, s[68:71], 0 offen sc1", 'lnc0'))
            xp = [Wait(vm='lnc0')] + L(["v_readfirstlane_b32 s52, v27", "s_bfe_u32 s53, s2, 0x50003", "s_lshl_b32 s53, s53, 16", f"s_lshl_b32 s54, s{sW}, 14", "s_add_u32 s53, s53, s54",
                                        "s_cmp_eq_u32 s52, 0x100\n    s_cselect_b32 s53, s53, 0x10000000"])
            for k in range(16):
                if k and k % 4 == 0: xp += L(["s_add_u32 s53, s53, 4096"])
                xp += L([f"buffer_load_dwordx4 v[20:23], v{vL16}, {sr(S_WS)}, s53 offen offset:{(k % 4)*1024} sc1"])
            g = XG
            for x in xp:
                G.nv[g].append(x); g += 8 if x.kind == 'vmem' else 1
    pf = L(srd_off(S_X, 54, 55, sH8, 0x400000) + mlp_slot(sT, sH, 27) + [f"s_lshl_b32 s{sT}, s{sT}, 7"] + srd_off(28, 64, 65, sT, 512*2752))
    pf += L([
             f"v_lshrrev_b32 v26, 3, v{vL}", "v_mul_u32_u24 v26, 2752, v26", f"v_and_b32 v1, 7, v{vL}", "v_lshl_add_u32 v26, v1, 4, v26",
             f"s_lshl_b32 s{sT}, s{sR}, 2", f"s_add_u32 s{sT}, s{sT}, s{sW}", f"s_mul_i32 s{sT2}, s{sT}, {16*2752}",
             f"s_lshr_b32 s{sT}, s2, 3", f"s_lshl_b32 s{sT}, s{sT}, 2", f"s_add_u32 s{sT}, s{sT}, s{sW}", f"s_lshl_b32 s{sT}, s{sT}, 15",
             f"s_and_b32 s27, s{sH}, 3", "s_lshl_b32 s27, s27, 8", f"s_sub_u32 s{sT}, s{sT}, s27"])
    for k in range(4):
        pf += L([f"buffer_load_dwordx4 v[20:23], v{vL16}, {sr(S_X)}, s{sT} offen", f"s_add_u32 s{sT}, s{sT}, 8192"])
    for k in range(2):
        pf += L([f"buffer_load_dwordx4 v[20:23], v26, {sr(28)}, s{sT2} offen", f"s_add_u32 s{sT2}, s{sT2}, {8*2752}"])
    pf = [I(x.text.replace(f"s{sT2}", "s53").replace(f"s{sT}", "s52")) for x in pf]
    pf += code_prefetch("K2_BEGIN" if FUSED else "attn_kernel", "K1_PC2", True, 20, 24, 38, 27)
    g = int(os.environ.get('PFG', '420'))
    for x in pf:
        G.nv[g].append(x); g += 4 if x.kind == 'vmem' else (0 if x.kind == 'label' or x.op == 's_getpc_b64' else 1)
    assert g < 1000
    for db in range(8):
        ins = []
        for ks in range(2):
            t = EP + ((db*2 + ks) % 8)*8
            ins += L([f"v_accvgpr_read_b32 v{t+k}, a{(db*4 + 2*ks)*4 + k}" for k in range(8)])
            ins += L([f"v_cvt_pk_bf16_f32 v{t+k}, v{t+2*k}, v{t+2*k+1}" for k in range(4)])
            ins += L([f"buffer_store_dwordx4 {vr(t)}, v{vL16}, {sr(S_WS)}, s{sV+db//2} offen offset:{(db%2)*2048 + ks*1024}{STF}"])
        spread(G, ins, 790 + 28*db, 790 + 28*db + 27)
    spread(G, k_epilogue(0, sSc) + k_epilogue(1, sSc), 964, 1022)
    tail = []
    assert FUSED
    if os.environ.get("K1FINE"):
        seq = list(pre)
        for p in range(8): seq += stamp(2+p) + G.linear(128*p, 128*p+128)
        seq += stamp(10) + tail + prof_end(0, S_WS, 28, 4, vtmp=32, drain=False)
    else:
        if os.environ.get("K1DIAG"): stamp_ = lambda k: []
        else: stamp_ = stamp
        seq = pre + stamp_(6) + G.linear(0, 64) + stamp_(7) + G.linear(64, 512) + stamp_(8) + G.linear(512, 1024) + stamp_(9) + tail + stamp_(10) + prof_end(0, S_WS, 28, 4, vtmp=32, drain=False)
    if FUSED:
        seq += L(["s_barrier"])
        if os.environ.get("PFD", "0") == "1":
            k = 0
            for n, x in enumerate(seq):
                if x.text.startswith("buffer_load_dwordx4 v[20:23]"):
                    seq[n] = I(x.text.replace("v[20:23]", vr(224 + 4*(k % 8))), x.tag); k += 1
        return seq, lnstub
    seq = resolve_waits(seq)
    seq, n = fix_hazards(seq)
    print("K1: instrs", len(seq), "nops", n)
    return seq + L(["K1_END:", "s_endpgm"])

DOC = """; One persistent launch, 256 workgroups x 4 waves (one wave per SIMD, 512 registers, 160 KB LDS); generated by the author's scheduler script.
; d_debug[0] counts the workgroups that have done so.  Every wait loop is bounded."""
def emit(kernels, path):
    hdr = open('parallel_sum__compressed_kv_cla__dense_activation_mish__prompt.s.ref').read().split('\n')
    out = [l for l in hdr[:14]]
    for (name, grid, block, lds, seq, nv, acc) in kernels:
        if len(kernels) == 1 and os.environ.get("PLAIN"): out.append(f"; @launch grid=({grid},1,1) block=({block},1,1) lds={lds}")
        else: out.append(f"; @launch kernel={name} grid=({grid},1,1) block=({block},1,1) lds={lds}")
    out += ['.amdgcn_target "amdgcn-amd-amdhsa--gfx950"', DOC, ".text"]
    for (name, grid, block, lds, seq, nv, acc) in kernels:
        out += [f".globl {name}", ".p2align 8", f".type {name},@function", f"{name}:"]
        out += [("" if i.kind == 'label' else "    ") + i.text for i in seq]
    out.append(".fill 8192, 4, 0xbf800000")
    out.append('.section .rodata,"a"')
    for (name, grid, block, lds, seq, nv, acc) in kernels:
        out += [".p2align 6", f".amdhsa_kernel {name}", f"  .amdhsa_next_free_vgpr {nv}", "  .amdhsa_next_free_sgpr 102",
                f"  .amdhsa_accum_offset {acc}", "  .amdhsa_group_segment_fixed_size 0", "  .amdhsa_kernarg_size 104",
                "  .amdhsa_user_sgpr_count 2", "  .amdhsa_user_sgpr_kernarg_segment_ptr 1",
                "  .amdhsa_system_sgpr_workgroup_id_x 1", ".end_amdhsa_kernel"]
    open(path, "w").write("\n".join(out) + "\n")

if __name__ == "__main__":
    ks = [("kvproj_kernel", 256, 256, 163840, gen_k1(), 512, 256)]
    emit(ks, sys.argv[1] if len(sys.argv) > 1 else "k.s")
```

```python
from gen import *

NEGINF = "0xff800000"
THR = f2u(2.0**60)

def gen_k2(K3):
    S_WS, S_WQ, S_W1, S_K, S_V, S_B1 = 4, 8, 12, 16, 20, 24
    sW, sH, sI, sPar = 28, 29, 30, 31
    sXN = 32
    sAct = 36
    sWm, sT, sT2, sT3 = 44, 45, 46, 47
    sWoQ, sWo1 = 48, 50
    sKd, sVd, sGd, sKr, sVr, sVk = 50, 51, 52, 53, 54, 55
    sC = {'a': 56, 'b': 57}
    sCnt, sThr, sRet = 58, 59, 60
    sPC = 62
    sKA = 64
    vL, vL16 = 2, 3
    vX = 4
    vWDq, vWD1 = 8, 10
    vT = 12; vTh = 16; vTt = 20
    vDM, vKr, vVr, vLB = 24, 25, 26, 27
    vNI = 28
    tA, tB = 29, 30
    WF = 32
    QE = 64
    QO = 128
    HA = 192
    P = {'a': 32, 'b': 48}
    S = {'a': 128, 'b': 160}
    QX = 192
    NM = {'a': 224, 'b': 232}
    ET = 240
    TS = {'a': 244, 'b': 246}; LS = {'a': 248, 'b': 250}; MS = {'a': 252, 'b': 254}
    O = {'a': 0, 'b': 64}; KF_, VF_ = 128, 192
    qf = lambda mbx, js: QE + (js*4 + mbx)*4
    Qreg = {'a': lambda nb, js: qf(nb, js), 'b': lambda nb, js: qf(2+nb, js), 'x': lambda nb, js: QX + (js*2+nb)*4}

    pre = L([f"s_mov_b32 s{S_WS+k}, s{16+k}" for k in range(3)] + [f"s_mov_b32 s{S_WS+3}, 0x00020000"] +
            [f"s_mov_b32 s{S_WQ+k}, s{20+k}" for k in range(3)] + [f"s_mov_b32 s{S_WQ+3}, 0x00020000"] +
            [f"s_mov_b32 s{S_W1+k}, s{28+k}" for k in range(3)] + [f"s_mov_b32 s{S_W1+3}, 0x00020000"] +
            [f"s_mov_b32 s{sW}, s24", f"s_mov_b32 s{sH}, s25", f"s_mov_b32 s{sI}, s26", f"s_and_b32 s{sPar}, s{sW}, 1", "v_mov_b32 v31, v0"])
    for j in range(4):
        pre += L([f"s_add_u32 s{sT}, s{sH}, {j}", f"s_and_b32 s{sT}, s{sT}, 3", f"s_lshl_b32 s{sT}, s{sT}, 10", f"v_add_u32 v{vX+j}, s{sT}, v{vL16}"])
    for u in range(2):
        pre += L([f"s_lshr_b32 s{sT}, s{sW}, 1", f"s_add_u32 s{sT}, s{sT}, s{sH}", f"s_add_u32 s{sT}, s{sT}, {2*u}", f"s_and_b32 s{sT}, s{sT}, 3",
                  f"s_lshl_b32 s{sT}, s{sT}, 1", f"s_add_u32 s{sT}, s{sT}, s{sPar}", f"s_lshl_b32 s{sWoQ+u}, s{sT}, 17", f"s_mul_i32 s{sWo1+u}, s{sT}, {16*2752}"])
    pre += L(w_dma_voff(vL, vWDq, vWDq+1, 8192, tA, tB) + w_dma_voff(vL, vWD1, vWD1+1, 2752, tA, tB))
    pre += L([f"s_lshl_b32 s{sT}, s{sI}, 3", f"s_lshl_b32 s{sT2}, s{sW}, 1", f"s_add_u32 s{sT3}, s{sT}, s{sT2}",
              f"s_sub_u32 s{sT}, 120, s{sT}", f"s_add_u32 s{sT}, s{sT}, s{sT2}",
              f"s_lshl_b32 s{sXN}, s{sT3}, 14", f"s_add_u32 s{sXN+1}, s{sXN}, 16384",
              f"s_lshl_b32 s{sXN+2}, s{sT}, 14", f"s_add_u32 s{sXN+3}, s{sXN+2}, 16384",
              f"s_mul_i32 s{sAct}, s{sT3}, {CA_RB}", f"s_mul_i32 s{sAct+4}, s{sT}, {CA_RB}",
              f"s_lshl_b32 s62, s{sT3}, 4", f"s_lshl_b32 s63, s{sT}, 4",
              f"s_lshl_b32 s{sWm}, s{sW}, 11"] + mlp_slot(sT2, sH, sT) + [f"s_lshl_b32 s{sT2}, s{sT2}, 7",
              f"v_lshrrev_b32 v{tA}, 4, v{vL}", f"v_lshlrev_b32 v{tA}, 3, v{tA}",
              f"s_mov_b32 s{S_B1}, s66", f"s_mov_b32 s{S_B1+1}, s67", f"s_mov_b32 s{S_B1+2}, 2752", f"s_mov_b32 s{S_B1+3}, 0x00020000"])
    su0 = pre
    xa = lambda mbx, ks: (((ks//4 + 2) % 4)*16 + mbx*4 + ks % 4)*4
    def ldX(st, js):
        return [T(f"buffer_load_dwordx4 {ar(xa(mbx, 4*st+j))}, v{vX+j}, {sr(S_WS)}, s{sXN+mbx} offen{LDF}", ('X', st))
                for j in js for mbx in range(4)] + [I(f"v_add_u32 v{vX+j}, 4096, v{vX+j}") for j in js]
    own = lambda st: ldX(st, [0]); rest = lambda st: ldX(st, [1, 2, 3])
    ring = [0, 1, 2, 3, 4, 5, 8, 9, 10, 11, 12, 13]
    pslot = lambda p, u: ring[((p % 6)*2 + u)]*8192
    hslot = [6, 7, 14, 15, 16, 17, 18, 19]
    def dmaUT(which, ksl, colb, ldsoff, tag):
        sd, vd, so, pitch = (S_W1, vWD1, sWo1, 2752) if which == 1 else (S_WQ, vWDq, sWoQ, 8192)
        return [I(f"s_add_u32 m0, s{sWm}, {ldsoff}"), I(f"s_add_u32 s{sT3}, s{so + ksl % 2}, {(ksl//2)*128*pitch + colb}"),
                T(f"buffer_load_dwordx4 v{vd}, {sr(sd)}, s{sT3} offen lds", tag),
                T(f"buffer_load_dwordx4 v{vd+1}, {sr(sd)}, s{sT3} offen offset:1024 lds", tag)]
    PM = {'1': [(1, 0), (0, 0), (1, 1), (0, 1), (1, 2), (1, 3), (0, 2), (0, 3)], '2': [(1, 0), (1, 1), (1, 2), (1, 3), (0, 0), (0, 1), (0, 2), (0, 3)],
          '3': [(1, 0), (0, 0), (1, 1), (1, 2), (1, 3), (0, 1), (0, 2), (0, 3)]}[os.environ.get('PM', '2')]
    def dmaP(p): return [x for u in range(2) for x in dmaUT(PM[p][0], PM[p][1]*2 + u, 0, pslot(p, u), ('W', p))]
    def dmaH(ks): return [x for k in ks for x in dmaUT(0, k, 128, hslot[k]*8192, 'WH')]
    DIAG = os.environ.get('DIAG')
    dst = lambda k: (L(['s_waitcnt vmcnt(0)'] if DIAG == 'w' else []) + stamp(k)) if DIAG else []
    BI = 64; BR = 20
    bl = [T(f"buffer_load_dwordx2 {vr(BR+2*fb, 2)}, v{tA}, {sr(S_B1)}, s{sT2} offen offset:{fb*32}", 'bias') for fb in range(4)]
    prefix, lnstub = gen_k1(dict(setup=su0, regloads=own(0) + bl + rest(0)[:-3], dma=dmaP(0)))
    pre = prefix + L(["K2_BEGIN:"]) + prof_begin() + own(1) + dmaP(1) + rest(0)[-3:]
    pre += [Wait(vm='bias')]
    ub = []
    for fb in range(4):
        for hw in range(2):
            ub += L([f"v_lshlrev_b32 v{BI+4*fb+2*hw}, 16, v{BR+2*fb+hw}", f"v_and_b32 v{BI+4*fb+2*hw+1}, 0xffff0000, v{BR+2*fb+hw}"])
    pre += ub + L([f"s_mov_b32 s{sC['a']}, s62", f"s_mov_b32 s{sC['b']}, s63"])
    pre += L(w_tr_addr(vL, vT, tA, tB)) + L([f"v_add_u32 v{vTh+c}, 0x10000, v{vT+c}" for c in range(4)] + [f"v_add_u32 v{vTt+c}, 0x20000, v{vT+c}" for c in range(4)])
    pre += L([f"s_lshl_b32 s{sT}, s{sH}, 19", f"s_lshl_b32 s{sT2}, s{sI}, 15", f"s_sub_u32 s{sT2}, 0x80000, s{sT2}",
              f"s_add_u32 s{sT3}, s{sT}, {WS_KF}", f"s_add_u32 s{S_K}, s{S_WS}, s{sT3}", f"s_addc_u32 s{S_K+1}, s{S_WS+1}, 0", f"s_mov_b32 s{S_K+2}, s{sT2}", f"s_mov_b32 s{S_K+3}, 0x00020000",
              f"s_add_u32 s{sT3}, s{sT}, {WS_VF}", f"s_add_u32 s{S_V}, s{S_WS}, s{sT3}", f"s_addc_u32 s{S_V+1}, s{S_WS+1}, 0", f"s_mov_b32 s{S_V+2}, s{sT2}", f"s_mov_b32 s{S_V+3}, 0x00020000"])
    pre += L([f"s_add_u32 s{sAct+2}, s{sAct}, {CA_RB}", f"s_add_u32 s{sAct+6}, s{sAct+4}, {CA_RB}",
              ] + mlp_slot(sCnt, sH, sT) + [f"s_lshl_b32 s{sT}, s{sCnt}, 11", f"s_add_u32 s{sT}, s{sT}, {WS_CA + 128*1024}",
              f"s_lshl_b32 s{sT2}, s{sH}, 12", f"s_add_u32 s{sT2}, s{sT2}, {WS_CA}"])
    ctxoff = []
    for mbx in range(4):
        ctxoff += L([f"s_add_u32 s{sXN+mbx}, s{sAct+2*mbx}, s{sT2}"])
    actoff = []
    for mbx in range(4):
        actoff += L([f"s_add_u32 s{sAct+2*mbx}, s{sAct+2*mbx}, s{sT}", f"s_add_u32 s{sAct+2*mbx+1}, s{sAct+2*mbx}, 1024",
                     f"s_cmp_gt_u32 s{sCnt}, 21", f"s_cselect_b32 s{sAct+2*mbx}, 0x10000000, s{sAct+2*mbx}",
                     f"s_cmp_gt_u32 s{sCnt}, 20", f"s_cselect_b32 s{sAct+2*mbx+1}, 0x10000000, s{sAct+2*mbx+1}"])
    pre += L([f"s_mov_b32 s{sKr}, s{sT}", f"s_mov_b32 s{sVr}, s{sT2}"])
    fix = lambda lst: [I(x.text.replace(f"s{sT2}", f"s{sVr}").replace(f"s{sT}", f"s{sKr}")) for x in lst]
    ctxoff, actoff = fix(ctxoff), fix(actoff)
    pre += L([f"v_lshl_add_u32 v{vDM}, s{sW}, 12, v{vL16}" if False else f"v_mov_b32 v{tA}, s{sW}", f"v_lshl_add_u32 v{vDM}, v{tA}, 12, v{vL16}",
              f"v_and_b32 v{tA}, 15, v{vL}", f"v_lshrrev_b32 v{tB}, 4, v{vL}", f"v_lshlrev_b32 v{tB}, 2, v{tB}", f"v_sub_u32 v{vLB}, v{tA}, v{tB}",
              f"v_mov_b32 v{vNI}, {NEGINF}", f"s_mov_b32 s{sThr}, {THR:#x}"])
    pre += L([f"s_mov_b32 s{sRet}, {f2u(SCALE):#x}"]) + k_epilogue(2, sRet) + k_epilogue(3, sRet)
    pre += L([f"s_lshl_b32 s{sRet}, s{sH}, 19", f"s_lshl_b32 s{sRet+1}, s{sI}, 16", f"s_add_u32 s{sRet}, s{sRet}, s{sRet+1}",
              f"s_lshl_b32 s{sRet+1}, s{sW}, 14", f"s_add_u32 s{sRet}, s{sRet}, s{sRet+1}", f"s_add_u32 s{sRet}, s{sRet}, {WS_KF}"])
    kst = []
    for mb in range(4):
        for js in range(4):
            kst.append(([I(f"s_add_u32 s{sRet}, s{sRet}, 4096")] if (mb and js == 0) else []) +
                       [T(f"buffer_store_dwordx4 {vr(KACC(2*js, mb))}, v{vL16}, {sr(S_WS)}, s{sRet} offen offset:{js*1024}{STF}", 'kst')])
    pre += stamp(3)
    xfr = lambda mbx, ks: ar(xa(mbx, ks))
    def tra(o, cb): return ((vT, vTh, vTt)[o >> 16] + cb, o & 0xffff)
    qacc = lambda db, mbx: (QE if db % 2 == 0 else QO) + ((db//2)*4 + mbx)*4
    groups = []
    for p in range(8):
        st = PM[p][1]
        for cb in range(4):
            fr = [tra(pslot(p, j//2) + (j % 2)*4096, cb) for j in range(4)]
            chains = []
            for mbx in range(4):
                if PM[p][0]: D = HA + (cb*4 + mbx)*4; C0 = vr(BI + 4*cb)
                else: D = qacc(cb, mbx); C0 = '0'
                chains.append([(lambda f, D=D, mbx=mbx, ks=st*4+j, C0=C0: f"{MF} {vr(D)}, {vr(f)}, {xfr(mbx, ks)}, {C0 if ks == 0 else vr(D)}") for j in range(4)])
            gr = dict(frags=fr, chains=chains, isH=PM[p][0])
            if cb == 0:
                gr['sync'] = [Wait(vm=('W', p)), I("s_barrier")]; gr['pair'] = p
                if PM[p][0]: gr['xwait'] = st
            groups.append(gr)
    for cb in range(4):
        for kq in range(4):
            fr = [tra(hslot[(kq*4+j)//2]*8192 + (j % 2)*4096, cb) for j in range(4)]
            chains = []
            for mbx in range(4):
                D = qacc(4+cb, mbx)
                chains.append([(lambda f, D=D, mbx=mbx, ks=kq*4+j: f"{MF} {vr(D)}, {vr(f)}, {xfr(mbx, ks)}, {'0' if ks == 0 else vr(D)}") for j in range(4)])
            gr = dict(frags=fr, chains=chains)
            if cb == 0 and kq == 0: gr['sync'] = [Wait(vm='WH'), I("s_barrier")]; gr['pair'] = 8
            groups.append(gr)
    G = Gaps(768)
    starts, gend = gemm_groups(G, 0, groups, WF, pre)
    assert gend == 768
    for n, gr in enumerate(groups):
        if 'xwait' in gr: G.before(starts[n], Wait(vm=('X', gr['xwait'])))
    bar = {gr['pair']: gr['syncgap'] for gr in groups if 'pair' in gr}
    for k, grp in enumerate(kst):
        for x in grp: G.nv[int(os.environ.get('KS0', '320')) + int(os.environ.get('KSP', '7'))*k].append(x)
    KB = bar[int(os.environ.get('KVB', '8'))]
    G.pre[KB].insert(0, Wait(vm='kst'))
    sig = L([f"s_lshl_b32 s{sGd}, s{sH}, 7", f"s_add_u32 s{sGd}, s{sGd}, {FL_KV}", f"s_lshl_b32 s{sVk}, s{sI}, 2", f"s_add_u32 s{sVk}, s{sVk}, s{sGd}",
             f"v_mov_b32 v{vKr}, 1", f"v_mov_b32 v{vVr}, 0"])
    for j, x in enumerate(sig): G.nv[KB - 12 + j].append(x)
    sig = one_lane([T(f"buffer_store_dword v{vKr}, v{vVr}, {sr(S_WS)}, s{sVk} offen sc1", 'NOCOUNT')], sW, "K2_SIG", sT)
    sig += L([f"v_and_b32 v{vVr}, 7, v{vL}", f"v_lshlrev_b32 v{vVr}, 2, v{vVr}"])
    for x in sig: G.nv[KB].append(x)
    pl = f"buffer_load_dword v{vKr}, v{vVr}, {sr(S_WS)}, s{sGd} offen sc1"
    GP = int(os.environ.get("GP", "600"))
    G.put(GP, T(pl, 'kvf'))
    for x in [Wait(vm='kvf')] + L([f"v_cmp_ne_u32 vcc, 1, v{vKr}", "s_cbranch_vccnz K2_KVSPIN_E", "K2_KVOK:"]) + (stamp(3) if os.environ.get("KVST") else []): G.before(GP + 40, x)
    if os.environ.get("KVST"):
        for x in stamp(2): G.before(GP + 39, x)
        for x in stamp(1): G.before(bar[8] - 1, x)
        for x in stamp(4): G.nv[bar[8]].append(x)
    kvstub = L(["K2_KVSPIN_E:"]) + spin("K2_KVSPIN", pl, vKr, 1, sCnt) + L(["s_branch K2_KVOK"])
    def dmaKV(which, t):
        sd, base = (S_K, 0) if which == 'K' else (S_V, 65536)
        return [I(f"s_lshl_b32 s{sT3}, s{sW}, 12"), I(f"s_add_u32 m0, s{sT3}, {base + t*16384}"), I(f"s_mov_b32 s{sT3}, {t*16384}")] + \
               [T(f"buffer_load_dwordx4 v{vDM}, {sr(sd)}, s{sT3} offen offset:{j*1024}{LDF} lds", ('KV', which, t)) for j in range(4)]
    trail = lambda l: l + [I("s_nop 0")] if False else l
    hP = {p: dmaP(p) for p in range(2, 6)}
    if os.environ.get('PM', '2') == '1': s0 = own(2) + rest(1) + hP[2] + hP[3] + own(3) + rest(2) + hP[4] + rest(3)[:-3] + hP[5]
    elif os.environ.get('PM', '2') == '2': s0 = own(2) + rest(1) + hP[2] + own(3) + rest(2) + hP[3] + rest(3)[:-3] + hP[4] + hP[5]
    else: s0 = own(2) + rest(1) + hP[2] + own(3) + rest(2) + hP[3] + rest(3)[:-3] + hP[4] + hP[5]
    lastH = max(p for p in range(8) if PM[p][0])
    stream = [(0, s0),
              (bar[2], dmaP(6)), (bar[3], dmaP(7) + dmaH(range(8))),
              ]
    end = place_stream(G, stream, int(os.environ.get('P1SP', '3')), start=4)
    print("K2 prologue dma stream (part 1) ends at gap", end)
    gb = 512 + 40
    G.before(gb, I("s_barrier"))
    end = place_stream(G, [(GP + 40, dmaKV('K', 0) + dmaKV('V', 0) + dmaKV('K', 1) + dmaKV('K', 2) + dmaKV('V', 1) + dmaKV('V', 2))], int(os.environ.get('KVSP', '4')), start=GP + 40)
    print("K2 prologue dma stream ends at gap", end)
    for j, x in enumerate(ctxoff + actoff): G.put(240 + (j//2), x)
    ins = []
    for js in range(2):
        for mbx in range(4):
            E, Od = qf(mbx, js), QO + (js*4 + mbx)*4
            ins += L([f"v_cvt_pk_bf16_f32 v{E}, v{E}, v{E+1}", f"v_cvt_pk_bf16_f32 v{E+1}, v{E+2}, v{E+3}",
                      f"v_cvt_pk_bf16_f32 v{E+2}, v{Od}, v{Od+1}", f"v_cvt_pk_bf16_f32 v{E+3}, v{Od+2}, v{Od+3}"])
    LOG2E = f2u(math.log2(math.e))
    mish = []
    for fbp in range(2):
        for mbx in range(4):
            D0, D1 = HA + ((2*fbp)*4 + mbx)*4, HA + ((2*fbp+1)*4 + mbx)*4
            regs = [D0+r for r in range(4)] + [D1+r for r in range(4)]
            tm_ = (0, 1, tA, tB)
            for q in (regs[:4], regs[4:]):
                for f in ("v_mul_f32 v{t}, %#x, v{a}" % LOG2E, "v_exp_f32 v{t}, v{t}", "v_add_f32 v{t}, 1.0, v{t}", "v_fma_f32 v{t}, v{t}, v{t}, 1.0",
                          "v_rcp_f32 v{t}, v{t}", "v_mul_f32 v{t}, v{t}, v{a}", "v_fma_f32 v{a}, v{t}, -2.0, v{a}"):
                    mish += L([f.format(t=t, a=a) for t, a in zip(tm_, q)])
            mish += L([f"v_cvt_pk_bf16_f32 v{D0}, v{D0}, v{D0+1}", f"v_cvt_pk_bf16_f32 v{D0+1}, v{D0+2}, v{D0+3}",
                       f"v_cvt_pk_bf16_f32 v{D0+2}, v{D1}, v{D1+1}", f"v_cvt_pk_bf16_f32 v{D0+3}, v{D1+2}, v{D1+3}",
                       f"buffer_store_dwordx4 {vr(D0)}, v{vL16}, {sr(S_WS)}, s{sAct+2*mbx+fbp} offen{STF2}"])
    spread(G, mish, 64*(lastH+1) + 8, 740)
    spread(G, ins, 520, 640)
    Hset = {id(x) for x in mish + actoff + [y for p in hP if PM[p][0] for y in hP[p]]}
    for gr in groups[:32]:
        if gr['isH']:
            Hset |= {id(x) for x in gr['made']}
            if gr.get('sync') and gr['pair'] >= 2: Hset.add(id(gr['sync'][0]))
    def qcvt(js, mbx):
        E, Od = qf(mbx, js), QO + (js*4 + mbx)*4
        return L([f"v_cvt_pk_bf16_f32 v{E}, v{E}, v{E+1}", f"v_cvt_pk_bf16_f32 v{E+1}, v{E+2}, v{E+3}",
                  f"v_cvt_pk_bf16_f32 v{E+2}, v{Od}, v{Od+1}", f"v_cvt_pk_bf16_f32 v{E+3}, v{Od+2}, v{Od+3}"])
    spread(G, [x for mbx in (2, 3, 0, 1) for x in qcvt(2, mbx)], 648, 716)
    ONE, ZR, T4 = 8, 20, 12
    sMk = 62
    vXB = 5
    zero_o = lambda s: [I(f"v_mfma_f32_32x32x16_bf16 {ar(O[s]+16*k, 16)}, {vr(ZR)}, {vr(ZR)}, 0") for k in range(4)]
    su = L(["s_load_dwordx2 s[8:9], s[0:1], 40", "s_load_dwordx2 s[12:13], s[0:1], 72",
            f"s_bfe_u32 s26, s2, 0x20001", f"s_lshr_b32 s27, s2, 3", f"s_lshl_b32 s27, s27, 2", f"s_add_u32 s27, s27, s{sW}",
            f"s_mul_i32 s24, s26, 352", f"s_mul_i32 s25, s27, 3", "s_add_u32 s24, s24, s25", "s_lshl_b32 s24, s24, 10",
            f"s_lshl_b32 s26, s26, 20", f"s_lshl_b32 s27, s27, 13", f"s_add_u32 s26, s26, s27",
            "s_add_u32 s10, s26, 8192", "s_mov_b32 s11, 0x00020000", "s_add_u32 s14, s24, 3072", f"s_min_u32 s14, s14, {1376*1024}", "s_mov_b32 s15, 0x00020000"] +
           [f"v_mov_b32 v{ONE+k}, 0x3f803f80" for k in range(4)] +
           [f"v_cmp_le_i32 s[{sMk+2*r}:{sMk+2*r+1}], {r}, v{vLB}" for r in range(4)] +
           [f"s_lshl_b32 s{sKd}, s{sW}, 12", f"s_add_u32 s{sKd}, s{sKd}, {3*16384}", f"s_mov_b32 s{sVd}, s{sKd}", f"v_add_u32 v{vX}, 0x10000, v{vL16}",
            f"s_mov_b32 s{sKr}, 16384", f"s_mov_b32 s{sVr}, 0",
            f"s_lshl_b32 s27, s{sPar}, 13", f"s_lshr_b32 s25, s{sW}, 1", "s_lshl_b32 s25, s25, 16", "s_add_u32 s27, s27, s25", f"s_add_u32 s27, s27, {49152}",
            f"v_add_u32 v{vXB}, s27, v{vL16}"])
    for j, x in enumerate(su): G.nv[360 + 2*j].append(x)
    kread = lambda f: T(f"ds_read_b128 {ar(KF_+4*f)}, v{vL16} offset:{f*1024}", ('kf', f))
    qw = lambda js, nb: T(f"ds_write_b128 v{vXB}, {vr(Qreg['b'](nb, js))} offset:{(js*2+nb)*1024}", 'qw')
    for x in [Wait(vm=('KV', 'K', 0), lg=0), I("s_barrier")]: G.before(722, x)
    for f in range(16): G.put(724 + 2*f, kread(f))
    for k in range(6): G.put(725 + 4*k, qw(k//2, k % 2))
    post = qcvt(3, 2) + qcvt(3, 3) + [qw(3, 0), qw(3, 1)] + qcvt(3, 0) + qcvt(3, 1)
    sreg = lambda s, mb, nb: S[s] + (mb*2 + nb)*4
    def prepass_mfma(s, q):
        return [I(f"{MF} {vr(sreg(s,0,nb))}, {ar(KF_+4*js)}, {vr(Qreg[q](nb, js))}, {'0' if js == 0 else vr(sreg(s,0,nb))}") for nb in range(2) for js in range(4)]
    def xred(op, v, t):
        return L([f"v_mov_b32 v{t}, v{v}", f"v_permlane16_swap_b32 v{t}, v{v}", f"{op} v{v}, v{v}, v{t}",
                  f"v_mov_b32 v{t}, v{v}", f"v_permlane32_swap_b32 v{t}, v{v}", f"{op} v{v}, v{v}, v{t}"])
    def zipl(a, b):
        def grp(l):
            g = []
            for x in l:
                if x.kind == 'label' and g: g[-1].append(x)
                else: g.append([x])
            return g
        a, b = grp(a), grp(b)
        o = []
        for k in range(max(len(a), len(b))):
            for y in a[k:k+1] + b[k:k+1]: o += y
        return o
    def prepass_init(s, mask):
        o = []
        if mask:
            o += L([f"v_add_u32 v{tA}, s{sC[s]}, v{vLB}"])
            prs = [(nb, r) for nb in range(2) for r in range(4)]
            pr = lambda k: "vcc" if k % 2 == 0 else f"s[{sRet}:{sRet+1}]"
            for k in range(0, 8, 2):
                o += L([f"v_cmp_le_i32 {pr(j)}, {prs[j][1] - 16*prs[j][0]}, v{tA}" for j in (k, k+1)])
                o += L([f"v_cndmask_b32 v{sreg(s,0,prs[j][0])+prs[j][1]}, v{vNI}, v{sreg(s,0,prs[j][0])+prs[j][1]}, {pr(j)}" for j in (k, k+1)])
        ch = []
        for nb in range(2):
            b = sreg(s, 0, nb); m = MS[s] + nb
            ch.append(L([f"v_max3_f32 v{m}, v{b}, v{b+1}, v{b+2}", f"v_max_f32 v{m}, v{m}, v{b+3}"]) + xred("v_max_f32", m, (tA, tB)[nb]) +
                      L([f"v_max_f32 v{m}, {f2u(-1e30):#x}, v{m}"] + [f"v_sub_f32 v{NM[s]+4*nb+r}, 0, v{m}" for r in range(4)]))
        return o + zipl(ch[0], ch[1])
    misc = L([f"v_mov_b32 v{ZR+k}, 0" for k in range(4)] + [f"v_mov_b32 v{LS[s]+nb}, 0" for s in 'ab' for nb in range(2)] +
             [f"s_mov_b32 s{sGd}, {3*16384}", f"s_lshl_b32 s{sCnt}, s{sI}, 1", f"s_sub_u32 s{sCnt}, s{sCnt}, 1", f"v_xor_b32 v{vXB}, 0x2000, v{vXB}"])
    def under(mf, fl, per=2):
        o = []
        for k, x in enumerate(mf): o += [x] + fl[per*k:per*k+per]
        return o + fl[per*len(mf):]
    post += under(prepass_mfma('a', 'a'), misc)
    post += [Wait(lg='qw'), I("s_barrier")]
    qxr = [I(f"ds_read_b128 {vr(Qreg['x'](nb, js))}, v{vXB} offset:{(js*2+nb)*1024}") for js in range(4) for nb in range(2)]
    pb = prepass_mfma('b', 'b')
    post += under(pb[:4], qxr) + under(pb[4:], prepass_init('a', True))

    NG, HG = 136, 68
    def body(name, qa, ntile, vmw, hooks, kread_on=True):
        B = Gaps(NG); used = [0]*NG; cls = {}
        cost = lambda x: 0 if x.kind == 'label' else (2 if x.kind in ('trans', 'vmem') else 1)
        def put(g, x, c, where=None):
            x = I(x) if isinstance(x, str) else x
            g %= NG
            if where == 'pre': B.before(g, x); used[(g-1) % NG] += cost(x)
            elif where == 'nv': B.nv[g].append(x); used[g] += cost(x)
            else: B.put(g, x); used[g] += cost(x)
            cls[id(x)] = c; return x
        def free(g, x, c, lim=None):
            x = I(x) if isinstance(x, str) else x
            while used[g % NG] + cost(x) > 2: g += 1
            assert lim is None or g <= lim, (name, x, g, lim)
            put(g, x, c, 'nv'); return g
        for s, g0, q in (('a', 0, qa), ('b', HG, 'b')):
            o = 'b' if s == 'a' else 'a'
            seq = []
            for mb in range(4):
                for nb in range(2):
                    D = vr(sreg(s, mb, nb))
                    seq += [(f"{MF} {D}, {ar(KF_+4*(mb*4+js))}, {vr(Qreg[q](nb, js))}, {vr(NM[s]+4*nb) if js == 0 else D}", 'qk'+s) for js in range(4)]
            ones = [(f"{MF} {vr(T4+4*nb)}, {vr(ONE)}, {vr(P[o]+(nb*2+ks)*4)}, {'0' if ks == 0 else vr(T4+4*nb)}", 'sm'+o) for nb in range(2) for ks in range(2)]
            seq[24:24] = ones
            for db in range(8):
                for nb in range(2):
                    D = ar(O[o] + (db*2+nb)*4)
                    seq += [(f"{MF} {D}, {ar(VF_+4*(db*2+ks))}, {vr(P[o]+(nb*2+ks)*4)}, {D}", 'pv'+o) for ks in range(2)]
            for k, (t, c) in enumerate(seq):
                B.mf[g0+k] = I(t); cls[id(B.mf[g0+k])] = c
            E0 = g0 + 26
            for e in range(32):
                mb, nb, r = e//8, (e//4) % 2, e % 4
                t = ET + (e % 4)
                put(E0 + 2*e, f"v_exp_f32 v{t}, v{sreg(s, mb, nb) + r}", 'sm'+s)
                if r % 2 == 1:
                    put(E0 + 2*e + 1, f"v_cvt_pk_bf16_f32 v{P[s] + (nb*2 + mb//2)*4 + (mb % 2)*2 + r//2}, v{t-1}, v{t}", 'sm'+s)
            if s not in hooks and s == 'a' and ntile == 1:
                for gh in (E0 - 1, E0 + 31): used[gh % NG] += 2
            if s in hooks:
                for hk, gh, lim in ((0, E0 - 1, 0), (1, E0 + 31, 32)):
                    lab = f"{name}_mk{s}{hk}"
                    put(gh, f"s_cmp_le_i32 s{sC[s]}, {lim}", 'sm'+s, 'nv'); put(gh, f"s_cbranch_scc1 {lab}", 'sm'+s, 'nv'); put(gh, f"{lab}_r:", 'sm'+s, 'nv')
            gc = g0 + HG + 31
            lab = f"{name}_rd{s}"
            put(gc, f"v_max_f32 v1, v{T4}, v{T4+4}", 'sm'+s); put(gc, f"v_cmp_lt_f32 vcc, s{sThr}, v1", 'sm'+s)
            put(gc+2, f"s_cbranch_vccnz {lab}", 'sm'+s, 'nv'); put(gc+2, f"{lab}_r:", 'sm'+s, 'nv')
            put(gc+4, f"v_add_f32 v{LS[s]}, v{LS[s]}, v{T4}", 'sm'+s); put(gc+4, f"v_add_f32 v{LS[s]+1}, v{LS[s]+1}, v{T4+4}", 'sm'+s)
        put(0, "s_waitcnt lgkmcnt(0)", 'mem', 'pre')
        put(4, f"s_waitcnt vmcnt({vmw})", 'mem', 'pre'); put(4, "s_barrier", 'mem', 'pre')
        free(5, f"v_add_u32 v{vVr}, s{sVr}, v{vX}", 'mem', 8)
        if kread_on: free(5, f"v_add_u32 v{vKr}, s{sKr}, v{vL16}", 'mem', 8)
        st = []
        wpf = [f"buffer_load_dword v5, v{vL16}, s[8:11], s26 offen", "s_add_u32 s26, s26, 1024"]
        if ntile == 1:
            st += [f"s_mov_b32 m0, s{sKd}"] + [f"buffer_load_dwordx4 v{vDM}, {sr(S_K)}, s{sGd} offen offset:{j*1024}{LDF} lds" for j in range(4)]
            st += wpf + [f"s_add_u32 s{sKd}, s{sKd}, 16384", f"s_and_b32 s{sKd}, s{sKd}, 0xffff", f"s_add_u32 m0, s{sVd}, 0x10000"]
            st += [f"buffer_load_dwordx4 v{vDM}, {sr(S_V)}, s{sGd} offen offset:{j*1024}{LDF} lds" for j in range(4)]
        elif ntile == 2:
            st += [f"s_add_u32 s{sT3}, s{sGd}, 16384", f"s_mov_b32 m0, s{sKd}"] + [f"buffer_load_dwordx4 v{vDM}, {sr(S_K)}, s{sGd} offen offset:{j*1024}{LDF} lds" for j in range(4)]
            st += [f"s_add_u32 m0, s{sKd}, 16384"] + [f"buffer_load_dwordx4 v{vDM}, {sr(S_K)}, s{sT3} offen offset:{j*1024}{LDF} lds" for j in range(4)]
            st += wpf + [f"s_xor_b32 s{sKd}, s{sKd}, 0x8000", f"s_add_u32 m0, s{sVd}, 0x10000"] + [f"buffer_load_dwordx4 v{vDM}, {sr(S_V)}, s{sGd} offen offset:{j*1024}{LDF} lds" for j in range(4)]
            st += [f"s_add_u32 m0, s{sVd}, 0x14000"] + [f"buffer_load_dwordx4 v{vDM}, {sr(S_V)}, s{sT3} offen offset:{j*1024}{LDF} lds" for j in range(4)]
        if ntile:
            st += [f"s_add_u32 s{sVd}, s{sVd}, {ntile*16384}", f"s_sub_u32 s{sT}, s{sVd}, 98304", f"s_min_u32 s{sVd}, s{sVd}, s{sT}", f"s_add_u32 s{sGd}, s{sGd}, {ntile*16384}"]
            g = 8; nd = 0; sp = 116/(4*2*ntile)
            for t in st:
                x = I(t)
                if x.kind == 'vmem' and x.op == 'buffer_load_dword': g = free(g + 1, x, 'mem', NG-1)
                elif x.kind == 'vmem':
                    g = free(max(g + 1, int(9 + nd*sp)), x, 'mem', NG-1); nd += 1
                else: g = free(g, x, 'mem', NG-1)
            step = ntile*16384
            g = 9
            ku = [f"s_add_u32 s{sKr}, s{sKr}, 16384", f"s_and_b32 s{sKr}, s{sKr}, 0xffff"] if ntile == 1 else [f"s_xor_b32 s{sKr}, s{sKr}, 0x8000"]
            for t in ku + [f"s_add_u32 s{sVr}, s{sVr}, {step}", f"s_sub_u32 s{sT2}, s{sVr}, 98304", f"s_min_u32 s{sVr}, s{sVr}, s{sT2}"]:
                g = free(g, t, 'mem', NG-1)
        g = 43
        for f in range(16):
            g = free(max(g, 40 + 2*f), f"ds_read_b128 {ar(VF_+4*f)}, v{vVr} offset:{f*1024}", 'mem', 96)
        vlast = g
        nk_before = 0
        if kread_on:
            for f in range(16):
                lastuse = HG + 8*(f//4) + 4 + f % 4 + (4 if 8*(f//4) + 4 + f % 4 >= 24 else 0)
                g = free(max(g, lastuse + 1), f"ds_read_b128 {ar(KF_+4*f)}, v{vKr} offset:{f*1024}", 'mem', 131)
                if g < 104: nk_before += 1
        put(104, f"s_waitcnt lgkmcnt({nk_before})", 'mem', 'pre')
        if name == "Sf":
            for t in [f"v_lshlrev_b32 v{vKr}, 2, v{vDM}", f"v_mul_u32_u24 v5, 3, v{vL16}", f"v_sub_u32 v{vKr}, v{vKr}, v5"]: free(9, t, 'mem', 30)
            B.wr_left = []
            for f in range(16):
                x = I(f"ds_write_b128 v{vKr}, {ar(O['a']+4*f)} offset:{f*1024}")
                g = 104 + 2*f + 5
                while g < NG and used[g] + 1 > 2: g += 1
                if g < NG: put(g, x, 'mem', 'nv')
                else: B.wr_left.append(x)
            ea = K3['early']
            first = ea[:9] + ea[-6:]; rest_ = ea[9:-6]
            g = 5
            for x in first: g = free(g, x, 'mem', NG-1)
            g = max(g, 41); K3['spill'] = []
            for x in rest_:
                while g < NG and used[g] + cost(x) > 2: g += 1
                if g < NG: put(g, x, 'mem', 'nv')
                else: K3['spill'].append(x)
        over = [(g, u) for g, u in enumerate(used) if u > 2]
        print(f"  body {name}: slots used {sum(used)}/{2*NG}, overfull gaps {over}")
        return B, cls
    def mkstubs(name):
        o = []
        for s in 'ab':
            for hk in range(2):
                lab = f"{name}_mk{s}{hk}"; lo, hi = 2*hk, 2*hk+1
                o += L([f"{lab}:", f"s_cmp_lg_u32 s{sC[s]}, {32*hk}", f"s_cbranch_scc1 {lab}_all"])
                o += L([f"v_cndmask_b32 v{sreg(s,lo,0)+r}, v{vNI}, v{sreg(s,lo,0)+r}, s[{sMk+2*r}:{sMk+2*r+1}]" for r in range(4)])
                o += L([f"v_mov_b32 v{sreg(s,hi,0)+r}, v{vNI}" for r in range(4)])
                o += L([f"v_cndmask_b32 v{sreg(s,hi,1)+r}, v{vNI}, v{sreg(s,hi,1)+r}, s[{sMk+2*r}:{sMk+2*r+1}]" for r in range(4)])
                o += L([f"s_branch {lab}_r", f"{lab}_all:"] + [f"v_mov_b32 v{sreg(s,lo,0)+k}, v{vNI}" for k in range(16)] + [f"s_branch {lab}_r"])
            lab = f"{name}_rd{s}"
            o += L([f"{lab}:", f"s_call_b64 s[{sRet}:{sRet+1}], K2_REDO_{s}", f"s_branch {lab}_r"])
        return o
    def redo(s):
        o = L([f"K2_REDO_{s}:", "s_nop 7"])
        for nb in range(2):
            vals = [sreg(s, mb, nb) + r for mb in range(4) for r in range(4)]
            ts = T4 + 4*nb
            o += L([f"v_max3_f32 v{tA}, v{vals[0]}, v{vals[1]}, v{vals[2]}"] + [f"v_max3_f32 v{tA}, v{tA}, v{vals[k]}, v{vals[k+1]}" for k in range(3, 15, 2)]
                   + [f"v_max_f32 v{tA}, v{tA}, v{vals[15]}"]) + xred("v_max_f32", tA, tB)
            o += L([f"v_max_f32 v{tA}, 0, v{tA}", f"v_add_f32 v{MS[s]+nb}, v{MS[s]+nb}, v{tA}", f"v_sub_f32 v{tB}, 0, v{tA}", f"v_exp_f32 v{tB}, v{tB}"])
            o += L([f"v_sub_f32 v{NM[s]+4*nb+r}, 0, v{MS[s]+nb}" for r in range(4)])
            o += L([f"v_mul_f32 v{LS[s]+nb}, v{LS[s]+nb}, v{tB}"])
            o += L([f"v_sub_f32 v{v}, v{v}, v{tA}" for v in vals])
            for db in range(8):
                for r in range(4):
                    a = O[s] + (db*2+nb)*4 + r
                    o += L([f"v_accvgpr_read_b32 v0, a{a}", f"v_mul_f32 v0, v0, v{tB}", f"v_accvgpr_write_b32 a{a}, v0"])
            o += L([f"v_mov_b32 v{ts}, 0"])
            for mb in range(4):
                for r in (0, 2):
                    b = sreg(s, mb, nb) + r
                    pd = P[s] + (nb*2 + mb//2)*4 + (mb % 2)*2 + r//2
                    o += L([f"v_exp_f32 v{tA}, v{b}", f"v_exp_f32 v{tB}, v{b+1}", f"v_add_f32 v{ts}, v{ts}, v{tA}",
                            f"v_add_f32 v{ts}, v{ts}, v{tB}", f"v_cvt_pk_bf16_f32 v{pd}, v{tA}, v{tB}"])
            o += xred("v_add_f32", ts, tB)
        o += L(["s_nop 1", f"s_setpc_b64 s[{sRet}:{sRet+1}]"])
        return o
    def lin(Bc, lo, hi, keep=None, ren=None):
        B, cls = Bc
        out = []
        XF = os.environ.get("XF", "").split(",")
        for x in B.linear(lo, hi):
            if keep is None and B in XB_:
                if 'dma' in XF and x.kind == 'vmem': continue
                if 'bar' in XF and x.op == 's_barrier': continue
                if 'ds' in XF and x.kind == 'ds': continue
                if 'salu' in XF and x.kind == 'salu' and x.op not in ('s_waitcnt', 's_barrier'): continue
                if 'wait' in XF and x.op == 's_waitcnt': continue
                if 'chk' in XF and x.kind == 'branch': continue
                if 'cvt' in XF and x.op.startswith('v_cvt'): continue
            if keep is None or cls.get(id(x), 'mem') in keep:
                out.append(I(x.text.replace(*ren)) if ren else x)
        return out
    D = body("D", 'a', 1, 5, ''); Dm = body("Dm", 'a', 1, 5, 'a'); S1 = body("S1", 'a', 2, 5, 'a')
    SS = body("S", 'x', 2, 9, ''); Sf = body("Sf", 'x', 0, int(os.environ.get("SFW", "9")), 'ab', kread_on=False)
    XB_ = [D[0], SS[0]]
    pream = lin(Dm, 0, HG, ('qka', 'sma', 'mem'), ("Dm_", "PR_"))
    ib = prepass_init('b', False); zs = zero_o('a') + zero_o('b')
    ib += L([f"buffer_load_dword v6, v{vL16}, s[12:15], s24 offen offset:{k*1024}" for k in range(3)])
    p2 = []; nm = 0
    for x in pream:
        p2.append(x)
        if x.kind == 'mfma':
            nm += 1
            if nm >= 5 and ib: p2 += ib[:2]; ib = ib[2:]
        if nm == 32 and x.op == 'v_cvt_pk_bf16_f32' and zs: p2.append(zs.pop(0))
    assert not ib and not zs
    pream = p2
    for n, x in enumerate(pream):
        if x.text.startswith("s_waitcnt vmcnt"): pream[n] = Wait(vm=[('KV', 'K', 1), ('KV', 'V', 0)], lg=0)
    if os.environ.get("P2ST"):
        for k, g in enumerate(eval(os.environ["P2ST"])):
            for x in stamp(1+k if k < 3 else 5+k): G.before(g, x)
        DIAG = True
    jump = L([f"s_lshl_b32 s{sC['a']}, s{sW}, 5", f"s_cmp_eq_u32 s{sI}, 0", "s_cbranch_scc1 K2_DM_MID", "s_branch K2_D_MID"])
    import copy
    vm, lg = Tracker(63), Tracker(15)
    h0 = resolve_waits(pre + stamp(4) + L([f"s_and_b32 s{sT}, s{sH}, 3", f"s_cmp_eq_u32 s{sT}, 1", "s_cbranch_scc1 K2_NOMLP"]), vm, lg)
    vmB, lgB = copy.deepcopy(vm), copy.deepcopy(lg)
    rest_ = G.linear(0, 512) + stamp(5) + G.linear(512, 768) + stamp(6) + post + stamp(7) + pream + jump
    head, n1 = fix_hazards(h0 + resolve_waits(rest_, vm, lg))
    ren = lambda x: x if isinstance(x, Wait) else I(x.text.replace("PR_", "PB_").replace("K2_SIG", "K2_SIGB").replace("K2_KV", "K2_KVB"), x.tag)
    hB, nB = fix_hazards(L(["K2_NOMLP:"]) + resolve_waits([ren(x) for x in rest_ if id(x) not in Hset], vmB, lgB), pre=h0[-20:])
    kvstub += [ren(x) for x in kvstub]
    dl = L(["K2_D:"]) + lin(D, 0, HG) + L(["K2_D_MID:"]) + lin(D, HG, NG) + L([f"s_sub_u32 s{sCnt}, s{sCnt}, 1", "s_cbranch_scc0 K2_D"])
    dl, n2 = fix_hazards(dl, pre=dl[-20:])
    assert os.environ.get('XF') or fix_hazards(lin(D, HG, HG+12), pre=head[-20:])[1] == 0 and fix_hazards(lin(Dm, HG, HG+12), pre=head[-20:])[1] == 0
    mid = lin(Dm, 0, HG) + L(["K2_DM_MID:"]) + lin(Dm, HG, NG)
    mid += L([f"s_lshl_b32 s{sT}, s{sPar}, 14", f"s_add_u32 s{sKr}, s{sKr}, s{sT}", f"s_and_b32 s{sKr}, s{sKr}, 0xffff", f"s_sub_u32 s{sC['a']}, s{sC['a']}, 64"])
    mid += (stamp(8) if not DIAG else []) + lin(S1, 0, NG) + (stamp(9) if not DIAG else [])
    def finalize(s, so, zero, wts=None):
        o = []
        for j in range(4):
            for nb in range(2):
                t = 152 if (j*2+nb) % 2 == 0 else 156
                t8 = 136 + ((j*2+nb) % 2)*8
                o += L([f"v_accvgpr_read_b32 v{t8+hh*4+r}, a{O[s] + ((2*j+hh)*2+nb)*4 + r}" for hh in range(2) for r in range(4)])
                sel = "op_sel_hi:[1,0]" if nb == 0 else "op_sel:[0,1] op_sel_hi:[1,1]"
                for k in range(0, 8, 2):
                    o += L([f"v_pk_mul_f32 {vr(t8+k,2)}, {vr(t8+k,2)}, {vr(TS[s],2)} {sel}"])
                    if wts is not None:
                        x = wts + ((2*j + k//4)*2+nb)*4 + k % 4
                        sel3 = "op_sel_hi:[1,0,1]" if nb == 0 else "op_sel:[0,1,0] op_sel_hi:[1,1,1]"
                        o += L([f"v_pk_fma_f32 {vr(t8+k,2)}, {vr(x,2)}, {vr(TS['a'],2)}, {vr(t8+k,2)} {sel3}"])
                o += L([f"v_cvt_pk_bf16_f32 v{t+k}, v{t8+2*k}, v{t8+2*k+1}" for k in range(4)])
                o += L([f"buffer_store_dwordx4 {vr(t)}, v{vL16}, {sr(S_WS)}, s{so+nb} offen offset:{j*1024}{STF2}"])
            if zero: o += [zero_o(s)[j]]
        return o
    t0 = L([f"s_lshl_b32 s{sT}, s{sI}, 7", f"s_sub_u32 s{sC['a']}, s{sC['b']}, s{sT}", f"s_lshl_b32 s{sT}, s{sPar}, 7", f"s_sub_u32 s{sC['a']}, s{sC['a']}, s{sT}",
            f"s_sub_u32 s{sC['a']}, s{sC['a']}, 96"] +
           [f"v_rcp_f32 v{TS['a']+nb}, v{LS['a']+nb}" for nb in range(2)] + [f"v_mov_b32 v{LS['a']+nb}, 0" for nb in range(2)] +
           [f"v_mov_b32 v{T4+k}, -1" for k in range(4)] + ["s_lshl_b32 s25, s2, 15", f"s_lshl_b32 s27, s{sW}, 13", "s_add_u32 s25, s25, s27"])
    tr = L(["s_waitcnt lgkmcnt(0)"]) + under(prepass_mfma('a', 'x'), t0)
    side = L([f"s_add_u32 s25, s25, {WS_EX + 2048}", "s_add_u32 s27, s25, 4096",
              f"s_lshl_b32 s{sT}, s{sPar}, 14", f"s_add_u32 s{sVr}, s{sVr}, s{sT}", f"s_add_u32 s{sVr}, s{sVr}, {98304-16384}",
              f"s_sub_u32 s{sT2}, s{sVr}, 98304", f"s_min_u32 s{sVr}, s{sVr}, s{sT2}", f"s_lshl_b32 s{sCnt}, s{sI}, 1", f"s_sub_u32 s{sCnt}, 13, s{sCnt}",
              f"s_lshl_b32 s{sT}, s{sH}, 2", f"s_add_u32 s{sT}, s{sT}, {FL_AC}", f"s_lshl_b32 s{sT2}, s{sI}, 7", f"s_sub_u32 s{sT3}, {15*128}, s{sT2}",
              f"v_mov_b32 v6, s{sT2}", f"v_writelane_b32 v6, s{sT3}, 1", "v_mov_b32 v7, 1",
              f"s_cmp_lg_u32 s{sW}, 0\n    s_cbranch_scc1 K2_SIGA\n    s_mov_b64 exec, 3\n    buffer_store_dword v7, v6, {sr(S_WS)}, s{sT} offen sc1\n    s_mov_b64 exec, -1\nK2_SIGA:"])
    ob = L([f"buffer_store_dwordx4 {vr(T4)}, v{vL16}, {sr(S_WS)}, s{25 if k < 4 else 27} offen offset:{(k % 4)*1024} sc1" for k in range(6)])
    fa = finalize('a', sXN, True)
    ini = prepass_init('a', True)
    k0 = len(ini)
    tr += zipl(ini, fa[:k0]) + side[:2]
    fa = fa[k0:]; side = side[2:]
    for k, x in enumerate(fa):
        tr.append(x)
        if k % 20 == 8 and ob: tr.append(ob.pop(0))
    tr += ob + side
    tr += code_prefetch("K3_BEGIN", "K2_PC2", False, 31, 31, sRet, sT3, vtid=31)
    tr += L([f"s_lshl_b32 s{sC['b']}, s{sW}, 5", f"s_lshl_b32 s{sT}, s{sPar}, 6", f"s_sub_u32 s{sC['b']}, s{sC['b']}, s{sT}",
             f"s_add_u32 s{sC['a']}, s{sC['b']}, 32", f"s_sub_u32 s{sC['a']}, s{sC['a']}, s{sT}"])
    mid += tr + (stamp(10) if not DIAG else []) + L([f"s_cmp_eq_u32 s{sI}, 7", "s_cbranch_scc1 K2_SF"])
    mid, n3 = fix_hazards(mid, pre=dl[-20:])
    sl = L(["K2_S:"]) + lin(SS, 0, NG) + L([f"s_sub_u32 s{sCnt}, s{sCnt}, 1", "s_cbranch_scc0 K2_S"])
    sl, n4 = fix_hazards(sl, pre=sl[-20:])
    assert os.environ.get('XF') or fix_hazards(sl[:24], pre=mid[-20:])[1] == 0
    tail = L(["K2_SF:"]) + lin(Sf, 0, NG)
    assert fix_hazards(tail[:24], pre=mid[-20:])[1] == 0
    tb = lin(SS, 0, HG, ('smb', 'pvb'), ("S_", "TL_"))
    kq = [n for n, x in enumerate(tb) if x.kind == 'mfma' and x.wr[0].startswith('a')][0]
    tail += L(["s_waitcnt vmcnt(1)", "s_barrier",
               f"v_xor_b32 v{vVr}, 0x4000, v{vKr}", f"v_add_u32 v{vDM}, 0x10000, v{vDM}",
               f"v_mov_b32 v{NM['a']}, v{MS['a']}", f"v_mov_b32 v{NM['a']+1}, v{MS['a']+1}", f"v_mov_b32 v{NM['a']+2}, v{LS['a']}", f"v_mov_b32 v{NM['a']+3}, v{LS['a']+1}",
               f"ds_write_b128 v{vDM}, {vr(NM['a'])}"])
    wr = Sf[0].wr_left
    tail += zipl(zipl(tb[:kq], wr), K3['spill'] + K3['acheck'] + K3['loads'])
    XO = 64
    pv = tb[kq:]
    n0 = K3['need0']
    tail += zipl(pv[:8], zipl(n0[0:16:2], n0[1:16:2])[:0] + n0[:8]) + L(["s_waitcnt lgkmcnt(0)", "s_barrier", f"v_xor_b32 v{vDM}, 0x1000, v{vDM}", f"ds_read_b128 {vr(NM['a'])}, v{vDM}"])
    rd = L([f"ds_read_b128 {vr(XO+4*f)}, v{vVr} offset:{f*1024}" for f in range(16)])
    wt = L(["s_waitcnt lgkmcnt(15)"])
    ch = []
    for nb in range(2):
        mx, lx, mb_, lb, t = NM['a']+nb, NM['a']+2+nb, MS['b']+nb, LS['b']+nb, (tA, tB)[nb]
        ch.append(L([f"v_max_f32 v{t}, v{mx}, v{mb_}", f"v_sub_f32 v{mx}, v{mx}, v{t}", f"v_sub_f32 v{mb_}, v{mb_}, v{t}",
                     f"v_exp_f32 v{mx}, v{mx}", f"v_exp_f32 v{mb_}, v{mb_}", f"v_mul_f32 v{lb}, v{lb}, v{mb_}", f"v_fmac_f32 v{lb}, v{lx}, v{mx}",
                     f"v_rcp_f32 v{lb}, v{lb}", f"v_mul_f32 v{TS['b']+nb}, v{mb_}, v{lb}", f"v_mul_f32 v{TS['a']+nb}, v{mx}, v{lb}"]))
    fl = rd + wt + zipl(ch[0], ch[1]) + n0[8:]
    pvr = pv[8:]
    for k, x in enumerate(pvr): tail += [x] + fl[2*k:2*k+2]
    tail += fl[2*len(pvr):]
    fb = finalize('b', sXN+2, False, wts=XO)
    for x in fb:
        if x.kind == 'vmem': x.tag = 'cst'
    tail += L(["s_waitcnt lgkmcnt(0)"]) + fb
    tail += prof_end(1, S_WS, sW, 4, vtmp=32, drain=not FUSED)
    tail, n5 = fix_hazards(resolve_waits(tail + K3['main']), pre=sl[-20:])
    alltext = "\n".join(x.text for x in head + hB + dl + mid + sl + tail)
    stubs = []
    for nm in ("PR", "PB", "D", "Dm", "S1", "S", "Sf", "TL"):
        cur = []
        for x in mkstubs(nm) + L(["SENTINEL:"]):
            if x.kind == 'label' and not x.text.endswith("_all:"):
                if cur and ("\n" + cur[0].text[:-1] + "_r:") in alltext: stubs += fix_hazards(cur)[0]
                cur = []
            cur.append(x)
    stubs += fix_hazards(redo('a'))[0] + fix_hazards(redo('b'))[0]
    stubs += kvstub + lnstub + K3['stubs']
    seq = head + dl + mid + sl + tail + hB + stubs
    print("total instrs", len(seq), "nops head/D/mid/S/tail", n1, n2, n3, n4, n5)
    return seq
```

```python
import math, sys, struct, os
from asmlib import *

WS_XN = 0x0
WS_KF = 0x200000
WS_VF = 0x1200000
WS_CA = 0x2200000
CA_RB = 172*1024
WS_EX = 0x4000000
WS_FL = 0x5000000
WS_SIZE = 0x10000000
SCALE = math.log2(math.e) / math.sqrt(128.0)
def f2u(f): return struct.unpack('<I', struct.pack('<f', f))[0]
MF = "v_mfma_f32_16x16x32_bf16"
def vr(b, n=4): return f"v[{b}:{b+n-1}]"
def ar(b, n=4): return f"a[{b}:{b+n-1}]"
def sr(b, n=4): return f"s[{b}:{b+n-1}]"
def L(lines): return [I(x) if isinstance(x, str) else x for x in lines]

def srd(d, lo, hi, size):
    return [f"s_mov_b32 s{d}, s{lo}", f"s_mov_b32 s{d+1}, s{hi}",
            f"s_mov_b32 s{d+2}, {size}" , f"s_mov_b32 s{d+3}, 0x00020000"]
def srd_off(d, lo, hi, soff, size):
    return [f"s_add_u32 s{d}, s{lo}, s{soff}\n    s_addc_u32 s{d+1}, s{hi}, 0", f"s_sub_u32 s{d+2}, {size}, s{soff}", f"s_mov_b32 s{d+3}, 0x00020000"]

PROF = bool(os.environ.get("PROF"))
STF = os.environ.get("STF", " sc1")
FUSED = os.environ.get("FUSED", "1") == "1"
LDF = " sc1" if FUSED else ""
FL_KV, FL_AC, FL_CX, FL_EX = WS_FL, WS_FL + 0x1000, WS_FL + 0x40000, WS_FL + 0x80000
STX = os.environ.get("STX", " sc1")
STF2 = os.environ.get("STF2", " sc1")
WS_PROF = 0xF000000
NSTAMP = 12
def stamp(k):
    return [I(f"s_memtime s[{72+2*k}:{73+2*k}]")] if PROF else []
def prof_begin():
    return ([I("s_memrealtime s[96:97]")] + [x for k in range(NSTAMP) for x in stamp(k)]) if PROF else []
def prof_end(kidx, S_WS, sW, nwaves, vtmp=0, drain=True):
    if not PROF: return []
    o = L((["s_waitcnt vmcnt(0)"] if drain else []) + ["s_memrealtime s[98:99]"]) + stamp(NSTAMP-1) + L(["s_waitcnt lgkmcnt(0)",
          f"s_mul_i32 s70, s2, {nwaves}", f"s_add_u32 s70, s70, s{sW}", "s_lshl_b32 s70, s70, 6",
          f"s_add_u32 s70, s70, {WS_PROF + kidx*0x40000}", f"v_mov_b32 v{vtmp+16}, 0"])
    regs = [96, 98] + [72+2*k for k in range(NSTAMP)] + [97, 99]
    for j, rg in enumerate(regs): o += L([f"v_mov_b32 v{vtmp+j}, s{rg}"])
    for j in range(4):
        o += L([f"buffer_store_dwordx4 {vr(vtmp+4*j)}, v{vtmp+16}, {sr(S_WS)}, s70 offen offset:{16*j}"])
    return o

def code_prefetch(label, here, wide, vdst, vaddr, sp, st, vtid=0):
    sh = 3 if wide else 2
    o = [f"s_getpc_b64 s[{sp}:{sp+1}]", f"{here}:"]
    if label is not None:
        o += [f"s_add_u32 s{sp}, s{sp}, {label}-{here}\n    s_addc_u32 s{sp+1}, s{sp+1}, 0"]
    o += [f"s_bfe_u32 s{st}, s2, 0x50003", f"s_lshl_b32 s{st}, s{st}, {8+sh}", f"v_lshlrev_b32 v{vaddr}, {sh}, v{vtid}", f"v_add_u32 v{vaddr}, s{st}, v{vaddr}",
          f"global_load_dwordx2 {vr(vdst, 2)}, v{vaddr}, s[{sp}:{sp+1}]" if wide else f"global_load_dword v{vdst}, v{vaddr}, s[{sp}:{sp+1}]"]
    return L(o)

def one_lane(ins, sW, lab, stmp):
    return L([f"s_cmp_lg_u32 s{sW}, 0\n    s_cbranch_scc1 {lab}\n    s_mov_b64 exec, 1"]) + ins + L(["s_mov_b64 exec, -1", f"{lab}:"])
def spin(lab, load, vdst, want, scnt):
    return L([f"s_mov_b32 s{scnt}, 0x40000", f"{lab}:", load, "s_waitcnt vmcnt(0)", f"v_cmp_ne_u32 vcc, {want}, v{vdst}", f"s_cbranch_vccz {lab}_ok",
              f"s_sleep {os.environ.get('SLP', '1')}", f"s_sub_u32 s{scnt}, s{scnt}, 1", f"s_cbranch_scc0 {lab}", f"{lab}_ok:"])

def red32(v, t):
    dpp = " row_mask:0xf bank_mask:0xf"
    return [f"v_add_f32_dpp v{v}, v{v}, v{v} quad_perm:[1,0,3,2]{dpp}",
            f"v_add_f32_dpp v{v}, v{v}, v{v} quad_perm:[2,3,0,1]{dpp}",
            f"v_add_f32_dpp v{v}, v{v}, v{v} row_half_mirror{dpp}",
            f"v_add_f32_dpp v{v}, v{v}, v{v} row_mirror{dpp}",
            f"v_mov_b32 v{t}, v{v}",
            f"v_permlane16_swap_b32 v{t}, v{v}",
            f"v_add_f32 v{v}, v{v}, v{t}"]

def w_dma_voff(vlane, vd0, vd1, pitch, t1, t2):
    return [f"v_bfe_u32 v{t1}, v{vlane}, 4, 1", f"v_lshlrev_b32 v{t1}, 1, v{t1}", f"v_and_b32 v{t2}, 7, v{vlane}",
            f"v_xor_b32 v{t1}, v{t1}, v{t2}", f"v_lshlrev_b32 v{t1}, 4, v{t1}",
            f"v_lshrrev_b32 v{t2}, 3, v{vlane}", f"v_mul_u32_u24 v{t2}, {pitch}, v{t2}",
            f"v_add_u32 v{vd0}, v{t1}, v{t2}", f"v_xor_b32 v{t1}, 64, v{t1}", f"v_add_u32 v{vd1}, v{t1}, v{t2}",
            f"v_add_u32 v{vd1}, {8*pitch-1024}, v{vd1}"]
def w_tr_addr(vlane, vT, t1, t2):
    o = [f"v_lshrrev_b32 v{t1}, 4, v{vlane}", f"v_lshlrev_b32 v{t1}, 10, v{t1}",
         f"v_bfe_u32 v{t2}, v{vlane}, 2, 2", f"v_lshl_add_u32 v{t1}, v{t2}, 7, v{t1}",
         f"v_and_b32 v{t2}, 3, v{vlane}", f"v_lshl_add_u32 v{t1}, v{t2}, 3, v{t1}",
         f"v_bfe_u32 v{t2}, v{vlane}, 3, 2",
         f"v_lshl_add_u32 v{vT}, v{t2}, 5, v{t1}"]
    for cb in range(1, 4): o += [f"v_xor_b32 v{vT+cb}, {cb*32}, v{vT}"]
    return o

def gemm_groups(G, g0, groups, WF, pre, nbuf=2):
    starts = []; g = g0
    for gr in groups:
        starts.append(g); g += len(gr['frags'])*len(gr['chains'])
    for n, gr in enumerate(groups):
        CH = len(gr['frags'])
        base = WF + (n % nbuf)*4*gr.get('bufsz', CH)
        tagid = gr.setdefault('id', (g0, n))
        reads = []
        for j, (va, off) in enumerate(gr['frags']):
            for t in range(2):
                reads.append(T(f"ds_read_b64_tr_b16 {vr(base+4*j+2*t,2)}, v{va} offset:{off+t*512}", ('wf', tagid, j)))
        if n == 0:
            pre.extend(gr.get('sync') or []); pre.extend(reads); gr['syncgap'] = None
        else:
            ps = starts[n-1]; plen = starts[n] - ps
            first = ps + 1
            for x in (gr.get('sync') or []): G.before(first, x)
            gr['syncgap'] = first
            span = max(len(reads), (plen*3)//4 - 1)
            for i, x in enumerate(reads): G.put(first + (i*span)//len(reads), x)
        gg = starts[n]
        gr['made'] = list(reads)
        for c, ch in enumerate(gr['chains']):
            for j in range(CH):
                G.mf[gg] = I(ch[j](base + 4*j)); gr['made'].append(G.mf[gg])
                if c == 0 and (j % 2 == 0):
                    gr['made'].append(G.before(gg, Wait(lg=[('wf', tagid, min(j+1, CH-1))] + (gr.get('lgwait', []) if j == 0 else []))))
                gg += 1
    return starts, g

def place_stream(G, groups, spacing, start=2):
    cur = start; last = start - 2
    for (e, ins) in groups:
        cur = max(cur, e + 2); last = max(last, e)
        pend = []
        for x in ins:
            if x.kind != 'vmem': pend.append(x); continue
            for j, y in enumerate(pend): G.nv[max(last, cur - len(pend) + j)].append(y)
            pend = []
            G.put(cur, x); last = cur; cur += spacing
    return cur

def spread(G, ins, g0, g1):
    for j, x in enumerate(ins):
        g = g0 + (j*(g1-g0))//len(ins)
        if x.kind == 'vmem' and not x.wr: G.put(g+1, x)
        else: G.put(g, x)

def mlp_slot(d, h, t):
    return [f"s_and_b32 s{t}, s{h}, 3", f"s_max_u32 s{t}, s{t}, 1", f"s_lshr_b32 s{d}, s{h}, 2", f"s_mul_i32 s{d}, s{d}, 3", f"s_add_u32 s{d}, s{d}, s{t}", f"s_sub_u32 s{d}, s{d}, 1"]
def KACC(db, mb):
    return ((96, 64)[db % 2] + (db//4)*64 + ((db//2) % 2)*16) + mb*4
def k_epilogue(js, sSc):
    o = []
    for mb in range(4):
        D0, D1 = KACC(2*js, mb), KACC(2*js+1, mb)
        o += L([f"v_mul_f32 v{D+r}, s{sSc}, v{D+r}" for D in (D0, D1) for r in range(4)])
        o += L([f"v_cvt_pk_bf16_f32 v{D0}, v{D0}, v{D0+1}", f"v_cvt_pk_bf16_f32 v{D0+1}, v{D0+2}, v{D0+3}",
                f"v_cvt_pk_bf16_f32 v{D0+2}, v{D1}, v{D1+1}", f"v_cvt_pk_bf16_f32 v{D0+3}, v{D1+2}, v{D1+3}"])
    return o
def gen_k1(early=None):
    S_CKV, S_WK, S_WV, S_WS, S_X = 4, 8, 12, 16, 20
    sW, sH, sR = 24, 25, 26
    sV = 52
    sAk, sWk = 40, 48
    sAm, sWm, sT, sT2, sFl, sSc, sLN, sH8 = 56, 57, 58, 59, 60, 61, 62, 63
    vL, vL16 = 2, 3
    vAD = 4; vAR = 8; vWD = 10; vT = 12; vTh = 16
    WF = 32; ACCK = 64; EP = 192; AR = 128
    DSL = (lambda l: l[1] - l[0])(eval(os.environ.get('SL', '[0,2,4,6,1,3,5,7]')))
    pre = prof_begin()
    pre += L(["s_load_dwordx4 s[28:31], s[0:1], 0", "s_load_dwordx4 s[32:35], s[0:1], 24", "s_load_dwordx2 s[36:37], s[0:1], 96",
              "s_load_dwordx2 s[54:55], s[0:1], 16", "s_load_dwordx4 s[64:67], s[0:1], 56", "s_load_dwordx2 s[68:69], s[0:1], 88",
              "s_cmp_ge_u32 s2, 256", "s_cbranch_scc1 K3_END" if FUSED else "s_cbranch_scc1 K1_END"])
    pre += code_prefetch(None, "K1_PC", False, 21, 24, 38, 27)
    pre += L(["v_lshrrev_b32 v1, 6, v0", f"v_and_b32 v{vL}, 63, v0", f"v_readfirstlane_b32 s{sW}, v1",
              f"v_lshlrev_b32 v{vL16}, 4, v{vL}",
              f"s_and_b32 s{sT}, s2, 7", f"s_lshl_b32 s{sT}, s{sT}, 2", f"s_bfe_u32 s{sT2}, s2, 0x20003",
              f"s_add_u32 s{sH}, s{sT}, s{sT2}", f"s_lshr_b32 s{sR}, s2, 5"])
    pre += L([f"v_lshrrev_b32 v24, 5, v{vL}", f"v_and_b32 v25, 31, v{vL}", "v_lshlrev_b32 v26, 10, v24",
              "v_lshl_add_u32 v26, v25, 5, v26",
              "v_lshlrev_b32 v27, 9, v25", "v_lshl_add_u32 v27, v24, 4, v27"])
    pre += L([f"v_lshrrev_b32 v24, 4, v{vL}", f"v_and_b32 v25, 7, v{vL}", "v_xor_b32 v24, v24, v25", "v_lshlrev_b32 v24, 4, v24",
              f"v_lshrrev_b32 v25, 3, v{vL}", f"v_lshl_add_u32 v{vAD}, v25, 10, v24",
              f"v_xor_b32 v{vAD+1}, 64, v{vAD}", f"v_add_u32 v{vAD+1}, {8192-1024}, v{vAD+1}",
              ])
    pre += L(w_dma_voff(vL, vWD, vWD+1, 8192, 24, 25))
    pre += L([f"s_lshl_b32 s{sT}, s{sR}, 18", f"s_lshl_b32 s{sT2}, s{sW}, 16", f"s_add_u32 s{sT}, s{sT}, s{sT2}",
              f"s_lshl_b32 s{sT2}, s{sW}, 14", f"s_add_u32 s{sT2}, s{sT2}, 98304"])
    for o in range(4):
        pre += L([f"s_add_u32 s27, s{sH}, {o}", "s_and_b32 s27, s27, 3", f"s_lshl_b32 s{sAk+o}, s27, 14", f"s_add_u32 s{sAk+o}, s{sAk+o}, s{sT}",
                  f"s_lshl_b32 s{sAk+4+o}, s27, 11", f"s_add_u32 s{sAk+4+o}, s{sAk+4+o}, s{sT2}"])
    pre += L([f"s_lshl_b32 s{sWk}, s{sW}, 17",
              f"s_lshr_b32 s27, s2, 3", "s_lshl_b32 s27, s27, 2", f"s_add_u32 s27, s27, s{sW}", f"s_and_b32 s{sWk+1}, s27, 63", f"s_lshl_b32 s{sWk+1}, s{sWk+1}, 13",
              "s_lshr_b32 s27, s27, 6", f"s_mul_i32 s27, s27, {DSL*64*8192}", f"s_add_u32 s{sWk+1}, s{sWk+1}, s27",
              f"s_and_b32 s27, s{sH}, 3", "s_lshl_b32 s27, s27, 8", f"s_sub_u32 s{sWk+1}, s{sWk+1}, s27"])
    pre += L([f"s_lshl_b32 s{sAm}, s{sW}, 14", f"s_add_u32 s{sAm}, s{sAm}, 98304", f"s_lshl_b32 s{sWm}, s{sW}, 11",
              f"s_lshl_b32 s{sH8}, s{sH}, 8", f"s_and_b32 s{sFl}, s{sR}, 1", f"s_lshl_b32 s{sFl}, s{sFl}, 7",
              f"s_lshl_b32 s{sT}, s2, 3", f"s_lshl_b32 s{sT2}, s{sW}, 1", f"s_add_u32 s{sT}, s{sT}, s{sT2}", f"s_lshl_b32 s{sLN}, s{sT}, 10"])
    pre += L(["s_waitcnt lgkmcnt(0)"]) + stamp(1)
    pre += L(srd(S_CKV, 30, 31, 0x200000))
    SL = eval(os.environ.get('SL', '[0,2,4,6,1,3,5,7]'))
    assert all(SL[2*k+1] - SL[2*k] == SL[1] - SL[0] for k in range(4))
    def dmaA(s, os_):
        o = []
        for k in os_:
            o += [I(f"s_add_u32 m0, s{sAk+4+k}, {(s % 2)*8192}"), I(f"s_add_u32 s{sT}, s{sAk+k}, {SL[s]*128}"),
                  T(f"buffer_load_dwordx4 v{vAD}, {sr(S_CKV)}, s{sT} offen lds", ('A', s)),
                  T(f"buffer_load_dwordx4 v{vAD+1}, {sr(S_CKV)}, s{sT} offen offset:1024 lds", ('A', s))]
        return o
    own = lambda s: dmaA(s, [0]); rest = lambda s: dmaA(s, [1, 2, 3])
    def pfW(sd, st):
        return L([f"s_add_u32 s{sT2}, s{sWk+1}, {SL[2*st]*64*8192}", f"buffer_load_dwordx4 v[20:23], v{vL16}, {sr(sd)}, s{sT2} offen" + (" nt" if st < int(os.environ.get("NTS", "2")) else "")])
    def dmaUT(sd, ksl, ch, ldsoff, tag):
        return [I(f"s_add_u32 m0, s{sWm}, {ldsoff}"), I(f"s_add_u32 s{sT2}, s{sWk}, {SL[ksl]*64*8192 + ch*128}"),
                T(f"buffer_load_dwordx4 v{vWD}, {sr(sd)}, s{sT2} offen lds", tag),
                T(f"buffer_load_dwordx4 v{vWD+1}, {sr(sd)}, s{sT2} offen offset:1024 lds", tag)]
    kslot = lambda p, u: ((p % 6)*2 + u)*8192
    def dmaWP(p): return [x for u in range(2) for x in dmaUT(S_WV if p % 4 < 2 else S_WK, (p//4)*2 + u, p % 2, kslot(p, u), ('W', p))]
    warm = L([f"buffer_load_dwordx4 v[20:23], v{vL16}, {sr(S_CKV)}, s{sLN} offen", f"buffer_load_dwordx4 v[20:23], v{vL16}, {sr(S_CKV)}, s{sLN} offen offset:1024"])
    lnld = [T(f"buffer_load_dwordx4 v[192:195], v26, {sr(S_X)}, s{sLN} offen", 'ln'),
            T(f"buffer_load_dwordx4 v[196:199], v26, {sr(S_X)}, s{sLN} offen offset:16", 'ln')]
    ORD = os.environ.get("ORD", "a")
    pfA1 = L([f"v_lshrrev_b32 v24, 3, v{vL}", "v_lshlrev_b32 v24, 10, v24", f"v_and_b32 v25, 7, v{vL}", "v_lshl_add_u32 v24, v25, 4, v24"])
    for sl in (2, 3):
        for k in range(2): pfA1 += L([f"s_add_u32 s{sT}, s{sAk}, {SL[sl]*128 + k*8192}", f"buffer_load_dwordx4 v[20:23], v24, {sr(S_CKV)}, s{sT} offen"])
    LNP = os.environ.get("LNP", "1") == "1"
    if LNP: pre += L(srd(S_X, 28, 29, 0x200000)) + lnld; lnld = []
    pre += (warm if ORD == "a" else []) + own(0) + own(1)
    pre += L(srd_off(S_WV, 34, 35, sH8, 0x400000))
    pre += pfW(S_WV, 0)
    pre += L(srd(S_X, 28, 29, 0x200000) + srd_off(S_WK, 32, 33, sH8, 0x400000))
    if ORD == "e": pre += pfW(S_WK, 0) + pfA1 + pfW(S_WV, 1) + pfW(S_WK, 1) + rest(0) + dmaWP(0) + rest(1)
    elif LNP: later = rest(0) + dmaWP(0) + rest(1) + pfW(S_WK, 0) + dmaWP(1)
    else: pre += rest(0) + dmaWP(0) + rest(1) + pfW(S_WK, 0)
    if not LNP: pre += dmaWP(1) + lnld + stamp(2)
    if os.environ.get("K1DIAG"):
        for k, n in enumerate((27, 24, 23, 17, 13, 7, 6, 2, 0)):
            pre += L([f"s_waitcnt vmcnt({n})"]) + stamp(3+k if k < 8 else 10)
    pre += L(srd(S_WS, 36, 37, WS_SIZE))
    pre += L(w_tr_addr(vL, vT, 24, 25)) + L([f"v_add_u32 v{vTh+c}, 0x10000, v{vT+c}" for c in range(4)])
    pre += L([f"v_and_b32 v24, 15, v{vL}", f"v_bfe_u32 v25, v{vL}, 1, 3", f"v_lshrrev_b32 v1, 4, v{vL}", "v_xor_b32 v25, v25, v1",
              "v_lshlrev_b32 v25, 4, v25", "v_lshl_add_u32 v24, v24, 7, v25", f"v_add_u32 v{vAR}, s{sAm}, v24",
              f"v_xor_b32 v{vAR+1}, 64, v{vAR}"])
    svs = L([f"s_lshl_b32 s{sV}, s{sH}, 19", f"s_lshl_b32 s27, s{sR}, 16", f"s_add_u32 s{sV}, s{sV}, s27", f"s_lshl_b32 s27, s{sW}, 14", f"s_add_u32 s{sV}, s{sV}, s27",
             f"s_add_u32 s{sV}, s{sV}, {WS_VF}"] + [f"s_add_u32 s{sV+j}, s{sV}, {j*4096}" for j in range(1, 4)])
    pre += L([f"s_mov_b32 s{sSc}, {f2u(SCALE):#x}"])
    X = 208; R0 = 192; m, t, d, q = 200, 201, 202, 203
    ln = []
    for j in range(8):
        ln += L([f"v_lshlrev_b32 v{X+2*j}, 16, v{R0+j}", f"v_and_b32 v{X+2*j+1}, 0xffff0000, v{R0+j}"])
    ln += L([f"v_add_f32 v{m}, v{X}, v{X+1}"] + [f"v_add_f32 v{m}, v{m}, v{X+j}" for j in range(2, 16)])
    ln += L(red32(m, t))
    ln += L([f"v_mul_f32 v{m}, 0x3b000000, v{m}"])
    ln += L([f"v_sub_f32 v{d}, v{X}, v{m}", f"v_mul_f32 v{q}, v{d}, v{d}"])
    for j in range(1, 16):
        ln += L([f"v_sub_f32 v{d}, v{X+j}, v{m}", f"v_fmac_f32 v{q}, v{d}, v{d}"])
    ln += L(red32(q, t))
    ln += L([f"v_mul_f32 v{q}, 0x3b000000, v{q}", f"v_cvt_pk_bf16_f32 v{m}, v{m}, v{q}",
             f"v_and_b32 v{q}, 0xffff0000, v{m}", f"v_lshlrev_b32 v{m}, 16, v{m}",
             f"v_add_f32 v{q}, {f2u(1e-5):#x}, v{q}", f"v_cvt_pk_bf16_f32 v{q}, v{q}, v{q}", f"v_lshlrev_b32 v{q}, 16, v{q}",
             f"v_sqrt_f32 v{q}, v{q}", f"v_cvt_pk_bf16_f32 v{q}, v{q}, v{q}", f"v_lshlrev_b32 v{q}, 16, v{q}",
             f"v_rcp_f32 v{q}, v{q}"])
    for j in range(8):
        a, b = X+2*j, X+2*j+1
        ln += L([f"v_sub_f32 v{a}, v{a}, v{m}", f"v_sub_f32 v{b}, v{b}, v{m}", f"v_cvt_pk_bf16_f32 v{a}, v{a}, v{b}",
                 f"v_and_b32 v{b}, 0xffff0000, v{a}", f"v_lshlrev_b32 v{a}, 16, v{a}",
                 f"v_mul_f32 v{a}, v{a}, v{q}", f"v_mul_f32 v{b}, v{b}, v{q}", f"v_cvt_pk_bf16_f32 v{R0+j}, v{a}, v{b}"])
    ln2 = []
    LX = kslot(5, 0)
    lnw = L([f"s_lshl_b32 s50, s{sW}, 11", f"s_add_u32 s50, s50, {LX}", "v_add_u32 v26, s50, v26",
             f"ds_write_b128 v26, {vr(R0)}", f"ds_write_b128 v26, {vr(R0+4)} offset:16",
             f"v_and_b32 v24, 7, v{vL}", f"v_lshrrev_b32 v25, 3, v{vL}", "v_lshlrev_b32 v26, 10, v24", "v_lshl_add_u32 v26, v25, 4, v26",
             f"s_lshl_b32 s50, s{sW}, 8", f"s_add_u32 s50, s50, {LX}", "v_add_u32 v26, s50, v26",
             "v_lshlrev_b32 v27, 8, v25", "v_lshl_add_u32 v27, v24, 4, v27"])
    lnw[4].tag = 'lnw'
    ln2 += [T(f"ds_read_b128 {vr(R0)}, v26", 'lnr'), T(f"ds_read_b128 {vr(R0+4)}, v26 offset:128", 'lnr')]
    ln2 += L([f"s_lshr_b32 s{sT}, s2, 1", f"s_lshl_b32 s{sT}, s{sT}, 14", f"s_and_b32 s{sT2}, s2, 1", f"s_lshl_b32 s{sT2}, s{sT2}, 7",
             f"s_add_u32 s{sT}, s{sT}, s{sT2}", f"s_lshl_b32 s{sT2}, s{sW}, 12", f"s_add_u32 s{sT}, s{sT}, s{sT2}"])
    ln2 += [Wait(lg='lnr')]
    ln2 += L([f"buffer_store_dwordx4 {vr(R0)}, v27, {sr(S_WS)}, s{sT} offen offset:{WS_XN}{STX}",
              f"buffer_store_dwordx4 {vr(R0+4)}, v27, {sr(S_WS)}, s{sT} offen offset:{WS_XN+2048}{STX}"])
    n_before = len(ln2)
    ln2 += L([f"s_lshl_b32 s{sT}, s{sH}, 7", f"s_lshl_b32 s{sT2}, s{sR}, 2", f"s_add_u32 s{sT}, s{sT}, s{sT2}", f"s_add_u32 s27, s{sT}, {FL_KV}", "v_writelane_b32 v24, s27, 2",
              f"s_lshl_b32 s{sT}, s{sR}, 7", f"s_lshl_b32 s{sT2}, s{sH}, 2", f"s_add_u32 s27, s{sT}, s{sT2}", f"s_add_u32 s27, s27, {FL_AC}", "v_writelane_b32 v24, s27, 3",
              f"s_sub_u32 s27, s{sT2}, s{sT}", f"s_add_u32 s27, s27, {FL_AC + 15*128}", "v_writelane_b32 v24, s27, 4",
              f"s_lshl_b32 s27, s{sW}, 7", f"s_add_u32 s{sT2}, s{sT2}, s27", f"s_lshl_b32 s{sT2}, s{sT2}, 5", f"s_lshl_b32 s{sT}, s{sT}, 7",
              f"s_add_u32 s27, s{sT}, s{sT2}", f"s_add_u32 s27, s27, {FL_CX}", "v_writelane_b32 v24, s27, 0",
              f"s_sub_u32 s27, s{sT2}, s{sT}", f"s_add_u32 s27, s27, {FL_CX + 15*16384}", "v_writelane_b32 v24, s27, 1",
              "v_mov_b32 v25, 0",
              T(f"s_cmp_eq_u32 s{sW}, 0\n    s_cselect_b64 exec, 31, 3", None),
              ])
    ln2[-1] = I(ln2[-1].text + f"\n    buffer_store_dword v25, v24, {sr(S_WS)}, 0 offen sc1\n    s_mov_b64 exec, -1", 'lnst'); ln2[-1].kind = 'vmem'
    ln2 += L([
              "s_mov_b32 s70, 256", "s_mov_b32 s71, 0x00020000", "s_bfe_u32 s60, s2, 0x10003", "s_lshl_b32 s60, s60, 7", "v_mov_b32 v26, 1"])
    zf = ln2[n_before:]
    ln2 = [x if isinstance(x, Wait) or x.tag == 'lnst' else I(x.text.replace(f's{sT2}', 's51').replace(f's{sT}', 's50'), x.tag) for x in ln2]
    kacc = lambda db, mb: KACC(db, mb)
    afr = lambda st, mb, j: ar(AR + (st % 2)*64 + (mb*4 + j)*4)
    def readA(s):
        return [T(f"ds_read_b128 {afr(s//2, mb, (s % 2)*2 + k)}, v{vAR+k} offset:{(s % 2)*8192 + mb*2048}", ('Ar', s))
                for mb in range(4) for k in range(2)]
    if LNP:
        first, later = later[:12], later[12:]
        pre += first + [Wait(vm='ln')]
        step = int(os.environ.get("LNI", "9"))
        for n, x in enumerate(ln + lnw):
            pre.append(x)
            if n % step == step - 1:
                while later and later[0].kind != 'vmem': pre.append(later.pop(0))
                if later: pre.append(later.pop(0))
        pre += later + stamp(4)
    pre += [Wait(vm=('A', 0))] + readA(0) + [Wait(vm=('A', 1))] + readA(1) + (stamp(5) if not os.environ.get('K1DIAG') else [])
    groups = []
    for p in range(16):
        st, cq = p//4, p % 4
        for cb in range(4):
            db = (cq % 2)*4 + cb
            fr = []
            for j in range(4):
                o = kslot(p, j//2) + (j % 2)*4096
                fr.append(((vT, vTh)[o >> 16] + cb, o & 0xffff))
            chains = []
            for mb in range(4):
                if cq >= 2:
                    D = vr(kacc(db, mb))
                    chains.append([(lambda f, D=D, a=afr(st, mb, j), z=(st == 0 and j == 0): f"{MF} {D}, {vr(f)}, {a}, {'0' if z else D}") for j in range(4)])
                else:
                    D = ar((db*4 + mb)*4)
                    chains.append([(lambda f, D=D, a=afr(st, mb, j), z=(st == 0 and j == 0): f"{MF} {D}, {a}, {vr(f)}, {'0' if z else D}") for j in range(4)])
            gr = dict(frags=fr, chains=chains)
            if cb == 0:
                gr['sync'] = [Wait(vm=('W', p)), I("s_barrier")]; gr['pair'] = p
                if cq == 0: gr['lgwait'] = [('Ar', 2*st+1)]
            groups.append(gr)
    G = Gaps(1024)
    starts, gend = gemm_groups(G, 0, groups, WF, pre)
    assert gend == 1024
    bar = {gr['pair']: gr['syncgap'] for gr in groups if 'pair' in gr}
    WL = int(os.environ.get('WL', '3'))
    ev = [(4*k, dmaWP(2+k)) for k in range(WL-1)]
    for st in range(3):
        g = 256*st
        ev += [(g, own(2*st+2) + own(2*st+3))]
        if st == 0 and ORD != 'e': ev += [(g + 10, pfW(S_WV, 1) + pfW(S_WK, 1))]
        if st < 2: ev += [(g + int(os.environ.get('PW', '150')), pfW(S_WV, st+2) + pfW(S_WK, st+2))]
        ev += [(g + 70, rest(2*st+2)), (g + 125, rest(2*st+3))]
        for k in range(2):
            gr_ = g + 196 + 26*k
            G.before(gr_, Wait(vm=('A', 2*st+2+k)))
            for j, x in enumerate(readA(2*st+2+k)): G.put(gr_ + 2*j, x)
    for p in range(1, 16-WL): ev += [(bar[p] if p + WL != 5 else max(bar[p], bar[3]), dmaWP(p+WL))]
    ev.sort(key=lambda e: e[0])
    end = place_stream(G, ev, int(os.environ.get("SP", "4")), start=2)
    print("K1 dma stream ends at gap", end)
    if LNP:
        k = [n for n, x in enumerate(pre) if x.op == 's_barrier'][0]
        pre.insert(k, Wait(lg='lnw'))
        for j, x in enumerate(ln2[:2]): G.nv[1 + j].append(x)
        LG = int(os.environ.get("LNG", "20"))
        for j, x in enumerate(ln2[2:]): G.nv[LG + j].append(x)
    else:
        G.before(3, Wait(vm='ln'))
        spread(G, ln, 3, 92)
        for j, x in enumerate(lnw): G.va[92 + j].append(x)
        G.pre[bar[2]].insert(0, Wait(lg='lnw'))
        for j, x in enumerate(ln2): G.nv[bar[2] + j].append(x)
    if FUSED:
        SB = int(os.environ.get('LNSB', '4')) if LNP else 4
        for x in one_lane([T("buffer_atomic_add v26, v25, s[68:71], s60 offen sc1", 'NOCOUNT')], sW, "K1_SIG", sT): G.nv[bar[SB]].append(x)
        G.pre[bar[SB]].insert(0, Wait(vm='lnst'))
        for j, x in enumerate(svs): G.nv[600 + j].append(x)
        EG = int(os.environ.get("EG", "860"))
        G.nv[EG - 64].append(I(f"v_lshrrev_b32 v25, 5, v{vL}")); G.nv[EG - 63].append(I("v_lshlrev_b32 v25, 7, v25"))
        G.put(EG - 60, T("buffer_load_dword v27, v25, s[68:71], 0 offen sc1", 'lnc'))
        for x in [Wait(vm='lnc')] + L(["s_movk_i32 s60, 0x80", "v_cmp_gt_u32 vcc, s60, v27", "s_cbranch_vccnz K1_LNSPIN_E", "K1_LNOK:"]): G.before(EG, x)
        sp = spin("K1_LNSPIN", "buffer_load_dword v27, v25, s[68:71], 0 offen sc1", 27, "s60", 59)
        lnstub = L(["K1_LNSPIN_E:"]) + [I(x.text.replace("v_cmp_ne_u32", "v_cmp_gt_u32")) for x in sp] + L(["s_branch K1_LNOK"])
        for j, x in enumerate(early['setup']): G.nv[776 + (j*(EG-778))//len(early['setup'])].append(x)
        place_stream(G, [(EG, early['regloads']), (bar[15], early['dma'])], int(os.environ.get("ESP", "5")), start=EG)
        XG = int(os.environ.get("XG", "0"))
        if XG:
            G.put(XG - 40, T("buffer_load_dword v27, v25, s[68:71], 0 offen sc1", 'lnc0'))
            xp = [Wait(vm='lnc0')] + L(["v_readfirstlane_b32 s52, v27", "s_bfe_u32 s53, s2, 0x50003", "s_lshl_b32 s53, s53, 16", f"s_lshl_b32 s54, s{sW}, 14", "s_add_u32 s53, s53, s54",
                                        "s_cmp_eq_u32 s52, 0x100\n    s_cselect_b32 s53, s53, 0x10000000"])
            for k in range(16):
                if k and k % 4 == 0: xp += L(["s_add_u32 s53, s53, 4096"])
                xp += L([f"buffer_load_dwordx4 v[20:23], v{vL16}, {sr(S_WS)}, s53 offen offset:{(k % 4)*1024} sc1"])
            g = XG
            for x in xp:
                G.nv[g].append(x); g += 8 if x.kind == 'vmem' else 1
    pf = L(srd_off(S_X, 54, 55, sH8, 0x400000) + mlp_slot(sT, sH, 27) + [f"s_lshl_b32 s{sT}, s{sT}, 7"] + srd_off(28, 64, 65, sT, 512*2752))
    pf += L([
             f"v_lshrrev_b32 v26, 3, v{vL}", "v_mul_u32_u24 v26, 2752, v26", f"v_and_b32 v1, 7, v{vL}", "v_lshl_add_u32 v26, v1, 4, v26",
             f"s_lshl_b32 s{sT}, s{sR}, 2", f"s_add_u32 s{sT}, s{sT}, s{sW}", f"s_mul_i32 s{sT2}, s{sT}, {16*2752}",
             f"s_lshr_b32 s{sT}, s2, 3", f"s_lshl_b32 s{sT}, s{sT}, 2", f"s_add_u32 s{sT}, s{sT}, s{sW}", f"s_lshl_b32 s{sT}, s{sT}, 15",
             f"s_and_b32 s27, s{sH}, 3", "s_lshl_b32 s27, s27, 8", f"s_sub_u32 s{sT}, s{sT}, s27"])
    for k in range(4):
        pf += L([f"buffer_load_dwordx4 v[20:23], v{vL16}, {sr(S_X)}, s{sT} offen", f"s_add_u32 s{sT}, s{sT}, 8192"])
    for k in range(2):
        pf += L([f"buffer_load_dwordx4 v[20:23], v26, {sr(28)}, s{sT2} offen", f"s_add_u32 s{sT2}, s{sT2}, {8*2752}"])
    pf = [I(x.text.replace(f"s{sT2}", "s53").replace(f"s{sT}", "s52")) for x in pf]
    pf += code_prefetch("K2_BEGIN" if FUSED else "attn_kernel", "K1_PC2", True, 20, 24, 38, 27)
    g = int(os.environ.get('PFG', '420'))
    for x in pf:
        G.nv[g].append(x); g += 4 if x.kind == 'vmem' else (0 if x.kind == 'label' or x.op == 's_getpc_b64' else 1)
    assert g < 1000
    for db in range(8):
        ins = []
        for ks in range(2):
            t = EP + ((db*2 + ks) % 8)*8
            ins += L([f"v_accvgpr_read_b32 v{t+k}, a{(db*4 + 2*ks)*4 + k}" for k in range(8)])
            ins += L([f"v_cvt_pk_bf16_f32 v{t+k}, v{t+2*k}, v{t+2*k+1}" for k in range(4)])
            ins += L([f"buffer_store_dwordx4 {vr(t)}, v{vL16}, {sr(S_WS)}, s{sV+db//2} offen offset:{(db%2)*2048 + ks*1024}{STF}"])
        spread(G, ins, 790 + 28*db, 790 + 28*db + 27)
    spread(G, k_epilogue(0, sSc) + k_epilogue(1, sSc), 964, 1022)
    tail = []
    assert FUSED
    if os.environ.get("K1FINE"):
        seq = list(pre)
        for p in range(8): seq += stamp(2+p) + G.linear(128*p, 128*p+128)
        seq += stamp(10) + tail + prof_end(0, S_WS, 28, 4, vtmp=32, drain=False)
    else:
        if os.environ.get("K1DIAG"): stamp_ = lambda k: []
        else: stamp_ = stamp
        seq = pre + stamp_(6) + G.linear(0, 64) + stamp_(7) + G.linear(64, 512) + stamp_(8) + G.linear(512, 1024) + stamp_(9) + tail + stamp_(10) + prof_end(0, S_WS, 28, 4, vtmp=32, drain=False)
    if FUSED:
        seq += L(["s_barrier"])
        if os.environ.get("PFD", "0") == "1":
            k = 0
            for n, x in enumerate(seq):
                if x.text.startswith("buffer_load_dwordx4 v[20:23]"):
                    seq[n] = I(x.text.replace("v[20:23]", vr(224 + 4*(k % 8))), x.tag); k += 1
        return seq, lnstub
    seq = resolve_waits(seq)
    seq, n = fix_hazards(seq)
    print("K1: instrs", len(seq), "nops", n)
    return seq + L(["K1_END:", "s_endpgm"])

DOC = """; One persistent launch, 256 workgroups x 4 waves (one wave per SIMD, 512 registers, 160 KB LDS); generated by the author's scheduler script.
; d_debug[0] and [32] count the workgroups that have done so.  Every wait loop is bounded."""
def emit(kernels, path):
    hdr = open('parallel_sum__compressed_kv_cla__dense_activation_mish__prompt.s.ref').read().split('\n')
    out = [l for l in hdr[:14]]
    for (name, grid, block, lds, seq, nv, acc) in kernels:
        if len(kernels) == 1 and os.environ.get("PLAIN"): out.append(f"; @launch grid=({grid},1,1) block=({block},1,1) lds={lds}")
        else: out.append(f"; @launch kernel={name} grid=({grid},1,1) block=({block},1,1) lds={lds}")
    out += ['.amdgcn_target "amdgcn-amd-amdhsa--gfx950"', DOC, ".text"]
    for (name, grid, block, lds, seq, nv, acc) in kernels:
        out += [f".globl {name}", ".p2align 8", f".type {name},@function", f"{name}:"]
        out += [("" if i.kind == 'label' else "    ") + i.text for i in seq]
    out.append(".fill 8192, 4, 0xbf800000")
    out.append('.section .rodata,"a"')
    for (name, grid, block, lds, seq, nv, acc) in kernels:
        out += [".p2align 6", f".amdhsa_kernel {name}", f"  .amdhsa_next_free_vgpr {nv}", "  .amdhsa_next_free_sgpr 102",
                f"  .amdhsa_accum_offset {acc}", "  .amdhsa_group_segment_fixed_size 0", "  .amdhsa_kernarg_size 104",
                "  .amdhsa_user_sgpr_count 2", "  .amdhsa_user_sgpr_kernarg_segment_ptr 1",
                "  .amdhsa_system_sgpr_workgroup_id_x 1", ".end_amdhsa_kernel"]
    open(path, "w").write("\n".join(out) + "\n")

if __name__ == "__main__":
    ks = [("kvproj_kernel", 256, 256, 163840, gen_k1(), 512, 256)]
    emit(ks, sys.argv[1] if len(sys.argv) > 1 else "k.s")
```
